```python
import torch

def _softmax(x, axis=-1):
    return torch.softmax(x, dim=axis)

def _gelu(x):
    return torch.nn.functional.gelu(x, approximate='tanh')

def _silu(x):
    return torch.nn.functional.silu(x)

def _sigmoid(x):
    return torch.sigmoid(x)

def _layernorm(x, axis=-1, eps=1e-05):
    m = x.mean(dim=axis, keepdim=True)
    v = x.var(dim=axis, keepdim=True, unbiased=False)
    return (x - m) / torch.sqrt(v + eps)

def _scatter_add(tgt, idx, src, axis=0):
    return tgt.clone().index_add_(axis, idx, src)

def _segment_sum(src, seg, n):
    out = torch.zeros((n,) + src.shape[1:], dtype=src.dtype)
    return out.index_add_(0, seg, src)

def _pad(x, pw):
    flat = tuple((v for pair in reversed(pw) for v in pair))
    return torch.nn.functional.pad(x, flat)
kernel_name = 'adaLN_cond__linear_kernel_hedgehog__glu_gated_swiglu__prompt'

def setup_inputs():

    _w = lambda a: (lambda t: t.to(torch.bfloat16) if t.is_floating_point() else t)(torch.as_tensor(a))

    def _A_setup():
        B, S, D, H = (1, 2048, 640, 32)
        Dh = D // H
        return {'x': _w((lambda *s: torch.randn(*s, dtype=torch.bfloat16) * 0.05)(B, S, D)), 'wqkv': _w((lambda *s: torch.randn(*s, dtype=torch.bfloat16) * 0.4)(D, 3 * D)), 'w_phi': _w((lambda *s: torch.randn(*s, dtype=torch.bfloat16) * 0.4)(H, Dh, Dh) * Dh ** (-0.5)), 'wo': _w((lambda *s: torch.randn(*s, dtype=torch.bfloat16) * 0.05)(D, D))}
    _A_in = _A_setup()

    def _B_setup():
        B, S, D, F = (1, 2048, 640, 1728)
        return {'x': _w((lambda *s: torch.randn(*s, dtype=torch.bfloat16) * 0.05)(B, S, D)), 'w1': _w((lambda *s: torch.randn(*s, dtype=torch.bfloat16) * 0.8)(D, F) * (2.0 / D) ** 0.5), 'w3': _w((lambda *s: torch.randn(*s, dtype=torch.bfloat16) * 0.8)(D, F) * (2.0 / D) ** 0.5), 'w2': _w((lambda *s: torch.randn(*s, dtype=torch.bfloat16) * 0.8)(F, D) * (2.0 / F) ** 0.5)}
    _B_in = _B_setup()
    return {'A_x': _A_in['x'], 'A_wqkv': _A_in['wqkv'], 'A_w_phi': _A_in['w_phi'], 'A_wo': _A_in['wo'], 'B_x': _B_in['x'], 'B_w1': _B_in['w1'], 'B_w3': _B_in['w3'], 'B_w2': _B_in['w2'], 'c': _w((lambda *s: torch.randn(*s, dtype=torch.bfloat16) * 0.2)(1, 640) * 8.0), 'w_mod': _w((lambda *s: torch.randn(*s, dtype=torch.bfloat16) * 0.2)(640, 6 * 640) * 640 ** (-0.5) * 8.0)}

def reference(A_x, A_wqkv, A_w_phi, A_wo, B_x, B_w1, B_w3, B_w2, c, w_mod):

    def _A_ref(x, wqkv, w_phi, wo):
        B, S, D = x.shape
        H = 32
        Dh = D // H
        qkv = (lambda x, *d: x.permute(*d))((x @ wqkv).reshape(B, S, 3, H, Dh), 2, 0, 3, 1, 4)
        q, k, v = (qkv[0], qkv[1], qkv[2])
        pq = torch.einsum('bhsd,hdf->bhsf', q, w_phi)
        pk = torch.einsum('bhsd,hdf->bhsf', k, w_phi)
        phi_q = torch.concatenate([_softmax(pq, axis=-1), _softmax(-pq, axis=-1)], axis=-1)
        phi_k = torch.concatenate([_softmax(pk, axis=-1), _softmax(-pk, axis=-1)], axis=-1)
        kv = torch.einsum('bhsf,bhsd->bhfd', phi_k, v)
        z = torch.einsum('bhsf->bhf', phi_k)
        num = torch.einsum('bhqf,bhfd->bhqd', phi_q, kv)
        den = torch.einsum('bhqf,bhf->bhq', phi_q, z)[..., None] + 1e-06
        o = num / den
        return (lambda x, *d: x.permute(*d))(o, 0, 2, 1, 3).reshape(B, S, D) @ wo

    def _B_ref(x, w1, w3, w2):
        gate = torch.einsum('bsd,df->bsf', x, w1)
        up = torch.einsum('bsd,df->bsf', x, w3)
        h = _silu(gate) * up
        out = torch.einsum('bsf,fd->bsd', h, w2)
        return out
    x = A_x
    mod = (_silu(c) @ w_mod).reshape(c.shape[0], 6, 1, -1)
    sa, ca, ga, sb, cb, gb = (mod[:, 0].clone(), mod[:, 1].clone(), mod[:, 2].clone(), mod[:, 3].clone(), mod[:, 4].clone(), mod[:, 5].clone())
    h = _layernorm(x, axis=-1) * (1 + ca) + sa
    x = x + ga * _A_ref(h, A_wqkv, A_w_phi, A_wo)
    h = _layernorm(x, axis=-1) * (1 + cb) + sb
    x = x + gb * _B_ref(h, B_w1, B_w3, B_w2)
    return x
```

```python
import re

TRANS = ('v_exp_f32', 'v_log_f32', 'v_rcp_f32', 'v_rsq_f32', 'v_sqrt_f32', 'v_sin_f32', 'v_cos_f32',
         'v_rcp_iflag_f32')


def vr(a, n=1):
    return f'v{a}' if n == 1 else f'v[{a}:{a + n - 1}]'


def ar(a, n=1):
    return f'a{a}' if n == 1 else f'a[{a}:{a + n - 1}]'


def sr(a, n=1):
    return f's{a}' if n == 1 else f's[{a}:{a + n - 1}]'


_REG = re.compile(r'^-?(?:abs\(|\|)?([vas])(?:(\d+)|\[(\d+):(\d+)\])\)?\|?$')


def regs_of(op):
    op = op.strip()
    if op in ('vcc',):
        return {('s', 'vcc')}
    if op in ('vcc_lo', 'vcc_hi'):
        return {('s', 'vcc')}
    if op in ('exec', 'exec_lo', 'exec_hi'):
        return {('s', 'exec')}
    if op == 'm0':
        return {('s', 'm0')}
    m = _REG.match(op)
    if not m:
        return set()
    k = m.group(1)
    if m.group(2) is not None:
        return {(k, int(m.group(2)))}
    return {(k, i) for i in range(int(m.group(3)), int(m.group(4)) + 1)}


class Ins:
    def __init__(self, text):
        self.text = text
        t = text.split(';')[0].strip()
        self.label = t.endswith(':')
        self.directive = t.startswith('.')
        self.op = t.split()[0] if t else ''
        rest = t[len(self.op):].strip()
        parts = [p.strip() for p in re.split(r',(?![^\[]*\])', rest)] if rest else []
        self.mods = ''
        if parts:
            last = parts[-1].split()
            if last:
                parts[-1] = last[0]
                self.mods = ' '.join(last[1:])
        self.ops = parts
        self.defs = set()
        self.uses = set()
        op = self.op
        R = [regs_of(p) for p in parts]
        self.kind = 'other'
        self.srcC = set()
        self.srcAB = set()
        self.sdata = set()
        if self.label or self.directive or not op:
            return
        if op.startswith('v_mfma'):
            self.kind = 'mfma'
            self.passes = 8 if '32x32' in op else 4
            self.defs = R[0]
            self.srcAB = R[1] | R[2]
            self.srcC = R[3]
            self.uses = self.srcAB | self.srcC
        elif op.startswith('v_'):
            self.kind = 'valu'
            base = op.replace('_e32', '').replace('_e64', '').replace('_dpp', '').replace('_sdwa', '')
            self.base = base
            if base.startswith('v_cmp'):
                self.defs = R[0]
                self.uses = set().union(*R[1:])
            elif base in ('v_permlane32_swap_b32', 'v_permlane16_swap_b32', 'v_swap_b32'):
                self.defs = R[0] | R[1]
                self.uses = R[0] | R[1]
            elif base in ('v_add_co_u32', 'v_sub_co_u32', 'v_addc_co_u32', 'v_subb_co_u32', 'v_div_scale_f32',
                          'v_mad_u64_u32'):
                self.defs = R[0] | R[1]
                self.uses = set().union(*R[2:])
            elif base == 'v_nop':
                pass
            else:
                self.defs = R[0]
                self.uses = set().union(*R[1:]) if len(R) > 1 else set()
                if base in ('v_fmac_f32', 'v_dot2c_f32_bf16', 'v_writelane_b32') or 'dpp' in op or 'quad_perm' in self.mods \
                        or 'row_' in self.mods:
                    self.uses |= R[0]
                if base == 'v_div_fmas_f32':
                    self.uses |= {('s', 'vcc')}
            self.trans = base in TRANS
            self.dot = base.startswith('v_dot')
            self.dpp = 'dpp' in op or 'quad_perm' in self.mods or 'row_' in self.mods
            self.permlane = base.startswith('v_permlane')
            self.readlane = base in ('v_readfirstlane_b32', 'v_readlane_b32')
        elif op.startswith('ds_'):
            self.kind = 'ds'
            if op.startswith('ds_read') or op.startswith('ds_bpermute') or op.startswith('ds_permute') \
                    or op.startswith('ds_swizzle'):
                self.defs = R[0]
                self.uses = set().union(*R[1:])
            else:
                self.uses = set().union(*R)
        elif op.startswith('buffer_') or op.startswith('global_'):
            self.kind = 'vmem'
            lds = ' lds' in (' ' + self.mods) or 'load_lds' in op
            self.lds = lds
            if 'load' in op and not lds:
                self.defs = R[0]
                self.uses = set().union(*R[1:])
            elif lds:
                self.uses = set().union(*R) | {('s', 'm0')}
            else:
                self.uses = set().union(*R)
                if 'x3' in op or 'x4' in op:
                    self.sdata = R[0] if op.startswith('buffer_') else R[1]
        elif op.startswith('s_'):
            self.kind = 'salu'
            if op in ('s_waitcnt', 's_barrier', 's_nop', 's_endpgm', 's_branch', 's_sleep', 's_setprio') \
                    or op.startswith('s_cbranch'):
                self.kind = 'ctl'
            elif op.startswith('s_cmp') or op.startswith('s_bitcmp'):
                self.uses = set().union(*R)
            else:
                self.defs = R[0] if R else set()
                self.uses = set().union(*R[1:]) if len(R) > 1 else set()
                if 'saveexec' in op:
                    self.defs = self.defs | {('s', 'exec')}

    def states(self):
        if self.label or self.directive or not self.op:
            return 0
        if self.op == 's_nop':
            return int(self.ops[0], 0) + 1
        return 1


def _vec(s):
    return {r for r in s if r[0] in 'va'}


def _sca(s):
    return {r for r in s if r[0] == 's'}


def required_gap(p, c):
    need = 0
    if p.kind == 'valu':
        pv, ps = _vec(p.defs), _sca(p.defs)
        if c.kind == 'mfma' and pv & c.uses:
            need = max(need, 3 if p.dot else 2)
        if c.kind == 'valu':
            if pv & c.uses:
                if p.trans and not c.trans:
                    need = max(need, 1)
                if c.permlane or c.dpp:
                    need = max(need, 2)
                if c.readlane:
                    need = max(need, 1)
            if p.dot and pv & (c.uses | c.defs):
                same_acc = c.dot and c.base == p.base and len(c.ops) >= 3 and \
                    not (pv & (regs_of(c.ops[1]) | regs_of(c.ops[2])))
                if not same_acc:
                    need = max(need, 3)
            if ps & c.uses:
                need = max(need, 4 if c.base in ('v_readlane_b32', 'v_writelane_b32', 'v_div_fmas_f32') else 2)
        if p.dot and c.kind in ('ds', 'vmem') and pv & c.uses:
            need = max(need, 3)
        if c.kind == 'vmem' and ps & c.uses:
            need = max(need, 5)
        if c.kind in ('salu',) and ps & c.uses:
            need = max(need, 1)
    elif p.kind == 'mfma':
        big = p.passes == 8
        if c.kind == 'mfma':
            if p.defs & c.srcAB:
                need = max(need, 12 if big else 8)
            if p.defs & c.srcC and not (p.defs == c.srcC and p.passes == c.passes):
                need = max(need, 10 if big else 6)
            if p.defs & c.defs and not (p.defs == c.srcC and p.passes == c.passes):
                need = max(need, 10 if big else 6)
        elif c.kind in ('valu', 'ds', 'vmem'):
            if p.defs & (c.uses | c.defs):
                need = max(need, 12 if big else 8)
            if c.kind == 'valu' and p.srcC & c.defs:
                need = max(need, 7 if big else 3)
    elif p.kind == 'vmem':
        if p.sdata & c.defs:
            need = max(need, 2)
    elif p.kind == 'salu':
        if ('s', 'm0') in p.defs and c.kind == 'vmem' and c.lds:
            need = max(need, 1)
    return need


def pad_hazards(lines):
    ins = [Ins(l) for l in lines]
    out = []
    branch_hist = {}
    WINDOW = 22

    def history():
        h = []
        d = 0
        for q in reversed(out):
            if q.op in ('s_branch', 's_endpgm'):
                break
            s = q.states()
            if s:
                h.append((q, d))
                d += s
            if q.label and q.op[:-1] in branch_hist:
                for bh in branch_hist[q.op[:-1]]:
                    h.extend((x, dd + d) for x, dd in bh)
            if d >= WINDOW:
                break
        return h

    for c in ins:
        if c.states() and c.kind != 'ctl':
            need = 0
            for p, d in history():
                g = required_gap(p, c)
                if g > d:
                    need = max(need, g - d)
            while need > 0:
                n = min(need, 16)
                out.append(Ins(f'    s_nop {n - 1}'))
                need -= n
        if c.op == 's_branch' or c.op.startswith('s_cbranch'):
            tgt = c.ops[0]
            branch_hist.setdefault(tgt, []).append([(q, d + 1) for q, d in history()])
        out.append(c)
    return [q.text for q in out]


class Asm:
    def __init__(self):
        self.lines = []
        self.vm = 0
        self.vm_done = 0
        self.lg = 0
        self.lg_done = 0
        self.nlabel = 0

    def e(self, text):
        for t in text.split('\n'):
            t = t.strip()
            if t:
                self.lines.append('    ' + t)

    def c(self, text):
        self.lines.append('    ; ' + text)

    def label(self, name):
        self.lines.append(name + ':')

    def newlabel(self, stem):
        self.nlabel += 1
        return f'L_{stem}_{self.nlabel}'

    def vmem(self, text):
        self.e(text)
        self.vm += 1
        return self.vm

    def ds(self, text):
        self.e(text)
        self.lg += 1
        return self.lg

    def wait(self, vm=None, lg=None):
        parts = []
        if vm is not None and vm > self.vm_done:
            n = self.vm - vm
            if n > 63:
                n = 63
            parts.append(f'vmcnt({n})')
            self.vm_done = self.vm - n
        if lg is not None and lg > self.lg_done:
            n = self.lg - lg
            if n > 15:
                n = 15
            parts.append(f'lgkmcnt({n})')
            self.lg_done = self.lg - n
        if parts:
            self.e('s_waitcnt ' + ' '.join(parts))

    def wait_all(self, vm=True, lg=True):
        parts = []
        if vm:
            parts.append('vmcnt(0)')
            self.vm_done = self.vm
        if lg:
            parts.append('lgkmcnt(0)')
            self.lg_done = self.lg
        self.e('s_waitcnt ' + ' '.join(parts))

    def state(self):
        return (self.vm, self.vm_done, self.lg, self.lg_done)

    def set_state(self, st):
        self.vm, self.vm_done, self.lg, self.lg_done = st
```

```python
from asmlib import vr, ar, sr
from gen import *

T = S_T
V_X1, V_GB, V_GA, V_SB, V_S2 = 16, 36, 208, 104, 228
SRC3, SRC4, RDST, RTMP, CLAMP = T + 22, T + 23, T + 24, T + 25, T + 26


class Ring:
    def __init__(self, g):
        self.g = g
        self.tok = {}
        self.issued = 0
        self.published = 0
        self.consumed = 0
        self.total = 138

    def can_issue(self):
        return self.issued < self.total and 4 * (self.issued + 1) - RING <= self.consumed

    def issue(self):
        a = self.g.a
        q = self.issued
        assert self.can_issue()
        if q == self.total - 1:
            a.e(f's_sub_u32 {sr(SRC4)}, {sr(SRC4)}, {sr(CLAMP)}\ns_sub_u32 {sr(RDST)}, {sr(RDST)}, {sr(CLAMP)}')
        src, off = (SRC3, q * 4096) if q < 70 else (SRC4, (q - 70) * 4096)
        a.e(f's_add_u32 m0, {sr(RDST)}, {(q % 35) * 4096}\ns_add_u32 {sr(RTMP)}, {sr(src)}, {off}')
        self.tok[q] = a.vmem(f'buffer_load_dwordx4 v1, {sr(R_WS, 4)}, {sr(RTMP)} offen sc1 lds')
        self.issued += 1

    def sync(self, consumed, publish):
        publish = min(publish, self.total)
        assert publish <= self.issued, (publish, self.issued)
        if publish > self.published:
            self.g.a.wait(vm=self.tok[publish - 1])
            self.published = publish
        self.g.barrier()
        self.consumed = max(self.consumed, consumed)

    def readable(self, f):
        return f < 4 * self.published


def frag16_addr(g, vd, t):
    a = g.a
    a.e(f'v_bfe_u32 {vr(t)}, v0, 2, 2\nv_lshlrev_b32 {vr(vd)}, 8, {vr(t)}\nv_and_b32 {vr(t)}, 2, {vr(t)}')
    a.e(f'v_lshrrev_b32 {vr(t + 1)}, 4, v0\nv_xor_b32 {vr(t)}, {vr(t)}, {vr(t + 1)}\nv_lshl_add_u32 {vr(vd)}, {vr(t)}, 6, {vr(vd)}')
    a.e(f'v_add_u32 {vr(vd)}, {vr(vd)}, v8')
    a.e(f's_and_b32 {sr(T)}, {sr(S_W)}, 1\ns_mul_i32 {sr(T)}, {sr(T)}, 5120\nv_add_u32 {vr(vd)}, {sr(T)}, {vr(vd)}')


def exchange(g, acc):
    a = g.a
    a.e(f's_mul_i32 {sr(T)}, {sr(S_W)}, 5120\ns_add_u32 {sr(T)}, {sr(T)}, {L_XCH}\nv_add_u32 v9, {sr(T)}, v1')
    a.e(f's_xor_b32 {sr(T)}, {sr(S_W)}, 1\ns_mul_i32 {sr(T)}, {sr(T)}, 5120\ns_add_u32 {sr(T)}, {sr(T)}, {L_XCH}\nv_add_u32 v10, {sr(T)}, v1')
    for t in range(5):
        a.ds(f'ds_write_b128 v9, {vr(acc + 20 + 4 * t, 4)} offset:{1024 * t}')
    a.wait_all(vm=False)
    g.barrier()
    tk = [a.ds(f'ds_read_b128 {vr(acc + 20 + 4 * t, 4)}, v10 offset:{1024 * t}') for t in range(5)]
    for t in range(5):
        a.wait(lg=tk[t])
        for n in (0, 2):
            a.e(f'v_pk_add_f32 {vr(acc + 4 * t + n, 2)}, {vr(acc + 4 * t + n, 2)}, {vr(acc + 20 + 4 * t + n, 2)}')


def phase2(g, ring):
    a, cfg = g.a, g.cfg
    a.c('phase 2: output projection, residual, LayerNorm 2')
    WSRC, DST = T + 8, T + 9
    a.e(f's_mul_i32 {sr(WSRC)}, {sr(S_N2)}, 102400\ns_lshl_b32 {sr(DST)}, {sr(S_W)}, 10\ns_add_u32 {sr(WSRC)}, {sr(WSRC)}, {sr(DST)}\ns_add_u32 {sr(WSRC)}, {sr(WSRC)}, {WS_WO}')
    a.e(f's_mov_b32 {sr(RDST)}, {sr(DST)}\ns_mul_i32 {sr(SRC3)}, {sr(S_J3)}, 286720\ns_add_u32 {sr(SRC3)}, {sr(SRC3)}, {sr(DST)}\ns_add_u32 {sr(SRC3)}, {sr(SRC3)}, {WS_W13}')
    a.e(f's_mul_i32 {sr(SRC4)}, {sr(S_N2)}, 276480\ns_add_u32 {sr(SRC4)}, {sr(SRC4)}, {sr(DST)}\ns_add_u32 {sr(SRC4)}, {sr(SRC4)}, {WS_W2}')
    a.e(f's_cmp_gt_u32 {sr(S_W)}, 1\ns_cselect_b32 {sr(CLAMP)}, 2048, 0')
    wt = []

    def wdma(q):
        a.e(f's_add_u32 m0, {sr(DST)}, {q * 4096}\ns_add_u32 {sr(T + 12)}, {sr(WSRC)}, {q * 4096}')
        wt.append(a.vmem(f'buffer_load_dwordx4 v1, {sr(R_WS, 4)}, {sr(T + 12)} offen sc1 lds'))
    for q in range(8):
        wdma(q)
    a.wait(vm=g.tok_o)
    g.flag(T + 6)
    g.stamp('opub')
    a.e(f's_mov_b32 {sr(T)}, 1280\nv_and_b32 v9, 15, v0\nv_lshrrev_b32 v10, 4, v0\nv_mul_lo_u32 v9, v9, {sr(T)}')
    a.e('v_lshl_add_u32 v12, v10, 4, v9\nv_lshl_add_u32 v13, v10, 3, v9')
    a.e(f's_lshl_b32 {sr(T)}, {sr(S_M2)}, 2\ns_add_u32 {sr(T)}, {sr(T)}, {sr(S_W)}\ns_mul_i32 {sr(T + 21)}, {sr(T)}, 20480')
    a.e(f's_mul_i32 {sr(T)}, {sr(S_N2)}, 160\ns_add_u32 {sr(T + 21)}, {sr(T + 21)}, {sr(T)}')
    a.vmem(f'buffer_load_dwordx4 v[56:59], v12, {sr(R_X, 4)}, {sr(T + 21)} offen')
    a.vmem(f'buffer_load_dwordx4 v[60:63], v12, {sr(R_X, 4)}, {sr(T + 21)} offen offset:64')
    a.vmem(f'buffer_load_dwordx2 v[14:15], v13, {sr(R_X, 4)}, {sr(T + 21)} offen offset:128')
    a.e('v_min_u32 v9, 19, v0\nv_lshrrev_b32 v10, 2, v9\nv_and_b32 v11, 3, v9\nv_lshlrev_b32 v11, 4, v11\nv_lshl_add_u32 v10, v10, 7, v11')
    a.e(f's_mul_i32 {sr(T)}, {sr(S_W)}, 40\ns_mul_i32 {sr(T + 1)}, {sr(S_N2)}, 5\ns_add_u32 {sr(T)}, {sr(T)}, {sr(T + 1)}\ns_add_u32 {sr(T)}, {sr(T)}, 80')
    a.e(f's_lshl_b32 {sr(T)}, {sr(T)}, 7\ns_add_u32 {sr(T)}, {sr(T)}, {WS_MOD}')
    a.e(f's_mul_i32 {sr(T + 1)}, {sr(S_W)}, 320\ns_add_u32 {sr(T + 1)}, {sr(T + 1)}, {L_PAR}\nv_lshlrev_b32 v9, 4, v9\nv_add_u32 v9, {sr(T + 1)}, v9')
    for q in range(8, 25):
        wdma(q)
    g.poll([(f'buffer_load_dwordx4 v[24:27], v10, {sr(R_WS, 4)}, {sr(T)} offen sc1', 26)])
    g.unpack(28, 29, 24)
    g.unpack(30, 31, 25)
    a.ds('ds_write_b128 v9, v[28:31]')
    frag16_addr(g, 4, 10)
    a.e('v_add_u32 v5, 0x10000, v4\nv_add_u32 v6, 0x20000, v4')
    a.e(f'v_lshrrev_b32 v10, 4, v0\nv_lshlrev_b32 v11, 4, v10\nv_add_u32 v11, {L_PAR}, v11\nv_lshlrev_b32 v10, 5, v10\nv_add_u32 v10, {L_PAR}, v10')
    a.wait_all()
    g.barrier()
    for n, r in enumerate((V_GA, V_SB, V_S2, V_GB)):
        for k, (v, off) in enumerate(((10, 0), (10, 16), (10, 128), (10, 144), (11, 256))):
            a.ds(f'ds_read_b128 {vr(r + 4 * k, 4)}, v{v} offset:{320 * n + off}')
    for q in range(10):
        for t in range(5):
            off = (10 * q + t) * 1024
            a.ds(f'ds_read_b128 {ar(20 * q + 4 * t, 4)}, v{4 + (off >> 16)} offset:{off & 0xffff}')
    for n in range(4):
        g.unpack(V_X1 + 2 * n, V_X1 + 2 * n + 1, 56 + n)
        g.unpack(V_X1 + 8 + 2 * n, V_X1 + 9 + 2 * n, 60 + n)
    g.unpack(V_X1 + 16, V_X1 + 17, 14)
    g.unpack(V_X1 + 18, V_X1 + 19, 15)
    a.wait_all(vm=False)
    g.barrier()
    g.stamp('wopre')
    for _ in range(cfg.n3a):
        ring.issue()
    OB0, OB1 = T + 10, T + 11
    a.e(f's_lshr_b32 {sr(T)}, {sr(S_M2)}, 1\ns_lshl_b32 {sr(T)}, {sr(T)}, 4\ns_and_b32 {sr(T + 1)}, {sr(S_W)}, 1\ns_lshl_b32 {sr(T + 2)}, {sr(T + 1)}, 3')
    a.e(f's_add_u32 {sr(T)}, {sr(T)}, {sr(T + 2)}\ns_lshl_b32 {sr(T)}, {sr(T)}, 2\ns_and_b32 {sr(T + 2)}, {sr(S_M2)}, 1\ns_lshl_b32 {sr(T + 2)}, {sr(T + 2)}, 1')
    a.e(f's_add_u32 {sr(T)}, {sr(T)}, {sr(T + 2)}\ns_lshr_b32 {sr(T + 2)}, {sr(S_W)}, 1\ns_add_u32 {sr(T)}, {sr(T)}, {sr(T + 2)}')
    a.e(f's_lshl_b32 {sr(T + 20)}, {sr(T)}, 7\ns_add_u32 {sr(T)}, {sr(T + 20)}, {WS_FO}\nv_and_b32 v7, 7, v0\nv_lshlrev_b32 v7, 9, v7')
    a.e(f's_lshl_b32 {sr(T + 2)}, {sr(S_M2)}, 2\ns_add_u32 {sr(T + 2)}, {sr(T + 2)}, {sr(S_W)}\ns_xor_b32 {sr(T + 3)}, {sr(T + 2)}, 1')
    a.e(f's_mul_i32 {sr(T + 4)}, {sr(T + 1)}, 10240\ns_add_u32 {sr(T + 4)}, {sr(T + 4)}, {WS_O}')
    for k in range(2):
        a.e(f's_mul_i32 {sr(OB0 + k)}, {sr(T + 2 + k)}, 20480\ns_add_u32 {sr(OB0 + k)}, {sr(OB0 + k)}, {sr(T + 4)}')
    g.poll([(f'buffer_load_dwordx2 v[14:15], v7, {sr(R_WS, 4)}, {sr(T)} offen sc1', 14)])
    g.stamp('oready')
    ot = {}
    for q in range(10):
        for k in range(2):
            if q and q % 4 == 0:
                a.e(f's_add_u32 {sr(OB0 + k)}, {sr(OB0 + k)}, 4096')
            ot[q, k] = a.vmem(f'buffer_load_dwordx4 {vr(128 + 8 * q + 4 * k, 4)}, v1, {sr(R_WS, 4)}, {sr(OB0 + k)} offen offset:{(q % 4) * 1024} sc1')
    g.advance_epoch()
    for q in range(10):
        for k in (1, 0) if q == 9 else (0, 1):
            a.wait(vm=ot[q, max(k, 1) if q == 9 else k])
            for t in range(5):
                acc = 64 + 20 * k + 4 * t
                a.e(f'v_mfma_f32_16x16x32_bf16 {vr(acc, 4)}, {ar(20 * q + 4 * t, 4)}, {vr(128 + 8 * q + 4 * k, 4)}, {vr(acc, 4) if q else 0}')
    g.stamp('p2mma')
    exchange(g, 64)
    if cfg.mimic >= 2:
        for n in range(10):
            g.round_pair(64 + 2 * n, 128 + n)
        for n in range(10):
            a.e(f'v_pk_mul_f32 {vr(64 + 2 * n, 2)}, {vr(64 + 2 * n, 2)}, {vr(V_GA + 2 * n, 2)}')
        for n in range(10):
            g.round_pair(64 + 2 * n, 128 + n)
        for n in range(10):
            a.e(f'v_pk_add_f32 {vr(V_X1 + 2 * n, 2)}, {vr(V_X1 + 2 * n, 2)}, {vr(64 + 2 * n, 2)}')
    else:
        for n in range(10):
            a.e(f'v_pk_fma_f32 {vr(V_X1 + 2 * n, 2)}, {vr(64 + 2 * n, 2)}, {vr(V_GA + 2 * n, 2)}, {vr(V_X1 + 2 * n, 2)}')
    for n in range(10):
        g.round_pair(V_X1 + 2 * n, 128 + n)
    a.e(f'v_pk_add_f32 v[64:65], {vr(V_X1, 2)}, {vr(V_X1 + 2, 2)}\nv_pk_mul_f32 v[66:67], {vr(V_X1, 2)}, {vr(V_X1, 2)}')
    a.e(f'v_pk_fma_f32 v[66:67], {vr(V_X1 + 2, 2)}, {vr(V_X1 + 2, 2)}, v[66:67]')
    for n in range(2, 10):
        a.e(f'v_pk_add_f32 v[64:65], v[64:65], {vr(V_X1 + 2 * n, 2)}\nv_pk_fma_f32 v[66:67], {vr(V_X1 + 2 * n, 2)}, {vr(V_X1 + 2 * n, 2)}, v[66:67]')
    a.e('v_add_f32 v64, v64, v65\nv_add_f32 v65, v66, v67')
    g.sum_rows(64, 66, (4, 5))
    g.sum_rows(65, 67, (4, 5))
    a.e(f'v_mov_b32 v66, {vr(V_TAG)}\nv_mov_b32 v67, {vr(V_TAG + 1)}')
    a.e(f's_lshl_b32 {sr(T)}, {sr(S_M2)}, 13\ns_lshl_b32 {sr(T + 1)}, {sr(S_W)}, 8\ns_add_u32 {sr(T)}, {sr(T)}, {sr(T + 1)}\ns_add_u32 {sr(T)}, {sr(T)}, {WS_ST}')
    a.e(f's_lshl_b32 {sr(T + 1)}, {sr(S_N2)}, 10\ns_add_u32 {sr(T + 1)}, {sr(T + 1)}, {sr(T)}')
    a.e('s_mov_b64 exec, 0xffff')
    a.vmem(f'buffer_store_dwordx4 v[64:67], v1, {sr(R_WS, 4)}, {sr(T + 1)} offen sc1')
    a.e('s_mov_b64 exec, -1')
    g.stamp('stpub')
    for _ in range(cfg.n3b):
        ring.issue()
    a.e('v_lshrrev_b32 v9, 4, v0\nv_and_b32 v10, 0xf0, v1\nv_lshl_add_u32 v11, v9, 11, v10')
    a.e('v_lshl_add_u32 v12, v9, 9, v10\nv_lshrrev_b32 v9, 1, v9\nv_lshl_add_u32 v13, v9, 9, v10')
    a.e(f's_lshl_b32 {sr(T + 2)}, {sr(S_M2)}, 1\ns_lshr_b32 {sr(T + 3)}, {sr(S_W)}, 1\ns_add_u32 {sr(T + 2)}, {sr(T + 2)}, {sr(T + 3)}\ns_mul_i32 {sr(T + 2)}, {sr(T + 2)}, 40960')
    a.e(f's_and_b32 {sr(T + 3)}, {sr(S_W)}, 1\ns_lshl_b32 {sr(T + 3)}, {sr(T + 3)}, 8\ns_add_u32 {sr(T + 2)}, {sr(T + 2)}, {sr(T + 3)}')
    a.e(f's_mul_i32 {sr(T + 3)}, {sr(S_N2)}, 5120\ns_add_u32 {sr(T + 2)}, {sr(T + 2)}, {sr(T + 3)}\ns_add_u32 {sr(T + 2)}, {sr(T + 2)}, {WS_Y}\ns_add_u32 {sr(T + 3)}, {sr(T + 2)}, 4096')
    a.e(f's_lshl_b32 {sr(T + 6)}, {sr(S_M2)}, 3\ns_add_u32 {sr(T + 6)}, {sr(T + 6)}, {sr(S_N2)}\ns_lshl_b32 {sr(T + 6)}, {sr(T + 6)}, 2\ns_add_u32 {sr(T + 6)}, {sr(T + 6)}, {sr(S_W)}')
    a.e(f's_lshl_b32 {sr(T + 6)}, {sr(T + 6)}, 7\ns_add_u32 {sr(T + 6)}, {sr(T + 6)}, {WS_FY}')
    g.poll([(f'buffer_load_dwordx4 v[68:71], v11, {sr(R_WS, 4)}, {sr(T)} offen sc1', 70),
            (f'buffer_load_dwordx4 v[72:75], v11, {sr(R_WS, 4)}, {sr(T)} offen offset:1024 sc1', 74)])
    g.stamp('stready')
    a.e('v_add_f32 v64, v68, v72\nv_add_f32 v66, v69, v73')
    g.sum_rows(64, 65, (4, 5))
    g.sum_rows(66, 67, (4, 5))
    a.e('v_mul_f32 v64, 0x3acccccd, v64\nv_mul_f32 v66, 0x3acccccd, v66\nv_fma_f32 v66, -v64, v64, v66\nv_max_f32 v66, 0, v66')
    if cfg.mimic >= 1:
        g.round_one(64, 9)
        g.round_one(66, 9)
        a.e('v_add_f32 v66, 0x3727c5ac, v66')
        g.round_one(66, 9)
        a.e('v_sqrt_f32 v66, v66')
        g.round_one(66, 9)
        a.e('v_rcp_f32 v66, v66')
    else:
        a.e('v_add_f32 v66, 0x3727c5ac, v66\nv_rsq_f32 v66, v66')
    for n in range(10):
        a.e(f'v_pk_add_f32 {vr(68 + 2 * n, 2)}, {vr(V_X1 + 2 * n, 2)}, v[64:65] op_sel_hi:[1,0] neg_lo:[0,1] neg_hi:[0,1]')
    if cfg.mimic >= 1:
        for n in range(10):
            g.round_pair(68 + 2 * n, 128 + n)
    for n in range(10):
        a.e(f'v_pk_mul_f32 {vr(68 + 2 * n, 2)}, {vr(68 + 2 * n, 2)}, v[66:67] op_sel_hi:[1,0]')
    if cfg.mimic >= 1:
        for n in range(10):
            g.round_pair(68 + 2 * n, 128 + n)
    for n in range(10):
        x = 68 + 2 * n
        if cfg.mimic >= 2:
            a.e(f'v_pk_mul_f32 {vr(x, 2)}, {vr(x, 2)}, {vr(V_S2 + 2 * n, 2)}')
            g.round_pair(x, 128 + n)
            a.e(f'v_pk_add_f32 {vr(x, 2)}, {vr(x, 2)}, {vr(V_SB + 2 * n, 2)}')
        else:
            a.e(f'v_pk_fma_f32 {vr(x, 2)}, {vr(x, 2)}, {vr(V_S2 + 2 * n, 2)}, {vr(V_SB + 2 * n, 2)}')
    for n in range(10):
        a.e(f'v_cvt_pk_bf16_f32 {vr(128 + n)}, {vr(68 + 2 * n)}, {vr(69 + 2 * n)}')
    a.vmem(f'buffer_store_dwordx4 v[128:131], v12, {sr(R_WS, 4)}, {sr(T + 2)} offen sc1')
    a.vmem(f'buffer_store_dwordx4 v[132:135], v12, {sr(R_WS, 4)}, {sr(T + 2)} offen offset:2048 sc1')
    a.e('v_permlane16_swap_b32 v136, v138\nv_permlane16_swap_b32 v137, v139\ns_mov_b32 exec_lo, 0xffff\ns_mov_b32 exec_hi, 0xffff')
    tok = a.vmem(f'buffer_store_dwordx4 v[136:139], v13, {sr(R_WS, 4)}, {sr(T + 3)} offen sc1')
    a.e('s_mov_b64 exec, -1')
    g.stamp('yst')
    for _ in range(cfg.n3c):
        ring.issue()
    a.wait(vm=tok)
    g.flag(T + 6)
    g.stamp('ypub')


def phase3(g, ring):
    a, cfg = g.a, g.cfg
    a.c('phase 3: gate / up projection')
    while ring.can_issue():
        ring.issue()
    g.frag_addr(9, 10)
    a.e('v_add_u32 v10, 0x10000, v9\nv_add_u32 v11, 0x20000, v9')
    YB = T + 10
    a.e(f's_lshl_b32 {sr(T)}, {sr(S_G3)}, 2\ns_add_u32 {sr(T)}, {sr(T)}, {sr(S_W)}\ns_mul_i32 {sr(YB)}, {sr(T)}, 40960\ns_add_u32 {sr(YB)}, {sr(YB)}, {WS_Y}')
    a.e(f's_lshr_b32 {sr(T + 1)}, {sr(T)}, 1\ns_lshl_b32 {sr(T + 1)}, {sr(T + 1)}, 5\ns_and_b32 {sr(T + 2)}, {sr(S_W)}, 1\ns_lshl_b32 {sr(T + 2)}, {sr(T + 2)}, 1')
    a.e(f's_add_u32 {sr(T + 1)}, {sr(T + 1)}, {sr(T + 2)}\ns_lshl_b32 {sr(T + 1)}, {sr(T + 1)}, 7\ns_add_u32 {sr(T + 1)}, {sr(T + 1)}, {WS_FY}')
    a.e('v_bfe_u32 v12, v0, 1, 3\nv_and_b32 v13, 1, v0\nv_lshl_add_u32 v12, v12, 2, v13\nv_lshlrev_b32 v12, 7, v12')
    a.e('v_bfe_u32 v13, v0, 4, 1\nv_mul_u32_u24 v13, 0xd800, v13\nv_and_b32 v14, 0xf0, v1\nv_add_u32 v13, v13, v14\nv_lshrrev_b32 v14, 5, v0\nv_lshl_add_u32 v56, v14, 8, v13')
    a.e(f's_and_b32 {sr(T + 2)}, {sr(S_J3)}, 1\ns_cmp_eq_u32 {sr(T + 2)}, 1\ns_cselect_b32 {sr(T + 3)}, 32, 64')
    a.e(f'v_mov_b32 v13, {OOB}\nv_cmp_gt_u32 vcc, {sr(T + 3)}, v0\nv_cndmask_b32 v57, v13, v56, vcc')
    a.e(f's_mul_i32 {sr(T + 2)}, {sr(T + 2)}, 14\ns_lshr_b32 {sr(T + 3)}, {sr(S_J3)}, 1\ns_mul_i32 {sr(T + 3)}, {sr(T + 3)}, 27\ns_add_u32 {sr(T + 2)}, {sr(T + 2)}, {sr(T + 3)}')
    a.e(f's_lshl_b32 {sr(T + 2)}, {sr(T + 2)}, 8\ns_mul_i32 {sr(T + 7)}, {sr(T)}, 110592\ns_add_u32 {sr(T + 7)}, {sr(T + 7)}, {sr(T + 2)}\ns_add_u32 {sr(T + 7)}, {sr(T + 7)}, {WS_HH}')
    a.e(f's_lshl_b32 {sr(T + 6)}, {sr(S_G3)}, 4\ns_add_u32 {sr(T + 6)}, {sr(T + 6)}, {sr(S_J3)}\ns_lshl_b32 {sr(T + 6)}, {sr(T + 6)}, 2\ns_add_u32 {sr(T + 6)}, {sr(T + 6)}, {sr(S_W)}')
    a.e(f's_lshl_b32 {sr(T + 6)}, {sr(T + 6)}, 7\ns_add_u32 {sr(T + 6)}, {sr(T + 6)}, {WS_FHH}')
    g.poll([(f'buffer_load_dwordx2 v[14:15], v12, {sr(R_WS, 4)}, {sr(T + 1)} offen sc1', 14)])
    g.stamp('yready')
    yt = {}

    def yload(s):
        if s and s % 4 == 0:
            a.e(f's_add_u32 {sr(YB)}, {sr(YB)}, 4096')
        yt[s] = a.vmem(f'buffer_load_dwordx4 {ar(4 * s, 4)}, v1, {sr(R_WS, 4)}, {sr(YB)} offen offset:{(s % 4) * 1024} sc1')
    ny = cfg.ypre
    for s in range(ny):
        yload(s)
    ring.sync(0, 14)
    LA = 6
    rt = {}

    def wread(f):
        assert ring.readable(f), f
        off = (f % RING) * 1024
        rt[f] = a.ds(f'ds_read_b128 {ar(160 + 4 * (f % 8), 4)}, v{9 + (off >> 16)} offset:{off & 0xffff}')
    for f in range(LA):
        wread(f)
    for f in range(280):
        s, t = divmod(f, 7)
        a.wait(vm=yt[s] if t == 0 else None, lg=rt[f])
        acc = 64 + 16 * t
        a.e(f'v_mfma_f32_32x32x16_bf16 {vr(acc, 16)}, {ar(160 + 4 * (f % 8), 4)}, {ar(4 * s, 4)}, {vr(acc, 16) if s else 0}')
        if f % 28 == 27:
            ring.sync(f + 1, min((f + 1) // 4 + 14, ring.issued))
        if t == 0 and ny < 40:
            yload(ny)
            ny += 1
        if t in (2, 4, 6) and ring.can_issue():
            ring.issue()
        if f + LA < 280:
            wread(f + LA)
    g.stamp('p3mma')
    last = None
    for t in range(7):
        G, U, E = 64 + 16 * t, 72 + 16 * t, 176 + 8 * (t & 1)
        if cfg.mimic >= 2:
            for n in range(8):
                g.round_pair(G + 2 * n, 192 + n)
        for n in range(4):
            a.e(f'v_pk_mul_f32 {vr(E + 2 * n, 2)}, {vr(G + 2 * n, 2)}, {sr(S_L2E, 2)} neg_lo:[1,0] neg_hi:[1,0]')
        for n in range(8):
            a.e(f'v_exp_f32 {vr(E + n)}, {vr(E + n)}')
        for n in range(4):
            a.e(f'v_pk_add_f32 {vr(E + 2 * n, 2)}, {vr(E + 2 * n, 2)}, 1.0 op_sel_hi:[1,0]')
        for n in range(8):
            a.e(f'v_rcp_f32 {vr(E + n)}, {vr(E + n)}')
        for n in range(4):
            a.e(f'v_pk_mul_f32 {vr(G + 2 * n, 2)}, {vr(G + 2 * n, 2)}, {vr(E + 2 * n, 2)}')
        if cfg.mimic >= 2:
            for n in range(4):
                g.round_pair(G + 2 * n, 192 + n)
        for n in range(4):
            a.e(f'v_pk_mul_f32 {vr(G + 2 * n, 2)}, {vr(G + 2 * n, 2)}, {vr(U + 2 * n, 2)}')
        for n in range(4):
            a.e(f'v_cvt_pk_bf16_f32 {vr(U + n)}, {vr(G + 2 * n)}, {vr(G + 2 * n + 1)}')
        last = a.vmem(f'buffer_store_dwordx4 {vr(U, 4)}, v{57 if t == 6 else 56}, {sr(R_WS, 4)}, {sr(T + 7)} offen offset:{512 * t} sc1')
    g.stamp('hhst')
    while ring.can_issue():
        ring.issue()
    a.wait(vm=last)
    g.flag(T + 6)
    g.stamp('hhpub')


def phase4(g, ring):
    a, cfg = g.a, g.cfg
    a.c('phase 4: down projection, residual')
    HB0 = T + 10
    a.e(f's_add_u32 {sr(T)}, {sr(T + 20)}, {WS_FHH}')
    a.e(f's_lshl_b32 {sr(T + 2)}, {sr(S_M2)}, 2\ns_add_u32 {sr(T + 2)}, {sr(T + 2)}, {sr(S_W)}\ns_xor_b32 {sr(T + 3)}, {sr(T + 2)}, 1')
    a.e(f's_and_b32 {sr(T + 1)}, {sr(S_W)}, 1\ns_mul_i32 {sr(T + 4)}, {sr(T + 1)}, 27648\ns_add_u32 {sr(T + 4)}, {sr(T + 4)}, {WS_HH}')
    for k in range(2):
        a.e(f's_mul_i32 {sr(HB0 + k)}, {sr(T + 2 + k)}, 55296\ns_add_u32 {sr(HB0 + k)}, {sr(HB0 + k)}, {sr(T + 4)}')
    srd(a, R_OUT, S_OUT, 2048 * 1280)
    a.e(f's_mov_b32 {sr(T + 1)}, 1280\nv_and_b32 v9, 15, v0\nv_lshrrev_b32 v10, 4, v0\nv_mul_lo_u32 v9, v9, {sr(T + 1)}')
    a.e('v_lshl_add_u32 v12, v10, 4, v9\nv_lshl_add_u32 v13, v10, 3, v9')
    g.poll([(f'buffer_load_dwordx2 v[14:15], v7, {sr(R_WS, 4)}, {sr(T)} offen sc1', 14)])
    g.stamp('hhready')
    ht = {}
    D = 20

    def hload(q):
        for k in range(2):
            if q and q % 4 == 0:
                a.e(f's_add_u32 {sr(HB0 + k)}, {sr(HB0 + k)}, 4096')
            ht[q, k] = a.vmem(f'buffer_load_dwordx4 {ar(8 * (q % D) + 4 * k, 4)}, v1, {sr(R_WS, 4)}, {sr(HB0 + k)} offen offset:{(q % 4) * 1024} sc1')
    nh = cfg.hpre
    for q in range(nh):
        hload(q)
    ring.sync(280, ring.issued)
    rt = {}

    def wread(q, t):
        assert ring.readable(280 + 10 * q + 5 + t), (q, t)
        off = ((10 * q) % RING + t) * 1024
        rt[q, t] = a.ds(f'ds_read_b128 {ar(160 + 20 * (q & 1) + 4 * t, 4)}, v{4 + (off >> 16)} offset:{off & 0xffff}')
    for t in range(5):
        wread(0, t)
    for q in range(27):
        n = 0
        for k in (1, 0) if q == 26 else (0, 1):
            a.wait(vm=ht[q, 1 if q == 26 else k], lg=rt[q, 4])
            if n == 0 and q and q % 2 == 0:
                need = -(-(280 + 10 * (q + 3)) // 4)
                ring.sync(280 + 10 * q, min(max(need, ring.published), ring.issued))
            for t in range(5):
                acc = 64 + 20 * k + 4 * t
                a.e(f'v_mfma_f32_16x16x32_bf16 {vr(acc, 4)}, {ar(160 + 20 * (q & 1) + 4 * t, 4)}, {ar(8 * (q % D) + 4 * k, 4)}, {vr(acc, 4) if q else 0}')
                if n < 5 and q + 1 < 27:
                    wread(q + 1, n)
                elif n in (6, 7, 8) and ring.can_issue():
                    ring.issue()
                n += 1
        if nh < 27 and nh - D <= q:
            hload(nh)
            nh += 1
    g.stamp('p4mma')
    exchange(g, 64)
    if cfg.mimic >= 2:
        for n in range(10):
            g.round_pair(64 + 2 * n, 128 + n)
        for n in range(10):
            a.e(f'v_pk_mul_f32 {vr(64 + 2 * n, 2)}, {vr(64 + 2 * n, 2)}, {vr(V_GB + 2 * n, 2)}')
        for n in range(10):
            g.round_pair(64 + 2 * n, 128 + n)
        for n in range(10):
            a.e(f'v_pk_add_f32 {vr(64 + 2 * n, 2)}, {vr(V_X1 + 2 * n, 2)}, {vr(64 + 2 * n, 2)}')
    else:
        for n in range(10):
            a.e(f'v_pk_fma_f32 {vr(64 + 2 * n, 2)}, {vr(64 + 2 * n, 2)}, {vr(V_GB + 2 * n, 2)}, {vr(V_X1 + 2 * n, 2)}')
    for n in range(10):
        a.e(f'v_cvt_pk_bf16_f32 {vr(128 + n)}, {vr(64 + 2 * n)}, {vr(65 + 2 * n)}')
    a.vmem(f'buffer_store_dwordx4 v[128:131], v12, {sr(R_OUT, 4)}, {sr(T + 21)} offen')
    a.vmem(f'buffer_store_dwordx4 v[132:135], v12, {sr(R_OUT, 4)}, {sr(T + 21)} offen offset:64')
    a.vmem(f'buffer_store_dwordx2 v[136:137], v13, {sr(R_OUT, 4)}, {sr(T + 21)} offen offset:128')


def back_half(g):
    ring = Ring(g)
    phase2(g, ring)
    if g.cfg.stop == 'phase2':
        g.a.wait_all()
        return
    phase3(g, ring)
    if g.cfg.stop == 'phase3':
        g.a.wait_all()
        return
    phase4(g, ring)
    if g.cfg.diag:
        g.a.wait_all()
```

```python
import sys
from asmlib import Asm, pad_hazards, vr, ar, sr

NAME = 'adaLN_cond__linear_kernel_hedgehog__glu_gated_swiglu__prompt'

WS_EPOCH = 0
WS_FW = 0x1000
WS_FH = 0x10000
WS_FKV = 0x30000
WS_FO = 0x50000
WS_FY = 0x70000
WS_FHH = 0x90000
WS_MOD = 0xB0000
WS_ST = 0xC0000
WS_KVP = 0x100000
WS_WQ = 0x200000
WS_H = 0x480000
WS_O = 0x700000
WS_Y = 0x980000
WS_WO = 0xC00000
WS_W13 = 0xD00000
WS_W2 = 0x1180000
WS_HH = 0x1400000
WS_DBG = 0x1B00000
WS_SIZE = 0x1C00000
OOB_VAL = 0x40000000
OOB = 's3'

L_JOB = 20480
L_P2W = 122880
L_MISC = 153600
L_MODP = L_MISC
L_SILU = L_MISC + 5120
L_LNRED = L_MISC + 6400
L_WPHI = L_MISC + 6656
L_KVR = L_MISC + 512
L_KVZ = L_KVR + 3840
L_PAR = L_MISC + 8704
L_XCH = 143360
TP = 336
RING = 140

S_X, S_WQKV, S_WPHI, S_WO, S_W1, S_W3, S_W2, S_C, S_WMOD, S_OUT, S_DBG, S_WS = 4, 6, 8, 10, 14, 16, 18, 20, 22, 24, 26, 28
S_TAG = 30
R_WS, R_A, R_B, R_C, R_X, R_OUT = 32, 36, 40, 44, 48, 52
S_W, S_XC, S_I, S_G1, S_J1, S_M2, S_N2, S_G3, S_J3 = 56, 57, 58, 59, 60, 61, 62, 63, 64
S_SPIN = 65
S_L2E = 66
S_T = 68
S_STAMP = 98

V_LANE, V_L16, V_TAG = 0, 1, 2
V_STAMP = 255


class Cfg:
    diag = False
    stop = None
    mimic = 1
    map2 = '8x1'
    map3 = '4x2'
    spin = 200000
    pfcode = 1
    n3a = 10
    n3b = 10
    n3c = 8
    ypre = 16
    hpre = 12


def srd(a, r, ptr, size):
    a.e(f's_mov_b32 {sr(r)}, {sr(ptr)}\ns_mov_b32 {sr(r + 1)}, {sr(ptr + 1)}\n'
        f's_mov_b32 {sr(r + 2)}, {size}\ns_mov_b32 {sr(r + 3)}, 0x20000')


class Gen:
    def __init__(self, cfg):
        self.cfg = cfg
        self.a = Asm()
        self.stamps = []

    def stamp(self, name):
        if not self.cfg.diag:
            return
        a = self.a
        idx = len(self.stamps)
        self.stamps.append(name)
        a.e(f's_memrealtime {sr(S_STAMP, 2)}\ns_memtime {sr(S_STAMP + 2, 2)}')
        a.wait_all(vm=False)
        a.e(f'v_writelane_b32 {vr(V_STAMP)}, {sr(S_STAMP)}, {idx}\nv_writelane_b32 {vr(V_STAMP)}, {sr(S_STAMP + 2)}, {idx + 32}')

    def barrier(self):
        self.a.e('s_barrier')

    def poll(self, loads):
        a = self.a
        top, done = a.newlabel('poll'), a.newlabel('polled')
        a.e(f's_mov_b32 {sr(S_SPIN)}, {self.cfg.spin}')
        a.label(top)
        for text, _ in loads:
            a.vmem(text)
        a.wait_all(lg=False)
        for n, (_, t) in enumerate(loads):
            if n == 0:
                a.e(f'v_cmp_ne_u64 vcc, {sr(S_TAG, 2)}, {vr(t, 2)}')
            else:
                a.e(f'v_cmp_ne_u64 {sr(S_T + 28, 2)}, {sr(S_TAG, 2)}, {vr(t, 2)}')
                a.e(f's_or_b64 vcc, vcc, {sr(S_T + 28, 2)}')
        a.e(f's_cbranch_vccz {done}')
        a.e(f's_sub_u32 {sr(S_SPIN)}, {sr(S_SPIN)}, 1\ns_cmp_lg_u32 {sr(S_SPIN)}, 0\ns_cbranch_scc1 {top}')
        a.label(done)

    def flag(self, soff):
        a = self.a
        a.e('s_mov_b64 exec, 1')
        a.vmem(f'buffer_store_dwordx2 {vr(V_TAG, 2)}, off, {sr(R_WS, 4)}, {sr(soff)} sc1')
        a.e('s_mov_b64 exec, -1')

    def unpack(self, lo, hi, src):
        self.a.e(f'v_lshlrev_b32 {vr(lo)}, 16, {vr(src)}\nv_and_b32 {vr(hi)}, 0xffff0000, {vr(src)}')

    def round_pair(self, lo, tmp):
        self.a.e(f'v_cvt_pk_bf16_f32 {vr(tmp)}, {vr(lo)}, {vr(lo + 1)}')
        self.unpack(lo, lo + 1, tmp)

    def round_one(self, r, tmp):
        self.a.e(f'v_cvt_pk_bf16_f32 {vr(tmp)}, {vr(r)}, {vr(r)}\nv_lshlrev_b32 {vr(r)}, 16, {vr(tmp)}')

    def sum_rows(self, r, tmp, bits):
        a = self.a
        for b in bits:
            if b == 3:
                a.e(f'v_add_f32_dpp {vr(r)}, {vr(r)}, {vr(r)} row_ror:8 row_mask:0xf bank_mask:0xf')
            else:
                a.e(f'v_mov_b32 {vr(tmp)}, {vr(r)}')
                a.e(f'v_permlane{16 if b == 4 else 32}_swap_b32 {vr(r)}, {vr(tmp)}')
                a.e(f'v_add_f32 {vr(r)}, {vr(r)}, {vr(tmp)}')

    def prologue(self):
        a, cfg = self.a, self.cfg
        a.e('s_cmp_ge_u32 s2, 256\ns_cbranch_scc1 L_end')
        a.e(f's_mov_b32 s3, {OOB_VAL}')
        a.e('s_load_dwordx16 s[4:19], s[0:1], 0\ns_load_dwordx8 s[20:27], s[0:1], 64\ns_load_dwordx2 s[28:29], s[0:1], 96')
        a.e('v_lshrrev_b32 v1, 6, v0\nv_and_b32 v0, 63, v0')
        a.e(f'v_readfirstlane_b32 {sr(S_W)}, v1\nv_lshlrev_b32 v1, 4, v0')
        if cfg.diag:
            a.e(f'v_mov_b32 {vr(V_STAMP)}, 0')
        a.e(f's_and_b32 {sr(S_XC)}, s2, 7\ns_lshr_b32 {sr(S_I)}, s2, 3')
        T = S_T

        def role(dm, dn, xm_shift, nn_bits_x, i_shift):
            a.e(f's_lshr_b32 {sr(T)}, {sr(S_XC)}, {xm_shift}\ns_lshl_b32 {sr(T)}, {sr(T)}, {5 - i_shift}')
            a.e(f's_lshr_b32 {sr(T + 1)}, {sr(S_I)}, {i_shift}\ns_add_u32 {sr(dm)}, {sr(T)}, {sr(T + 1)}')
            a.e(f's_and_b32 {sr(T)}, {sr(S_XC)}, {(1 << nn_bits_x) - 1}\ns_lshl_b32 {sr(T)}, {sr(T)}, {i_shift}')
            a.e(f's_and_b32 {sr(T + 1)}, {sr(S_I)}, {(1 << i_shift) - 1}\ns_add_u32 {sr(dn)}, {sr(T)}, {sr(T + 1)}')
        role(S_G1, S_J1, 2, 2, 2)
        role(S_M2, S_N2, *{'8x1': (0, 0, 3), '4x2': (1, 1, 2), '2x4': (2, 2, 1)}[cfg.map2])
        role(S_G3, S_J3, *{'8x1': (0, 0, 4), '4x2': (1, 1, 3), '2x4': (2, 2, 2)}[cfg.map3])
        a.e(f's_mov_b32 {sr(S_L2E)}, 0x3fb8aa3b\ns_mov_b32 {sr(S_L2E + 1)}, 0x3fb8aa3b')
        a.e('s_waitcnt lgkmcnt(0)')
        srd(a, R_WS, S_WS, WS_SIZE)
        srd(a, R_X, S_X, 2048 * 1280)
        self.stamp('start')
        if cfg.pfcode:
            self.prefetch_code()
        self.tok_epoch = a.vmem(f'buffer_load_dwordx2 {vr(V_TAG, 2)}, off, {sr(R_WS, 4)}, 0 sc1')

    def prefetch_code(self):
        a = self.a
        T = S_T
        a.e(f's_getpc_b64 {sr(T, 2)}')
        a.label('L_pc')
        a.e(f's_and_b32 {sr(T + 2)}, {sr(S_I)}, 1\ns_lshl_b32 {sr(T + 2)}, {sr(T + 2)}, 2\ns_add_u32 {sr(T + 2)}, {sr(T + 2)}, {sr(S_W)}')
        a.e(f's_lshl_b32 {sr(T + 2)}, {sr(T + 2)}, 13\nv_lshlrev_b32 v4, 7, v0\nv_add_u32 v4, {sr(T + 2)}, v4')
        a.e(f'v_min_u32 v4, L_end-L_pc, v4\nv_mov_b32 v5, {sr(T + 1)}\nv_add_co_u32 v4, vcc, {sr(T)}, v4\nv_addc_co_u32 v5, vcc, 0, v5, vcc')
        a.vmem('global_load_dword v254, v[4:5], off')

    def make_tag(self):
        a = self.a
        a.wait(vm=self.tok_epoch)
        a.e(f'v_readfirstlane_b32 {sr(S_TAG)}, {vr(V_TAG)}\nv_readfirstlane_b32 {sr(S_TAG + 1)}, {vr(V_TAG + 1)}')
        a.e(f's_mul_i32 {sr(S_TAG)}, {sr(S_TAG)}, 1664525\ns_add_u32 {sr(S_TAG)}, {sr(S_TAG)}, 1013904223')
        a.e(f's_mul_i32 {sr(S_TAG + 1)}, {sr(S_TAG + 1)}, 22695477\ns_add_u32 {sr(S_TAG + 1)}, {sr(S_TAG + 1)}, 0x3c6ef35f')
        a.e(f'v_mov_b32 {vr(V_TAG)}, {sr(S_TAG)}\nv_mov_b32 {vr(V_TAG + 1)}, {sr(S_TAG + 1)}')

    def job_common(self):
        a = self.a
        a.e('v_bfe_u32 v9, v0, 4, 1\nv_and_b32 v4, 7, v0\nv_xor_b32 v4, v4, v9\nv_lshlrev_b32 v4, 4, v4')
        a.e('v_lshrrev_b32 v5, 3, v0')
        a.e('v_lshrrev_b32 v6, 4, v0\nv_lshlrev_b32 v6, 10, v6')
        a.e('v_bfe_u32 v9, v0, 2, 2\nv_lshl_add_u32 v6, v9, 7, v6')
        a.e('v_lshrrev_b32 v9, 1, v9\nv_and_b32 v8, 3, v0\nv_lshl_or_b32 v9, v8, 1, v9\nv_lshl_add_u32 v6, v9, 4, v6')
        a.e(f's_mul_i32 {sr(S_T)}, {sr(S_W)}, 12288\ns_add_u32 {sr(S_T + 20)}, {sr(S_T)}, {L_JOB}')
        a.e(f'v_add_u32 v6, {sr(S_T + 20)}, v6\nv_xor_b32 v7, 16, v6\nv_lshlrev_b32 v8, 4, v8')

    def job_issue(self, r, rs, voff, s_off, s_pitch8):
        a = self.a
        tok = None
        for n in range(4):
            a.e(f's_add_u32 m0, {sr(S_T + 20)}, {r * 4096 + n * 1024}')
            if n:
                a.e(f's_add_u32 {sr(s_off)}, {sr(s_off)}, {sr(s_pitch8)}')
            tok = a.vmem(f'buffer_load_dwordx4 {vr(voff)}, {sr(rs, 4)}, {sr(s_off)} offen lds')
        return tok

    def job_finish(self, r, tok, vdest, base):
        a = self.a
        a.wait(vm=tok)
        t = []
        for n in range(4):
            for z in range(2):
                tk = a.ds(f'ds_read_b64_tr_b16 {vr(base + 4 * n + 2 * z, 2)}, v{6 + (n >> 1)} offset:{r * 4096 + z * 512 + (n & 1) * 8}')
            t.append(tk)
        for n in range(4):
            a.e(f'v_add_u32_dpp {vr(base + 16 + n)}, {vr(vdest)}, v8 quad_perm:[{n},{n},{n},{n}] row_mask:0xf bank_mask:0xf')
        last = None
        for n in range(4):
            a.wait(lg=t[n])
            last = a.vmem(f'buffer_store_dwordx4 {vr(base + 4 * n, 4)}, {vr(base + 16 + n)}, {sr(R_WS, 4)}, 0 offen sc1')
        return last

    def dest_A(self, vd, s_blk, s_kb, s_valid):
        a = self.a
        T = S_T
        a.e(f's_mul_i32 {sr(T)}, {sr(s_blk)}, 205\ns_lshr_b32 {sr(T)}, {sr(T)}, 11')
        a.e(f's_mul_i32 {sr(T + 1)}, {sr(T)}, 10\ns_sub_u32 {sr(T + 1)}, {sr(s_blk)}, {sr(T + 1)}\ns_lshl_b32 {sr(T + 1)}, {sr(T + 1)}, 4')
        a.e(f's_cmp_eq_u32 {sr(T)}, 0\ns_cselect_b32 {sr(T + 2)}, 10, 0\ns_cmp_eq_u32 {sr(T)}, 2\ns_cselect_b32 {sr(T + 2)}, 5, {sr(T + 2)}')
        a.e(f'v_and_b32 v9, 15, v0\nv_add_u32 v9, {sr(T + 1)}, v9')
        a.e('v_mul_u32_u24 v10, 103, v9\nv_lshrrev_b32 v10, 9, v10')
        a.e('v_mul_u32_u24 v11, 5, v10\nv_sub_u32 v11, v9, v11')
        a.e(f'v_add_u32 v11, {sr(T + 2)}, v11')
        a.e(f's_lshl_b32 {sr(T + 3)}, {sr(s_kb)}, 1\nv_lshrrev_b32 v12, 5, v0\nv_add_u32 v12, {sr(T + 3)}, v12')
        a.e('v_mul_u32_u24 v13, 0xc00, v12\nv_mul_u32_u24 v14, 0x300, v12')
        a.e(f'v_add_u32 v14, {L_P2W - 12 * 256}, v14\nv_cmp_gt_u32 vcc, 12, v11\nv_cndmask_b32 v13, v14, v13, vcc')
        a.e('v_lshl_add_u32 v13, v11, 8, v13')
        a.e('v_and_b32 v14, 1, v10\nv_lshl_add_u32 v13, v14, 7, v13')
        a.e('v_lshrrev_b32 v14, 1, v11\nv_lshrrev_b32 v15, 4, v0\nv_xor_b32 v14, v14, v15\nv_and_b32 v14, 1, v14\nv_lshl_add_u32 v13, v14, 6, v13')
        a.e(f's_mov_b32 {sr(T + 3)}, 153600\nv_lshrrev_b32 v10, 1, v10\nv_mad_u32_u24 v13, v10, {sr(T + 3)}, v13')
        a.e(f'v_add_u32 {vr(vd)}, {sr(s_valid)}, v13')

    def dest_B(self, vd, s_blk, s_kb, s_up):
        a = self.a
        T = S_T
        a.e(f's_lshl_b32 {sr(T)}, {sr(s_blk)}, 4\nv_and_b32 v9, 15, v0\nv_add_u32 v9, {sr(T)}, v9')
        a.e('v_lshrrev_b32 v10, 1, v9')
        a.e('v_mul_u32_u24 v11, 19, v10\nv_lshrrev_b32 v11, 9, v11')
        a.e('v_mul_u32_u24 v12, 27, v11\nv_sub_u32 v12, v10, v12')
        a.e('v_cmp_le_u32 vcc, 14, v12\nv_lshlrev_b32 v11, 1, v11\nv_subrev_u32 v13, 14, v12')
        a.e('v_cndmask_b32 v12, v12, v13, vcc\nv_addc_co_u32 v11, vcc, 0, v11, vcc')
        a.e('v_lshrrev_b32 v13, 1, v12\nv_lshlrev_b32 v13, 10, v13')
        a.e('v_and_b32 v12, 1, v12\nv_lshl_add_u32 v13, v12, 7, v13')
        a.e('v_and_b32 v9, 1, v9\nv_lshl_add_u32 v13, v9, 8, v13')
        a.e(f's_lshl_b32 {sr(T)}, {sr(s_kb)}, 1\nv_lshrrev_b32 v12, 5, v0\nv_add_u32 v12, {sr(T)}, v12')
        a.e(f's_mov_b32 {sr(T)}, 7168\nv_mad_u32_u24 v13, v12, {sr(T)}, v13')
        a.e(f'v_bfe_u32 v12, v0, 4, 1\nv_xor_b32 v12, {sr(s_up)}, v12\nv_lshl_add_u32 v13, v12, 6, v13')
        a.e(f's_mov_b32 {sr(T)}, 286720\nv_mad_u32_u24 v13, v11, {sr(T)}, v13')
        a.e(f's_lshl_b32 {sr(T)}, {sr(s_up)}, 9\ns_add_u32 {sr(T)}, {sr(T)}, {WS_W13}\nv_add_u32 {vr(vd)}, {sr(T)}, v13')

    def dest_C(self, vd, s_blk, s_base, s_stride):
        a = self.a
        T = S_T
        a.e(f's_lshl_b32 {sr(T)}, {sr(s_blk)}, 4\nv_and_b32 v9, 15, v0\nv_add_u32 v9, {sr(T)}, v9')
        a.e('v_mul_u32_u24 v10, 103, v9\nv_lshrrev_b32 v10, 11, v10')
        a.e('v_mul_u32_u24 v11, 20, v10\nv_sub_u32 v11, v9, v11')
        a.e('v_lshrrev_b32 v12, 3, v11\nv_lshlrev_b32 v12, 1, v12\nv_and_b32 v13, 1, v11\nv_add_u32 v13, v12, v13')
        a.e('v_bfe_u32 v14, v11, 1, 2\nv_and_b32 v15, 3, v11\nv_cmp_gt_u32 vcc, 16, v11')
        a.e('v_cndmask_b32 v13, 4, v13, vcc\nv_cndmask_b32 v14, v15, v14, vcc')
        a.e('v_lshlrev_b32 v13, 10, v13\nv_lshl_add_u32 v13, v14, 8, v13')
        a.e('v_and_b32 v14, 2, v14\nv_lshrrev_b32 v15, 4, v0\nv_xor_b32 v14, v14, v15\nv_lshl_add_u32 v13, v14, 6, v13')
        a.e(f'v_mad_u32_u24 v13, v10, {sr(s_stride)}, v13\nv_add_u32 {vr(vd)}, {sr(s_base)}, v13')

    def job_bc_setup(self, rnd, rs, voff, vd, s_off, s_p8):
        a = self.a
        T = S_T
        J, BLK, KB = T + 4, T + 5, T + 6
        lw13, lw2, lc, ldone = (a.newlabel(n) for n in ('jw13', 'jw2', 'jc', 'jdone'))
        a.e(f's_lshl_b32 {sr(J)}, s2, 2\ns_add_u32 {sr(J)}, {sr(J)}, {sr(S_W)}')
        if rnd:
            a.e(f's_add_u32 {sr(J)}, {sr(J)}, 1024')
        a.e(f's_cmp_ge_u32 {sr(J)}, 1280\ns_cbranch_scc1 {lw2}\ns_cmp_ge_u32 {sr(J)}, 200\ns_cbranch_scc1 {lw13}')
        srd(a, rs, S_WO, 640 * 1280)
        a.e(f's_mov_b32 {sr(T + 8)}, 10\ns_mov_b32 {sr(T + 9)}, {WS_WO}\ns_mov_b32 {sr(T + 10)}, 102400\ns_branch {lc}')
        a.label(lw2)
        srd(a, rs, S_W2, 1728 * 1280)
        a.e(f's_sub_u32 {sr(J)}, {sr(J)}, 1280\ns_mov_b32 {sr(T + 8)}, 27\ns_mov_b32 {sr(T + 10)}, 276480')
        a.e(f's_cmp_lt_u32 {sr(J)}, 540\ns_cselect_b32 {sr(T + 9)}, {WS_W2}, {OOB}\ns_cselect_b32 {sr(J)}, {sr(J)}, 0')
        a.label(lc)
        a.e(f's_mul_i32 {sr(KB)}, {sr(J)}, 205\ns_lshr_b32 {sr(KB)}, {sr(KB)}, 11')
        a.e(f's_mul_i32 {sr(BLK)}, {sr(KB)}, 10\ns_sub_u32 {sr(BLK)}, {sr(J)}, {sr(BLK)}')
        a.e(f's_sub_u32 {sr(T + 11)}, {sr(KB)}, {sr(T + 8)}\ns_lshl_b32 {sr(T + 11)}, {sr(T + 11)}, 1\ns_add_u32 {sr(T + 11)}, {sr(T + 11)}, 1')
        a.e(f's_lshl_b32 {sr(T + 12)}, {sr(KB)}, 1\ns_cmp_lt_u32 {sr(KB)}, {sr(T + 8)}\ns_cselect_b32 {sr(T + 11)}, {sr(T + 12)}, {sr(T + 11)}')
        a.e(f's_mul_i32 {sr(T + 11)}, {sr(T + 11)}, 5120\ns_add_u32 {sr(T + 9)}, {sr(T + 9)}, {sr(T + 11)}')
        self.dest_C(vd, BLK, T + 9, T + 10)
        a.e(f's_mov_b32 {sr(T + 13)}, 1280\ns_branch {ldone}')
        a.label(lw13)
        a.e(f's_sub_u32 {sr(J)}, {sr(J)}, 200\ns_cmp_ge_u32 {sr(J)}, 540\ns_cselect_b32 {sr(T + 8)}, 1, 0')
        a.e(f's_cselect_b32 {sr(rs)}, {sr(S_W3)}, {sr(S_W1)}\ns_cselect_b32 {sr(rs + 1)}, {sr(S_W3 + 1)}, {sr(S_W1 + 1)}')
        a.e(f's_cselect_b32 {sr(T + 9)}, 540, 0\ns_sub_u32 {sr(J)}, {sr(J)}, {sr(T + 9)}')
        a.e(f's_mov_b32 {sr(rs + 2)}, {640 * 3456}\ns_mov_b32 {sr(rs + 3)}, 0x20000')
        a.e(f's_mul_i32 {sr(KB)}, {sr(J)}, 607\ns_lshr_b32 {sr(KB)}, {sr(KB)}, 14')
        a.e(f's_mul_i32 {sr(BLK)}, {sr(KB)}, 27\ns_sub_u32 {sr(BLK)}, {sr(J)}, {sr(BLK)}')
        self.dest_B(vd, BLK, KB, T + 8)
        a.e(f's_mov_b32 {sr(T + 13)}, 3456')
        a.label(ldone)
        a.e(f's_lshl_b32 {sr(s_p8)}, {sr(T + 13)}, 3\ns_mul_i32 {sr(s_off)}, {sr(s_p8)}, {sr(KB)}\ns_lshl_b32 {sr(s_off)}, {sr(s_off)}, 2')
        a.e(f's_lshl_b32 {sr(BLK)}, {sr(BLK)}, 7\ns_add_u32 {sr(s_off)}, {sr(s_off)}, {sr(BLK)}')
        a.e(f'v_mad_u32_u24 {vr(voff)}, v5, {sr(T + 13)}, v4')

    def x_loads(self):
        a = self.a
        T = S_T
        a.e(f's_mov_b32 {sr(T)}, 1280\nv_and_b32 v9, 7, v0\nv_lshlrev_b32 v10, 4, v5\nv_mad_u32_u24 v9, v9, {sr(T)}, v10')
        a.e(f's_mul_i32 {sr(T)}, s2, 10240\ns_lshl_b32 {sr(T + 1)}, {sr(S_W)}, 7\ns_add_u32 {sr(T)}, {sr(T)}, {sr(T + 1)}')
        a.e(f's_cmp_lt_u32 {sr(S_W)}, 2\ns_cselect_b32 {sr(T + 1)}, {sr(T)}, {OOB}')
        for r in range(3):
            a.vmem(f'buffer_load_dwordx4 {vr(16 + 4 * r, 4)}, v9, {sr(R_X, 4)}, {sr(T + (r == 2))} offen offset:{r * 512}')

    def startup(self):
        a, cfg = self.a, self.cfg
        T = S_T
        self.job_common()
        lwn, ljoin = a.newlabel('wn'), a.newlabel('join')
        a.e(f's_cmp_lg_u32 {sr(S_W)}, 0\ns_cbranch_scc1 {lwn}')
        st = a.state()
        a.c('wave 0: modulation GEMV')
        srd(a, R_A, S_WMOD, 640 * 7680)
        srd(a, R_B, S_C, 1280)
        a.e('v_lshlrev_b32 v9, 2, v0')
        tc = [a.vmem(f'buffer_load_dword {vr(28 + n)}, v9, {sr(R_B, 4)}, 0 offen offset:{256 * n}') for n in range(5)]
        GRP, VAL = T + 14, T + 15
        a.e(f's_lshr_b32 {sr(T)}, {sr(S_I)}, 2\ns_lshl_b32 {sr(T)}, {sr(T)}, 3\ns_add_u32 {sr(T)}, {sr(T)}, {sr(S_XC)}')
        a.e(f's_and_b32 {sr(T + 1)}, {sr(S_I)}, 3\ns_lshl_b32 {sr(GRP)}, {sr(T)}, 2\ns_add_u32 {sr(GRP)}, {sr(GRP)}, {sr(T + 1)}')
        a.e(f's_cmp_lt_u32 {sr(T)}, 60\ns_cselect_b32 {sr(VAL)}, 0, {OOB}')
        a.e(f's_lshl_b32 {sr(T + 2)}, {sr(GRP)}, 5\ns_add_u32 {sr(T + 2)}, {sr(T + 2)}, {sr(VAL)}')
        a.e(f's_mov_b32 {sr(T)}, 7680\nv_lshrrev_b32 v10, 1, v0\nv_and_b32 v11, 1, v0\nv_lshlrev_b32 v11, 4, v11\nv_mad_u32_u24 v10, v10, {sr(T)}, v11')
        td = []
        for n in range(20):
            a.e(f's_mov_b32 m0, {n * 1024}')
            if n:
                a.e(f's_add_u32 {sr(T + 2)}, {sr(T + 2)}, {32 * 7680}')
            td.append(a.vmem(f'buffer_load_dwordx4 v10, {sr(R_A, 4)}, {sr(T + 2)} offen lds'))
        self.x_loads()
        a.wait(vm=tc[-1])
        self.make_tag()
        a.e(f'v_lshlrev_b32 v9, 2, v0\nv_add_u32 v9, {L_SILU}, v9')
        for n in range(5):
            self.unpack(34 + 2 * n, 35 + 2 * n, 28 + n)
        for n in range(10):
            a.e(f'v_mul_f32 {vr(44 + n)}, 0xbfb8aa3b, {vr(34 + n)}')
        for n in range(10):
            a.e(f'v_exp_f32 {vr(44 + n)}, {vr(44 + n)}')
        for n in range(10):
            a.e(f'v_add_f32 {vr(44 + n)}, 1.0, {vr(44 + n)}')
        for n in range(10):
            a.e(f'v_rcp_f32 {vr(44 + n)}, {vr(44 + n)}')
        for n in range(10):
            a.e(f'v_mul_f32 {vr(44 + n)}, {vr(34 + n)}, {vr(44 + n)}')
        for n in range(5):
            a.e(f'v_cvt_pk_bf16_f32 {vr(28 + n)}, {vr(44 + 2 * n)}, {vr(45 + 2 * n)}')
            a.ds(f'ds_write_b32 v9, {vr(28 + n)} offset:{256 * n}')
        a.e(f'v_lshrrev_b32 v9, 4, v0\nv_lshlrev_b32 v10, 4, v9\nv_add_u32 v10, {L_SILU}, v10')
        for s in range(20):
            a.ds(f'ds_read_b128 {vr(64 + 4 * s, 4)}, v10 offset:{64 * s}')
        a.e('v_lshlrev_b32 v9, 8, v9\nv_and_b32 v11, 15, v0\nv_lshl_add_u32 v9, v11, 3, v9')
        a.wait_all(vm=False)
        for g in range(4):
            a.wait(vm=td[5 * g + 4])
            tk = []
            for s in range(5 * g, 5 * g + 5):
                a.ds(f'ds_read_b64_tr_b16 {vr(144 + 4 * s, 2)}, v9 offset:{1024 * s}')
                tk.append(a.ds(f'ds_read_b64_tr_b16 {vr(146 + 4 * s, 2)}, v9 offset:{1024 * s + 128}'))
            for n, s in enumerate(range(5 * g, 5 * g + 5)):
                a.wait(lg=tk[n])
                acc = 56 + 4 * (s & 1)
                a.e(f'v_mfma_f32_16x16x32_bf16 {vr(acc, 4)}, {vr(144 + 4 * s, 4)}, {vr(64 + 4 * s, 4)}, {vr(acc, 4) if s > 1 else 0}')
        a.e(f's_sub_u32 {sr(T)}, {sr(GRP)}, 40\ns_cmp_lt_u32 {sr(T)}, 40\ns_cselect_b32 {sr(T + 1)}, 1.0, 0')
        a.e(f's_sub_u32 {sr(T)}, {sr(GRP)}, 160\ns_cmp_lt_u32 {sr(T)}, 40\ns_cselect_b32 {sr(T + 1)}, 1.0, {sr(T + 1)}')
        a.e(f's_lshl_b32 {sr(T + 2)}, {sr(GRP)}, 7\ns_add_u32 {sr(T + 2)}, {sr(T + 2)}, {sr(VAL)}\ns_add_u32 {sr(T + 2)}, {sr(T + 2)}, {WS_MOD}')
        for r in range(4):
            a.e(f'v_add_f32 {vr(56 + r)}, {vr(56 + r)}, {vr(60 + r)}')
        self.round_pair(56, 60)
        self.round_pair(58, 61)
        for r in range(4):
            a.e(f'v_add_f32 {vr(56 + r)}, {sr(T + 1)}, {vr(56 + r)}')
        a.e('v_cvt_pk_bf16_f32 v60, v56, v57\nv_cvt_pk_bf16_f32 v61, v58, v59')
        a.e(f'v_mov_b32 v62, {vr(V_TAG)}\nv_mov_b32 v63, {vr(V_TAG + 1)}')
        a.e('s_mov_b32 exec_lo, 0x00010001\ns_mov_b32 exec_hi, 0x00010001')
        a.vmem(f'buffer_store_dwordx4 v[60:63], v0, {sr(R_WS, 4)}, {sr(T + 2)} offen sc1')
        a.e('s_mov_b64 exec, -1')
        a.e(f's_mov_b32 {sr(T + 21)}, {OOB}\ns_branch {ljoin}')
        vm0 = a.vm
        a.set_state(st)
        a.label(lwn)
        a.c('waves 1-3: Wqkv re-tiling')
        srd(a, R_A, S_WQKV, 640 * 3840)
        J, BLK, KB, VALD = T + 4, T + 5, T + 6, T + 7
        a.e(f's_mul_i32 {sr(J)}, s2, 3\ns_add_u32 {sr(J)}, {sr(J)}, {sr(S_W)}\ns_sub_u32 {sr(J)}, {sr(J)}, 1')
        a.e(f's_cmp_lt_u32 {sr(J)}, 600\ns_cselect_b32 {sr(VALD)}, 0, {OOB}\ns_cselect_b32 {sr(J)}, {sr(J)}, 0')
        a.e(f's_mul_i32 {sr(BLK)}, {sr(J)}, 205\ns_lshr_b32 {sr(BLK)}, {sr(BLK)}, 12')
        a.e(f's_mul_i32 {sr(KB)}, {sr(BLK)}, 20\ns_sub_u32 {sr(KB)}, {sr(J)}, {sr(KB)}')
        a.e(f's_mul_i32 {sr(T + 16)}, {sr(KB)}, {32 * 3840}\ns_lshl_b32 {sr(T)}, {sr(BLK)}, 7\ns_add_u32 {sr(T + 16)}, {sr(T + 16)}, {sr(T)}')
        a.e(f's_add_u32 {sr(T + 16)}, {sr(T + 16)}, {sr(VALD)}\ns_mov_b32 {sr(T + 17)}, {8 * 3840}')
        a.e(f's_mov_b32 {sr(T)}, 3840\nv_mad_u32_u24 v28, v5, {sr(T)}, v4')
        tok = self.job_issue(0, R_A, 28, T + 16, T + 17)
        self.x_loads()
        a.e(f's_lshl_b32 {sr(T + 21)}, {sr(J)}, 3\ns_add_u32 {sr(T + 21)}, {sr(T + 21)}, {WS_FW}\ns_add_u32 {sr(T + 21)}, {sr(T + 21)}, {sr(VALD)}')
        a.e(f's_add_u32 {sr(VALD)}, {sr(VALD)}, {WS_WQ}')
        self.dest_A(29, BLK, KB, VALD)
        self.make_tag()
        self.job_finish(0, tok, 29, 32)
        a.label(ljoin)
        a.vm = max(a.vm, vm0)
        a.vm_done = 0
        a.lg_done = a.lg
        tj = a.vm
        self.stamp('jobA')
        self.job_bc_setup(0, R_B, 28, 30, T + 16, T + 17)
        tokB = self.job_issue(1, R_B, 28, T + 16, T + 17)
        self.job_bc_setup(1, R_C, 29, 31, T + 18, T + 19)
        tokC = self.job_issue(2, R_C, 29, T + 18, T + 19)
        a.wait(vm=tj)
        self.flag(T + 21)
        srd(a, R_A, S_WPHI, 32 * 800)
        a.e(f's_mul_i32 {sr(T)}, {sr(S_J1)}, 1600\ns_lshl_b32 {sr(T + 1)}, {sr(S_W)}, 9\ns_add_u32 {sr(T)}, {sr(T)}, {sr(T + 1)}')
        a.e(f's_add_u32 m0, {sr(T + 1)}, {L_WPHI}\ns_mov_b32 exec_hi, 0')
        tokP = a.vmem(f'buffer_load_dwordx4 v1, {sr(R_A, 4)}, {sr(T)} offen lds')
        a.e('s_mov_b64 exec, -1')
        a.c('LayerNorm 1')
        for n in range(12):
            self.unpack(64 + 2 * n, 65 + 2 * n, 16 + n)
        a.e('v_and_b32 v9, 7, v0\nv_lshlrev_b32 v9, 4, v9')
        a.e(f's_lshl_b32 {sr(T)}, {sr(S_W)}, 2\ns_add_u32 {sr(T)}, {sr(T)}, {L_LNRED}\nv_add_u32 v10, {sr(T)}, v9\nv_add_u32 v9, {L_LNRED}, v9')
        a.e(f's_cmp_lt_u32 {sr(S_W)}, 2\ns_cselect_b32 {sr(T + 2)}, 1.0, 0')

        def tree(dst, src, n):
            a.e(f'v_pk_add_f32 {vr(dst, 2)}, {vr(src, 2)}, {vr(src + 2, 2)}')
            for k in range(4, n, 2):
                a.e(f'v_pk_add_f32 {vr(dst, 2)}, {vr(dst, 2)}, {vr(src + k, 2)}')

        def all_sum(r, off):
            self.sum_rows(r, 11, (3, 4, 5))
            a.ds(f'ds_write_b32 v10, {vr(r)} offset:{off}')
            a.wait_all(vm=False)
            self.barrier()
            t = a.ds(f'ds_read_b128 v[12:15], v9 offset:{off}')
            a.wait(lg=t)
            a.e(f'v_add_f32 v12, v12, v13\nv_add_f32 v14, v14, v15\nv_add_f32 {vr(r)}, v12, v14')
        tree(88, 64, 24)
        a.e('v_add_f32 v88, v88, v89')
        all_sum(88, 0)
        a.e('v_mul_f32 v88, 0x3acccccd, v88')
        for n in range(12):
            a.e(f'v_pk_add_f32 {vr(92 + 2 * n, 2)}, {vr(64 + 2 * n, 2)}, v[88:89] op_sel_hi:[1,0] neg_lo:[0,1] neg_hi:[0,1]')
        for n in range(12):
            a.e(f'v_pk_mul_f32 {vr(116 + 2 * n, 2)}, {vr(92 + 2 * n, 2)}, {vr(92 + 2 * n, 2)}')
        tree(90, 116, 16)
        tree(140, 132, 8)
        a.e(f'v_add_f32 v90, v90, v91\nv_add_f32 v140, v140, v141\nv_fma_f32 v90, v140, {sr(T + 2)}, v90')
        all_sum(90, 128)
        a.e('v_mul_f32 v90, 0x3acccccd, v90')
        if cfg.mimic >= 1:
            self.round_one(88, 11)
            self.round_one(90, 11)
            a.e('v_add_f32 v90, 0x3727c5ac, v90')
            self.round_one(90, 11)
            a.e('v_sqrt_f32 v90, v90')
            self.round_one(90, 11)
            a.e('v_rcp_f32 v90, v90')
            for n in range(12):
                a.e(f'v_pk_add_f32 {vr(92 + 2 * n, 2)}, {vr(64 + 2 * n, 2)}, v[88:89] op_sel_hi:[1,0] neg_lo:[0,1] neg_hi:[0,1]')
            for n in range(12):
                self.round_pair(92 + 2 * n, 116 + n)
        else:
            a.e('v_add_f32 v90, 0x3727c5ac, v90\nv_rsq_f32 v90, v90')
        for n in range(12):
            a.e(f'v_pk_mul_f32 {vr(64 + 2 * n, 2)}, {vr(92 + 2 * n, 2)}, v[90:91] op_sel_hi:[1,0]')
        if cfg.mimic >= 1:
            for n in range(12):
                self.round_pair(64 + 2 * n, 116 + n)
        self.stamp('ln1')
        self.job_finish(1, tokB, 30, 32)
        self.job_finish(2, tokC, 31, 92)
        self.stamp('jobBC')
        a.c('wait for mod, modulate, publish h')
        a.e(f's_mul_i32 {sr(T)}, {sr(S_W)}, 2560\ns_add_u32 {sr(T)}, {sr(T)}, {WS_MOD}')
        a.e('v_lshrrev_b32 v9, 2, v0\nv_lshlrev_b32 v9, 7, v9\nv_add_u32 v9, v9, v8')
        a.e('v_bfe_u32 v10, v0, 2, 2\nv_lshlrev_b32 v10, 7, v10\nv_add_u32 v10, v10, v8')
        a.e(f's_mul_i32 {sr(T + 1)}, {sr(S_W)}, 1280\ns_add_u32 {sr(T + 1)}, {sr(T + 1)}, {L_MODP}')
        a.e(f'v_add_u32 v11, {sr(T + 1)}, v1\nv_and_b32 v12, 0xf0, v1\nv_add_u32 v12, {sr(T + 1)}, v12')
        a.e(f's_lshl_b32 {sr(T + 2)}, {sr(S_W)}, 8\ns_add_u32 {sr(T + 2)}, {sr(T + 2)}, {L_MODP}')
        a.e(f'v_lshlrev_b32 v13, 5, v5\nv_add_u32 v13, {sr(T + 2)}, v13')
        a.e('v_and_b32 v14, 7, v0\nv_lshlrev_b32 v14, 4, v14\nv_lshl_add_u32 v14, v5, 9, v14')
        a.e(f's_lshr_b32 {sr(T + 3)}, s2, 2\ns_mul_i32 {sr(T + 3)}, {sr(T + 3)}, 40960\ns_and_b32 {sr(T + 4)}, s2, 3\ns_lshl_b32 {sr(T + 4)}, {sr(T + 4)}, 7')
        a.e(f's_add_u32 {sr(T + 3)}, {sr(T + 3)}, {sr(T + 4)}\ns_lshl_b32 {sr(T + 4)}, {sr(S_W)}, 12\ns_add_u32 {sr(T + 3)}, {sr(T + 3)}, {sr(T + 4)}')
        a.e(f's_add_u32 {sr(T + 3)}, {sr(T + 3)}, {WS_H}\ns_add_u32 {sr(T + 4)}, {sr(T + 3)}, 16384\ns_add_u32 {sr(T + 5)}, {sr(T + 3)}, 32768')
        a.e(f's_cmp_lt_u32 {sr(S_W)}, 2\ns_cselect_b32 {sr(T + 5)}, {sr(T + 5)}, {OOB}')
        a.e(f's_lshl_b32 {sr(T + 6)}, s2, 2\ns_add_u32 {sr(T + 6)}, {sr(T + 6)}, {sr(S_W)}\ns_lshl_b32 {sr(T + 6)}, {sr(T + 6)}, 7\ns_add_u32 {sr(T + 6)}, {sr(T + 6)}, {WS_FH}')
        self.poll([(f'buffer_load_dwordx4 v[16:19], v9, {sr(R_WS, 4)}, {sr(T)} offen sc1', 18),
                   (f'buffer_load_dwordx4 v[20:23], v10, {sr(R_WS, 4)}, {sr(T)} offen offset:2048 sc1', 22)])
        self.stamp('mod')
        self.unpack(24, 25, 16)
        self.unpack(26, 27, 17)
        self.unpack(32, 33, 20)
        self.unpack(34, 35, 21)
        a.ds('ds_write_b128 v11, v[24:27]')
        a.ds('ds_write_b128 v12, v[32:35] offset:1024')
        a.wait_all(vm=False)
        self.barrier()
        tk = []
        for r in range(3):
            a.ds(f'ds_read_b128 {vr(92 + 16 * r, 4)}, v13 offset:{1024 * r + 2560}')
            a.ds(f'ds_read_b128 {vr(96 + 16 * r, 4)}, v13 offset:{1024 * r + 2576}')
            a.ds(f'ds_read_b128 {vr(100 + 16 * r, 4)}, v13 offset:{1024 * r}')
            tk.append(a.ds(f'ds_read_b128 {vr(104 + 16 * r, 4)}, v13 offset:{1024 * r + 16}'))
        for r in range(3):
            a.wait(lg=tk[r])
            for n in range(4):
                x, s, b = 64 + 8 * r + 2 * n, 92 + 16 * r + 2 * n, 100 + 16 * r + 2 * n
                if cfg.mimic >= 2:
                    a.e(f'v_pk_mul_f32 {vr(x, 2)}, {vr(x, 2)}, {vr(s, 2)}')
                    self.round_pair(x, 15)
                    a.e(f'v_pk_add_f32 {vr(x, 2)}, {vr(x, 2)}, {vr(b, 2)}')
                else:
                    a.e(f'v_pk_fma_f32 {vr(x, 2)}, {vr(x, 2)}, {vr(s, 2)}, {vr(b, 2)}')
            for n in range(4):
                a.e(f'v_cvt_pk_bf16_f32 {vr(16 + 4 * r + n)}, {vr(64 + 8 * r + 2 * n)}, {vr(65 + 8 * r + 2 * n)}')
            last = a.vmem(f'buffer_store_dwordx4 {vr(16 + 4 * r, 4)}, v14, {sr(R_WS, 4)}, {sr(T + 3 + r)} offen sc1')
        self.tok_h = last

    def frag_addr(self, vd, t):
        a = self.a
        a.e(f'v_bfe_u32 {vr(t)}, v0, 2, 3\nv_lshlrev_b32 {vr(vd)}, 7, {vr(t)}')
        a.e(f'v_lshrrev_b32 {vr(t)}, 4, v0\nv_lshrrev_b32 {vr(t + 1)}, 5, v0\nv_xor_b32 {vr(t)}, {vr(t)}, {vr(t + 1)}\nv_and_b32 {vr(t)}, 1, {vr(t)}')
        a.e(f'v_lshl_add_u32 {vr(vd)}, {vr(t)}, 6, {vr(vd)}\nv_add_u32 {vr(vd)}, {vr(vd)}, v8')

    def wphi_frags(self):
        a = self.a
        a.e('v_and_b32 v9, 1, v0\nv_mul_u32_u24 v9, 0x320, v9\nv_bfe_u32 v10, v0, 2, 2\nv_mul_u32_u24 v10, 40, v10\nv_add_u32 v9, v9, v10')
        a.e('v_bfe_u32 v10, v0, 1, 1\nv_bfe_u32 v11, v0, 4, 1\nv_lshl_add_u32 v10, v11, 1, v10\nv_lshl_add_u32 v9, v10, 3, v9')
        a.e(f'v_add_u32 v9, {L_WPHI}, v9')
        a.e('v_bfe_u32 v10, v0, 2, 1\nv_lshrrev_b32 v11, 5, v0\nv_cmp_eq_u32 vcc, v10, v11\nv_cndmask_b32 v10, 0, -1, vcc')
        for t in range(2):
            for s in range(3):
                r = 200 + 12 * t + 4 * s
                a.ds(f'ds_read_b64_tr_b16 {vr(r, 2)}, v9 offset:{32 * t + 320 * s}')
                if s < 2:
                    a.ds(f'ds_read_b64_tr_b16 {vr(r + 2, 2)}, v9 offset:{32 * t + 320 * s + 160}')
                else:
                    a.e(f'v_mov_b32 {vr(r + 2)}, 0\nv_mov_b32 {vr(r + 3)}, 0')
        a.wait_all(vm=False)
        for t in range(2):
            for n in range(10):
                r = 200 + 12 * t + n
                a.e(f'v_and_b32 {vr(r)}, {vr(r)}, v10')

    def feature_map(self, src, out):
        a, cfg = self.a, self.cfg
        for n in range(10):
            a.e(f'v_cvt_pk_bf16_f32 {vr(128 + n)}, {vr(src + 2 * n)}, {vr(src + 2 * n + 1)}')
        a.e('v_mov_b32 v138, 0\nv_mov_b32 v139, 0')
        for t in (1, 0):
            for s in range(3):
                acc = 140 + 16 * t
                a.e(f'v_mfma_f32_32x32x16_bf16 {vr(acc, 16)}, {vr(200 + 12 * t + 4 * s, 4)}, {vr(128 + 4 * s, 4)}, {vr(acc, 16) if s else 0}')
        P, E = 140, 172
        if cfg.mimic >= 2:
            for n in range(10):
                self.round_pair(P + 2 * n, 128 + n)
        for op, d in (('max', 192), ('min', 194)):
            a.e(f'v_{op}3_f32 {vr(d)}, {vr(P + 16)}, {vr(P + 17)}, {vr(P + 18)}\nv_{op}3_f32 {vr(d + 1)}, {vr(P + 19)}, {vr(P)}, {vr(P + 1)}')
            for k in range(2, 16, 4):
                a.e(f'v_{op}3_f32 {vr(d)}, {vr(d)}, {vr(P + k)}, {vr(P + k + 1)}')
                if k + 2 < 16:
                    a.e(f'v_{op}3_f32 {vr(d + 1)}, {vr(d + 1)}, {vr(P + k + 2)}, {vr(P + k + 3)}')
            a.e(f'v_{op}_f32 {vr(d)}, {vr(d)}, {vr(d + 1)}')
        for n in range(10):
            a.e(f'v_pk_add_f32 {vr(E + 2 * n, 2)}, {vr(P + 2 * n, 2)}, v[192:193] op_sel_hi:[1,0] neg_lo:[0,1] neg_hi:[0,1]')
            a.e(f'v_pk_add_f32 {vr(P + 2 * n, 2)}, {vr(P + 2 * n, 2)}, v[194:195] op_sel_hi:[1,0] neg_lo:[1,0] neg_hi:[1,0]')
        for b in (E, P):
            for n in range(10):
                a.e(f'v_pk_mul_f32 {vr(b + 2 * n, 2)}, {vr(b + 2 * n, 2)}, {sr(S_L2E, 2)}')
        for b in (E, P):
            for n in range(20):
                a.e(f'v_exp_f32 {vr(b + n)}, {vr(b + n)}')
        for b, d in ((E, 192), (P, 196)):
            a.e(f'v_pk_add_f32 {vr(d, 2)}, {vr(b, 2)}, {vr(b + 2, 2)}\nv_pk_add_f32 {vr(d + 2, 2)}, {vr(b + 4, 2)}, {vr(b + 6, 2)}')
        for k in range(8, 20, 4):
            for b, d in ((E, 192), (P, 196)):
                a.e(f'v_pk_add_f32 {vr(d, 2)}, {vr(d, 2)}, {vr(b + k, 2)}\nv_pk_add_f32 {vr(d + 2, 2)}, {vr(d + 2, 2)}, {vr(b + k + 2, 2)}')
        for d in (192, 196):
            a.e(f'v_pk_add_f32 {vr(d, 2)}, {vr(d, 2)}, {vr(d + 2, 2)}')
        for d in (192, 196):
            a.e(f'v_add_f32 {vr(d)}, {vr(d)}, {vr(d + 1)}')
        for d in (192, 196):
            a.e(f'v_rcp_f32 {vr(d)}, {vr(d)}')
        for b, d, o in ((E, 192, out), (P, 196, out + 10)):
            for n in range(10):
                a.e(f'v_pk_mul_f32 {vr(b + 2 * n, 2)}, {vr(b + 2 * n, 2)}, {vr(d, 2)} op_sel_hi:[1,0]')
            for n in range(10):
                a.e(f'v_cvt_pk_bf16_f32 {vr(o + n)}, {vr(b + 2 * n)}, {vr(b + 2 * n + 1)}')

    def phase1(self):
        a, cfg = self.a, self.cfg
        T = S_T
        a.c('phase 1: qkv projection')
        a.e('v_min_u32 v9, 59, v0\nv_mul_u32_u24 v10, 0xcd, v9\nv_lshrrev_b32 v10, 12, v10\nv_mul_u32_u24 v10, 0xb4, v10')
        a.e('v_add_u32 v9, v9, v10\nv_lshlrev_b32 v9, 3, v9')
        a.e(f's_mul_i32 {sr(T)}, {sr(S_J1)}, 40\ns_add_u32 {sr(T + 1)}, {sr(T)}, 39\ns_lshr_b32 {sr(T)}, {sr(T)}, 6\ns_lshr_b32 {sr(T + 1)}, {sr(T + 1)}, 6')
        for k in range(2):
            a.e(f's_mul_i32 {sr(T + k)}, {sr(T + k)}, 160\ns_add_u32 {sr(T + k)}, {sr(T + k)}, {WS_FW}')
        self.poll([(f'buffer_load_dwordx2 v[28:29], v9, {sr(R_WS, 4)}, {sr(T)} offen sc1', 28),
                   (f'buffer_load_dwordx2 v[30:31], v9, {sr(R_WS, 4)}, {sr(T + 1)} offen sc1', 30)])
        self.flag(T + 6)
        self.stamp('hpub')
        SRC, DST, HB = T + 8, T + 9, T + 10
        a.e(f's_mul_i32 {sr(SRC)}, {sr(S_J1)}, 153600\ns_lshl_b32 {sr(DST)}, {sr(S_W)}, 10\ns_add_u32 {sr(SRC)}, {sr(SRC)}, {sr(DST)}\ns_add_u32 {sr(SRC)}, {sr(SRC)}, {WS_WQ}')
        a.e(f's_cmp_gt_u32 {sr(S_W)}, 1\ns_cselect_b32 {sr(T + 11)}, 2048, 0')
        wtok = {}

        def wdma(q):
            if q == 37:
                a.e(f's_sub_u32 {sr(SRC)}, {sr(SRC)}, {sr(T + 11)}\ns_sub_u32 {sr(DST)}, {sr(DST)}, {sr(T + 11)}')
            a.e(f's_add_u32 m0, {sr(DST)}, {q * 4096}\ns_add_u32 {sr(T + 12)}, {sr(SRC)}, {q * 4096}')
            wtok[q] = a.vmem(f'buffer_load_dwordx4 v1, {sr(R_WS, 4)}, {sr(T + 12)} offen sc1 lds')
        NPRE = 18
        for q in range(NPRE):
            wdma(q)
        self.wphi_frags()
        self.frag_addr(4, 9)
        a.e(f'v_add_u32 v5, 0x10000, v4\nv_add_u32 v6, {L_P2W}, v4')
        a.e(f's_lshl_b32 {sr(T)}, {sr(S_G1)}, 2\ns_add_u32 {sr(T)}, {sr(T)}, {sr(S_W)}\ns_mul_i32 {sr(HB)}, {sr(T)}, 40960\ns_add_u32 {sr(HB)}, {sr(HB)}, {WS_H}')
        a.e(f's_lshl_b32 {sr(T)}, {sr(T)}, 11\ns_add_u32 {sr(T)}, {sr(T)}, {WS_FH}\nv_and_b32 v9, 15, v0\nv_lshlrev_b32 v9, 7, v9')
        self.poll([(f'buffer_load_dwordx2 v[28:29], v9, {sr(R_WS, 4)}, {sr(T)} offen sc1', 28)])
        self.stamp('hready')
        htok = {}

        def hload(s):
            if s and s % 4 == 0:
                a.e(f's_add_u32 {sr(HB)}, {sr(HB)}, 4096')
            htok[s] = a.vmem(f'buffer_load_dwordx4 {ar(4 * s, 4)}, v1, {sr(R_WS, 4)}, {sr(HB)} offen offset:{(s % 4) * 1024} sc1')
        HPRE = 16
        for s in range(HPRE):
            hload(s)
        LA = 6
        nf = 120
        rtok = {}

        def wread(f):
            if f % 24 == 0:
                a.wait(vm=wtok[f // 4 + 5])
                self.barrier()
            off = f * 1024
            rtok[f] = a.ds(f'ds_read_b128 {ar(160 + 4 * (f % 8), 4)}, v{4 + (off >> 16)} offset:{off & 0xffff}')
        for f in range(LA):
            wread(f)
        nq, nh = NPRE, HPRE
        for f in range(nf):
            s, t = divmod(f, 3)
            a.wait(vm=htok[s] if t == 0 else None, lg=rtok[f])
            acc = 64 + 16 * t
            a.e(f'v_mfma_f32_32x32x16_bf16 {vr(acc, 16)}, {ar(160 + 4 * (f % 8), 4)}, {ar(4 * s, 4)}, {vr(acc, 16) if s else 0}')
            if t == 0 and nh < 40:
                hload(nh)
                nh += 1
            if t == 1 and nq < 38:
                wdma(nq)
                nq += 1
            if f + LA < nf:
                wread(f + LA)
        self.stamp('pass1')
        a.c('feature map of k, partial kv')
        self.feature_map(64, 224)
        for n in range(10):
            a.e(f'v_cvt_pk_bf16_f32 {vr(128 + n)}, {vr(84 + 2 * n)}, {vr(85 + 2 * n)}')
        a.e('v_mov_b32 v138, 0x3f80\nv_mov_b32 v139, 0')
        a.e(f's_mul_i32 {sr(T)}, {sr(S_W)}, {32 * TP}\nv_and_b32 v9, 31, v0\nv_mul_u32_u24 v9, {TP}, v9\nv_add_u32 v9, {sr(T)}, v9')
        a.e('v_lshrrev_b32 v11, 5, v0\nv_mul_u32_u24 v10, 48, v11\nv_add_u32 v10, v10, v9\nv_mul_u32_u24 v11, 80, v11\nv_add_u32 v9, v11, v9')
        for n in range(5):
            a.ds(f'ds_write_b128 v9, {vr(224 + 4 * n, 4)} offset:{16 * n}')
        for n in range(3):
            a.ds(f'ds_write_b128 v10, {vr(128 + 4 * n, 4)} offset:{160 + 16 * n}')
        a.e(f'v_lshrrev_b32 v11, 5, v0\nv_bfe_u32 v12, v0, 2, 2\nv_lshl_add_u32 v11, v11, 3, v12\nv_mul_u32_u24 v11, {TP}, v11')
        a.e('v_bfe_u32 v12, v0, 4, 1\nv_and_b32 v13, 3, v0\nv_lshl_add_u32 v14, v12, 2, v13')
        a.e('v_and_b32 v15, 1, v0\nv_lshlrev_b32 v15, 1, v15\nv_lshl_add_u32 v15, v12, 2, v15\nv_bfe_u32 v13, v0, 1, 1\nv_add_u32 v15, v15, v13')
        a.e(f's_lshr_b32 {sr(T)}, {sr(S_W)}, 1\ns_and_b32 {sr(T + 1)}, {sr(S_W)}, 1\ns_mul_i32 {sr(T + 2)}, {sr(T)}, 80\ns_lshl_b32 {sr(T + 3)}, {sr(T + 1)}, 6')
        a.e(f's_add_u32 {sr(T + 2)}, {sr(T + 2)}, {sr(T + 3)}\ns_mul_i32 {sr(T + 3)}, {sr(T)}, 48\ns_add_u32 {sr(T + 3)}, {sr(T + 3)}, 160')
        a.e(f'v_lshl_add_u32 v12, v15, 3, v11\nv_add_u32 v12, {sr(T + 2)}, v12\nv_lshl_add_u32 v13, v14, 3, v11\nv_add_u32 v13, {sr(T + 3)}, v13')
        a.e(f'v_lshrrev_b32 v9, 5, v0\nv_and_b32 v10, 31, v0\ns_mul_i32 {sr(T)}, {sr(T)}, 5\ns_lshl_b32 {sr(T + 2)}, {sr(T + 1)}, 2\ns_add_u32 {sr(T)}, {sr(T)}, {sr(T + 2)}')
        a.e(f'v_add_u32 v11, {sr(T)}, v9\nv_mul_u32_u24 v11, 21, v11\nv_add_u32 v11, v11, v10\nv_lshlrev_b32 v11, 4, v11')
        a.e(f's_cmp_eq_u32 {sr(T + 1)}, 0\ns_cselect_b32 {sr(T + 2)}, 64, 32\ns_cselect_b32 {sr(T + 3)}, {42 * 16}, {OOB}')
        a.e(f'v_mov_b32 v9, {OOB}\nv_cmp_gt_u32 vcc, 21, v10\nv_cndmask_b32 v11, v9, v11, vcc\nv_cmp_gt_u32 vcc, {sr(T + 2)}, v0\nv_cndmask_b32 v14, v9, v11, vcc')
        a.e(f's_lshl_b32 {sr(T)}, {sr(S_J1)}, 4\ns_add_u32 {sr(T)}, {sr(T)}, {sr(S_G1)}\ns_mul_i32 {sr(T + 4)}, {sr(T)}, 3456\ns_add_u32 {sr(T + 4)}, {sr(T + 4)}, {WS_KVP}')
        a.e(f's_add_u32 {sr(T + 5)}, {sr(T + 4)}, {sr(T + 3)}')
        a.e(f's_lshl_b32 {sr(T)}, {sr(T)}, 2\ns_add_u32 {sr(T)}, {sr(T)}, {sr(S_W)}\ns_lshl_b32 {sr(T + 6)}, {sr(T)}, 7\ns_add_u32 {sr(T + 6)}, {sr(T + 6)}, {WS_FKV}')
        a.wait(vm=wtok[37])
        a.wait_all(vm=False)
        self.barrier()
        tk = []
        for s in range(8):
            for z in range(2):
                a.ds(f'ds_read_b64_tr_b16 {vr(128 + 8 * s + 2 * z, 2)}, v12 offset:{(16 * s + 4 * z) * TP}')
            for z in range(2):
                t = a.ds(f'ds_read_b64_tr_b16 {vr(132 + 8 * s + 2 * z, 2)}, v13 offset:{(16 * s + 4 * z) * TP}')
            tk.append(t)
            if s >= 2:
                a.wait(lg=tk[s - 2])
                a.e(f'v_mfma_f32_32x32x16_bf16 v[64:79], {vr(128 + 8 * (s - 2), 4)}, {vr(132 + 8 * (s - 2), 4)}, {"v[64:79]" if s > 2 else 0}')
        for s in (6, 7):
            a.wait(lg=tk[s])
            a.e(f'v_mfma_f32_32x32x16_bf16 v[64:79], {vr(128 + 8 * s, 4)}, {vr(132 + 8 * s, 4)}, v[64:79]')
        for n in range(8):
            a.e(f'v_cvt_pk_bf16_f32 {vr(80 + n)}, {vr(64 + 2 * n)}, {vr(65 + 2 * n)}')
        a.vmem(f'buffer_store_dwordx4 v[80:83], v14, {sr(R_WS, 4)}, {sr(T + 4)} offen sc1')
        tkv = a.vmem(f'buffer_store_dwordx4 v[84:87], v14, {sr(R_WS, 4)}, {sr(T + 5)} offen sc1')
        self.stamp('kvst')
        rtok = {}

        def wread2(s):
            rtok[s] = a.ds(f'ds_read_b128 {ar(160 + 4 * (s % 8), 4)}, v6 offset:{s * 768}')
        for s in range(LA):
            wread2(s)
        for s in range(40):
            a.wait(lg=rtok[s])
            a.e(f'v_mfma_f32_32x32x16_bf16 v[112:127], {ar(160 + 4 * (s % 8), 4)}, {ar(4 * s, 4)}, {"v[112:127]" if s else 0}')
            if s + LA < 40:
                wread2(s + LA)
            if s == 20:
                a.wait(vm=tkv)
                self.flag(T + 6)
        self.feature_map(104, 224)
        self.stamp('phiq')
        a.c('reduce kv, o = num / den')
        a.e(f's_lshl_b32 {sr(T)}, {sr(S_W)}, 6\nv_add_u32 v9, {sr(T)}, v0\nv_lshlrev_b32 v10, 4, v9\nv_mov_b32 v11, {OOB}')
        a.e('v_cmp_gt_u32 vcc, 0xd2, v9\nv_cndmask_b32 v10, v11, v10, vcc')
        a.e('v_mul_u32_u24 v11, 0x187, v9\nv_lshrrev_b32 v11, 13, v11\nv_mul_u32_u24 v12, 21, v11\nv_sub_u32 v12, v9, v12')
        a.e(f'v_mul_u32_u24 v12, 80, v12\nv_lshl_add_u32 v12, v11, 4, v12\nv_add_u32 v13, {1920 - 80}, v12')
        a.e(f'v_cmp_gt_u32 {sr(T + 2, 2)}, 5, v11\nv_cndmask_b32 v12, v13, v12, {sr(T + 2, 2)}')
        a.e(f'v_mov_b32 v13, 3920\nv_cndmask_b32 v12, v13, v12, vcc\nv_add_u32 v12, {L_KVR}, v12')
        a.e(f'v_mov_b32 v16, 0\nv_mov_b32 v17, 0\nv_mov_b32 v18, 0\nv_mov_b32 v19, 0\nv_min_u32 v13, 4, v0\nv_lshlrev_b32 v13, 4, v13\nv_add_u32 v13, {L_KVZ}, v13')
        a.ds('ds_write_b128 v13, v[16:19]')
        a.e('v_bfe_u32 v16, v0, 2, 1\nv_bfe_u32 v17, v0, 3, 2\nv_and_b32 v18, 3, v0\nv_lshrrev_b32 v19, 5, v0')
        a.e('v_add_u32 v20, v17, v16\nv_lshl_add_u32 v20, v20, 2, v18')
        a.e('v_lshlrev_b32 v21, 2, v16\nv_sub_u32 v21, 4, v21\nv_cmp_eq_u32 vcc, 0, v17\nv_cndmask_b32 v21, 5, v21, vcc\nv_lshl_add_u32 v21, v21, 2, v18')
        a.e(f'v_mul_u32_u24 v22, 0x780, v16\nv_add_u32 v22, {L_KVR}, v22\nv_mov_b32 v23, {L_KVZ}\nv_cmp_eq_u32 vcc, v16, v19')
        a.e('v_mul_u32_u24 v20, 80, v20\nv_add_u32 v20, v20, v22\nv_cndmask_b32 v14, v23, v20, vcc')
        a.e('v_mul_u32_u24 v21, 80, v21\nv_add_u32 v21, v21, v22\nv_cndmask_b32 v15, v23, v21, vcc')
        a.e('v_bfe_u32 v16, v0, 4, 1\nv_mul_u32_u24 v16, 0x5000, v16\nv_and_b32 v17, 0xf0, v1\nv_add_u32 v21, v16, v17\nv_mul_u32_u24 v19, 0x300, v19\nv_add_u32 v20, v21, v19')
        a.e(f's_lshl_b32 {sr(T)}, {sr(S_G1)}, 2\ns_add_u32 {sr(T)}, {sr(T)}, {sr(S_W)}\ns_mul_i32 {sr(T + 7)}, {sr(T)}, 40960\ns_mul_i32 {sr(T)}, {sr(S_J1)}, 1280')
        a.e(f's_add_u32 {sr(T + 7)}, {sr(T + 7)}, {sr(T)}\ns_add_u32 {sr(T + 7)}, {sr(T + 7)}, {WS_O}')
        a.e(f's_lshl_b32 {sr(T)}, {sr(S_G1)}, 4\ns_add_u32 {sr(T)}, {sr(T)}, {sr(S_J1)}\ns_lshl_b32 {sr(T)}, {sr(T)}, 2\ns_add_u32 {sr(T)}, {sr(T)}, {sr(S_W)}')
        a.e(f's_lshl_b32 {sr(T + 6)}, {sr(T)}, 7\ns_add_u32 {sr(T + 6)}, {sr(T + 6)}, {WS_FO}')
        a.e(f's_mul_i32 {sr(T + 4)}, {sr(S_J1)}, {16 * 3456}\ns_add_u32 {sr(T + 4)}, {sr(T + 4)}, {WS_KVP}')
        a.e(f's_lshl_b32 {sr(T)}, {sr(S_J1)}, 13\ns_add_u32 {sr(T)}, {sr(T)}, {WS_FKV}\nv_lshlrev_b32 v9, 7, v0')
        a.e(f's_mov_b32 {sr(T + 2)}, 0x3f80\ns_mov_b32 {sr(T + 3)}, 0x3f800000')
        for n in range(8):
            a.e(f'v_mov_b32 {vr(192 + n)}, 0')
        self.poll([(f'buffer_load_dwordx2 v[28:29], v9, {sr(R_WS, 4)}, {sr(T)} offen sc1', 28)])
        self.stamp('kvready')
        tk = []
        for g in range(16):
            if g:
                a.e(f's_add_u32 {sr(T + 4)}, {sr(T + 4)}, 3456')
            tk.append(a.vmem(f'buffer_load_dwordx4 {vr(128 + 4 * g, 4)}, v10, {sr(R_WS, 4)}, {sr(T + 4)} offen sc1'))
        for g in range(16):
            a.wait(vm=tk[g])
            for n in range(4):
                a.e(f'v_dot2c_f32_bf16 {vr(192 + 2 * n)}, {sr(T + 2)}, {vr(128 + 4 * g + n)}')
                a.e(f'v_dot2c_f32_bf16 {vr(193 + 2 * n)}, {sr(T + 3)}, {vr(128 + 4 * g + n)}')
        for n in range(4):
            a.e(f'v_cvt_pk_bf16_f32 {vr(16 + n)}, {vr(192 + 2 * n)}, {vr(193 + 2 * n)}')
        a.ds('ds_write_b128 v12, v[16:19]')
        a.wait_all(vm=False)
        self.barrier()
        tk = []
        for t in (1, 0):
            for s in range(5):
                tk.append(a.ds(f'ds_read_b128 {vr(128 + 20 * t + 4 * s, 4)}, v{14 + t} offset:{16 * s}'))
        n = 0
        for t in (1, 0):
            for s in range(5):
                a.wait(lg=tk[n])
                n += 1
                acc = 64 + 16 * t
                a.e(f'v_mfma_f32_32x32x16_bf16 {vr(acc, 16)}, {vr(128 + 20 * t + 4 * s, 4)}, {vr(224 + 4 * s, 4)}, {vr(acc, 16) if s else 0}')
        if cfg.mimic >= 2:
            self.round_one(84, 9)
            a.e('v_add_f32 v84, 0x358637bd, v84')
            self.round_one(84, 9)
            for n in range(10):
                self.round_pair(64 + 2 * n, 128 + n)
        else:
            a.e('v_add_f32 v84, 0x358637bd, v84')
        a.e('v_rcp_f32 v84, v84')
        for n in range(10):
            a.e(f'v_pk_mul_f32 {vr(64 + 2 * n, 2)}, {vr(64 + 2 * n, 2)}, v[84:85] op_sel_hi:[1,0]')
        for n in range(10):
            a.e(f'v_cvt_pk_bf16_f32 {vr(128 + n)}, {vr(64 + 2 * n)}, {vr(65 + 2 * n)}')
        a.vmem(f'buffer_store_dwordx4 v[128:131], v20, {sr(R_WS, 4)}, {sr(T + 7)} offen sc1')
        a.vmem(f'buffer_store_dwordx4 v[132:135], v20, {sr(R_WS, 4)}, {sr(T + 7)} offen offset:256 sc1')
        a.e('v_permlane32_swap_b32 v136, v138\nv_permlane32_swap_b32 v137, v139\ns_mov_b32 exec_hi, 0')
        self.tok_o = a.vmem(f'buffer_store_dwordx4 v[136:139], v21, {sr(R_WS, 4)}, {sr(T + 7)} offen offset:512 sc1')
        a.e('s_mov_b64 exec, -1')
        self.stamp('ost')

    def finish(self):
        a, cfg = self.a, self.cfg
        T = S_T
        if cfg.diag:
            self.stamp('end')
            a.e(f's_lshl_b32 {sr(T)}, s2, 2\ns_add_u32 {sr(T)}, {sr(T)}, {sr(S_W)}\ns_lshl_b32 {sr(T)}, {sr(T)}, 8\ns_add_u32 {sr(T)}, {sr(T)}, {WS_DBG}')
            a.e('v_lshlrev_b32 v9, 2, v0')
            a.vmem(f'buffer_store_dword {vr(V_STAMP)}, v9, {sr(R_WS, 4)}, {sr(T)} offen')
        a.label('L_end')
        a.e('s_endpgm')

    def advance_epoch(self):
        a = self.a
        T = S_T
        a.e(f's_lshl_b32 {sr(T + 27)}, s2, 2\ns_add_u32 {sr(T + 27)}, {sr(T + 27)}, {sr(S_W)}\ns_cmp_eq_u32 {sr(T + 27)}, 0\ns_cselect_b32 {sr(T + 27)}, {WS_EPOCH}, {OOB}')
        self.flag(T + 27)

    def build(self):
        cfg = self.cfg
        self.prologue()
        self.startup()
        if cfg.stop == 'startup':
            self.a.wait_all()
        else:
            self.phase1()
            if cfg.stop == 'phase1':
                self.a.wait_all()
            else:
                from gen2 import back_half
                back_half(self)
        self.finish()
        body = pad_hazards(self.a.lines)
        head = open(f'cdna_kernels/{NAME}.s.ref').read().split('\n')
        out = []
        for l in head:
            if l.startswith('; @launch'):
                out.append('; @launch grid=(256,1,1) block=(256,1,1) lds=163840')
            else:
                out.append(l)
            if l.startswith(NAME + '_kernel:'):
                break
        out += body
        out += ['.section .rodata,"a"', '.p2align 6', f'.amdhsa_kernel {NAME}_kernel',
                '  .amdhsa_next_free_vgpr 512', '  .amdhsa_next_free_sgpr 102', '  .amdhsa_accum_offset 256',
                '  .amdhsa_group_segment_fixed_size 0', '  .amdhsa_kernarg_size 104', '  .amdhsa_user_sgpr_count 2',
                '  .amdhsa_user_sgpr_kernarg_segment_ptr 1', '  .amdhsa_system_sgpr_workgroup_id_x 1',
                '  .amdhsa_float_denorm_mode_32 3', '.end_amdhsa_kernel', '']
        return '\n'.join(out)


def main():
    cfg = Cfg()
    path = None
    for arg in sys.argv[1:]:
        if '=' in arg:
            k, v = arg.split('=')
            old = getattr(Cfg, k)
            setattr(cfg, k, (v == '1') if isinstance(old, bool) else int(v) if isinstance(old, int) else v)
        else:
            path = arg
    g = Gen(cfg)
    text = g.build()
    open(path, 'w').write(text)
    open(path + '.stamps', 'w').write('\n'.join(g.stamps))
    print('wrote', path, len(text), 'bytes,', text.count('\n'), 'lines')


if __name__ == '__main__':
    import gen
    gen.main()
```

```python
import sys
from asmlib import Asm, pad_hazards, vr, ar, sr

NAME = 'adaLN_cond__linear_kernel_hedgehog__glu_gated_swiglu__prompt'

WS_EPOCH = 0
WS_FW = 0x1000
WS_FH = 0x10000
WS_FKV = 0x30000
WS_FO = 0x50000
WS_FY = 0x70000
WS_FHH = 0x90000
WS_MOD = 0xB0000
WS_ST = 0xC0000
WS_KVP = 0x100000
WS_WQ = 0x200000
WS_H = 0x480000
WS_O = 0x700000
WS_Y = 0x980000
WS_WO = 0xC00000
WS_W13 = 0xD00000
WS_W2 = 0x1180000
WS_HH = 0x1400000
WS_DBG = 0x1B00000
WS_SIZE = 0x1C00000
OOB_VAL = 0x40000000
OOB = 's3'

L_JOB = 20480
L_P2W = 122880
L_MISC = 153600
L_MODP = L_MISC
L_SILU = L_MISC + 5120
L_LNRED = L_MISC + 6400
L_WPHI = L_MISC + 6656
L_KVR = L_MISC + 512
L_KVZ = L_KVR + 3840
L_PAR = L_MISC + 8704
L_XCH = 143360
TP = 336
RING = 140

S_X, S_WQKV, S_WPHI, S_WO, S_W1, S_W3, S_W2, S_C, S_WMOD, S_OUT, S_DBG, S_WS = 4, 6, 8, 10, 14, 16, 18, 20, 22, 24, 26, 28
S_TAG = 30
R_WS, R_A, R_B, R_C, R_X, R_OUT = 32, 36, 40, 44, 48, 52
S_W, S_XC, S_I, S_G1, S_J1, S_M2, S_N2, S_G3, S_J3 = 56, 57, 58, 59, 60, 61, 62, 63, 64
S_SPIN = 65
S_L2E = 66
S_T = 68
S_STAMP = 98

V_LANE, V_L16, V_TAG = 0, 1, 2
V_STAMP = 255


class Cfg:
    diag = False
    stop = None
    mimic = 0
    map2 = '8x1'
    map3 = '4x2'
    spin = 200000
    pfcode = 1
    badmap = 0
    n3a = 10
    n3b = 10
    n3c = 8
    ypre = 16
    hpre = 12


def srd(a, r, ptr, size):
    a.e(f's_mov_b32 {sr(r)}, {sr(ptr)}\ns_mov_b32 {sr(r + 1)}, {sr(ptr + 1)}\n'
        f's_mov_b32 {sr(r + 2)}, {size}\ns_mov_b32 {sr(r + 3)}, 0x20000')


class Gen:
    def __init__(self, cfg):
        self.cfg = cfg
        self.a = Asm()
        self.stamps = []

    def stamp(self, name):
        if not self.cfg.diag:
            return
        a = self.a
        idx = len(self.stamps)
        self.stamps.append(name)
        a.e(f's_memrealtime {sr(S_STAMP, 2)}\ns_memtime {sr(S_STAMP + 2, 2)}')
        a.wait_all(vm=False)
        a.e(f'v_writelane_b32 {vr(V_STAMP)}, {sr(S_STAMP)}, {idx}\nv_writelane_b32 {vr(V_STAMP)}, {sr(S_STAMP + 2)}, {idx + 32}')

    def barrier(self):
        self.a.e('s_barrier')

    def poll(self, loads):
        a = self.a
        top, done = a.newlabel('poll'), a.newlabel('polled')
        a.e(f's_mov_b32 {sr(S_SPIN)}, {self.cfg.spin}')
        a.label(top)
        for text, _ in loads:
            a.vmem(text)
        a.wait_all(lg=False)
        for n, (_, t) in enumerate(loads):
            if n == 0:
                a.e(f'v_cmp_ne_u64 vcc, {sr(S_TAG, 2)}, {vr(t, 2)}')
            else:
                a.e(f'v_cmp_ne_u64 {sr(S_T + 28, 2)}, {sr(S_TAG, 2)}, {vr(t, 2)}')
                a.e(f's_or_b64 vcc, vcc, {sr(S_T + 28, 2)}')
        a.e(f's_cbranch_vccz {done}')
        a.e(f's_sub_u32 {sr(S_SPIN)}, {sr(S_SPIN)}, 1\ns_cmp_lg_u32 {sr(S_SPIN)}, 0\ns_cbranch_scc1 {top}')
        a.label(done)

    def flag(self, soff):
        a = self.a
        a.e('s_mov_b64 exec, 1')
        a.vmem(f'buffer_store_dwordx2 {vr(V_TAG, 2)}, off, {sr(R_WS, 4)}, {sr(soff)} sc1')
        a.e('s_mov_b64 exec, -1')

    def unpack(self, lo, hi, src):
        self.a.e(f'v_lshlrev_b32 {vr(lo)}, 16, {vr(src)}\nv_and_b32 {vr(hi)}, 0xffff0000, {vr(src)}')

    def round_pair(self, lo, tmp):
        self.a.e(f'v_cvt_pk_bf16_f32 {vr(tmp)}, {vr(lo)}, {vr(lo + 1)}')
        self.unpack(lo, lo + 1, tmp)

    def round_one(self, r, tmp):
        self.a.e(f'v_cvt_pk_bf16_f32 {vr(tmp)}, {vr(r)}, {vr(r)}\nv_lshlrev_b32 {vr(r)}, 16, {vr(tmp)}')

    def sum_rows(self, r, tmp, bits):
        a = self.a
        for b in bits:
            if b == 3:
                a.e(f'v_add_f32_dpp {vr(r)}, {vr(r)}, {vr(r)} row_ror:8 row_mask:0xf bank_mask:0xf')
            else:
                a.e(f'v_mov_b32 {vr(tmp)}, {vr(r)}')
                a.e(f'v_permlane{16 if b == 4 else 32}_swap_b32 {vr(r)}, {vr(tmp)}')
                a.e(f'v_add_f32 {vr(r)}, {vr(r)}, {vr(tmp)}')

    def prologue(self):
        a, cfg = self.a, self.cfg
        a.e('s_cmp_ge_u32 s2, 256\ns_cbranch_scc1 L_end')
        a.e(f's_mov_b32 s3, {OOB_VAL}')
        a.e('s_load_dwordx16 s[4:19], s[0:1], 0\ns_load_dwordx8 s[20:27], s[0:1], 64\ns_load_dwordx2 s[28:29], s[0:1], 96')
        a.e('v_lshrrev_b32 v1, 6, v0\nv_and_b32 v0, 63, v0')
        a.e(f'v_readfirstlane_b32 {sr(S_W)}, v1\nv_lshlrev_b32 v1, 4, v0')
        if cfg.diag:
            a.e(f'v_mov_b32 {vr(V_STAMP)}, 0')
        if cfg.badmap:
            a.e(f's_lshr_b32 {sr(S_XC)}, s2, 5\ns_and_b32 {sr(S_I)}, s2, 31')
        else:
            a.e(f's_and_b32 {sr(S_XC)}, s2, 7\ns_lshr_b32 {sr(S_I)}, s2, 3')
        T = S_T

        def role(dm, dn, xm_shift, nn_bits_x, i_shift):
            a.e(f's_lshr_b32 {sr(T)}, {sr(S_XC)}, {xm_shift}\ns_lshl_b32 {sr(T)}, {sr(T)}, {5 - i_shift}')
            a.e(f's_lshr_b32 {sr(T + 1)}, {sr(S_I)}, {i_shift}\ns_add_u32 {sr(dm)}, {sr(T)}, {sr(T + 1)}')
            a.e(f's_and_b32 {sr(T)}, {sr(S_XC)}, {(1 << nn_bits_x) - 1}\ns_lshl_b32 {sr(T)}, {sr(T)}, {i_shift}')
            a.e(f's_and_b32 {sr(T + 1)}, {sr(S_I)}, {(1 << i_shift) - 1}\ns_add_u32 {sr(dn)}, {sr(T)}, {sr(T + 1)}')
        role(S_G1, S_J1, 2, 2, 2)
        role(S_M2, S_N2, *{'8x1': (0, 0, 3), '4x2': (1, 1, 2), '2x4': (2, 2, 1)}[cfg.map2])
        role(S_G3, S_J3, *{'8x1': (0, 0, 4), '4x2': (1, 1, 3), '2x4': (2, 2, 2)}[cfg.map3])
        a.e(f's_mov_b32 {sr(S_L2E)}, 0x3fb8aa3b\ns_mov_b32 {sr(S_L2E + 1)}, 0x3fb8aa3b')
        a.e('s_waitcnt lgkmcnt(0)')
        srd(a, R_WS, S_WS, WS_SIZE)
        srd(a, R_X, S_X, 2048 * 1280)
        self.stamp('start')
        if cfg.pfcode:
            self.prefetch_code()
        self.tok_epoch = a.vmem(f'buffer_load_dwordx2 {vr(V_TAG, 2)}, off, {sr(R_WS, 4)}, 0 sc1')

    def prefetch_code(self):
        a = self.a
        T = S_T
        a.e(f's_getpc_b64 {sr(T, 2)}')
        a.label('L_pc')
        a.e(f's_and_b32 {sr(T + 2)}, {sr(S_I)}, 1\ns_lshl_b32 {sr(T + 2)}, {sr(T + 2)}, 2\ns_add_u32 {sr(T + 2)}, {sr(T + 2)}, {sr(S_W)}')
        a.e(f's_lshl_b32 {sr(T + 2)}, {sr(T + 2)}, 13\nv_lshlrev_b32 v4, 7, v0\nv_add_u32 v4, {sr(T + 2)}, v4')
        a.e(f'v_min_u32 v4, L_end-L_pc, v4\nv_mov_b32 v5, {sr(T + 1)}\nv_add_co_u32 v4, vcc, {sr(T)}, v4\nv_addc_co_u32 v5, vcc, 0, v5, vcc')
        a.vmem('global_load_dword v254, v[4:5], off')

    def make_tag(self):
        a = self.a
        a.wait(vm=self.tok_epoch)
        a.e(f'v_readfirstlane_b32 {sr(S_TAG)}, {vr(V_TAG)}\nv_readfirstlane_b32 {sr(S_TAG + 1)}, {vr(V_TAG + 1)}')
        a.e(f's_mul_i32 {sr(S_TAG)}, {sr(S_TAG)}, 1664525\ns_add_u32 {sr(S_TAG)}, {sr(S_TAG)}, 1013904223')
        a.e(f's_mul_i32 {sr(S_TAG + 1)}, {sr(S_TAG + 1)}, 22695477\ns_add_u32 {sr(S_TAG + 1)}, {sr(S_TAG + 1)}, 0x3c6ef35f')
        a.e(f'v_mov_b32 {vr(V_TAG)}, {sr(S_TAG)}\nv_mov_b32 {vr(V_TAG + 1)}, {sr(S_TAG + 1)}')

    def job_common(self):
        a = self.a
        a.e('v_bfe_u32 v9, v0, 4, 1\nv_and_b32 v4, 7, v0\nv_xor_b32 v4, v4, v9\nv_lshlrev_b32 v4, 4, v4')
        a.e('v_lshrrev_b32 v5, 3, v0')
        a.e('v_lshrrev_b32 v6, 4, v0\nv_lshlrev_b32 v6, 10, v6')
        a.e('v_bfe_u32 v9, v0, 2, 2\nv_lshl_add_u32 v6, v9, 7, v6')
        a.e('v_lshrrev_b32 v9, 1, v9\nv_and_b32 v8, 3, v0\nv_lshl_or_b32 v9, v8, 1, v9\nv_lshl_add_u32 v6, v9, 4, v6')
        a.e(f's_mul_i32 {sr(S_T)}, {sr(S_W)}, 12288\ns_add_u32 {sr(S_T + 20)}, {sr(S_T)}, {L_JOB}')
        a.e(f'v_add_u32 v6, {sr(S_T + 20)}, v6\nv_xor_b32 v7, 16, v6\nv_lshlrev_b32 v8, 4, v8')

    def job_issue(self, r, rs, voff, s_off, s_pitch8):
        a = self.a
        tok = None
        for n in range(4):
            a.e(f's_add_u32 m0, {sr(S_T + 20)}, {r * 4096 + n * 1024}')
            if n:
                a.e(f's_add_u32 {sr(s_off)}, {sr(s_off)}, {sr(s_pitch8)}')
            tok = a.vmem(f'buffer_load_dwordx4 {vr(voff)}, {sr(rs, 4)}, {sr(s_off)} offen lds')
        return tok

    def job_finish(self, r, tok, vdest, base):
        a = self.a
        a.wait(vm=tok)
        t = []
        for n in range(4):
            for z in range(2):
                tk = a.ds(f'ds_read_b64_tr_b16 {vr(base + 4 * n + 2 * z, 2)}, v{6 + (n >> 1)} offset:{r * 4096 + z * 512 + (n & 1) * 8}')
            t.append(tk)
        for n in range(4):
            a.e(f'v_add_u32_dpp {vr(base + 16 + n)}, {vr(vdest)}, v8 quad_perm:[{n},{n},{n},{n}] row_mask:0xf bank_mask:0xf')
        last = None
        for n in range(4):
            a.wait(lg=t[n])
            last = a.vmem(f'buffer_store_dwordx4 {vr(base + 4 * n, 4)}, {vr(base + 16 + n)}, {sr(R_WS, 4)}, 0 offen sc1')
        return last

    def dest_A(self, vd, s_blk, s_kb, s_valid):
        a = self.a
        T = S_T
        a.e(f's_mul_i32 {sr(T)}, {sr(s_blk)}, 205\ns_lshr_b32 {sr(T)}, {sr(T)}, 11')
        a.e(f's_mul_i32 {sr(T + 1)}, {sr(T)}, 10\ns_sub_u32 {sr(T + 1)}, {sr(s_blk)}, {sr(T + 1)}\ns_lshl_b32 {sr(T + 1)}, {sr(T + 1)}, 4')
        a.e(f's_cmp_eq_u32 {sr(T)}, 0\ns_cselect_b32 {sr(T + 2)}, 10, 0\ns_cmp_eq_u32 {sr(T)}, 2\ns_cselect_b32 {sr(T + 2)}, 5, {sr(T + 2)}')
        a.e(f'v_and_b32 v9, 15, v0\nv_add_u32 v9, {sr(T + 1)}, v9')
        a.e('v_mul_u32_u24 v10, 103, v9\nv_lshrrev_b32 v10, 9, v10')
        a.e('v_mul_u32_u24 v11, 5, v10\nv_sub_u32 v11, v9, v11')
        a.e(f'v_add_u32 v11, {sr(T + 2)}, v11')
        a.e(f's_lshl_b32 {sr(T + 3)}, {sr(s_kb)}, 1\nv_lshrrev_b32 v12, 5, v0\nv_add_u32 v12, {sr(T + 3)}, v12')
        a.e('v_mul_u32_u24 v13, 0xc00, v12\nv_mul_u32_u24 v14, 0x300, v12')
        a.e(f'v_add_u32 v14, {L_P2W - 12 * 256}, v14\nv_cmp_gt_u32 vcc, 12, v11\nv_cndmask_b32 v13, v14, v13, vcc')
        a.e('v_lshl_add_u32 v13, v11, 8, v13')
        a.e('v_and_b32 v14, 1, v10\nv_lshl_add_u32 v13, v14, 7, v13')
        a.e('v_lshrrev_b32 v14, 1, v11\nv_lshrrev_b32 v15, 4, v0\nv_xor_b32 v14, v14, v15\nv_and_b32 v14, 1, v14\nv_lshl_add_u32 v13, v14, 6, v13')
        a.e(f's_mov_b32 {sr(T + 3)}, 153600\nv_lshrrev_b32 v10, 1, v10\nv_mad_u32_u24 v13, v10, {sr(T + 3)}, v13')
        a.e(f'v_add_u32 {vr(vd)}, {sr(s_valid)}, v13')

    def dest_B(self, vd, s_blk, s_kb, s_up):
        a = self.a
        T = S_T
        a.e(f's_lshl_b32 {sr(T)}, {sr(s_blk)}, 4\nv_and_b32 v9, 15, v0\nv_add_u32 v9, {sr(T)}, v9')
        a.e('v_lshrrev_b32 v10, 1, v9')
        a.e('v_mul_u32_u24 v11, 19, v10\nv_lshrrev_b32 v11, 9, v11')
        a.e('v_mul_u32_u24 v12, 27, v11\nv_sub_u32 v12, v10, v12')
        a.e('v_cmp_le_u32 vcc, 14, v12\nv_lshlrev_b32 v11, 1, v11\nv_subrev_u32 v13, 14, v12')
        a.e('v_cndmask_b32 v12, v12, v13, vcc\nv_addc_co_u32 v11, vcc, 0, v11, vcc')
        a.e('v_lshrrev_b32 v13, 1, v12\nv_lshlrev_b32 v13, 10, v13')
        a.e('v_and_b32 v12, 1, v12\nv_lshl_add_u32 v13, v12, 7, v13')
        a.e('v_and_b32 v9, 1, v9\nv_lshl_add_u32 v13, v9, 8, v13')
        a.e(f's_lshl_b32 {sr(T)}, {sr(s_kb)}, 1\nv_lshrrev_b32 v12, 5, v0\nv_add_u32 v12, {sr(T)}, v12')
        a.e(f's_mov_b32 {sr(T)}, 7168\nv_mad_u32_u24 v13, v12, {sr(T)}, v13')
        a.e(f'v_bfe_u32 v12, v0, 4, 1\nv_xor_b32 v12, {sr(s_up)}, v12\nv_lshl_add_u32 v13, v12, 6, v13')
        a.e(f's_mov_b32 {sr(T)}, 286720\nv_mad_u32_u24 v13, v11, {sr(T)}, v13')
        a.e(f's_lshl_b32 {sr(T)}, {sr(s_up)}, 9\ns_add_u32 {sr(T)}, {sr(T)}, {WS_W13}\nv_add_u32 {vr(vd)}, {sr(T)}, v13')

    def dest_C(self, vd, s_blk, s_base, s_stride):
        a = self.a
        T = S_T
        a.e(f's_lshl_b32 {sr(T)}, {sr(s_blk)}, 4\nv_and_b32 v9, 15, v0\nv_add_u32 v9, {sr(T)}, v9')
        a.e('v_mul_u32_u24 v10, 103, v9\nv_lshrrev_b32 v10, 11, v10')
        a.e('v_mul_u32_u24 v11, 20, v10\nv_sub_u32 v11, v9, v11')
        a.e('v_lshrrev_b32 v12, 3, v11\nv_lshlrev_b32 v12, 1, v12\nv_and_b32 v13, 1, v11\nv_add_u32 v13, v12, v13')
        a.e('v_bfe_u32 v14, v11, 1, 2\nv_and_b32 v15, 3, v11\nv_cmp_gt_u32 vcc, 16, v11')
        a.e('v_cndmask_b32 v13, 4, v13, vcc\nv_cndmask_b32 v14, v15, v14, vcc')
        a.e('v_lshlrev_b32 v13, 10, v13\nv_lshl_add_u32 v13, v14, 8, v13')
        a.e('v_and_b32 v14, 2, v14\nv_lshrrev_b32 v15, 4, v0\nv_xor_b32 v14, v14, v15\nv_lshl_add_u32 v13, v14, 6, v13')
        a.e(f'v_mad_u32_u24 v13, v10, {sr(s_stride)}, v13\nv_add_u32 {vr(vd)}, {sr(s_base)}, v13')

    def job_bc_setup(self, rnd, rs, voff, vd, s_off, s_p8):
        a = self.a
        T = S_T
        J, BLK, KB = T + 4, T + 5, T + 6
        lw13, lw2, lc, ldone = (a.newlabel(n) for n in ('jw13', 'jw2', 'jc', 'jdone'))
        a.e(f's_lshl_b32 {sr(J)}, s2, 2\ns_add_u32 {sr(J)}, {sr(J)}, {sr(S_W)}')
        if rnd:
            a.e(f's_add_u32 {sr(J)}, {sr(J)}, 1024')
        a.e(f's_cmp_ge_u32 {sr(J)}, 1280\ns_cbranch_scc1 {lw2}\ns_cmp_ge_u32 {sr(J)}, 200\ns_cbranch_scc1 {lw13}')
        srd(a, rs, S_WO, 640 * 1280)
        a.e(f's_mov_b32 {sr(T + 8)}, 10\ns_mov_b32 {sr(T + 9)}, {WS_WO}\ns_mov_b32 {sr(T + 10)}, 102400\ns_branch {lc}')
        a.label(lw2)
        srd(a, rs, S_W2, 1728 * 1280)
        a.e(f's_sub_u32 {sr(J)}, {sr(J)}, 1280\ns_mov_b32 {sr(T + 8)}, 27\ns_mov_b32 {sr(T + 10)}, 276480')
        a.e(f's_cmp_lt_u32 {sr(J)}, 540\ns_cselect_b32 {sr(T + 9)}, {WS_W2}, {OOB}\ns_cselect_b32 {sr(J)}, {sr(J)}, 0')
        a.label(lc)
        a.e(f's_mul_i32 {sr(KB)}, {sr(J)}, 205\ns_lshr_b32 {sr(KB)}, {sr(KB)}, 11')
        a.e(f's_mul_i32 {sr(BLK)}, {sr(KB)}, 10\ns_sub_u32 {sr(BLK)}, {sr(J)}, {sr(BLK)}')
        a.e(f's_sub_u32 {sr(T + 11)}, {sr(KB)}, {sr(T + 8)}\ns_lshl_b32 {sr(T + 11)}, {sr(T + 11)}, 1\ns_add_u32 {sr(T + 11)}, {sr(T + 11)}, 1')
        a.e(f's_lshl_b32 {sr(T + 12)}, {sr(KB)}, 1\ns_cmp_lt_u32 {sr(KB)}, {sr(T + 8)}\ns_cselect_b32 {sr(T + 11)}, {sr(T + 12)}, {sr(T + 11)}')
        a.e(f's_mul_i32 {sr(T + 11)}, {sr(T + 11)}, 5120\ns_add_u32 {sr(T + 9)}, {sr(T + 9)}, {sr(T + 11)}')
        self.dest_C(vd, BLK, T + 9, T + 10)
        a.e(f's_mov_b32 {sr(T + 13)}, 1280\ns_branch {ldone}')
        a.label(lw13)
        a.e(f's_sub_u32 {sr(J)}, {sr(J)}, 200\ns_cmp_ge_u32 {sr(J)}, 540\ns_cselect_b32 {sr(T + 8)}, 1, 0')
        a.e(f's_cselect_b32 {sr(rs)}, {sr(S_W3)}, {sr(S_W1)}\ns_cselect_b32 {sr(rs + 1)}, {sr(S_W3 + 1)}, {sr(S_W1 + 1)}')
        a.e(f's_cselect_b32 {sr(T + 9)}, 540, 0\ns_sub_u32 {sr(J)}, {sr(J)}, {sr(T + 9)}')
        a.e(f's_mov_b32 {sr(rs + 2)}, {640 * 3456}\ns_mov_b32 {sr(rs + 3)}, 0x20000')
        a.e(f's_mul_i32 {sr(KB)}, {sr(J)}, 607\ns_lshr_b32 {sr(KB)}, {sr(KB)}, 14')
        a.e(f's_mul_i32 {sr(BLK)}, {sr(KB)}, 27\ns_sub_u32 {sr(BLK)}, {sr(J)}, {sr(BLK)}')
        self.dest_B(vd, BLK, KB, T + 8)
        a.e(f's_mov_b32 {sr(T + 13)}, 3456')
        a.label(ldone)
        a.e(f's_lshl_b32 {sr(s_p8)}, {sr(T + 13)}, 3\ns_mul_i32 {sr(s_off)}, {sr(s_p8)}, {sr(KB)}\ns_lshl_b32 {sr(s_off)}, {sr(s_off)}, 2')
        a.e(f's_lshl_b32 {sr(BLK)}, {sr(BLK)}, 7\ns_add_u32 {sr(s_off)}, {sr(s_off)}, {sr(BLK)}')
        a.e(f'v_mad_u32_u24 {vr(voff)}, v5, {sr(T + 13)}, v4')

    def x_loads(self):
        a = self.a
        T = S_T
        a.e(f's_mov_b32 {sr(T)}, 1280\nv_and_b32 v9, 7, v0\nv_lshlrev_b32 v10, 4, v5\nv_mad_u32_u24 v9, v9, {sr(T)}, v10')
        a.e(f's_mul_i32 {sr(T)}, s2, 10240\ns_lshl_b32 {sr(T + 1)}, {sr(S_W)}, 7\ns_add_u32 {sr(T)}, {sr(T)}, {sr(T + 1)}')
        a.e(f's_cmp_lt_u32 {sr(S_W)}, 2\ns_cselect_b32 {sr(T + 1)}, {sr(T)}, {OOB}')
        for r in range(3):
            a.vmem(f'buffer_load_dwordx4 {vr(16 + 4 * r, 4)}, v9, {sr(R_X, 4)}, {sr(T + (r == 2))} offen offset:{r * 512}')

    def startup(self):
        a, cfg = self.a, self.cfg
        T = S_T
        self.job_common()
        lwn, ljoin = a.newlabel('wn'), a.newlabel('join')
        a.e(f's_cmp_lg_u32 {sr(S_W)}, 0\ns_cbranch_scc1 {lwn}')
        st = a.state()
        a.c('wave 0: modulation GEMV')
        srd(a, R_A, S_WMOD, 640 * 7680)
        srd(a, R_B, S_C, 1280)
        a.e('v_lshlrev_b32 v9, 2, v0')
        tc = [a.vmem(f'buffer_load_dword {vr(28 + n)}, v9, {sr(R_B, 4)}, 0 offen offset:{256 * n}') for n in range(5)]
        GRP, VAL = T + 14, T + 15
        a.e(f's_lshr_b32 {sr(T)}, {sr(S_I)}, 2\ns_lshl_b32 {sr(T)}, {sr(T)}, 3\ns_add_u32 {sr(T)}, {sr(T)}, {sr(S_XC)}')
        a.e(f's_and_b32 {sr(T + 1)}, {sr(S_I)}, 3\ns_lshl_b32 {sr(GRP)}, {sr(T)}, 2\ns_add_u32 {sr(GRP)}, {sr(GRP)}, {sr(T + 1)}')
        a.e(f's_cmp_lt_u32 {sr(T)}, 60\ns_cselect_b32 {sr(VAL)}, 0, {OOB}')
        a.e(f's_lshl_b32 {sr(T + 2)}, {sr(GRP)}, 5\ns_add_u32 {sr(T + 2)}, {sr(T + 2)}, {sr(VAL)}')
        a.e(f's_mov_b32 {sr(T)}, 7680\nv_lshrrev_b32 v10, 1, v0\nv_and_b32 v11, 1, v0\nv_lshlrev_b32 v11, 4, v11\nv_mad_u32_u24 v10, v10, {sr(T)}, v11')
        td = []
        for n in range(20):
            a.e(f's_mov_b32 m0, {n * 1024}')
            if n:
                a.e(f's_add_u32 {sr(T + 2)}, {sr(T + 2)}, {32 * 7680}')
            td.append(a.vmem(f'buffer_load_dwordx4 v10, {sr(R_A, 4)}, {sr(T + 2)} offen lds'))
        self.x_loads()
        a.wait(vm=tc[-1])
        self.make_tag()
        a.e(f'v_lshlrev_b32 v9, 2, v0\nv_add_u32 v9, {L_SILU}, v9')
        for n in range(5):
            self.unpack(34 + 2 * n, 35 + 2 * n, 28 + n)
        for n in range(10):
            a.e(f'v_mul_f32 {vr(44 + n)}, 0xbfb8aa3b, {vr(34 + n)}')
        for n in range(10):
            a.e(f'v_exp_f32 {vr(44 + n)}, {vr(44 + n)}')
        for n in range(10):
            a.e(f'v_add_f32 {vr(44 + n)}, 1.0, {vr(44 + n)}')
        for n in range(10):
            a.e(f'v_rcp_f32 {vr(44 + n)}, {vr(44 + n)}')
        for n in range(10):
            a.e(f'v_mul_f32 {vr(44 + n)}, {vr(34 + n)}, {vr(44 + n)}')
        for n in range(5):
            a.e(f'v_cvt_pk_bf16_f32 {vr(28 + n)}, {vr(44 + 2 * n)}, {vr(45 + 2 * n)}')
            a.ds(f'ds_write_b32 v9, {vr(28 + n)} offset:{256 * n}')
        a.e(f'v_lshrrev_b32 v9, 4, v0\nv_lshlrev_b32 v10, 4, v9\nv_add_u32 v10, {L_SILU}, v10')
        for s in range(20):
            a.ds(f'ds_read_b128 {vr(64 + 4 * s, 4)}, v10 offset:{64 * s}')
        a.e('v_lshlrev_b32 v9, 8, v9\nv_and_b32 v11, 15, v0\nv_lshl_add_u32 v9, v11, 3, v9')
        a.wait_all(vm=False)
        for g in range(4):
            a.wait(vm=td[5 * g + 4])
            tk = []
            for s in range(5 * g, 5 * g + 5):
                a.ds(f'ds_read_b64_tr_b16 {vr(144 + 4 * s, 2)}, v9 offset:{1024 * s}')
                tk.append(a.ds(f'ds_read_b64_tr_b16 {vr(146 + 4 * s, 2)}, v9 offset:{1024 * s + 128}'))
            for n, s in enumerate(range(5 * g, 5 * g + 5)):
                a.wait(lg=tk[n])
                acc = 56 + 4 * (s & 1)
                a.e(f'v_mfma_f32_16x16x32_bf16 {vr(acc, 4)}, {vr(144 + 4 * s, 4)}, {vr(64 + 4 * s, 4)}, {vr(acc, 4) if s > 1 else 0}')
        a.e(f's_sub_u32 {sr(T)}, {sr(GRP)}, 40\ns_cmp_lt_u32 {sr(T)}, 40\ns_cselect_b32 {sr(T + 1)}, 1.0, 0')
        a.e(f's_sub_u32 {sr(T)}, {sr(GRP)}, 160\ns_cmp_lt_u32 {sr(T)}, 40\ns_cselect_b32 {sr(T + 1)}, 1.0, {sr(T + 1)}')
        a.e(f's_lshl_b32 {sr(T + 2)}, {sr(GRP)}, 7\ns_add_u32 {sr(T + 2)}, {sr(T + 2)}, {sr(VAL)}\ns_add_u32 {sr(T + 2)}, {sr(T + 2)}, {WS_MOD}')
        for r in range(4):
            a.e(f'v_add_f32 {vr(56 + r)}, {vr(56 + r)}, {vr(60 + r)}')
        self.round_pair(56, 60)
        self.round_pair(58, 61)
        for r in range(4):
            a.e(f'v_add_f32 {vr(56 + r)}, {sr(T + 1)}, {vr(56 + r)}')
        a.e('v_cvt_pk_bf16_f32 v60, v56, v57\nv_cvt_pk_bf16_f32 v61, v58, v59')
        a.e(f'v_mov_b32 v62, {vr(V_TAG)}\nv_mov_b32 v63, {vr(V_TAG + 1)}')
        a.e('s_mov_b32 exec_lo, 0x00010001\ns_mov_b32 exec_hi, 0x00010001')
        a.vmem(f'buffer_store_dwordx4 v[60:63], v0, {sr(R_WS, 4)}, {sr(T + 2)} offen sc1')
        a.e('s_mov_b64 exec, -1')
        a.e(f's_mov_b32 {sr(T + 21)}, {OOB}\ns_branch {ljoin}')
        vm0 = a.vm
        a.set_state(st)
        a.label(lwn)
        a.c('waves 1-3: Wqkv re-tiling')
        srd(a, R_A, S_WQKV, 640 * 3840)
        J, BLK, KB, VALD = T + 4, T + 5, T + 6, T + 7
        a.e(f's_mul_i32 {sr(J)}, s2, 3\ns_add_u32 {sr(J)}, {sr(J)}, {sr(S_W)}\ns_sub_u32 {sr(J)}, {sr(J)}, 1')
        a.e(f's_cmp_lt_u32 {sr(J)}, 600\ns_cselect_b32 {sr(VALD)}, 0, {OOB}\ns_cselect_b32 {sr(J)}, {sr(J)}, 0')
        a.e(f's_mul_i32 {sr(BLK)}, {sr(J)}, 205\ns_lshr_b32 {sr(BLK)}, {sr(BLK)}, 12')
        a.e(f's_mul_i32 {sr(KB)}, {sr(BLK)}, 20\ns_sub_u32 {sr(KB)}, {sr(J)}, {sr(KB)}')
        a.e(f's_mul_i32 {sr(T + 16)}, {sr(KB)}, {32 * 3840}\ns_lshl_b32 {sr(T)}, {sr(BLK)}, 7\ns_add_u32 {sr(T + 16)}, {sr(T + 16)}, {sr(T)}')
        a.e(f's_add_u32 {sr(T + 16)}, {sr(T + 16)}, {sr(VALD)}\ns_mov_b32 {sr(T + 17)}, {8 * 3840}')
        a.e(f's_mov_b32 {sr(T)}, 3840\nv_mad_u32_u24 v28, v5, {sr(T)}, v4')
        tok = self.job_issue(0, R_A, 28, T + 16, T + 17)
        self.x_loads()
        a.e(f's_lshl_b32 {sr(T + 21)}, {sr(J)}, 3\ns_add_u32 {sr(T + 21)}, {sr(T + 21)}, {WS_FW}\ns_add_u32 {sr(T + 21)}, {sr(T + 21)}, {sr(VALD)}')
        a.e(f's_add_u32 {sr(VALD)}, {sr(VALD)}, {WS_WQ}')
        self.dest_A(29, BLK, KB, VALD)
        self.make_tag()
        self.job_finish(0, tok, 29, 32)
        a.label(ljoin)
        a.vm = max(a.vm, vm0)
        a.vm_done = 0
        a.lg_done = a.lg
        tj = a.vm
        self.stamp('jobA')
        self.job_bc_setup(0, R_B, 28, 30, T + 16, T + 17)
        tokB = self.job_issue(1, R_B, 28, T + 16, T + 17)
        self.job_bc_setup(1, R_C, 29, 31, T + 18, T + 19)
        tokC = self.job_issue(2, R_C, 29, T + 18, T + 19)
        a.wait(vm=tj)
        self.flag(T + 21)
        srd(a, R_A, S_WPHI, 32 * 800)
        a.e(f's_mul_i32 {sr(T)}, {sr(S_J1)}, 1600\ns_lshl_b32 {sr(T + 1)}, {sr(S_W)}, 9\ns_add_u32 {sr(T)}, {sr(T)}, {sr(T + 1)}')
        a.e(f's_add_u32 m0, {sr(T + 1)}, {L_WPHI}\ns_mov_b32 exec_hi, 0')
        tokP = a.vmem(f'buffer_load_dwordx4 v1, {sr(R_A, 4)}, {sr(T)} offen lds')
        a.e('s_mov_b64 exec, -1')
        a.c('LayerNorm 1')
        for n in range(12):
            self.unpack(64 + 2 * n, 65 + 2 * n, 16 + n)
        a.e('v_and_b32 v9, 7, v0\nv_lshlrev_b32 v9, 4, v9')
        a.e(f's_lshl_b32 {sr(T)}, {sr(S_W)}, 2\ns_add_u32 {sr(T)}, {sr(T)}, {L_LNRED}\nv_add_u32 v10, {sr(T)}, v9\nv_add_u32 v9, {L_LNRED}, v9')
        a.e(f's_cmp_lt_u32 {sr(S_W)}, 2\ns_cselect_b32 {sr(T + 2)}, 1.0, 0')

        def tree(dst, src, n):
            a.e(f'v_pk_add_f32 {vr(dst, 2)}, {vr(src, 2)}, {vr(src + 2, 2)}')
            for k in range(4, n, 2):
                a.e(f'v_pk_add_f32 {vr(dst, 2)}, {vr(dst, 2)}, {vr(src + k, 2)}')

        def all_sum(r, off):
            self.sum_rows(r, 11, (3, 4, 5))
            a.ds(f'ds_write_b32 v10, {vr(r)} offset:{off}')
            a.wait_all(vm=False)
            self.barrier()
            t = a.ds(f'ds_read_b128 v[12:15], v9 offset:{off}')
            a.wait(lg=t)
            a.e(f'v_add_f32 v12, v12, v13\nv_add_f32 v14, v14, v15\nv_add_f32 {vr(r)}, v12, v14')
        tree(88, 64, 24)
        a.e('v_add_f32 v88, v88, v89')
        all_sum(88, 0)
        a.e('v_mul_f32 v88, 0x3acccccd, v88')
        for n in range(12):
            a.e(f'v_pk_add_f32 {vr(92 + 2 * n, 2)}, {vr(64 + 2 * n, 2)}, v[88:89] op_sel_hi:[1,0] neg_lo:[0,1] neg_hi:[0,1]')
        for n in range(12):
            a.e(f'v_pk_mul_f32 {vr(116 + 2 * n, 2)}, {vr(92 + 2 * n, 2)}, {vr(92 + 2 * n, 2)}')
        tree(90, 116, 16)
        tree(140, 132, 8)
        a.e(f'v_add_f32 v90, v90, v91\nv_add_f32 v140, v140, v141\nv_fma_f32 v90, v140, {sr(T + 2)}, v90')
        all_sum(90, 128)
        a.e('v_mul_f32 v90, 0x3acccccd, v90')
        if cfg.mimic >= 1:
            self.round_one(88, 11)
            self.round_one(90, 11)
            a.e('v_add_f32 v90, 0x3727c5ac, v90')
            self.round_one(90, 11)
            a.e('v_sqrt_f32 v90, v90')
            self.round_one(90, 11)
            a.e('v_rcp_f32 v90, v90')
            for n in range(12):
                a.e(f'v_pk_add_f32 {vr(92 + 2 * n, 2)}, {vr(64 + 2 * n, 2)}, v[88:89] op_sel_hi:[1,0] neg_lo:[0,1] neg_hi:[0,1]')
            for n in range(12):
                self.round_pair(92 + 2 * n, 116 + n)
        else:
            a.e('v_add_f32 v90, 0x3727c5ac, v90\nv_rsq_f32 v90, v90')
        for n in range(12):
            a.e(f'v_pk_mul_f32 {vr(64 + 2 * n, 2)}, {vr(92 + 2 * n, 2)}, v[90:91] op_sel_hi:[1,0]')
        if cfg.mimic >= 1:
            for n in range(12):
                self.round_pair(64 + 2 * n, 116 + n)
        self.stamp('ln1')
        self.job_finish(1, tokB, 30, 32)
        self.job_finish(2, tokC, 31, 92)
        self.stamp('jobBC')
        a.c('wait for mod, modulate, publish h')
        a.e(f's_mul_i32 {sr(T)}, {sr(S_W)}, 2560\ns_add_u32 {sr(T)}, {sr(T)}, {WS_MOD}')
        a.e('v_lshrrev_b32 v9, 2, v0\nv_lshlrev_b32 v9, 7, v9\nv_add_u32 v9, v9, v8')
        a.e('v_bfe_u32 v10, v0, 2, 2\nv_lshlrev_b32 v10, 7, v10\nv_add_u32 v10, v10, v8')
        a.e(f's_mul_i32 {sr(T + 1)}, {sr(S_W)}, 1280\ns_add_u32 {sr(T + 1)}, {sr(T + 1)}, {L_MODP}')
        a.e(f'v_add_u32 v11, {sr(T + 1)}, v1\nv_and_b32 v12, 0xf0, v1\nv_add_u32 v12, {sr(T + 1)}, v12')
        a.e(f's_lshl_b32 {sr(T + 2)}, {sr(S_W)}, 8\ns_add_u32 {sr(T + 2)}, {sr(T + 2)}, {L_MODP}')
        a.e(f'v_lshlrev_b32 v13, 5, v5\nv_add_u32 v13, {sr(T + 2)}, v13')
        a.e('v_and_b32 v14, 7, v0\nv_lshlrev_b32 v14, 4, v14\nv_lshl_add_u32 v14, v5, 9, v14')
        a.e(f's_lshr_b32 {sr(T + 3)}, s2, 2\ns_mul_i32 {sr(T + 3)}, {sr(T + 3)}, 40960\ns_and_b32 {sr(T + 4)}, s2, 3\ns_lshl_b32 {sr(T + 4)}, {sr(T + 4)}, 7')
        a.e(f's_add_u32 {sr(T + 3)}, {sr(T + 3)}, {sr(T + 4)}\ns_lshl_b32 {sr(T + 4)}, {sr(S_W)}, 12\ns_add_u32 {sr(T + 3)}, {sr(T + 3)}, {sr(T + 4)}')
        a.e(f's_add_u32 {sr(T + 3)}, {sr(T + 3)}, {WS_H}\ns_add_u32 {sr(T + 4)}, {sr(T + 3)}, 16384\ns_add_u32 {sr(T + 5)}, {sr(T + 3)}, 32768')
        a.e(f's_cmp_lt_u32 {sr(S_W)}, 2\ns_cselect_b32 {sr(T + 5)}, {sr(T + 5)}, {OOB}')
        a.e(f's_lshl_b32 {sr(T + 6)}, s2, 2\ns_add_u32 {sr(T + 6)}, {sr(T + 6)}, {sr(S_W)}\ns_lshl_b32 {sr(T + 6)}, {sr(T + 6)}, 7\ns_add_u32 {sr(T + 6)}, {sr(T + 6)}, {WS_FH}')
        self.poll([(f'buffer_load_dwordx4 v[16:19], v9, {sr(R_WS, 4)}, {sr(T)} offen sc1', 18),
                   (f'buffer_load_dwordx4 v[20:23], v10, {sr(R_WS, 4)}, {sr(T)} offen offset:2048 sc1', 22)])
        self.stamp('mod')
        self.unpack(24, 25, 16)
        self.unpack(26, 27, 17)
        self.unpack(32, 33, 20)
        self.unpack(34, 35, 21)
        a.ds('ds_write_b128 v11, v[24:27]')
        a.ds('ds_write_b128 v12, v[32:35] offset:1024')
        a.wait_all(vm=False)
        self.barrier()
        tk = []
        for r in range(3):
            a.ds(f'ds_read_b128 {vr(92 + 16 * r, 4)}, v13 offset:{1024 * r + 2560}')
            a.ds(f'ds_read_b128 {vr(96 + 16 * r, 4)}, v13 offset:{1024 * r + 2576}')
            a.ds(f'ds_read_b128 {vr(100 + 16 * r, 4)}, v13 offset:{1024 * r}')
            tk.append(a.ds(f'ds_read_b128 {vr(104 + 16 * r, 4)}, v13 offset:{1024 * r + 16}'))
        for r in range(3):
            a.wait(lg=tk[r])
            for n in range(4):
                x, s, b = 64 + 8 * r + 2 * n, 92 + 16 * r + 2 * n, 100 + 16 * r + 2 * n
                if cfg.mimic >= 2:
                    a.e(f'v_pk_mul_f32 {vr(x, 2)}, {vr(x, 2)}, {vr(s, 2)}')
                    self.round_pair(x, 15)
                    a.e(f'v_pk_add_f32 {vr(x, 2)}, {vr(x, 2)}, {vr(b, 2)}')
                else:
                    a.e(f'v_pk_fma_f32 {vr(x, 2)}, {vr(x, 2)}, {vr(s, 2)}, {vr(b, 2)}')
            for n in range(4):
                a.e(f'v_cvt_pk_bf16_f32 {vr(16 + 4 * r + n)}, {vr(64 + 8 * r + 2 * n)}, {vr(65 + 8 * r + 2 * n)}')
            last = a.vmem(f'buffer_store_dwordx4 {vr(16 + 4 * r, 4)}, v14, {sr(R_WS, 4)}, {sr(T + 3 + r)} offen sc1')
        self.tok_h = last

    def frag_addr(self, vd, t):
        a = self.a
        a.e(f'v_bfe_u32 {vr(t)}, v0, 2, 3\nv_lshlrev_b32 {vr(vd)}, 7, {vr(t)}')
        a.e(f'v_lshrrev_b32 {vr(t)}, 4, v0\nv_lshrrev_b32 {vr(t + 1)}, 5, v0\nv_xor_b32 {vr(t)}, {vr(t)}, {vr(t + 1)}\nv_and_b32 {vr(t)}, 1, {vr(t)}')
        a.e(f'v_lshl_add_u32 {vr(vd)}, {vr(t)}, 6, {vr(vd)}\nv_add_u32 {vr(vd)}, {vr(vd)}, v8')

    def wphi_frags(self):
        a = self.a
        a.e('v_and_b32 v9, 1, v0\nv_mul_u32_u24 v9, 0x320, v9\nv_bfe_u32 v10, v0, 2, 2\nv_mul_u32_u24 v10, 40, v10\nv_add_u32 v9, v9, v10')
        a.e('v_bfe_u32 v10, v0, 1, 1\nv_bfe_u32 v11, v0, 4, 1\nv_lshl_add_u32 v10, v11, 1, v10\nv_lshl_add_u32 v9, v10, 3, v9')
        a.e(f'v_add_u32 v9, {L_WPHI}, v9')
        a.e('v_bfe_u32 v10, v0, 2, 1\nv_lshrrev_b32 v11, 5, v0\nv_cmp_eq_u32 vcc, v10, v11\nv_cndmask_b32 v10, 0, -1, vcc')
        for t in range(2):
            for s in range(3):
                r = 200 + 12 * t + 4 * s
                a.ds(f'ds_read_b64_tr_b16 {vr(r, 2)}, v9 offset:{32 * t + 320 * s}')
                if s < 2:
                    a.ds(f'ds_read_b64_tr_b16 {vr(r + 2, 2)}, v9 offset:{32 * t + 320 * s + 160}')
                else:
                    a.e(f'v_mov_b32 {vr(r + 2)}, 0\nv_mov_b32 {vr(r + 3)}, 0')
        a.wait_all(vm=False)
        for t in range(2):
            for n in range(10):
                r = 200 + 12 * t + n
                a.e(f'v_and_b32 {vr(r)}, {vr(r)}, v10')

    def feature_map(self, src, out):
        a, cfg = self.a, self.cfg
        for n in range(10):
            a.e(f'v_cvt_pk_bf16_f32 {vr(128 + n)}, {vr(src + 2 * n)}, {vr(src + 2 * n + 1)}')
        a.e('v_mov_b32 v138, 0\nv_mov_b32 v139, 0')
        for t in (1, 0):
            for s in range(3):
                acc = 140 + 16 * t
                a.e(f'v_mfma_f32_32x32x16_bf16 {vr(acc, 16)}, {vr(200 + 12 * t + 4 * s, 4)}, {vr(128 + 4 * s, 4)}, {vr(acc, 16) if s else 0}')
        P, E = 140, 172
        if cfg.mimic >= 2:
            for n in range(10):
                self.round_pair(P + 2 * n, 128 + n)
        for op, d in (('max', 192), ('min', 194)):
            a.e(f'v_{op}3_f32 {vr(d)}, {vr(P + 16)}, {vr(P + 17)}, {vr(P + 18)}\nv_{op}3_f32 {vr(d + 1)}, {vr(P + 19)}, {vr(P)}, {vr(P + 1)}')
            for k in range(2, 16, 4):
                a.e(f'v_{op}3_f32 {vr(d)}, {vr(d)}, {vr(P + k)}, {vr(P + k + 1)}')
                if k + 2 < 16:
                    a.e(f'v_{op}3_f32 {vr(d + 1)}, {vr(d + 1)}, {vr(P + k + 2)}, {vr(P + k + 3)}')
            a.e(f'v_{op}_f32 {vr(d)}, {vr(d)}, {vr(d + 1)}')
        for n in range(10):
            a.e(f'v_pk_add_f32 {vr(E + 2 * n, 2)}, {vr(P + 2 * n, 2)}, v[192:193] op_sel_hi:[1,0] neg_lo:[0,1] neg_hi:[0,1]')
            a.e(f'v_pk_add_f32 {vr(P + 2 * n, 2)}, {vr(P + 2 * n, 2)}, v[194:195] op_sel_hi:[1,0] neg_lo:[1,0] neg_hi:[1,0]')
        for b in (E, P):
            for n in range(10):
                a.e(f'v_pk_mul_f32 {vr(b + 2 * n, 2)}, {vr(b + 2 * n, 2)}, {sr(S_L2E, 2)}')
        for b in (E, P):
            for n in range(20):
                a.e(f'v_exp_f32 {vr(b + n)}, {vr(b + n)}')
        for b, d in ((E, 192), (P, 196)):
            a.e(f'v_pk_add_f32 {vr(d, 2)}, {vr(b, 2)}, {vr(b + 2, 2)}\nv_pk_add_f32 {vr(d + 2, 2)}, {vr(b + 4, 2)}, {vr(b + 6, 2)}')
        for k in range(8, 20, 4):
            for b, d in ((E, 192), (P, 196)):
                a.e(f'v_pk_add_f32 {vr(d, 2)}, {vr(d, 2)}, {vr(b + k, 2)}\nv_pk_add_f32 {vr(d + 2, 2)}, {vr(d + 2, 2)}, {vr(b + k + 2, 2)}')
        for d in (192, 196):
            a.e(f'v_pk_add_f32 {vr(d, 2)}, {vr(d, 2)}, {vr(d + 2, 2)}')
        for d in (192, 196):
            a.e(f'v_add_f32 {vr(d)}, {vr(d)}, {vr(d + 1)}')
        for d in (192, 196):
            a.e(f'v_rcp_f32 {vr(d)}, {vr(d)}')
        for b, d, o in ((E, 192, out), (P, 196, out + 10)):
            for n in range(10):
                a.e(f'v_pk_mul_f32 {vr(b + 2 * n, 2)}, {vr(b + 2 * n, 2)}, {vr(d, 2)} op_sel_hi:[1,0]')
            for n in range(10):
                a.e(f'v_cvt_pk_bf16_f32 {vr(o + n)}, {vr(b + 2 * n)}, {vr(b + 2 * n + 1)}')

    def phase1(self):
        a, cfg = self.a, self.cfg
        T = S_T
        a.c('phase 1: qkv projection')
        a.e('v_min_u32 v9, 59, v0\nv_mul_u32_u24 v10, 0xcd, v9\nv_lshrrev_b32 v10, 12, v10\nv_mul_u32_u24 v10, 0xb4, v10')
        a.e('v_add_u32 v9, v9, v10\nv_lshlrev_b32 v9, 3, v9')
        a.e(f's_mul_i32 {sr(T)}, {sr(S_J1)}, 40\ns_add_u32 {sr(T + 1)}, {sr(T)}, 39\ns_lshr_b32 {sr(T)}, {sr(T)}, 6\ns_lshr_b32 {sr(T + 1)}, {sr(T + 1)}, 6')
        for k in range(2):
            a.e(f's_mul_i32 {sr(T + k)}, {sr(T + k)}, 160\ns_add_u32 {sr(T + k)}, {sr(T + k)}, {WS_FW}')
        self.poll([(f'buffer_load_dwordx2 v[28:29], v9, {sr(R_WS, 4)}, {sr(T)} offen sc1', 28),
                   (f'buffer_load_dwordx2 v[30:31], v9, {sr(R_WS, 4)}, {sr(T + 1)} offen sc1', 30)])
        self.flag(T + 6)
        self.stamp('hpub')
        SRC, DST, HB = T + 8, T + 9, T + 10
        a.e(f's_mul_i32 {sr(SRC)}, {sr(S_J1)}, 153600\ns_lshl_b32 {sr(DST)}, {sr(S_W)}, 10\ns_add_u32 {sr(SRC)}, {sr(SRC)}, {sr(DST)}\ns_add_u32 {sr(SRC)}, {sr(SRC)}, {WS_WQ}')
        a.e(f's_cmp_gt_u32 {sr(S_W)}, 1\ns_cselect_b32 {sr(T + 11)}, 2048, 0')
        wtok = {}

        def wdma(q):
            if q == 37:
                a.e(f's_sub_u32 {sr(SRC)}, {sr(SRC)}, {sr(T + 11)}\ns_sub_u32 {sr(DST)}, {sr(DST)}, {sr(T + 11)}')
            a.e(f's_add_u32 m0, {sr(DST)}, {q * 4096}\ns_add_u32 {sr(T + 12)}, {sr(SRC)}, {q * 4096}')
            wtok[q] = a.vmem(f'buffer_load_dwordx4 v1, {sr(R_WS, 4)}, {sr(T + 12)} offen sc1 lds')
        NPRE = 18
        for q in range(NPRE):
            wdma(q)
        self.wphi_frags()
        self.frag_addr(4, 9)
        a.e(f'v_add_u32 v5, 0x10000, v4\nv_add_u32 v6, {L_P2W}, v4')
        a.e(f's_lshl_b32 {sr(T)}, {sr(S_G1)}, 2\ns_add_u32 {sr(T)}, {sr(T)}, {sr(S_W)}\ns_mul_i32 {sr(HB)}, {sr(T)}, 40960\ns_add_u32 {sr(HB)}, {sr(HB)}, {WS_H}')
        a.e(f's_lshl_b32 {sr(T)}, {sr(T)}, 11\ns_add_u32 {sr(T)}, {sr(T)}, {WS_FH}\nv_and_b32 v9, 15, v0\nv_lshlrev_b32 v9, 7, v9')
        self.poll([(f'buffer_load_dwordx2 v[28:29], v9, {sr(R_WS, 4)}, {sr(T)} offen sc1', 28)])
        self.stamp('hready')
        htok = {}

        def hload(s):
            if s and s % 4 == 0:
                a.e(f's_add_u32 {sr(HB)}, {sr(HB)}, 4096')
            htok[s] = a.vmem(f'buffer_load_dwordx4 {ar(4 * s, 4)}, v1, {sr(R_WS, 4)}, {sr(HB)} offen offset:{(s % 4) * 1024} sc1')
        HPRE = 16
        for s in range(HPRE):
            hload(s)
        LA = 6
        nf = 120
        rtok = {}

        def wread(f):
            if f % 24 == 0:
                a.wait(vm=wtok[f // 4 + 5])
                self.barrier()
            off = f * 1024
            rtok[f] = a.ds(f'ds_read_b128 {ar(160 + 4 * (f % 8), 4)}, v{4 + (off >> 16)} offset:{off & 0xffff}')
        for f in range(LA):
            wread(f)
        nq, nh = NPRE, HPRE
        for f in range(nf):
            s, t = divmod(f, 3)
            a.wait(vm=htok[s] if t == 0 else None, lg=rtok[f])
            acc = 64 + 16 * t
            a.e(f'v_mfma_f32_32x32x16_bf16 {vr(acc, 16)}, {ar(160 + 4 * (f % 8), 4)}, {ar(4 * s, 4)}, {vr(acc, 16) if s else 0}')
            if t == 0 and nh < 40:
                hload(nh)
                nh += 1
            if t == 1 and nq < 38:
                wdma(nq)
                nq += 1
            if f + LA < nf:
                wread(f + LA)
        self.stamp('pass1')
        a.c('feature map of k, partial kv')
        self.feature_map(64, 224)
        for n in range(10):
            a.e(f'v_cvt_pk_bf16_f32 {vr(128 + n)}, {vr(84 + 2 * n)}, {vr(85 + 2 * n)}')
        a.e('v_mov_b32 v138, 0x3f80\nv_mov_b32 v139, 0')
        a.e(f's_mul_i32 {sr(T)}, {sr(S_W)}, {32 * TP}\nv_and_b32 v9, 31, v0\nv_mul_u32_u24 v9, {TP}, v9\nv_add_u32 v9, {sr(T)}, v9')
        a.e('v_lshrrev_b32 v11, 5, v0\nv_mul_u32_u24 v10, 48, v11\nv_add_u32 v10, v10, v9\nv_mul_u32_u24 v11, 80, v11\nv_add_u32 v9, v11, v9')
        for n in range(5):
            a.ds(f'ds_write_b128 v9, {vr(224 + 4 * n, 4)} offset:{16 * n}')
        for n in range(3):
            a.ds(f'ds_write_b128 v10, {vr(128 + 4 * n, 4)} offset:{160 + 16 * n}')
        a.e(f'v_lshrrev_b32 v11, 5, v0\nv_bfe_u32 v12, v0, 2, 2\nv_lshl_add_u32 v11, v11, 3, v12\nv_mul_u32_u24 v11, {TP}, v11')
        a.e('v_bfe_u32 v12, v0, 4, 1\nv_and_b32 v13, 3, v0\nv_lshl_add_u32 v14, v12, 2, v13')
        a.e('v_and_b32 v15, 1, v0\nv_lshlrev_b32 v15, 1, v15\nv_lshl_add_u32 v15, v12, 2, v15\nv_bfe_u32 v13, v0, 1, 1\nv_add_u32 v15, v15, v13')
        a.e(f's_lshr_b32 {sr(T)}, {sr(S_W)}, 1\ns_and_b32 {sr(T + 1)}, {sr(S_W)}, 1\ns_mul_i32 {sr(T + 2)}, {sr(T)}, 80\ns_lshl_b32 {sr(T + 3)}, {sr(T + 1)}, 6')
        a.e(f's_add_u32 {sr(T + 2)}, {sr(T + 2)}, {sr(T + 3)}\ns_mul_i32 {sr(T + 3)}, {sr(T)}, 48\ns_add_u32 {sr(T + 3)}, {sr(T + 3)}, 160')
        a.e(f'v_lshl_add_u32 v12, v15, 3, v11\nv_add_u32 v12, {sr(T + 2)}, v12\nv_lshl_add_u32 v13, v14, 3, v11\nv_add_u32 v13, {sr(T + 3)}, v13')
        a.e(f'v_lshrrev_b32 v9, 5, v0\nv_and_b32 v10, 31, v0\ns_mul_i32 {sr(T)}, {sr(T)}, 5\ns_lshl_b32 {sr(T + 2)}, {sr(T + 1)}, 2\ns_add_u32 {sr(T)}, {sr(T)}, {sr(T + 2)}')
        a.e(f'v_add_u32 v11, {sr(T)}, v9\nv_mul_u32_u24 v11, 21, v11\nv_add_u32 v11, v11, v10\nv_lshlrev_b32 v11, 4, v11')
        a.e(f's_cmp_eq_u32 {sr(T + 1)}, 0\ns_cselect_b32 {sr(T + 2)}, 64, 32\ns_cselect_b32 {sr(T + 3)}, {42 * 16}, {OOB}')
        a.e(f'v_mov_b32 v9, {OOB}\nv_cmp_gt_u32 vcc, 21, v10\nv_cndmask_b32 v11, v9, v11, vcc\nv_cmp_gt_u32 vcc, {sr(T + 2)}, v0\nv_cndmask_b32 v14, v9, v11, vcc')
        a.e(f's_lshl_b32 {sr(T)}, {sr(S_J1)}, 4\ns_add_u32 {sr(T)}, {sr(T)}, {sr(S_G1)}\ns_mul_i32 {sr(T + 4)}, {sr(T)}, 3456\ns_add_u32 {sr(T + 4)}, {sr(T + 4)}, {WS_KVP}')
        a.e(f's_add_u32 {sr(T + 5)}, {sr(T + 4)}, {sr(T + 3)}')
        a.e(f's_lshl_b32 {sr(T)}, {sr(T)}, 2\ns_add_u32 {sr(T)}, {sr(T)}, {sr(S_W)}\ns_lshl_b32 {sr(T + 6)}, {sr(T)}, 7\ns_add_u32 {sr(T + 6)}, {sr(T + 6)}, {WS_FKV}')
        a.wait(vm=wtok[37])
        a.wait_all(vm=False)
        self.barrier()
        tk = []
        for s in range(8):
            for z in range(2):
                a.ds(f'ds_read_b64_tr_b16 {vr(128 + 8 * s + 2 * z, 2)}, v12 offset:{(16 * s + 4 * z) * TP}')
            for z in range(2):
                t = a.ds(f'ds_read_b64_tr_b16 {vr(132 + 8 * s + 2 * z, 2)}, v13 offset:{(16 * s + 4 * z) * TP}')
            tk.append(t)
            if s >= 2:
                a.wait(lg=tk[s - 2])
                a.e(f'v_mfma_f32_32x32x16_bf16 v[64:79], {vr(128 + 8 * (s - 2), 4)}, {vr(132 + 8 * (s - 2), 4)}, {"v[64:79]" if s > 2 else 0}')
        for s in (6, 7):
            a.wait(lg=tk[s])
            a.e(f'v_mfma_f32_32x32x16_bf16 v[64:79], {vr(128 + 8 * s, 4)}, {vr(132 + 8 * s, 4)}, v[64:79]')
        for n in range(8):
            a.e(f'v_cvt_pk_bf16_f32 {vr(80 + n)}, {vr(64 + 2 * n)}, {vr(65 + 2 * n)}')
        a.vmem(f'buffer_store_dwordx4 v[80:83], v14, {sr(R_WS, 4)}, {sr(T + 4)} offen sc1')
        tkv = a.vmem(f'buffer_store_dwordx4 v[84:87], v14, {sr(R_WS, 4)}, {sr(T + 5)} offen sc1')
        self.stamp('kvst')
        rtok = {}

        def wread2(s):
            rtok[s] = a.ds(f'ds_read_b128 {ar(160 + 4 * (s % 8), 4)}, v6 offset:{s * 768}')
        for s in range(LA):
            wread2(s)
        for s in range(40):
            a.wait(lg=rtok[s])
            a.e(f'v_mfma_f32_32x32x16_bf16 v[112:127], {ar(160 + 4 * (s % 8), 4)}, {ar(4 * s, 4)}, {"v[112:127]" if s else 0}')
            if s + LA < 40:
                wread2(s + LA)
            if s == 20:
                a.wait(vm=tkv)
                self.flag(T + 6)
        self.feature_map(104, 224)
        self.stamp('phiq')
        a.c('reduce kv, o = num / den')
        a.e(f's_lshl_b32 {sr(T)}, {sr(S_W)}, 6\nv_add_u32 v9, {sr(T)}, v0\nv_lshlrev_b32 v10, 4, v9\nv_mov_b32 v11, {OOB}')
        a.e('v_cmp_gt_u32 vcc, 0xd2, v9\nv_cndmask_b32 v10, v11, v10, vcc')
        a.e('v_mul_u32_u24 v11, 0x187, v9\nv_lshrrev_b32 v11, 13, v11\nv_mul_u32_u24 v12, 21, v11\nv_sub_u32 v12, v9, v12')
        a.e(f'v_mul_u32_u24 v12, 80, v12\nv_lshl_add_u32 v12, v11, 4, v12\nv_add_u32 v13, {1920 - 80}, v12')
        a.e(f'v_cmp_gt_u32 {sr(T + 2, 2)}, 5, v11\nv_cndmask_b32 v12, v13, v12, {sr(T + 2, 2)}')
        a.e(f'v_mov_b32 v13, 3920\nv_cndmask_b32 v12, v13, v12, vcc\nv_add_u32 v12, {L_KVR}, v12')
        a.e(f'v_mov_b32 v16, 0\nv_mov_b32 v17, 0\nv_mov_b32 v18, 0\nv_mov_b32 v19, 0\nv_min_u32 v13, 4, v0\nv_lshlrev_b32 v13, 4, v13\nv_add_u32 v13, {L_KVZ}, v13')
        a.ds('ds_write_b128 v13, v[16:19]')
        a.e('v_bfe_u32 v16, v0, 2, 1\nv_bfe_u32 v17, v0, 3, 2\nv_and_b32 v18, 3, v0\nv_lshrrev_b32 v19, 5, v0')
        a.e('v_add_u32 v20, v17, v16\nv_lshl_add_u32 v20, v20, 2, v18')
        a.e('v_lshlrev_b32 v21, 2, v16\nv_sub_u32 v21, 4, v21\nv_cmp_eq_u32 vcc, 0, v17\nv_cndmask_b32 v21, 5, v21, vcc\nv_lshl_add_u32 v21, v21, 2, v18')
        a.e(f'v_mul_u32_u24 v22, 0x780, v16\nv_add_u32 v22, {L_KVR}, v22\nv_mov_b32 v23, {L_KVZ}\nv_cmp_eq_u32 vcc, v16, v19')
        a.e('v_mul_u32_u24 v20, 80, v20\nv_add_u32 v20, v20, v22\nv_cndmask_b32 v14, v23, v20, vcc')
        a.e('v_mul_u32_u24 v21, 80, v21\nv_add_u32 v21, v21, v22\nv_cndmask_b32 v15, v23, v21, vcc')
        a.e('v_bfe_u32 v16, v0, 4, 1\nv_mul_u32_u24 v16, 0x5000, v16\nv_and_b32 v17, 0xf0, v1\nv_add_u32 v21, v16, v17\nv_mul_u32_u24 v19, 0x300, v19\nv_add_u32 v20, v21, v19')
        a.e(f's_lshl_b32 {sr(T)}, {sr(S_G1)}, 2\ns_add_u32 {sr(T)}, {sr(T)}, {sr(S_W)}\ns_mul_i32 {sr(T + 7)}, {sr(T)}, 40960\ns_mul_i32 {sr(T)}, {sr(S_J1)}, 1280')
        a.e(f's_add_u32 {sr(T + 7)}, {sr(T + 7)}, {sr(T)}\ns_add_u32 {sr(T + 7)}, {sr(T + 7)}, {WS_O}')
        a.e(f's_lshl_b32 {sr(T)}, {sr(S_G1)}, 4\ns_add_u32 {sr(T)}, {sr(T)}, {sr(S_J1)}\ns_lshl_b32 {sr(T)}, {sr(T)}, 2\ns_add_u32 {sr(T)}, {sr(T)}, {sr(S_W)}')
        a.e(f's_lshl_b32 {sr(T + 6)}, {sr(T)}, 7\ns_add_u32 {sr(T + 6)}, {sr(T + 6)}, {WS_FO}')
        a.e(f's_mul_i32 {sr(T + 4)}, {sr(S_J1)}, {16 * 3456}\ns_add_u32 {sr(T + 4)}, {sr(T + 4)}, {WS_KVP}')
        a.e(f's_lshl_b32 {sr(T)}, {sr(S_J1)}, 13\ns_add_u32 {sr(T)}, {sr(T)}, {WS_FKV}\nv_lshlrev_b32 v9, 7, v0')
        a.e(f's_mov_b32 {sr(T + 2)}, 0x3f80\ns_mov_b32 {sr(T + 3)}, 0x3f800000')
        for n in range(8):
            a.e(f'v_mov_b32 {vr(192 + n)}, 0')
        self.poll([(f'buffer_load_dwordx2 v[28:29], v9, {sr(R_WS, 4)}, {sr(T)} offen sc1', 28)])
        self.stamp('kvready')
        tk = []
        for g in range(16):
            if g:
                a.e(f's_add_u32 {sr(T + 4)}, {sr(T + 4)}, 3456')
            tk.append(a.vmem(f'buffer_load_dwordx4 {vr(128 + 4 * g, 4)}, v10, {sr(R_WS, 4)}, {sr(T + 4)} offen sc1'))
        for g in range(16):
            a.wait(vm=tk[g])
            for n in range(4):
                a.e(f'v_dot2c_f32_bf16 {vr(192 + 2 * n)}, {sr(T + 2)}, {vr(128 + 4 * g + n)}')
                a.e(f'v_dot2c_f32_bf16 {vr(193 + 2 * n)}, {sr(T + 3)}, {vr(128 + 4 * g + n)}')
        for n in range(4):
            a.e(f'v_cvt_pk_bf16_f32 {vr(16 + n)}, {vr(192 + 2 * n)}, {vr(193 + 2 * n)}')
        a.ds('ds_write_b128 v12, v[16:19]')
        a.wait_all(vm=False)
        self.barrier()
        tk = []
        for t in (1, 0):
            for s in range(5):
                tk.append(a.ds(f'ds_read_b128 {vr(128 + 20 * t + 4 * s, 4)}, v{14 + t} offset:{16 * s}'))
        n = 0
        for t in (1, 0):
            for s in range(5):
                a.wait(lg=tk[n])
                n += 1
                acc = 64 + 16 * t
                a.e(f'v_mfma_f32_32x32x16_bf16 {vr(acc, 16)}, {vr(128 + 20 * t + 4 * s, 4)}, {vr(224 + 4 * s, 4)}, {vr(acc, 16) if s else 0}')
        if cfg.mimic >= 2:
            self.round_one(84, 9)
            a.e('v_add_f32 v84, 0x358637bd, v84')
            self.round_one(84, 9)
            for n in range(10):
                self.round_pair(64 + 2 * n, 128 + n)
        else:
            a.e('v_add_f32 v84, 0x358637bd, v84')
        a.e('v_rcp_f32 v84, v84')
        for n in range(10):
            a.e(f'v_pk_mul_f32 {vr(64 + 2 * n, 2)}, {vr(64 + 2 * n, 2)}, v[84:85] op_sel_hi:[1,0]')
        for n in range(10):
            a.e(f'v_cvt_pk_bf16_f32 {vr(128 + n)}, {vr(64 + 2 * n)}, {vr(65 + 2 * n)}')
        a.vmem(f'buffer_store_dwordx4 v[128:131], v20, {sr(R_WS, 4)}, {sr(T + 7)} offen sc1')
        a.vmem(f'buffer_store_dwordx4 v[132:135], v20, {sr(R_WS, 4)}, {sr(T + 7)} offen offset:256 sc1')
        a.e('v_permlane32_swap_b32 v136, v138\nv_permlane32_swap_b32 v137, v139\ns_mov_b32 exec_hi, 0')
        self.tok_o = a.vmem(f'buffer_store_dwordx4 v[136:139], v21, {sr(R_WS, 4)}, {sr(T + 7)} offen offset:512 sc1')
        a.e('s_mov_b64 exec, -1')
        self.stamp('ost')

    def finish(self):
        a, cfg = self.a, self.cfg
        T = S_T
        if cfg.diag:
            self.stamp('end')
            a.e(f's_lshl_b32 {sr(T)}, s2, 2\ns_add_u32 {sr(T)}, {sr(T)}, {sr(S_W)}\ns_lshl_b32 {sr(T)}, {sr(T)}, 8\ns_add_u32 {sr(T)}, {sr(T)}, {WS_DBG}')
            a.e('v_lshlrev_b32 v9, 2, v0')
            a.vmem(f'buffer_store_dword {vr(V_STAMP)}, v9, {sr(R_WS, 4)}, {sr(T)} offen')
        a.label('L_end')
        a.e('s_endpgm')

    def advance_epoch(self):
        a = self.a
        T = S_T
        a.e(f's_lshl_b32 {sr(T + 27)}, s2, 2\ns_add_u32 {sr(T + 27)}, {sr(T + 27)}, {sr(S_W)}\ns_cmp_eq_u32 {sr(T + 27)}, 0\ns_cselect_b32 {sr(T + 27)}, {WS_EPOCH}, {OOB}')
        self.flag(T + 27)

    def build(self):
        cfg = self.cfg
        self.prologue()
        self.startup()
        if cfg.stop == 'startup':
            self.a.wait_all()
        else:
            self.phase1()
            if cfg.stop == 'phase1':
                self.a.wait_all()
            else:
                from gen2 import back_half
                back_half(self)
        self.finish()
        body = pad_hazards(self.a.lines)
        head = open(f'cdna_kernels/{NAME}.s.ref').read().split('\n')
        out = []
        for l in head:
            if l.startswith('; @launch'):
                out.append('; @launch grid=(256,1,1) block=(256,1,1) lds=163840')
            else:
                out.append(l)
            if l.startswith(NAME + '_kernel:'):
                break
        out += body
        out += ['.section .rodata,"a"', '.p2align 6', f'.amdhsa_kernel {NAME}_kernel',
                '  .amdhsa_next_free_vgpr 512', '  .amdhsa_next_free_sgpr 102', '  .amdhsa_accum_offset 256',
                '  .amdhsa_group_segment_fixed_size 0', '  .amdhsa_kernarg_size 104', '  .amdhsa_user_sgpr_count 2',
                '  .amdhsa_user_sgpr_kernarg_segment_ptr 1', '  .amdhsa_system_sgpr_workgroup_id_x 1',
                '  .amdhsa_float_denorm_mode_32 3', '.end_amdhsa_kernel', '']
        return '\n'.join(out)


def main():
    cfg = Cfg()
    path = None
    for arg in sys.argv[1:]:
        if '=' in arg:
            k, v = arg.split('=')
            old = getattr(Cfg, k)
            setattr(cfg, k, (v == '1') if isinstance(old, bool) else int(v) if isinstance(old, int) else v)
        else:
            path = arg
    g = Gen(cfg)
    text = g.build()
    open(path, 'w').write(text)
    open(path + '.stamps', 'w').write('\n'.join(g.stamps))
    print('wrote', path, len(text), 'bytes,', text.count('\n'), 'lines')


if __name__ == '__main__':
    import gen
    gen.main()
```

```python
from asmlib import vr, ar, sr
from gen import *


def wphi_frags(g):
    a = g.a
    a.e('v_and_b32 v9, 1, v0\nv_mul_u32_u24 v9, 0x320, v9\nv_bfe_u32 v10, v0, 2, 2\nv_mul_u32_u24 v10, 40, v10\nv_add_u32 v9, v9, v10')
    a.e('v_bfe_u32 v10, v0, 1, 1\nv_bfe_u32 v11, v0, 4, 1\nv_lshl_add_u32 v10, v11, 1, v10\nv_lshl_add_u32 v9, v10, 3, v9')
    a.e(f'v_add_u32 v9, {L_WPHI}, v9')
    a.e('v_bfe_u32 v10, v0, 2, 1\nv_lshrrev_b32 v11, 5, v0\nv_cmp_eq_u32 vcc, v10, v11\nv_cndmask_b32 v10, 0, -1, vcc')
    for t in range(2):
        for s in range(3):
            r = 200 + 12 * t + 4 * s
            a.ds(f'ds_read_b64_tr_b16 {vr(r, 2)}, v9 offset:{32 * t + 320 * s}')
            if s < 2:
                a.ds(f'ds_read_b64_tr_b16 {vr(r + 2, 2)}, v9 offset:{32 * t + 320 * s + 160}')
            else:
                a.e(f'v_mov_b32 {vr(r + 2)}, 0\nv_mov_b32 {vr(r + 3)}, 0')
    a.wait_all(vm=False)
    for t in range(2):
        for n in range(10):
            r = 200 + 12 * t + n
            a.e(f'v_and_b32 {vr(r)}, {vr(r)}, v10')


def addresses(g):
    a = g.a
    g.frag16_addr(VA0, 9)
    a.e(f'v_add_u32 {vr(VA1)}, 0x10000, {vr(VA0)}')
    a.e(f'v_bfe_u32 v9, v0, 2, 2\nv_lshrrev_b32 v10, 1, v9\nv_sub_u32 v9, v9, v10\nv_lshlrev_b32 v9, 8, v9\nv_sub_u32 {vr(VA2)}, {vr(VA0)}, v9')
    a.e(f's_mul_i32 {sr(T)}, {sr(S_W)}, {32 * TP}\ns_add_u32 {sr(T)}, {sr(T)}, {L_TS}\nv_and_b32 v9, 31, v0\nv_mul_u32_u24 v9, {TP}, v9\nv_add_u32 v9, {sr(T)}, v9')
    a.e(f'v_lshrrev_b32 v11, 5, v0\nv_mul_u32_u24 v10, 48, v11\nv_add_u32 {vr(VTW1)}, v10, v9\nv_mul_u32_u24 v11, 80, v11\nv_add_u32 {vr(VTW0)}, v11, v9')
    a.e(f'v_lshrrev_b32 v11, 5, v0\nv_bfe_u32 v12, v0, 2, 2\nv_lshl_add_u32 v11, v11, 3, v12\nv_mul_u32_u24 v11, {TP}, v11')
    a.e('v_bfe_u32 v12, v0, 4, 1\nv_and_b32 v13, 3, v0\nv_lshl_add_u32 v14, v12, 2, v13')
    a.e('v_and_b32 v15, 1, v0\nv_lshlrev_b32 v15, 1, v15\nv_lshl_add_u32 v15, v12, 2, v15\nv_bfe_u32 v13, v0, 1, 1\nv_add_u32 v15, v15, v13')
    a.e(f's_lshr_b32 {sr(T)}, {sr(S_W)}, 1\ns_and_b32 {sr(T + 1)}, {sr(S_W)}, 1\ns_mul_i32 {sr(T + 2)}, {sr(T)}, 80\ns_lshl_b32 {sr(T + 3)}, {sr(T + 1)}, 6')
    a.e(f's_add_u32 {sr(T + 2)}, {sr(T + 2)}, {sr(T + 3)}\ns_add_u32 {sr(T + 2)}, {sr(T + 2)}, {L_TS}\ns_mul_i32 {sr(T + 3)}, {sr(T)}, 48\ns_add_u32 {sr(T + 3)}, {sr(T + 3)}, {L_TS + 160}')
    a.e(f'v_lshl_add_u32 v12, v15, 3, v11\nv_add_u32 {vr(VTR0)}, {sr(T + 2)}, v12\nv_lshl_add_u32 v13, v14, 3, v11\nv_add_u32 {vr(VTR1)}, {sr(T + 3)}, v13')
    a.e(f'v_lshrrev_b32 v9, 5, v0\nv_and_b32 v10, 31, v0\ns_mul_i32 {sr(T)}, {sr(T)}, 5\ns_lshl_b32 {sr(T + 2)}, {sr(T + 1)}, 2\ns_add_u32 {sr(T)}, {sr(T)}, {sr(T + 2)}')
    a.e(f'v_add_u32 v11, {sr(T)}, v9\nv_mul_u32_u24 v11, 21, v11\nv_add_u32 v11, v11, v10\nv_lshlrev_b32 v11, 4, v11')
    a.e(f's_cmp_eq_u32 {sr(T + 1)}, 0\ns_cselect_b32 {sr(T + 2)}, 64, 32\ns_cselect_b32 {sr(T + 3)}, {42 * 16}, {OOB}')
    a.e(f'v_mov_b32 v9, {OOB}\nv_cmp_gt_u32 vcc, 21, v10\nv_cndmask_b32 v11, v9, v11, vcc\nv_cmp_gt_u32 vcc, {sr(T + 2)}, v0\nv_cndmask_b32 {vr(VKS)}, v9, v11, vcc')
    a.e(f's_lshl_b32 {sr(T)}, {sr(S_J1)}, 4\ns_add_u32 {sr(T)}, {sr(T)}, {sr(S_G1)}\ns_mul_i32 {sr(P + 4)}, {sr(T)}, 3456\ns_add_u32 {sr(P + 4)}, {sr(P + 4)}, {WS_KVP}')
    a.e(f's_add_u32 {sr(P + 5)}, {sr(P + 4)}, {sr(T + 3)}')
    g.wg_flag_off(P + 6, S_J1, 16, S_G1, WS_FKV)
    a.e(f's_lshl_b32 {sr(T)}, {sr(S_W)}, 6\nv_add_u32 v9, {sr(T)}, v0\nv_lshlrev_b32 v10, 4, v9\nv_mov_b32 v11, {OOB}')
    a.e(f'v_cmp_gt_u32 vcc, 0xd2, v9\nv_cndmask_b32 {vr(VGL)}, v11, v10, vcc')
    a.e('v_mul_u32_u24 v11, 0x187, v9\nv_lshrrev_b32 v11, 13, v11\nv_mul_u32_u24 v12, 21, v11\nv_sub_u32 v12, v9, v12')
    a.e(f'v_mul_u32_u24 v12, 80, v12\nv_lshl_add_u32 v12, v11, 4, v12\nv_add_u32 v13, {1920 - 80}, v12')
    a.e(f'v_cmp_gt_u32 {sr(T + 2, 2)}, 5, v11\nv_cndmask_b32 v12, v13, v12, {sr(T + 2, 2)}')
    a.e(f'v_mov_b32 v13, 3920\nv_cndmask_b32 v12, v13, v12, vcc\nv_add_u32 {vr(VKW)}, {L_KVR}, v12')
    a.e('v_bfe_u32 v9, v0, 2, 1\nv_bfe_u32 v10, v0, 3, 2\nv_and_b32 v11, 3, v0\nv_lshrrev_b32 v12, 5, v0')
    a.e('v_add_u32 v13, v10, v9\nv_lshl_add_u32 v13, v13, 2, v11')
    a.e('v_lshlrev_b32 v14, 2, v9\nv_sub_u32 v14, 4, v14\nv_cmp_eq_u32 vcc, 0, v10\nv_cndmask_b32 v14, 5, v14, vcc\nv_lshl_add_u32 v14, v14, 2, v11')
    a.e(f'v_mul_u32_u24 v15, 0x780, v9\nv_add_u32 v15, {L_KVR}, v15\nv_mov_b32 v10, {L_KVZ}\nv_cmp_eq_u32 vcc, v9, v12')
    a.e(f'v_mul_u32_u24 v13, 80, v13\nv_add_u32 v13, v13, v15\nv_cndmask_b32 {vr(VO0)}, v10, v13, vcc')
    a.e(f'v_mul_u32_u24 v14, 80, v14\nv_add_u32 v14, v14, v15\nv_cndmask_b32 {vr(VO1)}, v10, v14, vcc')
    a.e(f'v_bfe_u32 v9, v0, 4, 1\nv_mul_u32_u24 v9, 0x5000, v9\nv_and_b32 v10, 0xf0, v1\nv_add_u32 {vr(VOS1)}, v9, v10\nv_mul_u32_u24 v12, 0x300, v12\nv_add_u32 {vr(VOS0)}, {vr(VOS1)}, v12')
    a.e(f'v_and_b32 v9, 15, v0\nv_lshlrev_b32 {vr(VF128)}, 7, v9')


class Paced:
    def __init__(self, g, every):
        self.g, self.every, self.n = g, every, 0

    def e(self, text):
        for t in text.split('\n'):
            self.g.a.e(t)
            self.n += 1
            if self.n % self.every == 0:
                self.g.fill(1)


def feature_map(g, out, mid=None, every=8):
    a = g.a
    for t in (1, 0):
        for s in range(3):
            acc = 140 + 16 * t
            a.e(f'v_mfma_f32_32x32x16_bf16 {vr(acc, 16)}, {vr(200 + 12 * t + 4 * s, 4)}, {vr(128 + 4 * s, 4)}, {vr(acc, 16) if s else 0}')
    if mid:
        mid()
    a = Paced(g, every)
    Pr, E = 140, 172
    for op, d in (('max', 192), ('min', 194)):
        a.e(f'v_{op}3_f32 {vr(d)}, {vr(Pr + 16)}, {vr(Pr + 17)}, {vr(Pr + 18)}')
    for op, d in (('max', 192), ('min', 194)):
        a.e(f'v_{op}3_f32 {vr(d + 1)}, {vr(Pr + 19)}, {vr(Pr)}, {vr(Pr + 1)}')
    for k in range(2, 16, 2):
        for op, d in (('max', 192), ('min', 194)):
            dd = d + ((k >> 1) & 1 ^ 1)
            a.e(f'v_{op}3_f32 {vr(dd)}, {vr(dd)}, {vr(Pr + k)}, {vr(Pr + k + 1)}')
    for op, d in (('max', 192), ('min', 194)):
        a.e(f'v_{op}_f32 {vr(d)}, {vr(d)}, {vr(d + 1)}')
    a.e(f'v_mul_f32 v192, {sr(S_L2E)}, v192\nv_mul_f32 v194, {sr(S_L2E)}, v194')
    for n in range(10):
        a.e(f'v_pk_fma_f32 {vr(E + 2 * n, 2)}, {vr(Pr + 2 * n, 2)}, {sr(S_L2E, 2)}, v[192:193] op_sel_hi:[1,1,0] neg_lo:[0,0,1] neg_hi:[0,0,1]')
        a.e(f'v_pk_fma_f32 {vr(Pr + 2 * n, 2)}, {vr(Pr + 2 * n, 2)}, {sr(S_L2E, 2)}, v[194:195] op_sel_hi:[1,1,0] neg_lo:[1,0,0] neg_hi:[1,0,0]')
    for b in (E, Pr):
        for n in range(20):
            a.e(f'v_exp_f32 {vr(b + n)}, {vr(b + n)}')
    for b, d in ((E, 192), (Pr, 196)):
        a.e(f'v_pk_add_f32 {vr(d, 2)}, {vr(b, 2)}, {vr(b + 2, 2)}\nv_pk_add_f32 {vr(d + 2, 2)}, {vr(b + 4, 2)}, {vr(b + 6, 2)}')
    for k in range(8, 20, 4):
        for b, d in ((E, 192), (Pr, 196)):
            a.e(f'v_pk_add_f32 {vr(d, 2)}, {vr(d, 2)}, {vr(b + k, 2)}\nv_pk_add_f32 {vr(d + 2, 2)}, {vr(d + 2, 2)}, {vr(b + k + 2, 2)}')
    for d in (192, 196):
        a.e(f'v_pk_add_f32 {vr(d, 2)}, {vr(d, 2)}, {vr(d + 2, 2)}')
    for d in (192, 196):
        a.e(f'v_add_f32 {vr(d)}, {vr(d)}, {vr(d + 1)}')
    for d in (192, 196):
        a.e(f'v_rcp_f32 {vr(d)}, {vr(d)}')
    for b, d, o in ((E, 192, out), (Pr, 196, out + 10)):
        for n in range(10):
            a.e(f'v_pk_mul_f32 {vr(b + 2 * n, 2)}, {vr(b + 2 * n, 2)}, {vr(d, 2)} op_sel_hi:[1,0]')
        for n in range(10):
            a.e(f'v_cvt_pk_bf16_f32 {vr(o + n)}, {vr(b + 2 * n)}, {vr(b + 2 * n + 1)}')


def phase1(g, ring):
    a, cfg = g.a, g.cfg
    a.c('phase 1: qkv projection')
    SRC, DST, HB = P + 10, P + 11, T + 15
    a.e(f's_mul_i32 {sr(SRC)}, {sr(S_J1)}, 153600\ns_lshl_b32 {sr(DST)}, {sr(S_W)}, 10\ns_add_u32 {sr(SRC)}, {sr(SRC)}, {sr(DST)}\ns_add_u32 {sr(SRC)}, {sr(SRC)}, {WS_WQ}')
    wtok = {}

    def wdma(q):
        if q == 37:
            a.e(f's_cmp_gt_u32 {sr(S_W)}, 1\ns_cselect_b32 {sr(T + 1)}, 2048, 0\ns_sub_u32 {sr(SRC)}, {sr(SRC)}, {sr(T + 1)}\ns_sub_u32 {sr(T + 1)}, {sr(DST)}, {sr(T + 1)}')
        a.e(f's_add_u32 m0, {sr(T + 1 if q == 37 else DST)}, {(q % 25) * 4096}\ns_add_u32 {sr(T)}, {sr(SRC)}, {q * 4096}')
        wtok[q] = a.vmem(f'buffer_load_dwordx4 v1, {sr(R_WS, 4)}, {sr(T)} offen sc1 lds')
    tf = g.publish(g.tok_h, P + 7)
    g.stamp('hpub')
    g.poll_check(*g.fw)
    for q in range(cfg.w1a):
        wdma(q)
    a.e(f's_lshl_b32 {sr(T)}, {sr(S_G1)}, 2\ns_add_u32 {sr(T)}, {sr(T)}, {sr(S_W)}\ns_mul_i32 {sr(HB)}, {sr(T)}, 40960\ns_add_u32 {sr(HB)}, {sr(HB)}, {WS_H}')
    a.e(f's_lshl_b32 {sr(T + 14)}, {sr(T)}, 9\ns_add_u32 {sr(T + 14)}, {sr(T + 14)}, {WS_FH}\nv_and_b32 v40, 3, v0\nv_lshlrev_b32 v40, 7, v40')
    fh = [(f'buffer_load_dwordx2 v[42:43], v40, {sr(R_WS, 4)}, {sr(T + 14)} offen sc1', 42)]
    wphi_frags(g)
    a.e(f's_add_u32 {sr(P + 8)}, {sr(HB)}, 20480')
    if cfg.ackw:
        a.wait(vm=tf)
    tok = g.poll_issue(fh)
    for q in range(cfg.w1a, cfg.w1b):
        wdma(q)
    g.fq.extend(g.gemv_items(L_MT2, P, 64))
    g.flush()
    g.poll_check(fh, tok)
    g.stamp('hready')
    htok = {}

    def hload(s, tt):
        sb = (HB, P + 8)[tt]
        if s and s % 4 == 0:
            a.e(f's_add_u32 {sr(sb)}, {sr(sb)}, 4096')
        htok[s, tt] = a.vmem(f'buffer_load_dwordx4 {ar(8 * s + 4 * tt, 4)}, v1, {sr(R_WS, 4)}, {sr(sb)} offen offset:{(s % 4) * 1024} sc1')
    for s in range(cfg.hpre):
        hload(s, 0)
        hload(s, 1)
    wq = list(range(cfg.w1b, 25))
    for s in range(cfg.hpre, 20):
        g.fq.append(lambda s=s: hload(s, 0))
        g.fq.append(lambda s=s: hload(s, 1))
        if wq:
            g.fq.append(lambda q=wq.pop(0): wdma(q))
    assert not wq
    jt, late = g.jt, g.late
    fin = g.job_finish_items(lambda: jt[0], 34, 0, 31, 128) + g.job_finish_items(lambda: jt[1], 34, 4096, 33, 148)
    a.wait(vm=wtok[cfg.w1b - 1])
    g.barrier()
    LA = 6
    rt = {}

    def wread(f):
        if f == 4 * cfg.w1b:
            a.wait(vm=wtok[24])
            g.barrier()
        off = f * 1024
        rt[f] = a.ds(f'ds_read_b128 {ar(160 + 4 * (f % 8), 4)}, {vr(VA0 + (off >> 16))} offset:{off & 0xffff}')
    for f in range(LA):
        wread(f)
    for f in range(100):
        s, n = divmod(f, 5)
        a.wait(vm=htok[s, 1] if n == 0 else None, lg=rt[f])
        for tt in range(2):
            acc = 64 + 20 * tt + 4 * n
            a.e(f'v_mfma_f32_16x16x32_bf16 {vr(acc, 4)}, {ar(160 + 4 * (f % 8), 4)}, {ar(8 * s + 4 * tt, 4)}, {vr(acc, 4) if s else 0}')
            if tt == 0 and f + LA < 100:
                wread(f + LA)
            if tt == 1 and f % 2 == 0:
                g.fill(1)
            if tt == 1 and f >= cfg.cold0 and (f - cfg.cold0) % cfg.coldp == 1 and late:
                late.pop(0)()
            if cfg.jfin and f >= 62 and not late and fin:
                g.fq.append(fin.pop(0))
                g.fill(1)
    assert not g.fq
    g.barrier()
    g.stamp('pass1')
    a.c('feature map of k, partial kv')
    for n in range(10):
        a.e(f'v_cvt_pk_bf16_f32 {vr(128 + n)}, {vr(64 + 2 * n)}, {vr(65 + 2 * n)}\nv_cvt_pk_bf16_f32 {vr(40 + n)}, {vr(84 + 2 * n)}, {vr(85 + 2 * n)}')
    a.e('v_mov_b32 v138, 0\nv_mov_b32 v139, 0\nv_mov_b32 v50, 0x3f80\nv_mov_b32 v51, 0')
    for n in range(10):
        a.e(f'v_permlane16_swap_b32 {vr(128 + n)}, {vr(40 + n)}')

    def mid_k():
        for n in range(3):
            a.ds(f'ds_write_b128 {vr(VTW1)}, {vr(40 + 4 * n, 4)} offset:{160 + 16 * n}')
        wl = [lambda q=q: wdma(q) for q in range(25, 38)]
        n = len(late)
        order = sorted([(i / max(n, 1), f) for i, f in enumerate(late)] + [(i / 13 * cfg.wspan, f) for i, f in enumerate(wl)], key=lambda x: x[0])
        g.fq.extend([f for _, f in order])
    feature_map(g, 224, mid_k, 165 // (13 + len(late)))
    g.flush()
    for n in range(5):
        a.ds(f'ds_write_b128 {vr(VTW0)}, {vr(224 + 4 * n, 4)} offset:{16 * n}')
    a.wait_all(vm=False)
    g.barrier()
    tk = []
    for s in range(8):
        for z in range(2):
            a.ds(f'ds_read_b64_tr_b16 {vr(128 + 8 * s + 2 * z, 2)}, {vr(VTR0)} offset:{(16 * s + 4 * z) * TP}')
        for z in range(2):
            t = a.ds(f'ds_read_b64_tr_b16 {vr(132 + 8 * s + 2 * z, 2)}, {vr(VTR1)} offset:{(16 * s + 4 * z) * TP}')
        tk.append(t)
        if s >= 2:
            a.wait(lg=tk[s - 2])
            a.e(f'v_mfma_f32_32x32x16_bf16 v[64:79], {vr(128 + 8 * (s - 2), 4)}, {vr(132 + 8 * (s - 2), 4)}, {"v[64:79]" if s > 2 else 0}')
    for s in (6, 7):
        a.wait(lg=tk[s])
        a.e(f'v_mfma_f32_32x32x16_bf16 v[64:79], {vr(128 + 8 * s, 4)}, {vr(132 + 8 * s, 4)}, v[64:79]')
    rt = {}

    def wread2(f):
        s, n = divmod(f, 3)
        rt[f] = a.ds(f'ds_read_b128 {ar(160 + 4 * (f % 8), 4)}, {vr(VA2 if n == 2 else VA0)} offset:{s * 2560 + n * 1024}')
    for n in range(8):
        a.e(f'v_cvt_pk_bf16_f32 {vr(52 + n)}, {vr(64 + 2 * n)}, {vr(65 + 2 * n)}')
    a.vmem(f'buffer_store_dwordx4 v[52:55], {vr(VKS)}, {sr(R_WS, 4)}, {sr(P + 4)} offen sc1')
    tkv = a.vmem(f'buffer_store_dwordx4 v[56:59], {vr(VKS)}, {sr(R_WS, 4)}, {sr(P + 5)} offen sc1')
    g.stamp('kvst')
    a.wait(vm=wtok[37])
    g.barrier()
    for f in range(LA):
        wread2(f)
    g.fq.extend(fin)
    fkv = [(f'buffer_load_dwordx2 v[12:13], {vr(VF128)}, {sr(R_WS, 4)}, {sr(T + 14)} offen sc1', 12)]
    for f in range(60):
        s, n = divmod(f, 3)
        a.wait(lg=rt[f])
        for tt in range(2):
            acc = 104 + 12 * tt + 4 * n
            a.e(f'v_mfma_f32_16x16x32_bf16 {vr(acc, 4)}, {ar(160 + 4 * (f % 8), 4)}, {ar(8 * s + 4 * tt, 4)}, {vr(acc, 4) if s else 0}')
            if tt == 0 and f + LA < 60:
                wread2(f + LA)
            if f > cfg.kvpub:
                g.fill(1)
        if f == cfg.kvpub:
            g.publish(tkv, P + 6)
        if f == 50:
            a.e(f's_lshl_b32 {sr(T + 14)}, {sr(S_J1)}, 11\ns_add_u32 {sr(T + 14)}, {sr(T + 14)}, {WS_FKV}')
    assert not g.fq
    tok = g.poll_issue(fkv)
    g.stamp('pass2')
    for n in range(3):
        for tt in range(2):
            for k in range(2):
                a.e(f'v_cvt_pk_bf16_f32 {vr(128 + 4 * n + 2 * tt + k)}, {vr(104 + 12 * tt + 4 * n + 2 * k)}, {vr(105 + 12 * tt + 4 * n + 2 * k)}')
    a.e(f'v_mov_b32 v60, 0\nv_mov_b32 v61, 0\nv_mov_b32 v62, 0\nv_mov_b32 v63, 0\nv_min_u32 v9, 4, v0\nv_lshlrev_b32 v9, 4, v9\nv_add_u32 v9, {L_KVZ}, v9')
    a.ds('ds_write_b128 v9, v[60:63]')
    for n in range(3):
        for k in range(2):
            a.e(f'v_permlane16_swap_b32 {vr(128 + 4 * n + k)}, {vr(130 + 4 * n + k)}')
    gt = []

    def mid_q():
        g.wg_flag_off(T + 13, 2, 1, None, WS_FRT, 3)
        a.e(f's_mul_i32 {sr(T + 4)}, {sr(S_J1)}, {16 * 3456}\ns_add_u32 {sr(T + 4)}, {sr(T + 4)}, {WS_KVP}')
        g.poll_check(fkv, tok)
        g.barrier()
        g.flag(T + 13)
        ring.setup()

        def gl(k):
            if k:
                a.e(f's_add_u32 {sr(T + 4)}, {sr(T + 4)}, 3456')
            gt.append(a.vmem(f'buffer_load_dwordx4 {vr(64 + 4 * k, 4)}, {vr(VGL)}, {sr(R_WS, 4)}, {sr(T + 4)} offen sc1'))
        g.fq.extend([lambda k=k: gl(k) for k in range(16)])
        g.fq.extend([ring.issue] * cfg.r0)
    feature_map(g, 224, mid_q, 6)
    g.stamp('phiq')
    a.c('reduce kv, o = num / den')
    a.e(f's_mov_b32 {sr(T + 2)}, 0x3f80\ns_mov_b32 {sr(T + 3)}, 0x3f800000')
    for n in range(8):
        a.e(f'v_mov_b32 {vr(52 + n)}, 0')
    for k in range(16):
        a.wait(vm=gt[k])
        g.fill(1)
        for n in range(4):
            a.e(f'v_dot2c_f32_bf16 {vr(52 + 2 * n)}, {sr(T + 2)}, {vr(64 + 4 * k + n)}')
            a.e(f'v_dot2c_f32_bf16 {vr(53 + 2 * n)}, {sr(T + 3)}, {vr(64 + 4 * k + n)}')
    for n in range(4):
        a.e(f'v_cvt_pk_bf16_f32 {vr(60 + n)}, {vr(52 + 2 * n)}, {vr(53 + 2 * n)}')
    a.ds(f'ds_write_b128 {vr(VKW)}, v[60:63]')
    g.flush()
    a.e(f's_lshl_b32 {sr(T)}, {sr(S_G1)}, 2\ns_add_u32 {sr(T)}, {sr(T)}, {sr(S_W)}\ns_mul_i32 {sr(T + 7)}, {sr(T)}, 40960\ns_mul_i32 {sr(T)}, {sr(S_J1)}, 1280')
    a.e(f's_add_u32 {sr(T + 7)}, {sr(T + 7)}, {sr(T)}\ns_add_u32 {sr(T + 7)}, {sr(T + 7)}, {WS_O}')
    g.wg_flag_off(P + 6, S_G1, 16, S_J1, WS_FO, spare=True)
    a.wait_all(vm=False)
    g.barrier()
    tk = []
    for t in (1, 0):
        for s in range(5):
            tk.append(a.ds(f'ds_read_b128 {vr(128 + 20 * t + 4 * s, 4)}, {vr(VO0 + t)} offset:{16 * s}'))
    n = 0
    for t in (1, 0):
        for s in range(5):
            a.wait(lg=tk[n])
            n += 1
            acc = 64 + 16 * t
            a.e(f'v_mfma_f32_32x32x16_bf16 {vr(acc, 16)}, {vr(128 + 20 * t + 4 * s, 4)}, {vr(224 + 4 * s, 4)}, {vr(acc, 16) if s else 0}')
    a.e('v_add_f32 v84, 0x358637bd, v84\nv_rcp_f32 v84, v84')
    for n in (8, 9, 0, 1, 2, 3, 4, 5, 6, 7):
        a.e(f'v_pk_mul_f32 {vr(64 + 2 * n, 2)}, {vr(64 + 2 * n, 2)}, v[84:85] op_sel_hi:[1,0]')
    for n in (8, 9, 0, 1, 2, 3, 4, 5, 6, 7):
        a.e(f'v_cvt_pk_bf16_f32 {vr(128 + n)}, {vr(64 + 2 * n)}, {vr(65 + 2 * n)}')
    a.e('v_permlane32_swap_b32 v136, v138\nv_permlane32_swap_b32 v137, v139')
    a.vmem(f'buffer_store_dwordx4 v[128:131], {vr(VOS0)}, {sr(R_WS, 4)}, {sr(T + 7)} offen sc1')
    a.vmem(f'buffer_store_dwordx4 v[132:135], {vr(VOS0)}, {sr(R_WS, 4)}, {sr(T + 7)} offen offset:256 sc1')
    a.e('s_mov_b32 exec_hi, 0')
    g.tok_o = a.vmem(f'buffer_store_dwordx4 v[136:139], {vr(VOS1)}, {sr(R_WS, 4)}, {sr(T + 7)} offen offset:512 sc1')
    a.e('s_mov_b64 exec, -1')
    g.stamp('ost')
```

```python
from asmlib import vr, ar, sr
from gen import *

V_X1, V_GB, V_GA, V_SB, V_S2 = 16, 36, 208, 104, 228
SRC2, SRC3, SRC4, RDST, RTMP = 12, 13, 14, 15, 16
XOFF, FLG8, BB0, BB1 = 17, 18, 19, 20
VK0, VN0 = 4, 56
VF8 = 7
VRING = 253
F_A, F_B, F_2, F_END = 100, 260, 380, 650


class Ring:
    def __init__(self, g):
        self.g = g
        self.tok = {}
        self.issued = 0
        self.published = 0
        self.consumed = 0
        self.total = 163
        self.limit = 25

    def setup(self):
        a = self.g.a
        a.e(f's_lshl_b32 {sr(RDST)}, {sr(S_W)}, 10')
        for d, role, size, base in ((SRC2, S_N2, 102400, WS_WO), (SRC3, S_J3, 286720, WS_W13), (SRC4, S_N2, 276480, WS_W2)):
            a.e(f's_mul_i32 {sr(d)}, {sr(role)}, {size}\ns_add_u32 {sr(d)}, {sr(d)}, {base}')
        self.delta = None
        self.m0_for = None

    def can_issue(self):
        return self.issued < min(self.total, self.limit) and 4 * (self.issued + 1) - RING <= self.consumed

    def issue(self):
        a = self.g.a
        q = self.issued
        assert self.can_issue(), q
        if q == self.total - 1:
            a.e(f's_cmp_gt_u32 {sr(S_W)}, 1\ns_cselect_b32 {sr(RTMP)}, 2048, 0\ns_sub_u32 {sr(RDST)}, {sr(RDST)}, {sr(RTMP)}')
        src, off = (SRC2, q) if q < 25 else (SRC3, q - 25) if q < 95 else (SRC4, q - 95)
        delta = (src, (off - q % 35) * 4096)
        if delta != self.delta:
            self.delta = delta
            a.e(f's_add_u32 {sr(RTMP)}, {sr(src)}, {delta[1] & 0xffffffff}\nv_add_u32 {vr(VRING)}, {sr(RTMP)}, v1')
        if self.m0_for != q:
            a.e(f's_add_u32 m0, {sr(RDST)}, {(q % 35) * 4096}')
        self.tok[q] = a.vmem(f'buffer_load_dwordx4 {vr(VRING)}, {sr(R_WS, 4)}, m0 offen sc1 lds')
        self.issued += 1
        if q + 2 < self.total:
            a.e(f's_add_u32 m0, {sr(RDST)}, {((q + 1) % 35) * 4096}')
            self.m0_for = q + 1

    def issue_n(self, n):
        while n > 0 and self.can_issue():
            self.issue()
            n -= 1

    def sync(self, consumed, need):
        publish = min(-(-need // 4), self.total)
        assert publish <= self.issued, (publish, self.issued)
        if publish > self.published:
            self.g.a.wait(vm=self.tok[publish - 1])
            self.published = publish
        self.g.barrier()
        self.consumed = max(self.consumed, consumed)

    def lds(self, base, f, chk=0):
        assert f + chk < 4 * self.published, f
        off = (f % RING) * 1024
        return f'{vr(base + (off >> 16))} offset:{off & 0xffff}'


def exchange(g, acc):
    a = g.a
    for t in range(5):
        a.ds(f'ds_write_b128 v59, {vr(acc + 20 + 4 * t, 4)} offset:{1024 * t}')
    a.wait_all(vm=False)
    g.barrier()
    tk = [a.ds(f'ds_read_b128 {vr(acc + 20 + 4 * t, 4)}, v60 offset:{1024 * t}') for t in range(5)]
    for t in range(5):
        a.wait(lg=tk[t])
        for n in (0, 2):
            a.e(f'v_pk_add_f32 {vr(acc + 4 * t + n, 2)}, {vr(acc + 4 * t + n, 2)}, {vr(acc + 20 + 4 * t + n, 2)}')


def pair_gemm(g, ring, f0, fend, steps, breg, btok, hook=None, first=True, last=True):
    a = g.a
    rt = g.pair_rt

    def wread(q, t):
        rt[q, t] = a.ds(f'ds_read_b128 {ar(160 + 20 * (q & 1) + 4 * t, 4)}, {ring.lds(VK0, f0 + 10 * q + t, 5)}')
    if first:
        rt.clear()
        for t in range(5):
            wread(steps[0], t)
    for q in steps:
        final = last and q == steps[-1]
        n = 0
        for k in (1, 0) if final else (0, 1):
            a.wait(vm=btok[q, 1 if final else k], lg=rt[q, 4])
            if n == 0 and q and q % 2 == 0:
                ring.sync(f0 + 10 * q, min(f0 + 10 * (q + 3), fend))
            for t in range(5):
                acc = 64 + 20 * k + 4 * t
                a.e(f'v_mfma_f32_16x16x32_bf16 {vr(acc, 4)}, {ar(160 + 20 * (q & 1) + 4 * t, 4)}, {breg(q, k)}, {vr(acc, 4) if q else 0}')
                if n < 5 and not final:
                    wread(q + 1, n)
                if hook:
                    hook(q, n)
                n += 1


def phase2(g, ring):
    a, cfg = g.a, g.cfg
    g.pair_rt = {}
    a.c('phase 2: output projection, residual, LayerNorm 2')
    a.e(f's_lshl_b32 {sr(T)}, {sr(S_M2)}, 2\ns_add_u32 {sr(T)}, {sr(T)}, {sr(S_W)}\ns_mul_i32 {sr(XOFF)}, {sr(T)}, 20480')
    a.e(f's_mul_i32 {sr(T)}, {sr(S_N2)}, 160\ns_add_u32 {sr(XOFF)}, {sr(XOFF)}, {sr(T)}\ns_mov_b32 {sr(T + 1)}, {1280 - 160}')
    for n in range(3):
        a.e(f'v_add_u32 v9, {64 * n}, v0\nv_mul_u32_u24 v10, 0xcd, v9\nv_lshrrev_b32 v10, 11, v10\nv_lshlrev_b32 v9, 4, v9\nv_mad_u32_u24 {vr(61 + n)}, v10, {sr(T + 1)}, v9')
    a.e(f's_mul_i32 {sr(T + 2)}, {sr(S_W)}, 2560\ns_add_u32 {sr(T + 2)}, {sr(T + 2)}, {L_XR}')
    ring.m0_for = None
    for n in range(3):
        a.e(f's_add_u32 m0, {sr(T + 2)}, {1024 * n}')
        if n == 2:
            a.e('s_mov_b32 exec_hi, 0')
        a.vmem(f'buffer_load_dwordx4 {vr(61 + n)}, {sr(R_X, 4)}, {sr(XOFF)} offen lds')
    a.e('s_mov_b64 exec, -1')
    a.e(f's_mul_i32 {sr(T + 3)}, {sr(S_W)}, 160\ns_mul_i32 {sr(T + 1)}, {sr(S_N2)}, 20\ns_add_u32 {sr(T + 3)}, {sr(T + 3)}, {sr(T + 1)}\ns_add_u32 {sr(T + 3)}, {sr(T + 3)}, 320')
    a.e(f'v_min_u32 v16, 19, v0\nv_add_u32 v17, {sr(T + 3)}, v16\nv_lshrrev_b32 v18, 4, v17\nv_and_b32 v17, 15, v17\nv_lshlrev_b32 v17, 4, v17\nv_lshl_add_u32 v17, v18, 10, v17')
    a.e(f's_mov_b32 {sr(T + 3)}, {WS_MOD}\ns_cmp_eq_u32 {sr(S_W)}, 2\ns_cselect_b32 {sr(T + 8)}, 1.0, 0\ns_mov_b32 {sr(T + 9)}, {sr(T + 8)}')
    a.e(f's_mov_b32 {sr(T + 4)}, {WS_FRT}')
    ld = [(f'buffer_load_dwordx4 {vr(36 + 4 * k, 4)}, v17, {sr(R_WS, 4)}, {sr(T + 3)} offen offset:{256 * k} sc1', -(36 + 4 * k)) for k in range(4)]
    ld += [(f'buffer_load_dwordx4 v[28:31], v1, {sr(R_WS, 4)}, {sr(T + 4)} offen sc1', (28, 30)),
           (f'buffer_load_dwordx4 v[32:35], v1, {sr(R_WS, 4)}, {sr(T + 4)} offen offset:1024 sc1', (32, 34))]
    tok = g.poll_issue(ld)
    ring.issue_n(cfg.r1)
    a.e(f's_mul_i32 {sr(T + 1)}, {sr(S_W)}, 320\ns_add_u32 {sr(T + 1)}, {sr(T + 1)}, {L_PAR}\nv_lshlrev_b32 v16, 4, v16\nv_add_u32 v16, {sr(T + 1)}, v16')
    g.frag16_addr(VN0, 11)
    a.e(f'v_add_u32 {vr(VN0 + 1)}, 0x10000, {vr(VN0)}\nv_add_u32 {vr(VN0 + 2)}, 0x20000, {vr(VN0)}')
    a.e(f's_and_b32 {sr(T + 1)}, {sr(S_W)}, 1\ns_mul_i32 {sr(T)}, {sr(T + 1)}, 5120')
    for k in range(3):
        a.e(f'v_add_u32 {vr(VK0 + k)}, {sr(T)}, {vr(VN0 + k)}')
    tf = g.publish(g.tok_o, P + 6)
    g.stamp('opub')
    a.e(f's_lshr_b32 {sr(T)}, {sr(S_M2)}, 1\ns_lshl_b32 {sr(T)}, {sr(T)}, 4\ns_lshl_b32 {sr(T + 5)}, {sr(T + 1)}, 3\ns_add_u32 {sr(T)}, {sr(T)}, {sr(T + 5)}')
    a.e(f's_lshl_b32 {sr(FLG8)}, {sr(T)}, 7\ns_add_u32 {sr(T + 14)}, {sr(FLG8)}, {WS_FO}\nv_and_b32 {vr(VF8)}, 7, v0\nv_lshlrev_b32 {vr(VF8)}, 7, {vr(VF8)}')
    a.e(f's_lshl_b32 {sr(T + 5)}, {sr(S_M2)}, 2\ns_add_u32 {sr(T + 5)}, {sr(T + 5)}, {sr(S_W)}\ns_xor_b32 {sr(T + 6)}, {sr(T + 5)}, 1')
    a.e(f's_mul_i32 {sr(T + 7)}, {sr(T + 1)}, 10240\ns_add_u32 {sr(T + 7)}, {sr(T + 7)}, {WS_O}')
    for k in range(2):
        a.e(f's_mul_i32 {sr(BB0 + k)}, {sr(T + 5 + k)}, 20480\ns_add_u32 {sr(BB0 + k)}, {sr(BB0 + k)}, {sr(T + 7)}')
    a.e(f's_mul_i32 {sr(T)}, {sr(S_W)}, 5120\ns_add_u32 {sr(T)}, {sr(T)}, {L_XCH}\nv_add_u32 v59, {sr(T)}, v1')
    a.e(f's_xor_b32 {sr(T)}, {sr(S_W)}, 1\ns_mul_i32 {sr(T)}, {sr(T)}, 5120\ns_add_u32 {sr(T)}, {sr(T)}, {L_XCH}\nv_add_u32 v60, {sr(T)}, v1')
    a.e(f'v_and_b32 v18, 15, v0\nv_mul_u32_u24 v18, 0xa0, v18\nv_add_u32 v18, {sr(T + 2)}, v18\nv_lshrrev_b32 v12, 4, v0')
    a.e('v_lshl_add_u32 v13, v12, 3, v18\nv_lshl_add_u32 v18, v12, 4, v18')
    fo = [(f'buffer_load_dwordx2 v[14:15], {vr(VF8)}, {sr(R_WS, 4)}, {sr(T + 14)} offen sc1', 14)]
    g.poll_check(ld, tok)
    g.mod_finish(36, 0, T + 8)
    a.ds('ds_write_b128 v16, v[36:39]')
    a.ds('ds_read_b128 v[64:67], v18')
    a.ds('ds_read_b128 v[68:71], v18 offset:64')
    a.ds('ds_read_b64 v[72:73], v13 offset:128')
    if cfg.ackw:
        a.wait(vm=tf)
    tok = g.poll_issue(fo)
    a.e(f'v_lshlrev_b32 v11, 4, v12\nv_add_u32 v11, {L_PAR}, v11\nv_lshlrev_b32 v10, 5, v12\nv_add_u32 v10, {L_PAR}, v10')
    a.wait_all(vm=False)
    for n in range(10):
        g.unpack(V_X1 + 2 * n, V_X1 + 2 * n + 1, 64 + n)
    ring.limit = ring.total
    ring.sync(0, min(100, 4 * ring.issued))
    g.poll_check(fo, tok)
    g.stamp('oready')
    ot = {}
    for q in range(10):
        for k in range(2):
            if q and q % 4 == 0:
                a.e(f's_add_u32 {sr(BB0 + k)}, {sr(BB0 + k)}, 4096')
            ot[q, k] = a.vmem(f'buffer_load_dwordx4 {vr(128 + 8 * q + 4 * k, 4)}, v1, {sr(R_WS, 4)}, {sr(BB0 + k)} offen offset:{(q % 4) * 1024} sc1')
            n = 2 * q + k
            r, (v, off) = (V_GA, V_SB, V_S2, V_GB)[n // 5], ((10, 0), (10, 16), (10, 128), (10, 144), (11, 256))[n % 5]
            a.ds(f'ds_read_b128 {vr(r + 4 * (n % 5), 4)}, v{v} offset:{320 * (n // 5) + off}')
    g.advance_epoch()
    budget = [cfg.r2]

    def hook(q, n):
        if n in (6, 8) and q >= 2 and budget[0] > 0 and ring.can_issue():
            ring.issue()
            budget[0] -= 1
    pair_gemm(g, ring, 0, 100, list(range(10)), lambda q, k: vr(128 + 8 * q + 4 * k, 4), ot, hook)
    g.stamp('p2mma')
    exchange(g, 64)
    ring.consumed = 100
    for n in range(10):
        a.e(f'v_pk_fma_f32 {vr(V_X1 + 2 * n, 2)}, {vr(64 + 2 * n, 2)}, {vr(V_GA + 2 * n, 2)}, {vr(V_X1 + 2 * n, 2)}')
    for n in range(10):
        a.e(f'v_cvt_pk_bf16_f32 {vr(128 + n)}, {vr(V_X1 + 2 * n)}, {vr(V_X1 + 2 * n + 1)}')
    a.e(f's_mov_b32 {sr(T + 2)}, 0x3f803f80\nv_mov_b32 v64, 0\nv_mov_b32 v65, 0\nv_mov_b32 v68, 0\nv_mov_b32 v69, 0')
    for n in range(10):
        d = 64 + 4 * (n & 1)
        a.e(f'v_dot2c_f32_bf16 {vr(d)}, {sr(T + 2)}, {vr(128 + n)}\nv_dot2c_f32_bf16 {vr(d + 1)}, {vr(128 + n)}, {vr(128 + n)}')
    a.e(f's_lshl_b32 {sr(T)}, {sr(S_M2)}, 13\ns_lshl_b32 {sr(T + 1)}, {sr(S_W)}, 8\ns_add_u32 {sr(T)}, {sr(T)}, {sr(T + 1)}\ns_add_u32 {sr(T + 14)}, {sr(T)}, {WS_ST}')
    a.e(f's_lshl_b32 {sr(T + 1)}, {sr(S_N2)}, 10\ns_add_u32 {sr(T + 1)}, {sr(T + 1)}, {sr(T + 14)}')
    a.e('v_pk_add_f32 v[64:65], v[64:65], v[68:69]')
    g.sum_rows((64, 65), (66, 67), (4, 5))
    a.e(f'v_mov_b32 v66, {vr(V_TAG)}\nv_mov_b32 v67, {vr(V_TAG + 1)}\ns_mov_b64 exec, 0xffff')
    tf = a.vmem(f'buffer_store_dwordx4 v[64:67], v1, {sr(R_WS, 4)}, {sr(T + 1)} offen sc1')
    a.e('s_mov_b64 exec, -1')
    g.stamp('stpub')
    ring.issue_n(cfg.r3)
    for n in range(10):
        g.unpack(V_X1 + 2 * n, V_X1 + 2 * n + 1, 128 + n)
    a.e('v_lshrrev_b32 v9, 4, v0\nv_and_b32 v10, 0xf0, v1\nv_lshl_add_u32 v11, v9, 11, v10')
    a.e('v_lshrrev_b32 v9, 1, v9\nv_lshl_add_u32 v13, v9, 8, v10')
    a.e(f's_lshl_b32 {sr(T + 2)}, {sr(S_M2)}, 2\ns_add_u32 {sr(T + 2)}, {sr(T + 2)}, {sr(S_W)}\ns_mul_i32 {sr(T + 2)}, {sr(T + 2)}, 20480')
    a.e(f's_mul_i32 {sr(T + 3)}, {sr(S_N2)}, 2560\ns_add_u32 {sr(T + 2)}, {sr(T + 2)}, {sr(T + 3)}\ns_add_u32 {sr(T + 2)}, {sr(T + 2)}, {WS_Y}')
    g.wg_flag_off(T + 6, S_M2, 8, S_N2, WS_FY, spare=True)
    if cfg.ackw:
        a.wait(vm=tf)
    g.poll([(f'buffer_load_dwordx4 v[68:71], v11, {sr(R_WS, 4)}, {sr(T + 14)} offen sc1', 70),
            (f'buffer_load_dwordx4 v[72:75], v11, {sr(R_WS, 4)}, {sr(T + 14)} offen offset:1024 sc1', 74)])
    g.stamp('stready')
    a.e('v_pk_add_f32 v[64:65], v[68:69], v[72:73]')
    g.sum_rows((64, 65), (66, 67), (4, 5))
    a.e('v_mul_f32 v64, 0x3acccccd, v64\nv_mul_f32 v66, 0x3acccccd, v65\nv_fma_f32 v66, -v64, v64, v66\nv_max_f32 v66, 0, v66')
    a.e('v_add_f32 v66, 0x3727c5ac, v66\nv_rsq_f32 v66, v66')
    order = (8, 9, 0, 1, 2, 3, 4, 5, 6, 7)
    for n in order:
        a.e(f'v_pk_add_f32 {vr(68 + 2 * n, 2)}, {vr(V_X1 + 2 * n, 2)}, v[64:65] op_sel_hi:[1,0] neg_lo:[0,1] neg_hi:[0,1]')
    for n in order:
        a.e(f'v_pk_mul_f32 {vr(68 + 2 * n, 2)}, {vr(68 + 2 * n, 2)}, v[66:67] op_sel_hi:[1,0]')
    for n in order:
        a.e(f'v_pk_fma_f32 {vr(68 + 2 * n, 2)}, {vr(68 + 2 * n, 2)}, {vr(V_S2 + 2 * n, 2)}, {vr(V_SB + 2 * n, 2)}')
    for n in order:
        a.e(f'v_cvt_pk_bf16_f32 {vr(128 + n)}, {vr(68 + 2 * n)}, {vr(69 + 2 * n)}')
    a.e('v_permlane16_swap_b32 v136, v138\nv_permlane16_swap_b32 v137, v139')
    a.vmem(f'buffer_store_dwordx4 v[128:131], v1, {sr(R_WS, 4)}, {sr(T + 2)} offen sc1')
    a.vmem(f'buffer_store_dwordx4 v[132:135], v1, {sr(R_WS, 4)}, {sr(T + 2)} offen offset:1024 sc1')
    a.e('s_mov_b32 exec_lo, 0xffff\ns_mov_b32 exec_hi, 0xffff')
    tok = a.vmem(f'buffer_store_dwordx4 v[136:139], v13, {sr(R_WS, 4)}, {sr(T + 2)} offen offset:2048 sc1')
    a.e('s_mov_b64 exec, -1')
    g.stamp('yst')
    ring.issue_n(cfg.r4)
    g.tf = g.publish(tok, T + 6)
    g.stamp('ypub')


def silu_items(G0, U0, G1, U1, E, dst, packed=False):
    G = [G0 + i for i in range(4)] + ([G1 + i for i in range(4)] if G1 is not None else [])
    U = [U0 + i for i in range(4)] + ([U1 + i for i in range(4)] if U1 is not None else [])
    n = len(G)
    it = []
    if packed:
        it += [f'v_pk_mul_f32 {vr(E + i, 2)}, {vr(G[i], 2)}, {sr(S_L2E, 2)} neg_lo:[1,0] neg_hi:[1,0]' for i in range(0, n, 2)]
        it += [f'v_exp_f32 {vr(E + i)}, {vr(E + i)}' for i in range(n)]
        it += [f'v_pk_mul_f32 {vr(G[i], 2)}, {vr(G[i], 2)}, {vr(U[i], 2)}' for i in range(0, n, 2)]
        it += [f'v_pk_add_f32 {vr(E + i, 2)}, {vr(E + i, 2)}, 1.0 op_sel_hi:[1,0]' for i in range(0, n, 2)]
        it += [f'v_rcp_f32 {vr(E + i)}, {vr(E + i)}' for i in range(n)]
        it += [f'v_pk_mul_f32 {vr(G[i], 2)}, {vr(G[i], 2)}, {vr(E + i, 2)}' for i in range(0, n, 2)]
    else:
        it += [f'v_mul_f32 {vr(E + i)}, 0xbfb8aa3b, {vr(G[i])}' for i in range(n)]
        for i in range(n):
            it += [f'v_exp_f32 {vr(E + i)}, {vr(E + i)}', f'v_mul_f32 {vr(G[i])}, {vr(G[i])}, {vr(U[i])}']
        it += [f'v_add_f32 {vr(E + i)}, 1.0, {vr(E + i)}' for i in range(n)]
        it += [f'v_rcp_f32 {vr(E + i)}, {vr(E + i)}' for i in range(n)]
        it += [f'v_mul_f32 {vr(G[i])}, {vr(G[i])}, {vr(E + i)}' for i in range(n)]
    it += [f'v_cvt_pk_bf16_f32 {vr(dst + i // 2)}, {vr(G[i])}, {vr(G[i + 1])}' for i in range(0, n, 2)]
    return it


def phase34(g, ring):
    a, cfg = g.a, g.cfg
    a.c('phase 3: gate / up projection in two passes')
    YB0, YB1, HA, HBo, FA, FB = T + 8, T + 9, T + 10, T + 11, T + 12, T + 13
    a.e(f's_lshl_b32 {sr(T)}, {sr(S_G3)}, 2\ns_add_u32 {sr(T)}, {sr(T)}, {sr(S_W)}')
    a.e(f's_lshr_b32 {sr(T + 1)}, {sr(T)}, 1\ns_lshl_b32 {sr(T + 1)}, {sr(T + 1)}, 10\ns_add_u32 {sr(T + 14)}, {sr(T + 1)}, {WS_FY}')
    ring.issue_n(cfg.r5)
    fy = [(f'buffer_load_dwordx2 v[14:15], {vr(VF8)}, {sr(R_WS, 4)}, {sr(T + 14)} offen sc1', 14)]
    a.e(f's_mul_i32 {sr(YB0)}, {sr(T)}, 40960\ns_add_u32 {sr(YB0)}, {sr(YB0)}, {WS_Y}\ns_add_u32 {sr(YB1)}, {sr(YB0)}, 20480')
    a.e(f's_mul_i32 {sr(HA)}, {sr(T)}, 110592\ns_add_u32 {sr(HA)}, {sr(HA)}, {WS_HH}\ns_lshr_b32 {sr(T)}, {sr(S_J3)}, 3\ns_mul_i32 {sr(T)}, {sr(T)}, {108 * 256}')
    a.e(f's_add_u32 {sr(HA)}, {sr(HA)}, {sr(T)}\ns_bfe_u32 {sr(T)}, {sr(S_J3)}, 0x20001\ns_mul_i32 {sr(T)}, {sr(T)}, 11\ns_and_b32 {sr(T + 1)}, {sr(S_J3)}, 1')
    a.e(f's_mul_i32 {sr(T + 2)}, {sr(T + 1)}, 6\ns_add_u32 {sr(T)}, {sr(T)}, {sr(T + 2)}\ns_add_u32 {sr(T)}, {sr(T)}, 64\ns_lshl_b32 {sr(T)}, {sr(T)}, 8\ns_add_u32 {sr(HBo)}, {sr(HA)}, {sr(T)}')
    a.e(f's_and_b32 {sr(T)}, {sr(S_J3)}, 7\ns_lshl_b32 {sr(T)}, {sr(T)}, 11\ns_add_u32 {sr(HA)}, {sr(HA)}, {sr(T)}')
    a.e('v_add_u32 v10, 0xd800, v1\nv_bfe_u32 v9, v0, 4, 1\nv_mul_u32_u24 v9, 0xd800, v9\nv_and_b32 v11, 0xf0, v1\nv_add_u32 v9, v9, v11\nv_lshrrev_b32 v11, 5, v0\nv_lshl_add_u32 v9, v11, 8, v9')
    a.e(f's_cmp_eq_u32 {sr(T + 1)}, 1\ns_cselect_b32 {sr(T + 3)}, 32, 64\nv_mov_b32 v11, {OOB}\nv_cmp_gt_u32 vcc, {sr(T + 3)}, v0\nv_cndmask_b32 v9, v11, v9, vcc')
    g.wg_flag_off(FA, S_G3, 16, S_J3, WS_FHA)
    a.e(f's_add_u32 {sr(FB)}, {sr(FA)}, {WS_FHB - WS_FHA}')
    a.e(f's_lshl_b32 {sr(T + 2)}, {sr(S_M2)}, 2\ns_add_u32 {sr(T + 2)}, {sr(T + 2)}, {sr(S_W)}\ns_xor_b32 {sr(T + 3)}, {sr(T + 2)}, 1')
    a.e(f's_and_b32 {sr(T + 1)}, {sr(S_W)}, 1\ns_mul_i32 {sr(T + 4)}, {sr(T + 1)}, 27648\ns_add_u32 {sr(T + 4)}, {sr(T + 4)}, {WS_HH}')
    for k in range(2):
        a.e(f's_mul_i32 {sr(BB0 + k)}, {sr(T + 2 + k)}, 55296\ns_add_u32 {sr(BB0 + k)}, {sr(BB0 + k)}, {sr(T + 4)}')
    srd(a, R_OUT, S_OUT, 2048 * 1280)
    if cfg.ackw:
        a.wait(vm=g.tf)
    g.poll(fy)
    g.stamp('yready')
    yt = {}

    def yload(s, tt):
        sb = YB0 + tt
        if s and s % 4 == 0:
            a.e(f's_add_u32 {sr(sb)}, {sr(sb)}, 4096')
        yt[s, tt] = a.vmem(f'buffer_load_dwordx4 {ar(8 * s + 4 * tt, 4)}, v1, {sr(R_WS, 4)}, {sr(sb)} offen offset:{(s % 4) * 1024} sc1')
    for s in range(cfg.ypre):
        yload(s, 0)
        yload(s, 1)
    yq = [(s, tt) for s in range(cfg.ypre, 20) for tt in range(2)]
    SY = 24
    ring.sync(F_A, min(F_A + SY + 12, 4 * ring.issued))
    LA = 6
    rt = {}

    def wread(f):
        rt[f] = a.ds(f'ds_read_b128 {ar(160 + 4 * (f % 8), 4)}, {ring.lds(VN0, f)}')
    for f in range(F_A, F_A + LA):
        wread(f)

    def acc_of(f, tt):
        if f < F_B:
            s, fi = divmod(f - F_A, 8)
            return s, 64 + 32 * tt + 4 * fi
        s, fi = divmod(f - F_B, 6)
        return s, 128 + 24 * tt + 4 * fi
    ht = {}

    def breg(q, k):
        if q < 7:
            return ar(200 + 8 * q + 4 * k, 4)
        if q < 14:
            return vr(192 + 8 * (q - 7) + 4 * k, 4)
        return ar(8 * (q - 14) + 4 * k, 4)

    def hload(q, k):
        if q and q % 4 == 0:
            a.e(f's_add_u32 {sr(BB0 + k)}, {sr(BB0 + k)}, 4096')
        ht[q, k] = a.vmem(f'buffer_load_dwordx4 {breg(q, k)}, v1, {sr(R_WS, 4)}, {sr(BB0 + k)} offen offset:{(q % 4) * 1024} sc1')
    st = {}
    fa = [(f'buffer_load_dwordx2 v[14:15], {vr(VF8)}, {sr(R_WS, 4)}, {sr(T + 14)} offen sc1', 14)]
    hq = []

    def vm_slot(f):
        urgent = ring.can_issue() and 4 * ring.issued < f + cfg.lead
        if urgent:
            ring.issue()
        elif yq:
            yload(*yq.pop(0))
        elif hq:
            hload(*hq.pop(0))
        elif ring.can_issue():
            ring.issue()

    def run_pass(f0, f1):
        for f in range(f0, f1):
            s, _ = acc_of(f, 0)
            first_of_step = f == (F_A + 8 * s if f < F_B else F_B + 6 * s)
            a.wait(vm=yt[s, 1] if f < F_B and first_of_step else None, lg=rt[min(f + (f & 1 ^ 1), F_2 - 1)] if cfg.wait2 else rt[f])
            for tt in range(2):
                _, acc = acc_of(f, tt)
                a.e(f'v_mfma_f32_16x16x32_bf16 {vr(acc, 4)}, {ar(160 + 4 * (f % 8), 4)}, {ar(8 * s + 4 * tt, 4)}, {vr(acc, 4) if s else 0}')
                if tt == 0 and f + LA < F_2:
                    wread(f + LA)
                if tt == 1 and f % 2 == 0:
                    vm_slot(f)
            if (f - F_A) % SY == SY - 1 and f + 1 < F_2:
                pub = 'A' in st and 'Aflag' not in st and f >= F_B + cfg.puba
                if pub:
                    a.wait(vm=st['A'])
                ring.sync(f + 1, min(f + 1 + SY + 12, 4 * ring.issued))
                if pub:
                    g.flag(FA)
                    st['Aflag'] = f
            if f == F_B + 6 * cfg.chk_a:
                assert 'Aflag' in st
                a.e(f's_add_u32 {sr(T + 14)}, {sr(FLG8)}, {WS_FHA}')
                st['fa'] = g.poll_issue(fa)
            if f == F_B + 6 * cfg.chk_a + 18:
                g.poll_check(fa, st['fa'])
                hq.extend((q, k) for q in range(14) for k in range(2))

    def epilogue(items, every):
        for n, it in enumerate(items):
            g.fq.append(it)
            g.fill(1)
            if n % every == every - 1:
                vm_slot(1 << 20)
    run_pass(F_A, F_B)
    g.stamp('passA')
    items = []
    for tt in range(2):
        for pp in range(2):
            b = 64 + 32 * tt + 16 * pp
            items += silu_items(b, b + 4, b + 8, b + 12, 176 + 8 * pp, b + 4, True)

            def sto(tt=tt, pp=pp, b=b):
                st['A'] = a.vmem(f'buffer_store_dwordx4 {vr(b + 4, 4)}, v{1 if tt == 0 else 10}, {sr(R_WS, 4)}, {sr(HA)} offen offset:{1024 * pp} sc1')
            items.append(sto)
    epilogue(items, 12)
    g.stamp('epiA')
    run_pass(F_B, F_2)
    g.stamp('passB')
    ring.sync(F_2, min(F_2 + 30, 4 * ring.issued))
    hq.extend((q, k) for q in (14, 15) for k in range(2))
    items = []
    for tt in range(2):
        b = 128 + 24 * tt
        items += silu_items(b, b + 4, b + 8, b + 12, 176 + 8 * tt, b + 4, True)

        def stb(tt=tt, b=b):
            a.vmem(f'buffer_store_dwordx4 {vr(b + 4, 4)}, v{1 if tt == 0 else 10}, {sr(R_WS, 4)}, {sr(HBo)} offen sc1')
        items.append(stb)
    items += silu_items(144, 148, 168, 172, 176, 148, True)
    items += ['v_permlane16_swap_b32 v148, v150', 'v_permlane16_swap_b32 v149, v151']

    def stc():
        st['B'] = a.vmem(f'buffer_store_dwordx4 v[148:151], v9, {sr(R_WS, 4)}, {sr(HBo)} offen offset:1024 sc1')
    items.append(stc)
    cfg_lead, cfg.lead = cfg.lead, -(1 << 20)
    epilogue(items, 10)
    cfg.lead = cfg_lead
    g.stamp('epiB')
    a.c('phase 4: down projection, residual')
    fb = [(f'buffer_load_dwordx2 v[14:15], {vr(VF8)}, {sr(R_WS, 4)}, {sr(T + 14)} offen sc1', 14)]

    def hook(q, n):
        if n in (5, 7, 9):
            if hq and hq[0][0] <= q + 3:
                hload(*hq.pop(0))
            else:
                vm_slot(F_2 + 10 * q)
        if n == 9 and q == cfg.pubb:
            g.publish(st['B'], FB)
        if n == 9 and q == cfg.chk_b:
            a.e(f's_add_u32 {sr(T + 14)}, {sr(FLG8)}, {WS_FHB}')
            st['fb'] = g.poll_issue(fb)
        if n == 9 and q == cfg.chk_b + 3:
            g.poll_check(fb, st['fb'])
            hq.extend((qq, k) for qq in range(16, 27) for k in range(2))
        if n == 9 and q in (7, 15, 21):
            g.stamp(f'p4q{q}')
        if n == 9:
            while hq and hq[0][0] <= q + 1:
                hload(*hq.pop(0))
    while hq and hq[0][0] <= 1:
        hload(*hq.pop(0))
    pair_gemm(g, ring, F_2, F_END, list(range(27)), breg, ht, hook)
    g.stamp('p4mma')
    a.e(f's_mul_i32 {sr(T + 2)}, {sr(S_W)}, 2560\nv_and_b32 v11, 15, v0\nv_mul_u32_u24 v11, 0xa0, v11\nv_add_u32 v11, {sr(T + 2)}, v11\nv_lshrrev_b32 v12, 4, v0')
    a.e(f'v_lshl_add_u32 v13, v12, 3, v11\nv_lshl_add_u32 v11, v12, 4, v11\nv_add_u32 v12, {sr(T + 2)}, v1')
    exchange(g, 64)
    for n in range(10):
        a.e(f'v_pk_fma_f32 {vr(64 + 2 * n, 2)}, {vr(64 + 2 * n, 2)}, {vr(V_GB + 2 * n, 2)}, {vr(V_X1 + 2 * n, 2)}')
    for n in range(10):
        a.e(f'v_cvt_pk_bf16_f32 {vr(128 + n)}, {vr(64 + 2 * n)}, {vr(65 + 2 * n)}')
    a.ds('ds_write_b128 v11, v[128:131]')
    a.ds('ds_write_b128 v11, v[132:135] offset:64')
    a.ds('ds_write_b64 v13, v[136:137] offset:128')
    tk = [a.ds(f'ds_read_b128 {vr(140 + 4 * n, 4)}, v12 offset:{1024 * n}') for n in range(3)]
    for n in range(3):
        a.wait(lg=tk[n])
        if n == 2:
            a.e('s_mov_b32 exec_hi, 0')
        a.vmem(f'buffer_store_dwordx4 {vr(140 + 4 * n, 4)}, {vr(61 + n)}, {sr(R_OUT, 4)}, {sr(XOFF)} offen')
    a.e('s_mov_b64 exec, -1')
```

```python
import sys
from asmlib import Asm, pad_hazards, vr, ar, sr

NAME = 'adaLN_cond__linear_kernel_hedgehog__glu_gated_swiglu__prompt'

WS_EPOCH = 0
WS_FW = 0x1000
WS_FH = 0x10000
WS_FKV = 0x30000
WS_FO = 0x50000
WS_FY = 0x70000
WS_FHH = 0x90000
WS_MOD = 0xB0000
WS_ST = 0xC0000
WS_KVP = 0x100000
WS_WQ = 0x200000
WS_H = 0x480000
WS_O = 0x700000
WS_Y = 0x980000
WS_WO = 0xC00000
WS_W13 = 0xD00000
WS_W2 = 0x1180000
WS_HH = 0x1400000
WS_DBG = 0x1B00000
WS_SIZE = 0x1C00000
OOB_VAL = 0x40000000
OOB = 's3'

L_JOB = 20480
L_P2W = 122880
L_MISC = 153600
L_MODP = L_MISC
L_SILU = L_MISC + 5120
L_LNRED = L_MISC + 6400
L_WPHI = L_MISC + 6656
L_KVR = L_MISC + 512
L_KVZ = L_KVR + 3840
L_PAR = L_MISC + 8704
L_XCH = 143360
TP = 336
RING = 140

S_X, S_WQKV, S_WPHI, S_WO, S_W1, S_W3, S_W2, S_C, S_WMOD, S_OUT, S_DBG, S_WS = 4, 6, 8, 10, 14, 16, 18, 20, 22, 24, 26, 28
S_TAG = 30
R_WS, R_A, R_B, R_C, R_X, R_OUT = 32, 36, 40, 44, 48, 52
S_W, S_XC, S_I, S_G1, S_J1, S_M2, S_N2, S_G3, S_J3 = 56, 57, 58, 59, 60, 61, 62, 63, 64
S_SPIN = 65
S_L2E = 66
S_T = 68
S_STAMP = 98

V_LANE, V_L16, V_TAG = 0, 1, 2
V_STAMP = 255


class Cfg:
    diag = False
    stop = None
    mimic = 0
    map2 = '8x1'
    map3 = '4x2'
    spin = 200000
    pfcode = 1
    nt = 1
    fullflag = 0
    tlb = 0
    probe = None
    badmap = 0
    n3a = 10
    n3b = 10
    n3c = 8
    ypre = 16
    hpre = 12


def srd(a, r, ptr, size):
    a.e(f's_mov_b32 {sr(r)}, {sr(ptr)}\ns_mov_b32 {sr(r + 1)}, {sr(ptr + 1)}\n'
        f's_mov_b32 {sr(r + 2)}, {size}\ns_mov_b32 {sr(r + 3)}, 0x20000')


class Gen:
    def __init__(self, cfg):
        self.cfg = cfg
        self.a = Asm()
        self.stamps = []
        self.nt = ' nt' if cfg.nt else ''

    def stamp(self, name):
        a = self.a
        if self.cfg.probe:
            if name == 'start':
                a.e(f's_memrealtime {sr(S_STAMP, 2)}')
                a.wait_all(vm=False)
            if name == self.cfg.probe:
                a.e(f's_memrealtime {sr(S_STAMP + 2, 2)}')
                a.wait_all(vm=False)
            return
        if not self.cfg.diag:
            return
        idx = len(self.stamps)
        self.stamps.append(name)
        a.e(f's_memrealtime {sr(S_STAMP, 2)}\ns_memtime {sr(S_STAMP + 2, 2)}')
        a.wait_all(vm=False)
        a.e(f'v_writelane_b32 {vr(V_STAMP)}, {sr(S_STAMP)}, {idx}\nv_writelane_b32 {vr(V_STAMP)}, {sr(S_STAMP + 2)}, {idx + 32}')

    def barrier(self):
        self.a.e('s_barrier')

    def poll(self, loads):
        a = self.a
        top, done = a.newlabel('poll'), a.newlabel('polled')
        a.e(f's_mov_b32 {sr(S_SPIN)}, {self.cfg.spin}')
        a.label(top)
        for text, _ in loads:
            a.vmem(text)
        a.wait_all(lg=False)
        for n, (_, t) in enumerate(loads):
            if n == 0:
                a.e(f'v_cmp_ne_u64 vcc, {sr(S_TAG, 2)}, {vr(t, 2)}')
            else:
                a.e(f'v_cmp_ne_u64 {sr(S_T + 28, 2)}, {sr(S_TAG, 2)}, {vr(t, 2)}')
                a.e(f's_or_b64 vcc, vcc, {sr(S_T + 28, 2)}')
        a.e(f's_cbranch_vccz {done}')
        a.e(f's_sub_u32 {sr(S_SPIN)}, {sr(S_SPIN)}, 1\ns_cmp_lg_u32 {sr(S_SPIN)}, 0\ns_cbranch_scc1 {top}')
        a.label(done)

    def flag(self, soff, full=True):
        a = self.a
        if self.cfg.fullflag and full:
            a.e(f'v_lshlrev_b32 v253, 3, v0\ns_mov_b64 exec, 0xffff')
            a.vmem(f'buffer_store_dwordx2 {vr(V_TAG, 2)}, v253, {sr(R_WS, 4)}, {sr(soff)} offen sc1')
            a.e('s_mov_b64 exec, -1')
            return
        a.e('s_mov_b64 exec, 1')
        a.vmem(f'buffer_store_dwordx2 {vr(V_TAG, 2)}, off, {sr(R_WS, 4)}, {sr(soff)} sc1')
        a.e('s_mov_b64 exec, -1')

    def unpack(self, lo, hi, src):
        self.a.e(f'v_lshlrev_b32 {vr(lo)}, 16, {vr(src)}\nv_and_b32 {vr(hi)}, 0xffff0000, {vr(src)}')

    def round_pair(self, lo, tmp):
        self.a.e(f'v_cvt_pk_bf16_f32 {vr(tmp)}, {vr(lo)}, {vr(lo + 1)}')
        self.unpack(lo, lo + 1, tmp)

    def round_one(self, r, tmp):
        self.a.e(f'v_cvt_pk_bf16_f32 {vr(tmp)}, {vr(r)}, {vr(r)}\nv_lshlrev_b32 {vr(r)}, 16, {vr(tmp)}')

    def sum_rows(self, r, tmp, bits):
        a = self.a
        for b in bits:
            if b == 3:
                a.e(f'v_add_f32_dpp {vr(r)}, {vr(r)}, {vr(r)} row_ror:8 row_mask:0xf bank_mask:0xf')
            else:
                a.e(f'v_mov_b32 {vr(tmp)}, {vr(r)}')
                a.e(f'v_permlane{16 if b == 4 else 32}_swap_b32 {vr(r)}, {vr(tmp)}')
                a.e(f'v_add_f32 {vr(r)}, {vr(r)}, {vr(tmp)}')

    def prologue(self):
        a, cfg = self.a, self.cfg
        a.e('s_cmp_ge_u32 s2, 256\ns_cbranch_scc1 L_end')
        a.e(f's_mov_b32 s3, {OOB_VAL}')
        a.e('s_load_dwordx16 s[4:19], s[0:1], 0\ns_load_dwordx8 s[20:27], s[0:1], 64\ns_load_dwordx2 s[28:29], s[0:1], 96')
        a.e('v_lshrrev_b32 v1, 6, v0\nv_and_b32 v0, 63, v0')
        a.e(f'v_readfirstlane_b32 {sr(S_W)}, v1\nv_lshlrev_b32 v1, 4, v0')
        if cfg.diag:
            a.e(f'v_mov_b32 {vr(V_STAMP)}, 0')
        if cfg.badmap:
            a.e(f's_lshr_b32 {sr(S_XC)}, s2, 5\ns_and_b32 {sr(S_I)}, s2, 31')
        else:
            a.e(f's_and_b32 {sr(S_XC)}, s2, 7\ns_lshr_b32 {sr(S_I)}, s2, 3')
        T = S_T

        def role(dm, dn, xm_shift, nn_bits_x, i_shift):
            a.e(f's_lshr_b32 {sr(T)}, {sr(S_XC)}, {xm_shift}\ns_lshl_b32 {sr(T)}, {sr(T)}, {5 - i_shift}')
            a.e(f's_lshr_b32 {sr(T + 1)}, {sr(S_I)}, {i_shift}\ns_add_u32 {sr(dm)}, {sr(T)}, {sr(T + 1)}')
            a.e(f's_and_b32 {sr(T)}, {sr(S_XC)}, {(1 << nn_bits_x) - 1}\ns_lshl_b32 {sr(T)}, {sr(T)}, {i_shift}')
            a.e(f's_and_b32 {sr(T + 1)}, {sr(S_I)}, {(1 << i_shift) - 1}\ns_add_u32 {sr(dn)}, {sr(T)}, {sr(T + 1)}')
        role(S_G1, S_J1, 2, 2, 2)
        role(S_M2, S_N2, *{'8x1': (0, 0, 3), '4x2': (1, 1, 2), '2x4': (2, 2, 1)}[cfg.map2])
        role(S_G3, S_J3, *{'8x1': (0, 0, 4), '4x2': (1, 1, 3), '2x4': (2, 2, 2)}[cfg.map3])
        a.e(f's_mov_b32 {sr(S_L2E)}, 0x3fb8aa3b\ns_mov_b32 {sr(S_L2E + 1)}, 0x3fb8aa3b')
        a.e('s_waitcnt lgkmcnt(0)')
        srd(a, R_WS, S_WS, WS_SIZE)
        srd(a, R_X, S_X, 2048 * 1280)
        self.stamp('start')
        if cfg.pfcode:
            self.prefetch_code()
        if cfg.tlb:
            a.e(f'v_lshlrev_b32 v4, 19, v0\nv_add_u32 v4, 0x40000, v4')
            a.vmem(f'buffer_load_dword v253, v4, {sr(R_WS, 4)}, 0 offen nt')
        self.tok_epoch = a.vmem(f'buffer_load_dwordx2 {vr(V_TAG, 2)}, off, {sr(R_WS, 4)}, 0 sc1')

    def prefetch_code(self):
        a = self.a
        T = S_T
        a.e(f's_getpc_b64 {sr(T, 2)}')
        a.label('L_pc')
        a.e(f's_and_b32 {sr(T + 2)}, {sr(S_I)}, 1\ns_lshl_b32 {sr(T + 2)}, {sr(T + 2)}, 2\ns_add_u32 {sr(T + 2)}, {sr(T + 2)}, {sr(S_W)}')
        a.e(f's_lshl_b32 {sr(T + 2)}, {sr(T + 2)}, 13\nv_lshlrev_b32 v4, 7, v0\nv_add_u32 v4, {sr(T + 2)}, v4')
        a.e(f'v_min_u32 v4, L_end-L_pc, v4\nv_mov_b32 v5, {sr(T + 1)}\nv_add_co_u32 v4, vcc, {sr(T)}, v4\nv_addc_co_u32 v5, vcc, 0, v5, vcc')
        a.vmem('global_load_dword v254, v[4:5], off')

    def make_tag(self):
        a = self.a
        a.wait(vm=self.tok_epoch)
        a.e(f'v_readfirstlane_b32 {sr(S_TAG)}, {vr(V_TAG)}\nv_readfirstlane_b32 {sr(S_TAG + 1)}, {vr(V_TAG + 1)}')
        a.e(f's_mul_i32 {sr(S_TAG)}, {sr(S_TAG)}, 1664525\ns_add_u32 {sr(S_TAG)}, {sr(S_TAG)}, 1013904223')
        a.e(f's_mul_i32 {sr(S_TAG + 1)}, {sr(S_TAG + 1)}, 22695477\ns_add_u32 {sr(S_TAG + 1)}, {sr(S_TAG + 1)}, 0x3c6ef35f')
        a.e(f'v_mov_b32 {vr(V_TAG)}, {sr(S_TAG)}\nv_mov_b32 {vr(V_TAG + 1)}, {sr(S_TAG + 1)}')

    def job_common(self):
        a = self.a
        a.e('v_bfe_u32 v9, v0, 4, 1\nv_and_b32 v4, 7, v0\nv_xor_b32 v4, v4, v9\nv_lshlrev_b32 v4, 4, v4')
        a.e('v_lshrrev_b32 v5, 3, v0')
        a.e('v_lshrrev_b32 v6, 4, v0\nv_lshlrev_b32 v6, 10, v6')
        a.e('v_bfe_u32 v9, v0, 2, 2\nv_lshl_add_u32 v6, v9, 7, v6')
        a.e('v_lshrrev_b32 v9, 1, v9\nv_and_b32 v8, 3, v0\nv_lshl_or_b32 v9, v8, 1, v9\nv_lshl_add_u32 v6, v9, 4, v6')
        a.e(f's_mul_i32 {sr(S_T)}, {sr(S_W)}, 12288\ns_add_u32 {sr(S_T + 20)}, {sr(S_T)}, {L_JOB}')
        a.e(f'v_add_u32 v6, {sr(S_T + 20)}, v6\nv_xor_b32 v7, 16, v6\nv_lshlrev_b32 v8, 4, v8')

    def job_issue(self, r, rs, voff, s_off, s_pitch8):
        a = self.a
        tok = None
        for n in range(4):
            a.e(f's_add_u32 m0, {sr(S_T + 20)}, {r * 4096 + n * 1024}')
            if n:
                a.e(f's_add_u32 {sr(s_off)}, {sr(s_off)}, {sr(s_pitch8)}')
            tok = a.vmem(f'buffer_load_dwordx4 {vr(voff)}, {sr(rs, 4)}, {sr(s_off)} offen{self.nt} lds')
        return tok

    def job_finish(self, r, tok, vdest, base):
        a = self.a
        a.wait(vm=tok)
        t = []
        for n in range(4):
            for z in range(2):
                tk = a.ds(f'ds_read_b64_tr_b16 {vr(base + 4 * n + 2 * z, 2)}, v{6 + (n >> 1)} offset:{r * 4096 + z * 512 + (n & 1) * 8}')
            t.append(tk)
        for n in range(4):
            a.e(f'v_add_u32_dpp {vr(base + 16 + n)}, {vr(vdest)}, v8 quad_perm:[{n},{n},{n},{n}] row_mask:0xf bank_mask:0xf')
        last = None
        for n in range(4):
            a.wait(lg=t[n])
            last = a.vmem(f'buffer_store_dwordx4 {vr(base + 4 * n, 4)}, {vr(base + 16 + n)}, {sr(R_WS, 4)}, 0 offen sc1')
        return last

    def dest_A(self, vd, s_blk, s_kb, s_valid):
        a = self.a
        T = S_T
        a.e(f's_mul_i32 {sr(T)}, {sr(s_blk)}, 205\ns_lshr_b32 {sr(T)}, {sr(T)}, 11')
        a.e(f's_mul_i32 {sr(T + 1)}, {sr(T)}, 10\ns_sub_u32 {sr(T + 1)}, {sr(s_blk)}, {sr(T + 1)}\ns_lshl_b32 {sr(T + 1)}, {sr(T + 1)}, 4')
        a.e(f's_cmp_eq_u32 {sr(T)}, 0\ns_cselect_b32 {sr(T + 2)}, 10, 0\ns_cmp_eq_u32 {sr(T)}, 2\ns_cselect_b32 {sr(T + 2)}, 5, {sr(T + 2)}')
        a.e(f'v_and_b32 v9, 15, v0\nv_add_u32 v9, {sr(T + 1)}, v9')
        a.e('v_mul_u32_u24 v10, 103, v9\nv_lshrrev_b32 v10, 9, v10')
        a.e('v_mul_u32_u24 v11, 5, v10\nv_sub_u32 v11, v9, v11')
        a.e(f'v_add_u32 v11, {sr(T + 2)}, v11')
        a.e(f's_lshl_b32 {sr(T + 3)}, {sr(s_kb)}, 1\nv_lshrrev_b32 v12, 5, v0\nv_add_u32 v12, {sr(T + 3)}, v12')
        a.e('v_mul_u32_u24 v13, 0xc00, v12\nv_mul_u32_u24 v14, 0x300, v12')
        a.e(f'v_add_u32 v14, {L_P2W - 12 * 256}, v14\nv_cmp_gt_u32 vcc, 12, v11\nv_cndmask_b32 v13, v14, v13, vcc')
        a.e('v_lshl_add_u32 v13, v11, 8, v13')
        a.e('v_and_b32 v14, 1, v10\nv_lshl_add_u32 v13, v14, 7, v13')
        a.e('v_lshrrev_b32 v14, 1, v11\nv_lshrrev_b32 v15, 4, v0\nv_xor_b32 v14, v14, v15\nv_and_b32 v14, 1, v14\nv_lshl_add_u32 v13, v14, 6, v13')
        a.e(f's_mov_b32 {sr(T + 3)}, 153600\nv_lshrrev_b32 v10, 1, v10\nv_mad_u32_u24 v13, v10, {sr(T + 3)}, v13')
        a.e(f'v_add_u32 {vr(vd)}, {sr(s_valid)}, v13')

    def dest_B(self, vd, s_blk, s_kb, s_up):
        a = self.a
        T = S_T
        a.e(f's_lshl_b32 {sr(T)}, {sr(s_blk)}, 4\nv_and_b32 v9, 15, v0\nv_add_u32 v9, {sr(T)}, v9')
        a.e('v_lshrrev_b32 v10, 1, v9')
        a.e('v_mul_u32_u24 v11, 19, v10\nv_lshrrev_b32 v11, 9, v11')
        a.e('v_mul_u32_u24 v12, 27, v11\nv_sub_u32 v12, v10, v12')
        a.e('v_cmp_le_u32 vcc, 14, v12\nv_lshlrev_b32 v11, 1, v11\nv_subrev_u32 v13, 14, v12')
        a.e('v_cndmask_b32 v12, v12, v13, vcc\nv_addc_co_u32 v11, vcc, 0, v11, vcc')
        a.e('v_lshrrev_b32 v13, 1, v12\nv_lshlrev_b32 v13, 10, v13')
        a.e('v_and_b32 v12, 1, v12\nv_lshl_add_u32 v13, v12, 7, v13')
        a.e('v_and_b32 v9, 1, v9\nv_lshl_add_u32 v13, v9, 8, v13')
        a.e(f's_lshl_b32 {sr(T)}, {sr(s_kb)}, 1\nv_lshrrev_b32 v12, 5, v0\nv_add_u32 v12, {sr(T)}, v12')
        a.e(f's_mov_b32 {sr(T)}, 7168\nv_mad_u32_u24 v13, v12, {sr(T)}, v13')
        a.e(f'v_bfe_u32 v12, v0, 4, 1\nv_xor_b32 v12, {sr(s_up)}, v12\nv_lshl_add_u32 v13, v12, 6, v13')
        a.e(f's_mov_b32 {sr(T)}, 286720\nv_mad_u32_u24 v13, v11, {sr(T)}, v13')
        a.e(f's_lshl_b32 {sr(T)}, {sr(s_up)}, 9\ns_add_u32 {sr(T)}, {sr(T)}, {WS_W13}\nv_add_u32 {vr(vd)}, {sr(T)}, v13')

    def dest_C(self, vd, s_blk, s_base, s_stride):
        a = self.a
        T = S_T
        a.e(f's_lshl_b32 {sr(T)}, {sr(s_blk)}, 4\nv_and_b32 v9, 15, v0\nv_add_u32 v9, {sr(T)}, v9')
        a.e('v_mul_u32_u24 v10, 103, v9\nv_lshrrev_b32 v10, 11, v10')
        a.e('v_mul_u32_u24 v11, 20, v10\nv_sub_u32 v11, v9, v11')
        a.e('v_lshrrev_b32 v12, 3, v11\nv_lshlrev_b32 v12, 1, v12\nv_and_b32 v13, 1, v11\nv_add_u32 v13, v12, v13')
        a.e('v_bfe_u32 v14, v11, 1, 2\nv_and_b32 v15, 3, v11\nv_cmp_gt_u32 vcc, 16, v11')
        a.e('v_cndmask_b32 v13, 4, v13, vcc\nv_cndmask_b32 v14, v15, v14, vcc')
        a.e('v_lshlrev_b32 v13, 10, v13\nv_lshl_add_u32 v13, v14, 8, v13')
        a.e('v_and_b32 v14, 2, v14\nv_lshrrev_b32 v15, 4, v0\nv_xor_b32 v14, v14, v15\nv_lshl_add_u32 v13, v14, 6, v13')
        a.e(f'v_mad_u32_u24 v13, v10, {sr(s_stride)}, v13\nv_add_u32 {vr(vd)}, {sr(s_base)}, v13')

    def job_bc_setup(self, rnd, rs, voff, vd, s_off, s_p8):
        a = self.a
        T = S_T
        J, BLK, KB = T + 4, T + 5, T + 6
        lw13, lw2, lc, ldone = (a.newlabel(n) for n in ('jw13', 'jw2', 'jc', 'jdone'))
        a.e(f's_lshl_b32 {sr(J)}, s2, 2\ns_add_u32 {sr(J)}, {sr(J)}, {sr(S_W)}')
        if rnd:
            a.e(f's_add_u32 {sr(J)}, {sr(J)}, 1024')
        a.e(f's_cmp_ge_u32 {sr(J)}, 1280\ns_cbranch_scc1 {lw2}\ns_cmp_ge_u32 {sr(J)}, 200\ns_cbranch_scc1 {lw13}')
        srd(a, rs, S_WO, 640 * 1280)
        a.e(f's_mov_b32 {sr(T + 8)}, 10\ns_mov_b32 {sr(T + 9)}, {WS_WO}\ns_mov_b32 {sr(T + 10)}, 102400\ns_branch {lc}')
        a.label(lw2)
        srd(a, rs, S_W2, 1728 * 1280)
        a.e(f's_sub_u32 {sr(J)}, {sr(J)}, 1280\ns_mov_b32 {sr(T + 8)}, 27\ns_mov_b32 {sr(T + 10)}, 276480')
        a.e(f's_cmp_lt_u32 {sr(J)}, 540\ns_cselect_b32 {sr(T + 9)}, {WS_W2}, {OOB}\ns_cselect_b32 {sr(J)}, {sr(J)}, 0')
        a.label(lc)
        a.e(f's_mul_i32 {sr(KB)}, {sr(J)}, 205\ns_lshr_b32 {sr(KB)}, {sr(KB)}, 11')
        a.e(f's_mul_i32 {sr(BLK)}, {sr(KB)}, 10\ns_sub_u32 {sr(BLK)}, {sr(J)}, {sr(BLK)}')
        a.e(f's_sub_u32 {sr(T + 11)}, {sr(KB)}, {sr(T + 8)}\ns_lshl_b32 {sr(T + 11)}, {sr(T + 11)}, 1\ns_add_u32 {sr(T + 11)}, {sr(T + 11)}, 1')
        a.e(f's_lshl_b32 {sr(T + 12)}, {sr(KB)}, 1\ns_cmp_lt_u32 {sr(KB)}, {sr(T + 8)}\ns_cselect_b32 {sr(T + 11)}, {sr(T + 12)}, {sr(T + 11)}')
        a.e(f's_mul_i32 {sr(T + 11)}, {sr(T + 11)}, 5120\ns_add_u32 {sr(T + 9)}, {sr(T + 9)}, {sr(T + 11)}')
        self.dest_C(vd, BLK, T + 9, T + 10)
        a.e(f's_mov_b32 {sr(T + 13)}, 1280\ns_branch {ldone}')
        a.label(lw13)
        a.e(f's_sub_u32 {sr(J)}, {sr(J)}, 200\ns_cmp_ge_u32 {sr(J)}, 540\ns_cselect_b32 {sr(T + 8)}, 1, 0')
        a.e(f's_cselect_b32 {sr(rs)}, {sr(S_W3)}, {sr(S_W1)}\ns_cselect_b32 {sr(rs + 1)}, {sr(S_W3 + 1)}, {sr(S_W1 + 1)}')
        a.e(f's_cselect_b32 {sr(T + 9)}, 540, 0\ns_sub_u32 {sr(J)}, {sr(J)}, {sr(T + 9)}')
        a.e(f's_mov_b32 {sr(rs + 2)}, {640 * 3456}\ns_mov_b32 {sr(rs + 3)}, 0x20000')
        a.e(f's_mul_i32 {sr(KB)}, {sr(J)}, 607\ns_lshr_b32 {sr(KB)}, {sr(KB)}, 14')
        a.e(f's_mul_i32 {sr(BLK)}, {sr(KB)}, 27\ns_sub_u32 {sr(BLK)}, {sr(J)}, {sr(BLK)}')
        self.dest_B(vd, BLK, KB, T + 8)
        a.e(f's_mov_b32 {sr(T + 13)}, 3456')
        a.label(ldone)
        a.e(f's_lshl_b32 {sr(s_p8)}, {sr(T + 13)}, 3\ns_mul_i32 {sr(s_off)}, {sr(s_p8)}, {sr(KB)}\ns_lshl_b32 {sr(s_off)}, {sr(s_off)}, 2')
        a.e(f's_lshl_b32 {sr(BLK)}, {sr(BLK)}, 7\ns_add_u32 {sr(s_off)}, {sr(s_off)}, {sr(BLK)}')
        a.e(f'v_mad_u32_u24 {vr(voff)}, v5, {sr(T + 13)}, v4')

    def x_loads(self):
        a = self.a
        T = S_T
        a.e(f's_mov_b32 {sr(T)}, 1280\nv_and_b32 v9, 7, v0\nv_lshlrev_b32 v10, 4, v5\nv_mad_u32_u24 v9, v9, {sr(T)}, v10')
        a.e(f's_mul_i32 {sr(T)}, s2, 10240\ns_lshl_b32 {sr(T + 1)}, {sr(S_W)}, 7\ns_add_u32 {sr(T)}, {sr(T)}, {sr(T + 1)}')
        a.e(f's_cmp_lt_u32 {sr(S_W)}, 2\ns_cselect_b32 {sr(T + 1)}, {sr(T)}, {OOB}')
        for r in range(3):
            a.vmem(f'buffer_load_dwordx4 {vr(16 + 4 * r, 4)}, v9, {sr(R_X, 4)}, {sr(T + (r == 2))} offen offset:{r * 512}{self.nt}')

    def startup(self):
        a, cfg = self.a, self.cfg
        T = S_T
        self.job_common()
        lwn, ljoin = a.newlabel('wn'), a.newlabel('join')
        a.e(f's_cmp_lg_u32 {sr(S_W)}, 0\ns_cbranch_scc1 {lwn}')
        st = a.state()
        a.c('wave 0: modulation GEMV')
        srd(a, R_A, S_WMOD, 640 * 7680)
        srd(a, R_B, S_C, 1280)
        a.e('v_lshlrev_b32 v9, 2, v0')
        tc = [a.vmem(f'buffer_load_dword {vr(28 + n)}, v9, {sr(R_B, 4)}, 0 offen offset:{256 * n}') for n in range(5)]
        GRP, VAL = T + 14, T + 15
        a.e(f's_lshr_b32 {sr(T)}, {sr(S_I)}, 2\ns_lshl_b32 {sr(T)}, {sr(T)}, 3\ns_add_u32 {sr(T)}, {sr(T)}, {sr(S_XC)}')
        a.e(f's_and_b32 {sr(T + 1)}, {sr(S_I)}, 3\ns_lshl_b32 {sr(GRP)}, {sr(T)}, 2\ns_add_u32 {sr(GRP)}, {sr(GRP)}, {sr(T + 1)}')
        a.e(f's_cmp_lt_u32 {sr(T)}, 60\ns_cselect_b32 {sr(VAL)}, 0, {OOB}')
        a.e(f's_lshl_b32 {sr(T + 2)}, {sr(GRP)}, 5\ns_add_u32 {sr(T + 2)}, {sr(T + 2)}, {sr(VAL)}')
        a.e(f's_mov_b32 {sr(T)}, 7680\nv_lshrrev_b32 v10, 1, v0\nv_and_b32 v11, 1, v0\nv_lshlrev_b32 v11, 4, v11\nv_mad_u32_u24 v10, v10, {sr(T)}, v11')
        td = []
        for n in range(20):
            a.e(f's_mov_b32 m0, {n * 1024}')
            if n:
                a.e(f's_add_u32 {sr(T + 2)}, {sr(T + 2)}, {32 * 7680}')
            td.append(a.vmem(f'buffer_load_dwordx4 v10, {sr(R_A, 4)}, {sr(T + 2)} offen{self.nt if cfg.nt > 1 else ""} lds'))
        self.x_loads()
        a.wait(vm=tc[-1])
        self.make_tag()
        a.e(f'v_lshlrev_b32 v9, 2, v0\nv_add_u32 v9, {L_SILU}, v9')
        for n in range(5):
            self.unpack(34 + 2 * n, 35 + 2 * n, 28 + n)
        for n in range(10):
            a.e(f'v_mul_f32 {vr(44 + n)}, 0xbfb8aa3b, {vr(34 + n)}')
        for n in range(10):
            a.e(f'v_exp_f32 {vr(44 + n)}, {vr(44 + n)}')
        for n in range(10):
            a.e(f'v_add_f32 {vr(44 + n)}, 1.0, {vr(44 + n)}')
        for n in range(10):
            a.e(f'v_rcp_f32 {vr(44 + n)}, {vr(44 + n)}')
        for n in range(10):
            a.e(f'v_mul_f32 {vr(44 + n)}, {vr(34 + n)}, {vr(44 + n)}')
        for n in range(5):
            a.e(f'v_cvt_pk_bf16_f32 {vr(28 + n)}, {vr(44 + 2 * n)}, {vr(45 + 2 * n)}')
            a.ds(f'ds_write_b32 v9, {vr(28 + n)} offset:{256 * n}')
        a.e(f'v_lshrrev_b32 v9, 4, v0\nv_lshlrev_b32 v10, 4, v9\nv_add_u32 v10, {L_SILU}, v10')
        for s in range(20):
            a.ds(f'ds_read_b128 {vr(64 + 4 * s, 4)}, v10 offset:{64 * s}')
        a.e('v_lshlrev_b32 v9, 8, v9\nv_and_b32 v11, 15, v0\nv_lshl_add_u32 v9, v11, 3, v9')
        a.wait_all(vm=False)
        for g in range(4):
            a.wait(vm=td[5 * g + 4])
            tk = []
            for s in range(5 * g, 5 * g + 5):
                a.ds(f'ds_read_b64_tr_b16 {vr(144 + 4 * s, 2)}, v9 offset:{1024 * s}')
                tk.append(a.ds(f'ds_read_b64_tr_b16 {vr(146 + 4 * s, 2)}, v9 offset:{1024 * s + 128}'))
            for n, s in enumerate(range(5 * g, 5 * g + 5)):
                a.wait(lg=tk[n])
                acc = 56 + 4 * (s & 1)
                a.e(f'v_mfma_f32_16x16x32_bf16 {vr(acc, 4)}, {vr(144 + 4 * s, 4)}, {vr(64 + 4 * s, 4)}, {vr(acc, 4) if s > 1 else 0}')
        a.e(f's_sub_u32 {sr(T)}, {sr(GRP)}, 40\ns_cmp_lt_u32 {sr(T)}, 40\ns_cselect_b32 {sr(T + 1)}, 1.0, 0')
        a.e(f's_sub_u32 {sr(T)}, {sr(GRP)}, 160\ns_cmp_lt_u32 {sr(T)}, 40\ns_cselect_b32 {sr(T + 1)}, 1.0, {sr(T + 1)}')
        a.e(f's_lshl_b32 {sr(T + 2)}, {sr(GRP)}, 7\ns_add_u32 {sr(T + 2)}, {sr(T + 2)}, {sr(VAL)}\ns_add_u32 {sr(T + 2)}, {sr(T + 2)}, {WS_MOD}')
        for r in range(4):
            a.e(f'v_add_f32 {vr(56 + r)}, {vr(56 + r)}, {vr(60 + r)}')
        self.round_pair(56, 60)
        self.round_pair(58, 61)
        for r in range(4):
            a.e(f'v_add_f32 {vr(56 + r)}, {sr(T + 1)}, {vr(56 + r)}')
        a.e('v_cvt_pk_bf16_f32 v60, v56, v57\nv_cvt_pk_bf16_f32 v61, v58, v59')
        a.e(f'v_mov_b32 v62, {vr(V_TAG)}\nv_mov_b32 v63, {vr(V_TAG + 1)}')
        a.e('s_mov_b32 exec_lo, 0x00010001\ns_mov_b32 exec_hi, 0x00010001')
        a.vmem(f'buffer_store_dwordx4 v[60:63], v0, {sr(R_WS, 4)}, {sr(T + 2)} offen sc1')
        a.e('s_mov_b64 exec, -1')
        a.e(f's_mov_b32 {sr(T + 21)}, {OOB}\ns_branch {ljoin}')
        vm0 = a.vm
        a.set_state(st)
        a.label(lwn)
        a.c('waves 1-3: Wqkv re-tiling')
        srd(a, R_A, S_WQKV, 640 * 3840)
        J, BLK, KB, VALD = T + 4, T + 5, T + 6, T + 7
        a.e(f's_mul_i32 {sr(J)}, s2, 3\ns_add_u32 {sr(J)}, {sr(J)}, {sr(S_W)}\ns_sub_u32 {sr(J)}, {sr(J)}, 1')
        a.e(f's_cmp_lt_u32 {sr(J)}, 600\ns_cselect_b32 {sr(VALD)}, 0, {OOB}\ns_cselect_b32 {sr(J)}, {sr(J)}, 0')
        a.e(f's_mul_i32 {sr(BLK)}, {sr(J)}, 205\ns_lshr_b32 {sr(BLK)}, {sr(BLK)}, 12')
        a.e(f's_mul_i32 {sr(KB)}, {sr(BLK)}, 20\ns_sub_u32 {sr(KB)}, {sr(J)}, {sr(KB)}')
        a.e(f's_mul_i32 {sr(T + 16)}, {sr(KB)}, {32 * 3840}\ns_lshl_b32 {sr(T)}, {sr(BLK)}, 7\ns_add_u32 {sr(T + 16)}, {sr(T + 16)}, {sr(T)}')
        a.e(f's_add_u32 {sr(T + 16)}, {sr(T + 16)}, {sr(VALD)}\ns_mov_b32 {sr(T + 17)}, {8 * 3840}')
        a.e(f's_mov_b32 {sr(T)}, 3840\nv_mad_u32_u24 v28, v5, {sr(T)}, v4')
        tok = self.job_issue(0, R_A, 28, T + 16, T + 17)
        self.x_loads()
        a.e(f's_lshl_b32 {sr(T + 21)}, {sr(J)}, 3\ns_add_u32 {sr(T + 21)}, {sr(T + 21)}, {WS_FW}\ns_add_u32 {sr(T + 21)}, {sr(T + 21)}, {sr(VALD)}')
        a.e(f's_add_u32 {sr(VALD)}, {sr(VALD)}, {WS_WQ}')
        self.dest_A(29, BLK, KB, VALD)
        self.make_tag()
        self.job_finish(0, tok, 29, 32)
        a.label(ljoin)
        a.vm = max(a.vm, vm0)
        a.vm_done = 0
        a.lg_done = a.lg
        tj = a.vm
        self.stamp('jobA')
        self.job_bc_setup(0, R_B, 28, 30, T + 16, T + 17)
        tokB = self.job_issue(1, R_B, 28, T + 16, T + 17)
        self.job_bc_setup(1, R_C, 29, 31, T + 18, T + 19)
        tokC = self.job_issue(2, R_C, 29, T + 18, T + 19)
        a.wait(vm=tj)
        self.flag(T + 21, False)
        srd(a, R_A, S_WPHI, 32 * 800)
        a.e(f's_mul_i32 {sr(T)}, {sr(S_J1)}, 1600\ns_lshl_b32 {sr(T + 1)}, {sr(S_W)}, 9\ns_add_u32 {sr(T)}, {sr(T)}, {sr(T + 1)}')
        a.e(f's_add_u32 m0, {sr(T + 1)}, {L_WPHI}\ns_mov_b32 exec_hi, 0')
        tokP = a.vmem(f'buffer_load_dwordx4 v1, {sr(R_A, 4)}, {sr(T)} offen lds')
        a.e('s_mov_b64 exec, -1')
        a.c('LayerNorm 1')
        for n in range(12):
            self.unpack(64 + 2 * n, 65 + 2 * n, 16 + n)
        a.e('v_and_b32 v9, 7, v0\nv_lshlrev_b32 v9, 4, v9')
        a.e(f's_lshl_b32 {sr(T)}, {sr(S_W)}, 2\ns_add_u32 {sr(T)}, {sr(T)}, {L_LNRED}\nv_add_u32 v10, {sr(T)}, v9\nv_add_u32 v9, {L_LNRED}, v9')
        a.e(f's_cmp_lt_u32 {sr(S_W)}, 2\ns_cselect_b32 {sr(T + 2)}, 1.0, 0')

        def tree(dst, src, n):
            a.e(f'v_pk_add_f32 {vr(dst, 2)}, {vr(src, 2)}, {vr(src + 2, 2)}')
            for k in range(4, n, 2):
                a.e(f'v_pk_add_f32 {vr(dst, 2)}, {vr(dst, 2)}, {vr(src + k, 2)}')

        def all_sum(r, off):
            self.sum_rows(r, 11, (3, 4, 5))
            a.ds(f'ds_write_b32 v10, {vr(r)} offset:{off}')
            a.wait_all(vm=False)
            self.barrier()
            t = a.ds(f'ds_read_b128 v[12:15], v9 offset:{off}')
            a.wait(lg=t)
            a.e(f'v_add_f32 v12, v12, v13\nv_add_f32 v14, v14, v15\nv_add_f32 {vr(r)}, v12, v14')
        tree(88, 64, 24)
        a.e('v_add_f32 v88, v88, v89')
        all_sum(88, 0)
        a.e('v_mul_f32 v88, 0x3acccccd, v88')
        for n in range(12):
            a.e(f'v_pk_add_f32 {vr(92 + 2 * n, 2)}, {vr(64 + 2 * n, 2)}, v[88:89] op_sel_hi:[1,0] neg_lo:[0,1] neg_hi:[0,1]')
        for n in range(12):
            a.e(f'v_pk_mul_f32 {vr(116 + 2 * n, 2)}, {vr(92 + 2 * n, 2)}, {vr(92 + 2 * n, 2)}')
        tree(90, 116, 16)
        tree(140, 132, 8)
        a.e(f'v_add_f32 v90, v90, v91\nv_add_f32 v140, v140, v141\nv_fma_f32 v90, v140, {sr(T + 2)}, v90')
        all_sum(90, 128)
        a.e('v_mul_f32 v90, 0x3acccccd, v90')
        if cfg.mimic >= 1:
            self.round_one(88, 11)
            self.round_one(90, 11)
            a.e('v_add_f32 v90, 0x3727c5ac, v90')
            self.round_one(90, 11)
            a.e('v_sqrt_f32 v90, v90')
            self.round_one(90, 11)
            a.e('v_rcp_f32 v90, v90')
            for n in range(12):
                a.e(f'v_pk_add_f32 {vr(92 + 2 * n, 2)}, {vr(64 + 2 * n, 2)}, v[88:89] op_sel_hi:[1,0] neg_lo:[0,1] neg_hi:[0,1]')
            for n in range(12):
                self.round_pair(92 + 2 * n, 116 + n)
        else:
            a.e('v_add_f32 v90, 0x3727c5ac, v90\nv_rsq_f32 v90, v90')
        for n in range(12):
            a.e(f'v_pk_mul_f32 {vr(64 + 2 * n, 2)}, {vr(92 + 2 * n, 2)}, v[90:91] op_sel_hi:[1,0]')
        if cfg.mimic >= 1:
            for n in range(12):
                self.round_pair(64 + 2 * n, 116 + n)
        self.stamp('ln1')
        self.job_finish(1, tokB, 30, 32)
        self.job_finish(2, tokC, 31, 92)
        self.stamp('jobBC')
        a.c('wait for mod, modulate, publish h')
        a.e(f's_mul_i32 {sr(T)}, {sr(S_W)}, 2560\ns_add_u32 {sr(T)}, {sr(T)}, {WS_MOD}')
        a.e('v_lshrrev_b32 v9, 2, v0\nv_lshlrev_b32 v9, 7, v9\nv_add_u32 v9, v9, v8')
        a.e('v_bfe_u32 v10, v0, 2, 2\nv_lshlrev_b32 v10, 7, v10\nv_add_u32 v10, v10, v8')
        a.e(f's_mul_i32 {sr(T + 1)}, {sr(S_W)}, 1280\ns_add_u32 {sr(T + 1)}, {sr(T + 1)}, {L_MODP}')
        a.e(f'v_add_u32 v11, {sr(T + 1)}, v1\nv_and_b32 v12, 0xf0, v1\nv_add_u32 v12, {sr(T + 1)}, v12')
        a.e(f's_lshl_b32 {sr(T + 2)}, {sr(S_W)}, 8\ns_add_u32 {sr(T + 2)}, {sr(T + 2)}, {L_MODP}')
        a.e(f'v_lshlrev_b32 v13, 5, v5\nv_add_u32 v13, {sr(T + 2)}, v13')
        a.e('v_and_b32 v14, 7, v0\nv_lshlrev_b32 v14, 4, v14\nv_lshl_add_u32 v14, v5, 9, v14')
        a.e(f's_lshr_b32 {sr(T + 3)}, s2, 2\ns_mul_i32 {sr(T + 3)}, {sr(T + 3)}, 40960\ns_and_b32 {sr(T + 4)}, s2, 3\ns_lshl_b32 {sr(T + 4)}, {sr(T + 4)}, 7')
        a.e(f's_add_u32 {sr(T + 3)}, {sr(T + 3)}, {sr(T + 4)}\ns_lshl_b32 {sr(T + 4)}, {sr(S_W)}, 12\ns_add_u32 {sr(T + 3)}, {sr(T + 3)}, {sr(T + 4)}')
        a.e(f's_add_u32 {sr(T + 3)}, {sr(T + 3)}, {WS_H}\ns_add_u32 {sr(T + 4)}, {sr(T + 3)}, 16384\ns_add_u32 {sr(T + 5)}, {sr(T + 3)}, 32768')
        a.e(f's_cmp_lt_u32 {sr(S_W)}, 2\ns_cselect_b32 {sr(T + 5)}, {sr(T + 5)}, {OOB}')
        a.e(f's_lshl_b32 {sr(T + 6)}, s2, 2\ns_add_u32 {sr(T + 6)}, {sr(T + 6)}, {sr(S_W)}\ns_lshl_b32 {sr(T + 6)}, {sr(T + 6)}, 7\ns_add_u32 {sr(T + 6)}, {sr(T + 6)}, {WS_FH}')
        self.poll([(f'buffer_load_dwordx4 v[16:19], v9, {sr(R_WS, 4)}, {sr(T)} offen sc1', 18),
                   (f'buffer_load_dwordx4 v[20:23], v10, {sr(R_WS, 4)}, {sr(T)} offen offset:2048 sc1', 22)])
        self.stamp('mod')
        self.unpack(24, 25, 16)
        self.unpack(26, 27, 17)
        self.unpack(32, 33, 20)
        self.unpack(34, 35, 21)
        a.ds('ds_write_b128 v11, v[24:27]')
        a.ds('ds_write_b128 v12, v[32:35] offset:1024')
        a.wait_all(vm=False)
        self.barrier()
        tk = []
        for r in range(3):
            a.ds(f'ds_read_b128 {vr(92 + 16 * r, 4)}, v13 offset:{1024 * r + 2560}')
            a.ds(f'ds_read_b128 {vr(96 + 16 * r, 4)}, v13 offset:{1024 * r + 2576}')
            a.ds(f'ds_read_b128 {vr(100 + 16 * r, 4)}, v13 offset:{1024 * r}')
            tk.append(a.ds(f'ds_read_b128 {vr(104 + 16 * r, 4)}, v13 offset:{1024 * r + 16}'))
        for r in range(3):
            a.wait(lg=tk[r])
            for n in range(4):
                x, s, b = 64 + 8 * r + 2 * n, 92 + 16 * r + 2 * n, 100 + 16 * r + 2 * n
                if cfg.mimic >= 2:
                    a.e(f'v_pk_mul_f32 {vr(x, 2)}, {vr(x, 2)}, {vr(s, 2)}')
                    self.round_pair(x, 15)
                    a.e(f'v_pk_add_f32 {vr(x, 2)}, {vr(x, 2)}, {vr(b, 2)}')
                else:
                    a.e(f'v_pk_fma_f32 {vr(x, 2)}, {vr(x, 2)}, {vr(s, 2)}, {vr(b, 2)}')
            for n in range(4):
                a.e(f'v_cvt_pk_bf16_f32 {vr(16 + 4 * r + n)}, {vr(64 + 8 * r + 2 * n)}, {vr(65 + 8 * r + 2 * n)}')
            last = a.vmem(f'buffer_store_dwordx4 {vr(16 + 4 * r, 4)}, v14, {sr(R_WS, 4)}, {sr(T + 3 + r)} offen sc1')
        self.tok_h = last

    def frag_addr(self, vd, t):
        a = self.a
        a.e(f'v_bfe_u32 {vr(t)}, v0, 2, 3\nv_lshlrev_b32 {vr(vd)}, 7, {vr(t)}')
        a.e(f'v_lshrrev_b32 {vr(t)}, 4, v0\nv_lshrrev_b32 {vr(t + 1)}, 5, v0\nv_xor_b32 {vr(t)}, {vr(t)}, {vr(t + 1)}\nv_and_b32 {vr(t)}, 1, {vr(t)}')
        a.e(f'v_lshl_add_u32 {vr(vd)}, {vr(t)}, 6, {vr(vd)}\nv_add_u32 {vr(vd)}, {vr(vd)}, v8')

    def wphi_frags(self):
        a = self.a
        a.e('v_and_b32 v9, 1, v0\nv_mul_u32_u24 v9, 0x320, v9\nv_bfe_u32 v10, v0, 2, 2\nv_mul_u32_u24 v10, 40, v10\nv_add_u32 v9, v9, v10')
        a.e('v_bfe_u32 v10, v0, 1, 1\nv_bfe_u32 v11, v0, 4, 1\nv_lshl_add_u32 v10, v11, 1, v10\nv_lshl_add_u32 v9, v10, 3, v9')
        a.e(f'v_add_u32 v9, {L_WPHI}, v9')
        a.e('v_bfe_u32 v10, v0, 2, 1\nv_lshrrev_b32 v11, 5, v0\nv_cmp_eq_u32 vcc, v10, v11\nv_cndmask_b32 v10, 0, -1, vcc')
        for t in range(2):
            for s in range(3):
                r = 200 + 12 * t + 4 * s
                a.ds(f'ds_read_b64_tr_b16 {vr(r, 2)}, v9 offset:{32 * t + 320 * s}')
                if s < 2:
                    a.ds(f'ds_read_b64_tr_b16 {vr(r + 2, 2)}, v9 offset:{32 * t + 320 * s + 160}')
                else:
                    a.e(f'v_mov_b32 {vr(r + 2)}, 0\nv_mov_b32 {vr(r + 3)}, 0')
        a.wait_all(vm=False)
        for t in range(2):
            for n in range(10):
                r = 200 + 12 * t + n
                a.e(f'v_and_b32 {vr(r)}, {vr(r)}, v10')

    def feature_map(self, src, out):
        a, cfg = self.a, self.cfg
        for n in range(10):
            a.e(f'v_cvt_pk_bf16_f32 {vr(128 + n)}, {vr(src + 2 * n)}, {vr(src + 2 * n + 1)}')
        a.e('v_mov_b32 v138, 0\nv_mov_b32 v139, 0')
        for t in (1, 0):
            for s in range(3):
                acc = 140 + 16 * t
                a.e(f'v_mfma_f32_32x32x16_bf16 {vr(acc, 16)}, {vr(200 + 12 * t + 4 * s, 4)}, {vr(128 + 4 * s, 4)}, {vr(acc, 16) if s else 0}')
        P, E = 140, 172
        if cfg.mimic >= 2:
            for n in range(10):
                self.round_pair(P + 2 * n, 128 + n)
        for op, d in (('max', 192), ('min', 194)):
            a.e(f'v_{op}3_f32 {vr(d)}, {vr(P + 16)}, {vr(P + 17)}, {vr(P + 18)}\nv_{op}3_f32 {vr(d + 1)}, {vr(P + 19)}, {vr(P)}, {vr(P + 1)}')
            for k in range(2, 16, 4):
                a.e(f'v_{op}3_f32 {vr(d)}, {vr(d)}, {vr(P + k)}, {vr(P + k + 1)}')
                if k + 2 < 16:
                    a.e(f'v_{op}3_f32 {vr(d + 1)}, {vr(d + 1)}, {vr(P + k + 2)}, {vr(P + k + 3)}')
            a.e(f'v_{op}_f32 {vr(d)}, {vr(d)}, {vr(d + 1)}')
        for n in range(10):
            a.e(f'v_pk_add_f32 {vr(E + 2 * n, 2)}, {vr(P + 2 * n, 2)}, v[192:193] op_sel_hi:[1,0] neg_lo:[0,1] neg_hi:[0,1]')
            a.e(f'v_pk_add_f32 {vr(P + 2 * n, 2)}, {vr(P + 2 * n, 2)}, v[194:195] op_sel_hi:[1,0] neg_lo:[1,0] neg_hi:[1,0]')
        for b in (E, P):
            for n in range(10):
                a.e(f'v_pk_mul_f32 {vr(b + 2 * n, 2)}, {vr(b + 2 * n, 2)}, {sr(S_L2E, 2)}')
        for b in (E, P):
            for n in range(20):
                a.e(f'v_exp_f32 {vr(b + n)}, {vr(b + n)}')
        for b, d in ((E, 192), (P, 196)):
            a.e(f'v_pk_add_f32 {vr(d, 2)}, {vr(b, 2)}, {vr(b + 2, 2)}\nv_pk_add_f32 {vr(d + 2, 2)}, {vr(b + 4, 2)}, {vr(b + 6, 2)}')
        for k in range(8, 20, 4):
            for b, d in ((E, 192), (P, 196)):
                a.e(f'v_pk_add_f32 {vr(d, 2)}, {vr(d, 2)}, {vr(b + k, 2)}\nv_pk_add_f32 {vr(d + 2, 2)}, {vr(d + 2, 2)}, {vr(b + k + 2, 2)}')
        for d in (192, 196):
            a.e(f'v_pk_add_f32 {vr(d, 2)}, {vr(d, 2)}, {vr(d + 2, 2)}')
        for d in (192, 196):
            a.e(f'v_add_f32 {vr(d)}, {vr(d)}, {vr(d + 1)}')
        for d in (192, 196):
            a.e(f'v_rcp_f32 {vr(d)}, {vr(d)}')
        for b, d, o in ((E, 192, out), (P, 196, out + 10)):
            for n in range(10):
                a.e(f'v_pk_mul_f32 {vr(b + 2 * n, 2)}, {vr(b + 2 * n, 2)}, {vr(d, 2)} op_sel_hi:[1,0]')
            for n in range(10):
                a.e(f'v_cvt_pk_bf16_f32 {vr(o + n)}, {vr(b + 2 * n)}, {vr(b + 2 * n + 1)}')

    def phase1(self):
        a, cfg = self.a, self.cfg
        T = S_T
        a.c('phase 1: qkv projection')
        a.e('v_min_u32 v9, 59, v0\nv_mul_u32_u24 v10, 0xcd, v9\nv_lshrrev_b32 v10, 12, v10\nv_mul_u32_u24 v10, 0xb4, v10')
        a.e('v_add_u32 v9, v9, v10\nv_lshlrev_b32 v9, 3, v9')
        a.e(f's_mul_i32 {sr(T)}, {sr(S_J1)}, 40\ns_add_u32 {sr(T + 1)}, {sr(T)}, 39\ns_lshr_b32 {sr(T)}, {sr(T)}, 6\ns_lshr_b32 {sr(T + 1)}, {sr(T + 1)}, 6')
        for k in range(2):
            a.e(f's_mul_i32 {sr(T + k)}, {sr(T + k)}, 160\ns_add_u32 {sr(T + k)}, {sr(T + k)}, {WS_FW}')
        self.poll([(f'buffer_load_dwordx2 v[28:29], v9, {sr(R_WS, 4)}, {sr(T)} offen sc1', 28),
                   (f'buffer_load_dwordx2 v[30:31], v9, {sr(R_WS, 4)}, {sr(T + 1)} offen sc1', 30)])
        self.flag(T + 6)
        self.stamp('hpub')
        SRC, DST, HB = T + 8, T + 9, T + 10
        a.e(f's_mul_i32 {sr(SRC)}, {sr(S_J1)}, 153600\ns_lshl_b32 {sr(DST)}, {sr(S_W)}, 10\ns_add_u32 {sr(SRC)}, {sr(SRC)}, {sr(DST)}\ns_add_u32 {sr(SRC)}, {sr(SRC)}, {WS_WQ}')
        a.e(f's_cmp_gt_u32 {sr(S_W)}, 1\ns_cselect_b32 {sr(T + 11)}, 2048, 0')
        wtok = {}

        def wdma(q):
            if q == 37:
                a.e(f's_sub_u32 {sr(SRC)}, {sr(SRC)}, {sr(T + 11)}\ns_sub_u32 {sr(DST)}, {sr(DST)}, {sr(T + 11)}')
            a.e(f's_add_u32 m0, {sr(DST)}, {q * 4096}\ns_add_u32 {sr(T + 12)}, {sr(SRC)}, {q * 4096}')
            wtok[q] = a.vmem(f'buffer_load_dwordx4 v1, {sr(R_WS, 4)}, {sr(T + 12)} offen sc1 lds')
        NPRE = 18
        for q in range(NPRE):
            wdma(q)
        self.wphi_frags()
        self.frag_addr(4, 9)
        a.e(f'v_add_u32 v5, 0x10000, v4\nv_add_u32 v6, {L_P2W}, v4')
        a.e(f's_lshl_b32 {sr(T)}, {sr(S_G1)}, 2\ns_add_u32 {sr(T)}, {sr(T)}, {sr(S_W)}\ns_mul_i32 {sr(HB)}, {sr(T)}, 40960\ns_add_u32 {sr(HB)}, {sr(HB)}, {WS_H}')
        a.e(f's_lshl_b32 {sr(T)}, {sr(T)}, 11\ns_add_u32 {sr(T)}, {sr(T)}, {WS_FH}\nv_and_b32 v9, 15, v0\nv_lshlrev_b32 v9, 7, v9')
        self.poll([(f'buffer_load_dwordx2 v[28:29], v9, {sr(R_WS, 4)}, {sr(T)} offen sc1', 28)])
        self.stamp('hready')
        htok = {}

        def hload(s):
            if s and s % 4 == 0:
                a.e(f's_add_u32 {sr(HB)}, {sr(HB)}, 4096')
            htok[s] = a.vmem(f'buffer_load_dwordx4 {ar(4 * s, 4)}, v1, {sr(R_WS, 4)}, {sr(HB)} offen offset:{(s % 4) * 1024} sc1')
        HPRE = 16
        for s in range(HPRE):
            hload(s)
        LA = 6
        nf = 120
        rtok = {}

        def wread(f):
            if f % 24 == 0:
                a.wait(vm=wtok[f // 4 + 5])
                self.barrier()
            off = f * 1024
            rtok[f] = a.ds(f'ds_read_b128 {ar(160 + 4 * (f % 8), 4)}, v{4 + (off >> 16)} offset:{off & 0xffff}')
        for f in range(LA):
            wread(f)
        nq, nh = NPRE, HPRE
        for f in range(nf):
            s, t = divmod(f, 3)
            a.wait(vm=htok[s] if t == 0 else None, lg=rtok[f])
            acc = 64 + 16 * t
            a.e(f'v_mfma_f32_32x32x16_bf16 {vr(acc, 16)}, {ar(160 + 4 * (f % 8), 4)}, {ar(4 * s, 4)}, {vr(acc, 16) if s else 0}')
            if t == 0 and nh < 40:
                hload(nh)
                nh += 1
            if t == 1 and nq < 38:
                wdma(nq)
                nq += 1
            if f + LA < nf:
                wread(f + LA)
        self.stamp('pass1')
        a.c('feature map of k, partial kv')
        self.feature_map(64, 224)
        for n in range(10):
            a.e(f'v_cvt_pk_bf16_f32 {vr(128 + n)}, {vr(84 + 2 * n)}, {vr(85 + 2 * n)}')
        a.e('v_mov_b32 v138, 0x3f80\nv_mov_b32 v139, 0')
        a.e(f's_mul_i32 {sr(T)}, {sr(S_W)}, {32 * TP}\nv_and_b32 v9, 31, v0\nv_mul_u32_u24 v9, {TP}, v9\nv_add_u32 v9, {sr(T)}, v9')
        a.e('v_lshrrev_b32 v11, 5, v0\nv_mul_u32_u24 v10, 48, v11\nv_add_u32 v10, v10, v9\nv_mul_u32_u24 v11, 80, v11\nv_add_u32 v9, v11, v9')
        for n in range(5):
            a.ds(f'ds_write_b128 v9, {vr(224 + 4 * n, 4)} offset:{16 * n}')
        for n in range(3):
            a.ds(f'ds_write_b128 v10, {vr(128 + 4 * n, 4)} offset:{160 + 16 * n}')
        a.e(f'v_lshrrev_b32 v11, 5, v0\nv_bfe_u32 v12, v0, 2, 2\nv_lshl_add_u32 v11, v11, 3, v12\nv_mul_u32_u24 v11, {TP}, v11')
        a.e('v_bfe_u32 v12, v0, 4, 1\nv_and_b32 v13, 3, v0\nv_lshl_add_u32 v14, v12, 2, v13')
        a.e('v_and_b32 v15, 1, v0\nv_lshlrev_b32 v15, 1, v15\nv_lshl_add_u32 v15, v12, 2, v15\nv_bfe_u32 v13, v0, 1, 1\nv_add_u32 v15, v15, v13')
        a.e(f's_lshr_b32 {sr(T)}, {sr(S_W)}, 1\ns_and_b32 {sr(T + 1)}, {sr(S_W)}, 1\ns_mul_i32 {sr(T + 2)}, {sr(T)}, 80\ns_lshl_b32 {sr(T + 3)}, {sr(T + 1)}, 6')
        a.e(f's_add_u32 {sr(T + 2)}, {sr(T + 2)}, {sr(T + 3)}\ns_mul_i32 {sr(T + 3)}, {sr(T)}, 48\ns_add_u32 {sr(T + 3)}, {sr(T + 3)}, 160')
        a.e(f'v_lshl_add_u32 v12, v15, 3, v11\nv_add_u32 v12, {sr(T + 2)}, v12\nv_lshl_add_u32 v13, v14, 3, v11\nv_add_u32 v13, {sr(T + 3)}, v13')
        a.e(f'v_lshrrev_b32 v9, 5, v0\nv_and_b32 v10, 31, v0\ns_mul_i32 {sr(T)}, {sr(T)}, 5\ns_lshl_b32 {sr(T + 2)}, {sr(T + 1)}, 2\ns_add_u32 {sr(T)}, {sr(T)}, {sr(T + 2)}')
        a.e(f'v_add_u32 v11, {sr(T)}, v9\nv_mul_u32_u24 v11, 21, v11\nv_add_u32 v11, v11, v10\nv_lshlrev_b32 v11, 4, v11')
        a.e(f's_cmp_eq_u32 {sr(T + 1)}, 0\ns_cselect_b32 {sr(T + 2)}, 64, 32\ns_cselect_b32 {sr(T + 3)}, {42 * 16}, {OOB}')
        a.e(f'v_mov_b32 v9, {OOB}\nv_cmp_gt_u32 vcc, 21, v10\nv_cndmask_b32 v11, v9, v11, vcc\nv_cmp_gt_u32 vcc, {sr(T + 2)}, v0\nv_cndmask_b32 v14, v9, v11, vcc')
        a.e(f's_lshl_b32 {sr(T)}, {sr(S_J1)}, 4\ns_add_u32 {sr(T)}, {sr(T)}, {sr(S_G1)}\ns_mul_i32 {sr(T + 4)}, {sr(T)}, 3456\ns_add_u32 {sr(T + 4)}, {sr(T + 4)}, {WS_KVP}')
        a.e(f's_add_u32 {sr(T + 5)}, {sr(T + 4)}, {sr(T + 3)}')
        a.e(f's_lshl_b32 {sr(T)}, {sr(T)}, 2\ns_add_u32 {sr(T)}, {sr(T)}, {sr(S_W)}\ns_lshl_b32 {sr(T + 6)}, {sr(T)}, 7\ns_add_u32 {sr(T + 6)}, {sr(T + 6)}, {WS_FKV}')
        a.wait(vm=wtok[37])
        a.wait_all(vm=False)
        self.barrier()
        tk = []
        for s in range(8):
            for z in range(2):
                a.ds(f'ds_read_b64_tr_b16 {vr(128 + 8 * s + 2 * z, 2)}, v12 offset:{(16 * s + 4 * z) * TP}')
            for z in range(2):
                t = a.ds(f'ds_read_b64_tr_b16 {vr(132 + 8 * s + 2 * z, 2)}, v13 offset:{(16 * s + 4 * z) * TP}')
            tk.append(t)
            if s >= 2:
                a.wait(lg=tk[s - 2])
                a.e(f'v_mfma_f32_32x32x16_bf16 v[64:79], {vr(128 + 8 * (s - 2), 4)}, {vr(132 + 8 * (s - 2), 4)}, {"v[64:79]" if s > 2 else 0}')
        for s in (6, 7):
            a.wait(lg=tk[s])
            a.e(f'v_mfma_f32_32x32x16_bf16 v[64:79], {vr(128 + 8 * s, 4)}, {vr(132 + 8 * s, 4)}, v[64:79]')
        for n in range(8):
            a.e(f'v_cvt_pk_bf16_f32 {vr(80 + n)}, {vr(64 + 2 * n)}, {vr(65 + 2 * n)}')
        a.vmem(f'buffer_store_dwordx4 v[80:83], v14, {sr(R_WS, 4)}, {sr(T + 4)} offen sc1')
        tkv = a.vmem(f'buffer_store_dwordx4 v[84:87], v14, {sr(R_WS, 4)}, {sr(T + 5)} offen sc1')
        self.stamp('kvst')
        rtok = {}

        def wread2(s):
            rtok[s] = a.ds(f'ds_read_b128 {ar(160 + 4 * (s % 8), 4)}, v6 offset:{s * 768}')
        for s in range(LA):
            wread2(s)
        for s in range(40):
            a.wait(lg=rtok[s])
            a.e(f'v_mfma_f32_32x32x16_bf16 v[112:127], {ar(160 + 4 * (s % 8), 4)}, {ar(4 * s, 4)}, {"v[112:127]" if s else 0}')
            if s + LA < 40:
                wread2(s + LA)
            if s == 20:
                a.wait(vm=tkv)
                self.flag(T + 6)
        self.feature_map(104, 224)
        self.stamp('phiq')
        a.c('reduce kv, o = num / den')
        a.e(f's_lshl_b32 {sr(T)}, {sr(S_W)}, 6\nv_add_u32 v9, {sr(T)}, v0\nv_lshlrev_b32 v10, 4, v9\nv_mov_b32 v11, {OOB}')
        a.e('v_cmp_gt_u32 vcc, 0xd2, v9\nv_cndmask_b32 v10, v11, v10, vcc')
        a.e('v_mul_u32_u24 v11, 0x187, v9\nv_lshrrev_b32 v11, 13, v11\nv_mul_u32_u24 v12, 21, v11\nv_sub_u32 v12, v9, v12')
        a.e(f'v_mul_u32_u24 v12, 80, v12\nv_lshl_add_u32 v12, v11, 4, v12\nv_add_u32 v13, {1920 - 80}, v12')
        a.e(f'v_cmp_gt_u32 {sr(T + 2, 2)}, 5, v11\nv_cndmask_b32 v12, v13, v12, {sr(T + 2, 2)}')
        a.e(f'v_mov_b32 v13, 3920\nv_cndmask_b32 v12, v13, v12, vcc\nv_add_u32 v12, {L_KVR}, v12')
        a.e(f'v_mov_b32 v16, 0\nv_mov_b32 v17, 0\nv_mov_b32 v18, 0\nv_mov_b32 v19, 0\nv_min_u32 v13, 4, v0\nv_lshlrev_b32 v13, 4, v13\nv_add_u32 v13, {L_KVZ}, v13')
        a.ds('ds_write_b128 v13, v[16:19]')
        a.e('v_bfe_u32 v16, v0, 2, 1\nv_bfe_u32 v17, v0, 3, 2\nv_and_b32 v18, 3, v0\nv_lshrrev_b32 v19, 5, v0')
        a.e('v_add_u32 v20, v17, v16\nv_lshl_add_u32 v20, v20, 2, v18')
        a.e('v_lshlrev_b32 v21, 2, v16\nv_sub_u32 v21, 4, v21\nv_cmp_eq_u32 vcc, 0, v17\nv_cndmask_b32 v21, 5, v21, vcc\nv_lshl_add_u32 v21, v21, 2, v18')
        a.e(f'v_mul_u32_u24 v22, 0x780, v16\nv_add_u32 v22, {L_KVR}, v22\nv_mov_b32 v23, {L_KVZ}\nv_cmp_eq_u32 vcc, v16, v19')
        a.e('v_mul_u32_u24 v20, 80, v20\nv_add_u32 v20, v20, v22\nv_cndmask_b32 v14, v23, v20, vcc')
        a.e('v_mul_u32_u24 v21, 80, v21\nv_add_u32 v21, v21, v22\nv_cndmask_b32 v15, v23, v21, vcc')
        a.e('v_bfe_u32 v16, v0, 4, 1\nv_mul_u32_u24 v16, 0x5000, v16\nv_and_b32 v17, 0xf0, v1\nv_add_u32 v21, v16, v17\nv_mul_u32_u24 v19, 0x300, v19\nv_add_u32 v20, v21, v19')
        a.e(f's_lshl_b32 {sr(T)}, {sr(S_G1)}, 2\ns_add_u32 {sr(T)}, {sr(T)}, {sr(S_W)}\ns_mul_i32 {sr(T + 7)}, {sr(T)}, 40960\ns_mul_i32 {sr(T)}, {sr(S_J1)}, 1280')
        a.e(f's_add_u32 {sr(T + 7)}, {sr(T + 7)}, {sr(T)}\ns_add_u32 {sr(T + 7)}, {sr(T + 7)}, {WS_O}')
        a.e(f's_lshl_b32 {sr(T)}, {sr(S_G1)}, 4\ns_add_u32 {sr(T)}, {sr(T)}, {sr(S_J1)}\ns_lshl_b32 {sr(T)}, {sr(T)}, 2\ns_add_u32 {sr(T)}, {sr(T)}, {sr(S_W)}')
        a.e(f's_lshl_b32 {sr(T + 6)}, {sr(T)}, 7\ns_add_u32 {sr(T + 6)}, {sr(T + 6)}, {WS_FO}')
        a.e(f's_mul_i32 {sr(T + 4)}, {sr(S_J1)}, {16 * 3456}\ns_add_u32 {sr(T + 4)}, {sr(T + 4)}, {WS_KVP}')
        a.e(f's_lshl_b32 {sr(T)}, {sr(S_J1)}, 13\ns_add_u32 {sr(T)}, {sr(T)}, {WS_FKV}\nv_lshlrev_b32 v9, 7, v0')
        a.e(f's_mov_b32 {sr(T + 2)}, 0x3f80\ns_mov_b32 {sr(T + 3)}, 0x3f800000')
        for n in range(8):
            a.e(f'v_mov_b32 {vr(192 + n)}, 0')
        self.poll([(f'buffer_load_dwordx2 v[28:29], v9, {sr(R_WS, 4)}, {sr(T)} offen sc1', 28)])
        self.stamp('kvready')
        tk = []
        for g in range(16):
            if g:
                a.e(f's_add_u32 {sr(T + 4)}, {sr(T + 4)}, 3456')
            tk.append(a.vmem(f'buffer_load_dwordx4 {vr(128 + 4 * g, 4)}, v10, {sr(R_WS, 4)}, {sr(T + 4)} offen sc1'))
        for g in range(16):
            a.wait(vm=tk[g])
            for n in range(4):
                a.e(f'v_dot2c_f32_bf16 {vr(192 + 2 * n)}, {sr(T + 2)}, {vr(128 + 4 * g + n)}')
                a.e(f'v_dot2c_f32_bf16 {vr(193 + 2 * n)}, {sr(T + 3)}, {vr(128 + 4 * g + n)}')
        for n in range(4):
            a.e(f'v_cvt_pk_bf16_f32 {vr(16 + n)}, {vr(192 + 2 * n)}, {vr(193 + 2 * n)}')
        a.ds('ds_write_b128 v12, v[16:19]')
        a.wait_all(vm=False)
        self.barrier()
        tk = []
        for t in (1, 0):
            for s in range(5):
                tk.append(a.ds(f'ds_read_b128 {vr(128 + 20 * t + 4 * s, 4)}, v{14 + t} offset:{16 * s}'))
        n = 0
        for t in (1, 0):
            for s in range(5):
                a.wait(lg=tk[n])
                n += 1
                acc = 64 + 16 * t
                a.e(f'v_mfma_f32_32x32x16_bf16 {vr(acc, 16)}, {vr(128 + 20 * t + 4 * s, 4)}, {vr(224 + 4 * s, 4)}, {vr(acc, 16) if s else 0}')
        if cfg.mimic >= 2:
            self.round_one(84, 9)
            a.e('v_add_f32 v84, 0x358637bd, v84')
            self.round_one(84, 9)
            for n in range(10):
                self.round_pair(64 + 2 * n, 128 + n)
        else:
            a.e('v_add_f32 v84, 0x358637bd, v84')
        a.e('v_rcp_f32 v84, v84')
        for n in range(10):
            a.e(f'v_pk_mul_f32 {vr(64 + 2 * n, 2)}, {vr(64 + 2 * n, 2)}, v[84:85] op_sel_hi:[1,0]')
        for n in range(10):
            a.e(f'v_cvt_pk_bf16_f32 {vr(128 + n)}, {vr(64 + 2 * n)}, {vr(65 + 2 * n)}')
        a.vmem(f'buffer_store_dwordx4 v[128:131], v20, {sr(R_WS, 4)}, {sr(T + 7)} offen sc1')
        a.vmem(f'buffer_store_dwordx4 v[132:135], v20, {sr(R_WS, 4)}, {sr(T + 7)} offen offset:256 sc1')
        a.e('v_permlane32_swap_b32 v136, v138\nv_permlane32_swap_b32 v137, v139\ns_mov_b32 exec_hi, 0')
        self.tok_o = a.vmem(f'buffer_store_dwordx4 v[136:139], v21, {sr(R_WS, 4)}, {sr(T + 7)} offen offset:512 sc1')
        a.e('s_mov_b64 exec, -1')
        self.stamp('ost')

    def finish(self):
        a, cfg = self.a, self.cfg
        T = S_T
        if cfg.diag:
            self.stamp('end')
            a.e(f's_lshl_b32 {sr(T)}, s2, 2\ns_add_u32 {sr(T)}, {sr(T)}, {sr(S_W)}\ns_lshl_b32 {sr(T)}, {sr(T)}, 8\ns_add_u32 {sr(T)}, {sr(T)}, {WS_DBG}')
            a.e('v_lshlrev_b32 v9, 2, v0')
            a.vmem(f'buffer_store_dword {vr(V_STAMP)}, v9, {sr(R_WS, 4)}, {sr(T)} offen')
        if cfg.probe:
            a.wait_all()
            self.stamp('end')
            a.e(f's_add_u32 {sr(S_STAMP + 2)}, {sr(S_STAMP + 2)}, 7000')
            a.label('L_probe')
            a.e(f's_memrealtime {sr(T, 2)}\ns_waitcnt lgkmcnt(0)\ns_sub_u32 {sr(T)}, {sr(T)}, {sr(S_STAMP + 2)}\ns_cmp_lt_i32 {sr(T)}, 0\ns_cbranch_scc1 L_probe')
        a.label('L_end')
        a.e('s_endpgm')

    def advance_epoch(self):
        a = self.a
        T = S_T
        a.e(f's_lshl_b32 {sr(T + 27)}, s2, 2\ns_add_u32 {sr(T + 27)}, {sr(T + 27)}, {sr(S_W)}\ns_cmp_eq_u32 {sr(T + 27)}, 0\ns_cselect_b32 {sr(T + 27)}, {WS_EPOCH}, {OOB}')
        self.flag(T + 27)

    def build(self):
        cfg = self.cfg
        self.prologue()
        self.startup()
        if cfg.stop == 'startup':
            self.a.wait_all()
        else:
            self.phase1()
            if cfg.stop == 'phase1':
                self.a.wait_all()
            else:
                from gen2 import back_half
                back_half(self)
        self.finish()
        body = pad_hazards(self.a.lines)
        head = open(f'cdna_kernels/{NAME}.s.ref').read().split('\n')
        out = []
        for l in head:
            if l.startswith('; @launch'):
                out.append('; @launch grid=(256,1,1) block=(256,1,1) lds=163840')
            else:
                out.append(l)
            if l.startswith(NAME + '_kernel:'):
                break
        out += body
        out += ['.section .rodata,"a"', '.p2align 6', f'.amdhsa_kernel {NAME}_kernel',
                '  .amdhsa_next_free_vgpr 512', '  .amdhsa_next_free_sgpr 102', '  .amdhsa_accum_offset 256',
                '  .amdhsa_group_segment_fixed_size 0', '  .amdhsa_kernarg_size 104', '  .amdhsa_user_sgpr_count 2',
                '  .amdhsa_user_sgpr_kernarg_segment_ptr 1', '  .amdhsa_system_sgpr_workgroup_id_x 1',
                '  .amdhsa_float_denorm_mode_32 3', '.end_amdhsa_kernel', '']
        return '\n'.join(out)


def main():
    cfg = Cfg()
    path = None
    for arg in sys.argv[1:]:
        if '=' in arg:
            k, v = arg.split('=')
            old = getattr(Cfg, k)
            setattr(cfg, k, (v == '1') if isinstance(old, bool) else int(v) if isinstance(old, int) else v)
        else:
            path = arg
    g = Gen(cfg)
    text = g.build()
    open(path, 'w').write(text)
    open(path + '.stamps', 'w').write('\n'.join(g.stamps))
    print('wrote', path, len(text), 'bytes,', text.count('\n'), 'lines')


if __name__ == '__main__':
    import gen
    gen.main()
```

```python
import sys
from collections import deque
from asmlib import Asm, pad_hazards, vr, ar, sr

NAME = 'adaLN_cond__linear_kernel_hedgehog__glu_gated_swiglu__prompt'

WS_EPOCH = 0
WS_FW = 0x1000
WS_FRT = 0x4000
WS_FH = 0x10000
WS_FKV = 0x30000
WS_FO = 0x50000
WS_FY = 0x70000
WS_FHA = 0x90000
WS_FHB = 0xB0000
WS_MOD = 0xD0000
WS_ST = 0xE0000
WS_KVP = 0x120000
WS_WQ = 0x200000
WS_H = 0x480000
WS_O = 0x700000
WS_Y = 0x980000
WS_WO = 0xC00000
WS_W13 = 0xD00000
WS_W2 = 0x1180000
WS_HH = 0x1400000
WS_DBG = 0x1B00000
WS_SIZE = 0x1C00000
OOB_VAL = 0x40000000
OOB = 's3'

L_XS = 20480
L_JA = 32768
L_JB = 102400
L_TS = 51200
L_MISC = 153600
L_MODP = L_MISC
L_SILU = L_MISC + 5120
L_LNRED = L_MISC + 6400
L_WPHI = L_MISC + 6656
L_KVR = L_MISC
L_KVZ = L_KVR + 3840
L_PAR = L_MISC + 8704
L_XCH = 143360
L_XR = 143360
TP = 336
RING = 140

S_X, S_WQKV, S_WPHI, S_WO, S_W1, S_W3, S_W2, S_C, S_WMOD, S_OUT, S_DBG, S_WS = 4, 6, 8, 10, 14, 16, 18, 20, 22, 24, 26, 28
S_TAG = 30
R_WS, R_A, R_B, R_C, R_X, R_OUT = 32, 36, 40, 44, 48, 52
S_W, S_XC, S_I, S_G1, S_J1, S_M2, S_N2, S_G3, S_J3 = 56, 57, 58, 59, 60, 61, 62, 63, 64
S_SPIN = 65
S_L2E = 66
T = 68
P = 84
S_PM = 96
S_STAMP = 98
JB_OFF, JC_OFF = 4, 8

V_TAG = 2
V_STAMP = 255
VA0, VA1, VA2, VTW0, VTW1, VTR0, VTR1, VKS, VGL, VKW, VO0, VO1 = range(16, 28)
VOS0, VOS1, VF128, VFW = 36, 37, 38, 39


class Cfg:
    diag = False
    probe = None
    stop = None
    map2 = '8x1'
    map3 = '4x2'
    spin = 200000
    pfcode = 1
    nt = 1
    w1a = 12
    hpre = 8
    r0 = 25
    r1 = 0
    r2 = 10
    r3 = 8
    r4 = 8
    ypre = 8
    fillb = 2
    chk_a = 16
    epib_inline = 0


def srd(a, r, ptr, size):
    a.e(f's_mov_b32 {sr(r)}, {sr(ptr)}\ns_mov_b32 {sr(r + 1)}, {sr(ptr + 1)}\n'
        f's_mov_b32 {sr(r + 2)}, {size}\ns_mov_b32 {sr(r + 3)}, 0x20000')


class Gen:
    def __init__(self, cfg):
        self.cfg = cfg
        self.a = Asm()
        self.stamps = []
        self.nt = ' nt' if cfg.nt else ''
        self.fq = deque()

    def stamp(self, name):
        a = self.a
        if self.cfg.probe:
            if name == 'start':
                a.e(f's_memrealtime {sr(S_STAMP, 2)}')
                a.wait_all(vm=False)
            if name == self.cfg.probe:
                a.e(f's_memrealtime {sr(S_STAMP + 2, 2)}')
                a.wait_all(vm=False)
            return
        if not self.cfg.diag:
            return
        idx = len(self.stamps)
        self.stamps.append(name)
        a.e(f's_memrealtime {sr(S_STAMP, 2)}\ns_memtime {sr(S_STAMP + 2, 2)}')
        a.wait_all(vm=False)
        a.e(f'v_writelane_b32 {vr(V_STAMP)}, {sr(S_STAMP)}, {idx}\nv_writelane_b32 {vr(V_STAMP)}, {sr(S_STAMP + 2)}, {idx + 32}')

    def barrier(self):
        self.a.e('s_barrier')

    def fill(self, n):
        while n > 0 and self.fq:
            f = self.fq.popleft()
            if callable(f):
                f()
            else:
                self.a.e(f)
            n -= 1

    def flush(self):
        self.fill(1 << 30)

    def _cmp_tags(self, loads):
        a = self.a
        first = True
        for _, tags in loads:
            for t in (tags if isinstance(tags, tuple) else (tags,)):
                if first:
                    a.e(f'v_cmp_ne_u64 vcc, {sr(S_TAG, 2)}, {vr(t, 2)}')
                    first = False
                else:
                    a.e(f'v_cmp_ne_u64 {sr(S_PM, 2)}, {sr(S_TAG, 2)}, {vr(t, 2)}\ns_or_b64 vcc, vcc, {sr(S_PM, 2)}')

    def poll_issue(self, loads):
        tok = None
        for text, _ in loads:
            tok = self.a.vmem(text)
        return tok

    def poll_check(self, loads, tok):
        a = self.a
        top, done = a.newlabel('poll'), a.newlabel('polled')
        a.wait(vm=tok)
        self._cmp_tags(loads)
        a.e(f's_cbranch_vccz {done}\ns_mov_b32 {sr(S_SPIN)}, {self.cfg.spin}')
        a.label(top)
        for text, _ in loads:
            a.e(text)
        a.e('s_waitcnt vmcnt(0)')
        self._cmp_tags(loads)
        a.e(f's_cbranch_vccz {done}')
        a.e(f's_sub_u32 {sr(S_SPIN)}, {sr(S_SPIN)}, 1\ns_cmp_lg_u32 {sr(S_SPIN)}, 0\ns_cbranch_scc1 {top}')
        a.label(done)

    def poll(self, loads):
        self.poll_check(loads, self.poll_issue(loads))

    def flag(self, soff):
        a = self.a
        a.e('s_mov_b64 exec, 1')
        a.vmem(f'buffer_store_dwordx2 {vr(V_TAG, 2)}, off, {sr(R_WS, 4)}, {sr(soff)} sc1')
        a.e('s_mov_b64 exec, -1')

    def wave_flag_off(self, dst, hi, mul, lo, base, shift=7):
        a = self.a
        a.e(f's_mul_i32 {sr(dst)}, {sr(hi)}, {mul}')
        if lo is not None:
            a.e(f's_add_u32 {sr(dst)}, {sr(dst)}, {sr(lo)}')
        a.e(f's_lshl_b32 {sr(dst)}, {sr(dst)}, 2\ns_add_u32 {sr(dst)}, {sr(dst)}, {sr(S_W)}')
        a.e(f's_lshl_b32 {sr(dst)}, {sr(dst)}, {shift}\ns_add_u32 {sr(dst)}, {sr(dst)}, {base}')

    def unpack(self, lo, hi, src):
        self.a.e(f'v_lshlrev_b32 {vr(lo)}, 16, {vr(src)}\nv_and_b32 {vr(hi)}, 0xffff0000, {vr(src)}')

    def round_pair(self, lo, tmp):
        self.a.e(f'v_cvt_pk_bf16_f32 {vr(tmp)}, {vr(lo)}, {vr(lo + 1)}')
        self.unpack(lo, lo + 1, tmp)

    def sum_rows(self, regs, tmps, bits):
        a = self.a
        for b in bits:
            if b == 3:
                for r in regs:
                    a.e(f'v_add_f32_dpp {vr(r)}, {vr(r)}, {vr(r)} row_ror:8 row_mask:0xf bank_mask:0xf')
            else:
                for r, t in zip(regs, tmps):
                    a.e(f'v_mov_b32 {vr(t)}, {vr(r)}')
                for r, t in zip(regs, tmps):
                    a.e(f'v_permlane{16 if b == 4 else 32}_swap_b32 {vr(r)}, {vr(t)}')
                for r, t in zip(regs, tmps):
                    a.e(f'v_add_f32 {vr(r)}, {vr(r)}, {vr(t)}')

    def frag16_addr(self, vd, t):
        a = self.a
        a.e(f'v_bfe_u32 {vr(t)}, v0, 2, 2\nv_lshlrev_b32 {vr(vd)}, 8, {vr(t)}\nv_and_b32 {vr(t)}, 2, {vr(t)}')
        a.e(f'v_lshrrev_b32 {vr(t + 1)}, 4, v0\nv_xor_b32 {vr(t)}, {vr(t)}, {vr(t + 1)}\nv_lshl_add_u32 {vr(vd)}, {vr(t)}, 6, {vr(vd)}')
        a.e(f'v_add_u32 {vr(vd)}, {vr(vd)}, v8')

    def prologue(self):
        a, cfg = self.a, self.cfg
        a.e('s_cmp_ge_u32 s2, 256\ns_cbranch_scc1 L_end')
        a.e('s_load_dwordx16 s[4:19], s[0:1], 0\ns_load_dwordx8 s[20:27], s[0:1], 64\ns_load_dwordx2 s[28:29], s[0:1], 96')
        a.e(f's_mov_b32 s3, {OOB_VAL}')
        a.e('v_lshrrev_b32 v1, 6, v0\nv_and_b32 v0, 63, v0')
        a.e(f'v_readfirstlane_b32 {sr(S_W)}, v1\nv_lshlrev_b32 v1, 4, v0')
        if cfg.diag:
            a.e(f'v_mov_b32 {vr(V_STAMP)}, 0')
        a.e(f's_and_b32 {sr(S_XC)}, s2, 7\ns_lshr_b32 {sr(S_I)}, s2, 3')
        if cfg.pfcode:
            self.prefetch_code()
        a.e('v_bfe_u32 v9, v0, 4, 1\nv_and_b32 v10, 7, v0\nv_xor_b32 v4, v10, v9\nv_lshlrev_b32 v4, 4, v4\nv_lshrrev_b32 v5, 3, v0')
        a.e(f's_mov_b32 {sr(T)}, 1280\nv_xor_b32 v10, v10, v5\nv_lshlrev_b32 v10, 4, v10\nv_mad_u32_u24 v12, v5, {sr(T)}, v10')
        a.e(f's_mov_b32 {sr(T)}, 7680\nv_lshrrev_b32 v13, 1, v0\nv_and_b32 v11, 1, v0\nv_lshlrev_b32 v11, 4, v11\nv_mad_u32_u24 v13, v13, {sr(T)}, v11')
        a.e(f's_mul_i32 {sr(T + 2)}, s2, 10240\ns_lshl_b32 {sr(T + 1)}, {sr(S_W)}, 7\ns_add_u32 {sr(T + 2)}, {sr(T + 2)}, {sr(T + 1)}')
        a.e(f's_cmp_lt_u32 {sr(S_W)}, 2\ns_cselect_b32 {sr(T + 3)}, {sr(T + 2)}, {OOB}')
        a.e(f's_lshr_b32 {sr(T)}, {sr(S_I)}, 2\ns_lshl_b32 {sr(T)}, {sr(T)}, 3\ns_add_u32 {sr(T)}, {sr(T)}, {sr(S_XC)}')
        a.e(f's_and_b32 {sr(T + 1)}, {sr(S_I)}, 3\ns_lshl_b32 {sr(P)}, {sr(T)}, 2\ns_add_u32 {sr(P)}, {sr(P)}, {sr(T + 1)}')
        a.e(f's_cmp_lt_u32 {sr(T)}, 60\ns_cselect_b32 {sr(P + 1)}, 0, {OOB}')
        a.e(f's_lshl_b32 {sr(T + 4)}, {sr(P)}, 5\ns_add_u32 {sr(T + 4)}, {sr(T + 4)}, {sr(P + 1)}')
        a.e(f's_mul_i32 {sr(T)}, {sr(S_W)}, {160 * 7680}\ns_add_u32 {sr(T + 4)}, {sr(T + 4)}, {sr(T)}')
        a.e(f's_mul_i32 {sr(T + 5)}, {sr(S_W)}, 3072\ns_add_u32 {sr(T + 5)}, {sr(T + 5)}, {L_XS}\ns_mul_i32 {sr(T + 6)}, {sr(S_W)}, 5120')
        a.e('s_waitcnt lgkmcnt(0)')
        srd(a, R_X, S_X, 2048 * 1280)
        srd(a, R_A, S_WMOD, 640 * 7680)
        srd(a, R_WS, S_WS, WS_SIZE)
        self.stamp('start')

    def prefetch_code(self):
        a = self.a
        a.e(f's_getpc_b64 {sr(T, 2)}')
        a.label('L_pc')
        a.e(f's_and_b32 {sr(T + 2)}, {sr(S_I)}, 1\ns_lshl_b32 {sr(T + 2)}, {sr(T + 2)}, 2\ns_add_u32 {sr(T + 2)}, {sr(T + 2)}, {sr(S_W)}')
        a.e(f's_lshl_b32 {sr(T + 2)}, {sr(T + 2)}, 13\nv_lshlrev_b32 v4, 7, v0\nv_add_u32 v4, {sr(T + 2)}, v4')
        a.e(f'v_min_u32 v4, L_end-L_pc, v4\nv_mov_b32 v5, {sr(T + 1)}\nv_add_co_u32 v4, vcc, {sr(T)}, v4\nv_addc_co_u32 v5, vcc, 0, v5, vcc')
        a.vmem('global_load_dword v254, v[4:5], off')

    def roles(self):
        a, cfg = self.a, self.cfg

        def role(dm, dn, xm_shift, nn_bits_x, i_shift):
            a.e(f's_lshr_b32 {sr(T)}, {sr(S_XC)}, {xm_shift}\ns_lshl_b32 {sr(T)}, {sr(T)}, {5 - i_shift}')
            a.e(f's_lshr_b32 {sr(T + 1)}, {sr(S_I)}, {i_shift}\ns_add_u32 {sr(dm)}, {sr(T)}, {sr(T + 1)}')
            a.e(f's_and_b32 {sr(T)}, {sr(S_XC)}, {(1 << nn_bits_x) - 1}\ns_lshl_b32 {sr(T)}, {sr(T)}, {i_shift}')
            a.e(f's_and_b32 {sr(T + 1)}, {sr(S_I)}, {(1 << i_shift) - 1}\ns_add_u32 {sr(dn)}, {sr(T)}, {sr(T + 1)}')
        role(S_G1, S_J1, 2, 2, 2)
        role(S_M2, S_N2, *{'8x1': (0, 0, 3), '4x2': (1, 1, 2), '2x4': (2, 2, 1)}[cfg.map2])
        role(S_G3, S_J3, *{'8x1': (0, 0, 4), '4x2': (1, 1, 3), '2x4': (2, 2, 2)}[cfg.map3])
        a.e(f's_mov_b32 {sr(S_L2E)}, 0x3fb8aa3b\ns_mov_b32 {sr(S_L2E + 1)}, 0x3fb8aa3b')

    def make_tag(self):
        a = self.a
        a.wait(vm=self.tok_epoch)
        a.e(f'v_readfirstlane_b32 {sr(S_TAG)}, {vr(V_TAG)}\nv_readfirstlane_b32 {sr(S_TAG + 1)}, {vr(V_TAG + 1)}')
        a.e(f's_mul_i32 {sr(S_TAG)}, {sr(S_TAG)}, 1664525\ns_add_u32 {sr(S_TAG)}, {sr(S_TAG)}, 1013904223')
        a.e(f's_mul_i32 {sr(S_TAG + 1)}, {sr(S_TAG + 1)}, 22695477\ns_add_u32 {sr(S_TAG + 1)}, {sr(S_TAG + 1)}, 0x3c6ef35f')
        a.e(f'v_mov_b32 {vr(V_TAG)}, {sr(S_TAG)}\nv_mov_b32 {vr(V_TAG + 1)}, {sr(S_TAG + 1)}')

    def job_tr_bases(self):
        a = self.a
        a.e('v_lshrrev_b32 v6, 4, v0\nv_lshlrev_b32 v6, 10, v6\nv_bfe_u32 v9, v0, 2, 2\nv_lshl_add_u32 v6, v9, 7, v6')
        a.e('v_lshrrev_b32 v9, 1, v9\nv_and_b32 v8, 3, v0\nv_lshl_or_b32 v9, v8, 1, v9\nv_lshl_add_u32 v6, v9, 4, v6\nv_lshlrev_b32 v8, 4, v8')
        a.e(f's_lshl_b32 {sr(T)}, {sr(S_W)}, 13\ns_add_u32 {sr(P + 3)}, {sr(T)}, {L_JB}\nv_add_u32 v34, {sr(P + 3)}, v6\nv_xor_b32 v35, 16, v34')
        a.e(f's_lshl_b32 {sr(T)}, {sr(S_W)}, 12\ns_add_u32 {sr(T)}, {sr(T)}, {L_JA}\nv_add_u32 v6, {sr(T)}, v6\nv_xor_b32 v7, 16, v6')

    def job_finish_items(self, tok, vb, off, vdest, base):
        a = self.a
        st = {}
        items = [lambda: a.wait(vm=tok())]
        for n in range(4):
            for z in range(2):
                def rd(n=n, z=z):
                    st[n] = a.ds(f'ds_read_b64_tr_b16 {vr(base + 4 * n + 2 * z, 2)}, v{vb + (n >> 1)} offset:{off + z * 512 + (n & 1) * 8}')
                items.append(rd)
        for n in range(4):
            items.append(f'v_add_u32_dpp {vr(base + 16 + n)}, {vr(vdest)}, v8 quad_perm:[{n},{n},{n},{n}] row_mask:0xf bank_mask:0xf')
        for n in range(4):
            def sto(n=n):
                a.wait(lg=st[n])
                self.tok_job = a.vmem(f'buffer_store_dwordx4 {vr(base + 4 * n, 4)}, {vr(base + 16 + n)}, {sr(R_WS, 4)}, 0 offen sc1')
            items.append(sto)
        return items

    def piece_swizzle(self, acc, g):
        self.a.e(f'v_and_b32 {vr(g)}, 2, {vr(g)}\nv_lshrrev_b32 v15, 4, v0\nv_xor_b32 {vr(g)}, {vr(g)}, v15\nv_lshl_add_u32 {vr(acc)}, {vr(g)}, 6, {vr(acc)}')

    def dest_A(self, vd, s_blk, s_kb, s_base):
        a = self.a
        a.e(f's_mul_i32 {sr(T)}, {sr(s_blk)}, 205\ns_lshr_b32 {sr(T)}, {sr(T)}, 11')
        a.e(f's_mul_i32 {sr(T + 1)}, {sr(T)}, 10\ns_sub_u32 {sr(T + 1)}, {sr(s_blk)}, {sr(T + 1)}\ns_lshl_b32 {sr(T + 1)}, {sr(T + 1)}, 4')
        a.e(f'v_and_b32 v9, 15, v0\nv_add_u32 v9, {sr(T + 1)}, v9')
        a.e('v_mul_u32_u24 v10, 103, v9\nv_lshrrev_b32 v10, 9, v10')
        a.e('v_mul_u32_u24 v11, 5, v10\nv_sub_u32 v11, v9, v11')
        a.e('v_and_b32 v12, 1, v10\nv_lshlrev_b32 v14, 1, v12')
        a.e(f's_lshr_b32 {sr(T + 1)}, {sr(T)}, 1\nv_add_u32 v13, {sr(T + 1)}, v14\nv_lshlrev_b32 v13, 8, v13\nv_lshl_add_u32 v13, v11, 10, v13')
        a.e('v_and_b32 v9, 1, v11\nv_add_u32 v9, v9, v14\nv_cmp_gt_u32 vcc, 4, v11\nv_cndmask_b32 v9, v12, v9, vcc')
        a.e('v_lshlrev_b32 v9, 8, v9\nv_lshrrev_b32 v11, 1, v11\nv_lshl_add_u32 v9, v11, 10, v9')
        a.e(f's_cmp_eq_u32 {sr(T)}, 0\ns_cselect_b64 vcc, -1, 0\ns_mul_i32 {sr(T + 1)}, {sr(s_kb)}, 5120\ns_mul_i32 {sr(T + 2)}, {sr(s_kb)}, 2560')
        a.e(f's_add_u32 {sr(T + 2)}, {sr(T + 2)}, 102400\ns_cmp_eq_u32 {sr(T)}, 0\ns_cselect_b32 {sr(T + 1)}, {sr(T + 2)}, {sr(T + 1)}')
        a.e(f's_add_u32 {sr(T + 1)}, {sr(T + 1)}, {sr(s_base)}\nv_cndmask_b32 v13, v13, v9, vcc')
        self.piece_swizzle(13, 14)
        a.e(f's_mov_b32 {sr(T + 2)}, 153600\nv_lshrrev_b32 v10, 1, v10\nv_mad_u32_u24 v13, v10, {sr(T + 2)}, v13')
        a.e(f'v_add_u32 {vr(vd)}, {sr(T + 1)}, v13')

    def dest_B(self, vd, s_blk, s_kb, s_up):
        a = self.a
        a.e(f's_lshl_b32 {sr(T)}, {sr(s_blk)}, 4\nv_and_b32 v9, 15, v0\nv_add_u32 v9, {sr(T)}, v9')
        a.e('v_lshrrev_b32 v10, 1, v9\nv_and_b32 v9, 1, v9')
        a.e('v_mul_u32_u24 v11, 19, v10\nv_lshrrev_b32 v11, 9, v11')
        a.e('v_mul_u32_u24 v12, 27, v11\nv_sub_u32 v12, v10, v12')
        a.e('v_cmp_le_u32 vcc, 14, v12\nv_lshlrev_b32 v11, 1, v11\nv_subrev_u32 v13, 14, v12')
        a.e('v_cndmask_b32 v12, v12, v13, vcc\nv_addc_co_u32 v11, vcc, 0, v11, vcc')
        a.e('v_lshrrev_b32 v13, 2, v12\nv_lshl_add_u32 v13, v13, 1, v9\nv_and_b32 v14, 3, v12')
        a.e('v_lshl_add_u32 v10, v14, 1, v9\nv_cmp_gt_u32 vcc, 12, v12\nv_cndmask_b32 v13, 6, v13, vcc\nv_cndmask_b32 v14, v10, v14, vcc')
        a.e(f's_lshl_b32 {sr(T)}, {sr(s_kb)}, 13\ns_mul_i32 {sr(T + 1)}, {sr(s_kb)}, 6144\ns_add_u32 {sr(T + 1)}, {sr(T + 1)}, {163840 - 8192}')
        a.e(f'v_mov_b32 v9, {sr(T)}\nv_mov_b32 v10, {sr(T + 1)}\nv_cmp_gt_u32 vcc, 4, v13\nv_cndmask_b32 v9, v10, v9, vcc')
        a.e('v_lshl_add_u32 v13, v13, 11, v9\nv_lshl_add_u32 v13, v14, 8, v13')
        self.piece_swizzle(13, 14)
        a.e(f's_mov_b32 {sr(T)}, 286720\nv_mad_u32_u24 v13, v11, {sr(T)}, v13')
        a.e(f's_lshl_b32 {sr(T)}, {sr(s_up)}, 10\ns_add_u32 {sr(T)}, {sr(T)}, {WS_W13}\nv_add_u32 {vr(vd)}, {sr(T)}, v13')

    def dest_C(self, vd, s_blk, s_kb, half, s_base, stride):
        a = self.a
        a.e(f's_sub_u32 {sr(T + 1)}, {sr(s_kb)}, {half}\ns_lshl_b32 {sr(T + 1)}, {sr(T + 1)}, 1\ns_add_u32 {sr(T + 1)}, {sr(T + 1)}, 1')
        a.e(f's_lshl_b32 {sr(T + 2)}, {sr(s_kb)}, 1\ns_cmp_lt_u32 {sr(s_kb)}, {half}\ns_cselect_b32 {sr(T + 1)}, {sr(T + 2)}, {sr(T + 1)}')
        a.e(f's_mul_i32 {sr(T + 1)}, {sr(T + 1)}, 5120\ns_add_u32 {sr(T + 1)}, {sr(T + 1)}, {sr(s_base)}')
        a.e(f's_lshl_b32 {sr(T)}, {sr(s_blk)}, 4\nv_and_b32 v9, 15, v0\nv_add_u32 v9, {sr(T)}, v9')
        a.e('v_mul_u32_u24 v10, 103, v9\nv_lshrrev_b32 v10, 11, v10')
        a.e('v_mul_u32_u24 v11, 20, v10\nv_sub_u32 v11, v9, v11')
        a.e('v_lshrrev_b32 v12, 3, v11\nv_lshlrev_b32 v12, 1, v12\nv_and_b32 v13, 1, v11\nv_add_u32 v13, v12, v13')
        a.e('v_bfe_u32 v14, v11, 1, 2\nv_and_b32 v15, 3, v11\nv_cmp_gt_u32 vcc, 16, v11')
        a.e('v_cndmask_b32 v13, 4, v13, vcc\nv_cndmask_b32 v14, v15, v14, vcc')
        a.e('v_lshlrev_b32 v13, 10, v13\nv_lshl_add_u32 v13, v14, 8, v13')
        self.piece_swizzle(13, 14)
        a.e(f's_mov_b32 {sr(T)}, {stride}\nv_mad_u32_u24 v13, v10, {sr(T)}, v13\nv_add_u32 {vr(vd)}, {sr(T + 1)}, v13')

    def job_bc_setup(self, rnd, rs, voff, vd, offs):
        a = self.a
        J, BLK, KB = T + 4, T + 5, T + 6
        lw2, ldone = a.newlabel('jw2'), a.newlabel('jdone')
        a.e(f's_lshl_b32 {sr(J)}, s2, 2\ns_add_u32 {sr(J)}, {sr(J)}, {sr(S_W)}')
        if rnd:
            a.e(f's_add_u32 {sr(J)}, {sr(J)}, 1024\ns_cmp_ge_u32 {sr(J)}, 1080\ns_cbranch_scc1 {lw2}')
        a.e(f's_cmp_ge_u32 {sr(J)}, 540\ns_cselect_b32 {sr(T + 8)}, 1, 0')
        a.e(f's_cselect_b32 {sr(rs)}, {sr(S_W3)}, {sr(S_W1)}\ns_cselect_b32 {sr(rs + 1)}, {sr(S_W3 + 1)}, {sr(S_W1 + 1)}')
        a.e(f's_cselect_b32 {sr(T + 9)}, 540, 0\ns_sub_u32 {sr(J)}, {sr(J)}, {sr(T + 9)}')
        a.e(f's_mov_b32 {sr(rs + 2)}, {640 * 3456}\ns_mov_b32 {sr(rs + 3)}, 0x20000')
        a.e(f's_mul_i32 {sr(KB)}, {sr(J)}, 607\ns_lshr_b32 {sr(KB)}, {sr(KB)}, 14')
        a.e(f's_mul_i32 {sr(BLK)}, {sr(KB)}, 27\ns_sub_u32 {sr(BLK)}, {sr(J)}, {sr(BLK)}')
        self.dest_B(vd, BLK, KB, T + 8)
        a.e(f's_mov_b32 {sr(T)}, 3456\nv_mad_u32_u24 {vr(voff)}, v5, {sr(T)}, v4')
        a.e(f's_mul_i32 {sr(T + 10)}, {sr(KB)}, {32 * 3456}\ns_lshl_b32 {sr(BLK)}, {sr(BLK)}, 7\ns_add_u32 {sr(T + 10)}, {sr(T + 10)}, {sr(BLK)}')
        for n in range(1, 4):
            a.e(f's_add_u32 {sr(T + 10 + n)}, {sr(T + 10)}, {n * 8 * 3456}')
        if rnd:
            a.e(f's_branch {ldone}')
            a.label(lw2)
            srd(a, rs, S_W2, 1728 * 1280)
            a.e(f's_sub_u32 {sr(J)}, {sr(J)}, 1080\ns_mov_b32 {sr(T + 9)}, {WS_W2}')
            a.e(f's_cmp_lt_u32 {sr(J)}, 540\ns_cselect_b32 {sr(T + 9)}, {sr(T + 9)}, {OOB}\ns_cselect_b32 {sr(T + 8)}, 0, {OOB}\ns_cselect_b32 {sr(J)}, {sr(J)}, 0')
            a.e(f's_mul_i32 {sr(KB)}, {sr(J)}, 205\ns_lshr_b32 {sr(KB)}, {sr(KB)}, 11')
            a.e(f's_mul_i32 {sr(BLK)}, {sr(KB)}, 10\ns_sub_u32 {sr(BLK)}, {sr(J)}, {sr(BLK)}')
            self.dest_C(vd, BLK, KB, 27, T + 9, 276480)
            a.e(f's_mov_b32 {sr(T)}, 1280\nv_mad_u32_u24 {vr(voff)}, v5, {sr(T)}, v4')
            a.e(f's_lshl_b32 {sr(BLK)}, {sr(BLK)}, 7\ns_add_u32 {sr(BLK)}, {sr(BLK)}, {sr(T + 8)}')
            a.e(f's_cmp_ge_u32 {sr(KB)}, 27\ns_cselect_b32 {sr(T + 7)}, 108, 0\ns_cselect_b32 {sr(T)}, 27, 0\ns_sub_u32 {sr(KB)}, {sr(KB)}, {sr(T)}\ns_lshl_b32 {sr(KB)}, {sr(KB)}, 2')
            for n in range(4):
                U, JS, UU = T, T + 1, T + 2
                a.e(f's_add_u32 {sr(U)}, {sr(KB)}, {n}\ns_sub_u32 {sr(T + 3)}, {sr(U)}, 64\ns_max_i32 {sr(T + 3)}, {sr(T + 3)}, 0')
                a.e(f's_mul_i32 {sr(JS)}, {sr(T + 3)}, 47\ns_lshr_b32 {sr(JS)}, {sr(JS)}, 9\ns_mul_i32 {sr(UU)}, {sr(JS)}, 11\ns_sub_u32 {sr(UU)}, {sr(T + 3)}, {sr(UU)}')
                a.e(f's_mul_i32 {sr(JS)}, {sr(JS)}, 27\ns_cmp_ge_u32 {sr(UU)}, 6\ns_cselect_b32 {sr(T + 3)}, 16, 8\ns_add_u32 {sr(UU)}, {sr(UU)}, {sr(T + 3)}\ns_add_u32 {sr(UU)}, {sr(UU)}, {sr(JS)}')
                a.e(f's_lshr_b32 {sr(JS)}, {sr(U)}, 4\ns_mul_i32 {sr(JS)}, {sr(JS)}, 27\ns_bfe_u32 {sr(T + 3)}, {sr(U)}, 0x10003\ns_mul_i32 {sr(T + 3)}, {sr(T + 3)}, 14')
                a.e(f's_add_u32 {sr(JS)}, {sr(JS)}, {sr(T + 3)}\ns_and_b32 {sr(T + 3)}, {sr(U)}, 7\ns_add_u32 {sr(JS)}, {sr(JS)}, {sr(T + 3)}')
                a.e(f's_cmp_lt_u32 {sr(U)}, 64\ns_cselect_b32 {sr(UU)}, {sr(JS)}, {sr(UU)}\ns_add_u32 {sr(UU)}, {sr(UU)}, {sr(T + 7)}')
                a.e(f's_mul_i32 {sr(UU)}, {sr(UU)}, {8 * 1280}\ns_add_u32 {sr(T + 10 + n)}, {sr(UU)}, {sr(BLK)}')
            a.label(ldone)
        for n in range(4):
            a.e(f's_mov_b32 {sr(offs + n)}, {sr(T + 10 + n)}')

    def startup(self):
        a, cfg = self.a, self.cfg
        lskip = a.newlabel('noc')
        a.e(f's_cmp_lg_u32 {sr(S_W)}, 0\ns_cbranch_scc1 {lskip}')
        srd(a, R_B, S_C, 1280)
        a.e(f'v_lshlrev_b32 v9, 2, v0\nbuffer_load_dwordx4 v[36:39], v1, {sr(R_B, 4)}, 0 offen\nbuffer_load_dword v40, v9, {sr(R_B, 4)}, 0 offen offset:1024')
        a.label(lskip)
        self.tok_epoch = a.vmem(f'buffer_load_dwordx2 {vr(V_TAG, 2)}, off, {sr(R_WS, 4)}, 0 sc1')
        for r in range(3):
            a.e(f's_add_u32 m0, {sr(T + 5)}, {r * 512}')
            tx = a.vmem(f'buffer_load_dwordx4 v12, {sr(R_X, 4)}, {sr(T + 2 + (r == 2))} offen offset:{r * 512}{self.nt} lds')
        for n in range(5):
            a.e(f's_add_u32 m0, {sr(T + 6)}, {n * 1024}')
            if n:
                a.e(f's_add_u32 {sr(T + 4)}, {sr(T + 4)}, {32 * 7680}')
            tt = a.vmem(f'buffer_load_dwordx4 v13, {sr(R_A, 4)}, {sr(T + 4)} offen{self.nt} lds')
        J, BLK, KB, VALD, PITCH = T + 4, T + 5, T + 6, T + 7, T + 8
        lwn, lj = a.newlabel('jqkv'), a.newlabel('jgo')
        a.e(f's_cmp_lg_u32 {sr(S_W)}, 0\ns_cbranch_scc1 {lwn}')
        srd(a, R_C, S_WO, 640 * 1280)
        a.e(f's_cmp_lt_u32 s2, 200\ns_cselect_b32 {sr(VALD)}, 0, {OOB}\ns_cselect_b32 {sr(J)}, s2, 0')
        a.e(f's_mul_i32 {sr(KB)}, {sr(J)}, 205\ns_lshr_b32 {sr(KB)}, {sr(KB)}, 11\ns_mul_i32 {sr(BLK)}, {sr(KB)}, 10\ns_sub_u32 {sr(BLK)}, {sr(J)}, {sr(BLK)}')
        a.e(f's_mov_b32 {sr(PITCH)}, 1280\ns_branch {lj}')
        a.label(lwn)
        srd(a, R_C, S_WQKV, 640 * 3840)
        a.e(f's_mul_i32 {sr(J)}, s2, 3\ns_add_u32 {sr(J)}, {sr(J)}, {sr(S_W)}\ns_sub_u32 {sr(J)}, {sr(J)}, 1')
        a.e(f's_cmp_lt_u32 {sr(J)}, 600\ns_cselect_b32 {sr(VALD)}, 0, {OOB}\ns_cselect_b32 {sr(J)}, {sr(J)}, 0')
        a.e(f's_mul_i32 {sr(BLK)}, {sr(J)}, 205\ns_lshr_b32 {sr(BLK)}, {sr(BLK)}, 12\ns_mul_i32 {sr(KB)}, {sr(BLK)}, 20\ns_sub_u32 {sr(KB)}, {sr(J)}, {sr(KB)}')
        a.e(f's_mov_b32 {sr(PITCH)}, 3840')
        a.label(lj)
        a.e(f's_lshl_b32 {sr(T + 10)}, {sr(PITCH)}, 3\ns_mul_i32 {sr(T + 9)}, {sr(T + 10)}, {sr(KB)}\ns_lshl_b32 {sr(T + 9)}, {sr(T + 9)}, 2')
        a.e(f's_lshl_b32 {sr(T)}, {sr(BLK)}, 7\ns_add_u32 {sr(T + 9)}, {sr(T + 9)}, {sr(T)}\ns_add_u32 {sr(T + 9)}, {sr(T + 9)}, {sr(VALD)}')
        a.e(f'v_mad_u32_u24 v28, v5, {sr(PITCH)}, v4\ns_lshl_b32 {sr(T)}, {sr(S_W)}, 12\ns_add_u32 {sr(T)}, {sr(T)}, {L_JA}')
        for n in range(4):
            a.e(f's_add_u32 m0, {sr(T)}, {n * 1024}')
            if n:
                a.e(f's_add_u32 {sr(T + 9)}, {sr(T + 9)}, {sr(T + 10)}')
            tja = a.vmem(f'buffer_load_dwordx4 v28, {sr(R_C, 4)}, {sr(T + 9)} offen{self.nt} lds')
        self.stamp('issued')
        self.roles()
        srd(a, R_A, S_WPHI, 32 * 800)
        a.e(f's_mul_i32 {sr(T)}, {sr(S_J1)}, 1600\ns_lshl_b32 {sr(T + 1)}, {sr(S_W)}, 9\ns_add_u32 {sr(T)}, {sr(T)}, {sr(T + 1)}')
        a.e(f's_add_u32 m0, {sr(T + 1)}, {L_WPHI}\ns_mov_b32 exec_hi, 0')
        a.vmem(f'buffer_load_dwordx4 v1, {sr(R_A, 4)}, {sr(T)} offen lds')
        a.e('s_mov_b64 exec, -1')
        self.job_tr_bases()
        lwn, lj = a.newlabel('dqkv'), a.newlabel('dgo')
        a.e(f's_cmp_lg_u32 {sr(S_W)}, 0\ns_cbranch_scc1 {lwn}')
        a.e(f's_add_u32 {sr(VALD)}, {sr(VALD)}, {WS_WO}\ns_mov_b32 {sr(P + 2)}, {OOB}')
        self.dest_C(29, BLK, KB, 10, VALD, 102400)
        st = a.state()
        a.wait(vm=self.tok_epoch)
        for n in range(5):
            self.unpack(44 + 2 * n, 45 + 2 * n, 36 + n)
        for op in ('v_mul_f32 {d}, 0xbfb8aa3b, {s}', 'v_exp_f32 {d}, {d}', 'v_add_f32 {d}, 1.0, {d}', 'v_rcp_f32 {d}, {d}', 'v_mul_f32 {d}, {s}, {d}'):
            for n in range(10):
                a.e(op.format(d=vr(54 + n), s=vr(44 + n)))
        for n in range(5):
            a.e(f'v_cvt_pk_bf16_f32 {vr(36 + n)}, {vr(54 + 2 * n)}, {vr(55 + 2 * n)}')
        a.e(f'v_add_u32 v9, {L_SILU}, v1\nv_lshlrev_b32 v10, 2, v0\nv_add_u32 v10, {L_SILU + 1024}, v10')
        a.e('ds_write_b128 v9, v[36:39]\nds_write_b32 v10, v40')
        a.e(f'v_lshrrev_b32 v9, 4, v0\nv_lshlrev_b32 v10, 4, v9\nv_add_u32 v10, {L_SILU}, v10')
        for s in range(20):
            a.e(f'ds_read_b128 {vr(64 + 4 * s, 4)}, v10 offset:{64 * s}')
        a.e(f's_waitcnt lgkmcnt(0)\ns_branch {lj}')
        a.set_state(st)
        a.label(lwn)
        a.e(f's_lshl_b32 {sr(P + 2)}, {sr(J)}, 3\ns_add_u32 {sr(P + 2)}, {sr(P + 2)}, {WS_FW}\ns_add_u32 {sr(P + 2)}, {sr(P + 2)}, {sr(VALD)}')
        a.e(f's_add_u32 {sr(VALD)}, {sr(VALD)}, {WS_WQ}')
        self.dest_A(29, BLK, KB, VALD)
        a.label(lj)
        self.stamp('setup')
        self.make_tag()
        self.stamp('tag')
        a.c('LayerNorm 1')
        a.e('v_and_b32 v9, 7, v0\nv_xor_b32 v10, v9, v5\nv_lshlrev_b32 v10, 4, v10\nv_lshl_add_u32 v10, v9, 7, v10')
        a.e(f's_mul_i32 {sr(T)}, {sr(S_W)}, 3072\ns_add_u32 {sr(T)}, {sr(T)}, {L_XS}\nv_add_u32 v11, {sr(T)}, v10')
        a.e(f'v_lshlrev_b32 v9, 4, v9\ns_lshl_b32 {sr(T)}, {sr(S_W)}, 2\ns_add_u32 {sr(T)}, {sr(T)}, {L_LNRED}\nv_add_u32 v10, {sr(T)}, v9\nv_add_u32 v9, {L_LNRED}, v9')
        a.e(f's_cmp_lt_u32 {sr(S_W)}, 2\ns_cselect_b32 {sr(T + 2)}, 1.0, 0')
        a.wait(vm=tx)
        self.stamp('xin')
        tk = [a.ds(f'ds_read_b128 {vr(16 + 4 * r, 4)}, v11 offset:{1024 * r}') for r in range(3)]
        X = 224
        for r in range(3):
            a.wait(lg=tk[r])
            for n in range(4):
                self.unpack(X + 8 * r + 2 * n, X + 8 * r + 2 * n + 1, 16 + 4 * r + n)

        def tree(dst, src, n):
            a.e(f'v_pk_add_f32 {vr(dst, 2)}, {vr(src, 2)}, {vr(src + 2, 2)}')
            for k in range(4, n, 2):
                a.e(f'v_pk_add_f32 {vr(dst, 2)}, {vr(dst, 2)}, {vr(src + k, 2)}')

        def all_sum(r, off, pre=None):
            self.sum_rows((r,), (11,), (3, 4, 5))
            a.ds(f'ds_write_b32 v10, {vr(r)} offset:{off}')
            if pre:
                pre()
            a.wait_all(vm=False)
            self.barrier()

        def read_sum(r, off):
            t = a.ds(f'ds_read_b128 v[12:15], v9 offset:{off}')
            a.wait(lg=t)
            a.e(f'v_add_f32 v12, v12, v13\nv_add_f32 v14, v14, v15\nv_add_f32 {vr(r)}, v12, v14\nv_mul_f32 {vr(r)}, 0x3acccccd, {vr(r)}')
        tree(248, X, 12)
        tree(250, X + 12, 12)
        a.e('v_pk_add_f32 v[248:249], v[248:249], v[250:251]\nv_add_f32 v248, v248, v249')
        all_sum(248, 0)
        read_sum(248, 0)
        for n in range(12):
            a.e(f'v_pk_add_f32 {vr(X + 2 * n, 2)}, {vr(X + 2 * n, 2)}, v[248:249] op_sel_hi:[1,0] neg_lo:[0,1] neg_hi:[0,1]')
        a.e(f'v_pk_mul_f32 v[250:251], {vr(X, 2)}, {vr(X, 2)}\nv_pk_mul_f32 v[252:253], {vr(X + 16, 2)}, {vr(X + 16, 2)}')
        for n in range(1, 8):
            a.e(f'v_pk_fma_f32 v[250:251], {vr(X + 2 * n, 2)}, {vr(X + 2 * n, 2)}, v[250:251]')
            if n < 4:
                a.e(f'v_pk_fma_f32 v[252:253], {vr(X + 16 + 2 * n, 2)}, {vr(X + 16 + 2 * n, 2)}, v[252:253]')
        a.e(f'v_add_f32 v250, v250, v251\nv_add_f32 v252, v252, v253\nv_fma_f32 v250, v252, {sr(T + 2)}, v250')
        all_sum(250, 128, pre=lambda: a.wait(vm=tt))
        self.stamp('tilein')
        lj = a.newlabel('nogemv')
        a.e(f's_cmp_lg_u32 {sr(S_W)}, 0\ns_cbranch_scc1 {lj}')
        st = a.state()
        a.e('v_lshrrev_b32 v11, 4, v0\nv_lshlrev_b32 v11, 8, v11\nv_and_b32 v12, 15, v0\nv_lshl_add_u32 v11, v12, 3, v11')
        tk = {}

        def trd(s):
            a.ds(f'ds_read_b64_tr_b16 {vr(144 + 4 * s, 2)}, v11 offset:{1024 * s}')
            tk[s] = a.ds(f'ds_read_b64_tr_b16 {vr(146 + 4 * s, 2)}, v11 offset:{1024 * s + 128}')
        for s in range(6):
            trd(s)
        a.e(f's_sub_u32 {sr(T)}, {sr(P)}, 40\ns_cmp_lt_u32 {sr(T)}, 40\ns_cselect_b32 {sr(T + 1)}, 1.0, 0')
        a.e(f's_sub_u32 {sr(T)}, {sr(P)}, 160\ns_cmp_lt_u32 {sr(T)}, 40\ns_cselect_b32 {sr(T + 1)}, 1.0, {sr(T + 1)}')
        a.e(f's_lshl_b32 {sr(T + 2)}, {sr(P)}, 7\ns_add_u32 {sr(T + 2)}, {sr(T + 2)}, {sr(P + 1)}\ns_add_u32 {sr(T + 2)}, {sr(T + 2)}, {WS_MOD}')
        for s in range(20):
            a.wait(lg=tk[s])
            acc = 56 + 4 * (s & 1)
            a.e(f'v_mfma_f32_16x16x32_bf16 {vr(acc, 4)}, {vr(144 + 4 * s, 4)}, {vr(64 + 4 * s, 4)}, {vr(acc, 4) if s > 1 else 0}')
            if s + 6 < 20:
                trd(s + 6)
        a.e(f'v_mov_b32 v54, {vr(V_TAG)}\nv_mov_b32 v55, {vr(V_TAG + 1)}')
        a.e('v_pk_add_f32 v[56:57], v[56:57], v[60:61]\nv_pk_add_f32 v[58:59], v[58:59], v[62:63]')
        self.round_pair(56, 60)
        self.round_pair(58, 61)
        for r in range(4):
            a.e(f'v_add_f32 {vr(56 + r)}, {sr(T + 1)}, {vr(56 + r)}')
        a.e('v_cvt_pk_bf16_f32 v52, v56, v57\nv_cvt_pk_bf16_f32 v53, v58, v59')
        a.e('s_mov_b32 exec_lo, 0x00010001\ns_mov_b32 exec_hi, 0x00010001')
        a.e(f'buffer_store_dwordx4 v[52:55], v0, {sr(R_WS, 4)}, {sr(T + 2)} offen sc1')
        a.e('s_mov_b64 exec, -1\ns_nop 1')
        a.set_state(st)
        a.label(lj)
        a.lg_done = a.lg
        self.stamp('gemv')
        self.fq.extend(self.job_finish_items(lambda: tja, 6, 0, 29, 44))
        self.flush()
        read_sum(250, 128)
        a.e('v_add_f32 v250, 0x3727c5ac, v250\nv_rsq_f32 v250, v250')
        for n in range(12):
            a.e(f'v_pk_mul_f32 {vr(X + 2 * n, 2)}, {vr(X + 2 * n, 2)}, v[250:251] op_sel_hi:[1,0]')
        a.e(f's_mul_i32 {sr(T + 14)}, {sr(S_W)}, 2560\ns_add_u32 {sr(T + 14)}, {sr(T + 14)}, {WS_MOD}')
        a.e('v_lshrrev_b32 v40, 2, v0\nv_lshlrev_b32 v40, 7, v40\nv_add_u32 v40, v40, v8')
        a.e('v_bfe_u32 v41, v0, 2, 2\nv_lshlrev_b32 v41, 7, v41\nv_add_u32 v41, v41, v8')
        a.e(f's_mul_i32 {sr(T + 1)}, {sr(S_W)}, 1280\ns_add_u32 {sr(T + 1)}, {sr(T + 1)}, {L_MODP}')
        a.e(f'v_add_u32 v42, {sr(T + 1)}, v1\nv_and_b32 v43, 0xf0, v1\nv_add_u32 v43, {sr(T + 1)}, v43')
        a.wait(vm=self.tok_job)
        self.flag(P + 2)
        self.stamp('fw')
        mod_loads = [(f'buffer_load_dwordx4 v[44:47], v40, {sr(R_WS, 4)}, {sr(T + 14)} offen sc1', 46),
                     (f'buffer_load_dwordx4 v[48:51], v41, {sr(R_WS, 4)}, {sr(T + 14)} offen offset:2048 sc1', 50)]
        tok = self.poll_issue(mod_loads)
        a.e(f's_lshl_b32 {sr(T + 2)}, {sr(S_W)}, 8\ns_add_u32 {sr(T + 2)}, {sr(T + 2)}, {L_MODP}\nv_lshlrev_b32 v60, 5, v5\nv_add_u32 v60, {sr(T + 2)}, v60')
        a.e('v_and_b32 v61, 7, v0\nv_lshlrev_b32 v61, 4, v61\nv_lshl_add_u32 v61, v5, 8, v61')
        a.e(f's_lshr_b32 {sr(P + 4)}, s2, 1\ns_mul_i32 {sr(P + 4)}, {sr(P + 4)}, 20480\ns_and_b32 {sr(T)}, s2, 1\ns_lshl_b32 {sr(T)}, {sr(T)}, 7')
        a.e(f's_add_u32 {sr(P + 4)}, {sr(P + 4)}, {sr(T)}\ns_lshl_b32 {sr(T)}, {sr(S_W)}, 11\ns_add_u32 {sr(P + 4)}, {sr(P + 4)}, {sr(T)}')
        a.e(f's_add_u32 {sr(P + 4)}, {sr(P + 4)}, {WS_H}\ns_add_u32 {sr(P + 5)}, {sr(P + 4)}, 8192\ns_add_u32 {sr(P + 6)}, {sr(P + 4)}, 16384')
        a.e(f's_cmp_lt_u32 {sr(S_W)}, 2\ns_cselect_b32 {sr(P + 6)}, {sr(P + 6)}, {OOB}')
        self.wave_flag_off(P + 7, 2, 1, None, WS_FH)
        a.e(f'v_min_u32 v9, 59, v0\nv_mul_u32_u24 v10, 0xcd, v9\nv_lshrrev_b32 v10, 12, v10\nv_mul_u32_u24 v10, 0xb4, v10\nv_add_u32 v9, v9, v10\nv_lshlrev_b32 {vr(VFW)}, 3, v9')
        a.e(f's_mul_i32 {sr(P + 8)}, {sr(S_J1)}, 40\ns_add_u32 {sr(P + 9)}, {sr(P + 8)}, 39\ns_lshr_b32 {sr(P + 8)}, {sr(P + 8)}, 6\ns_lshr_b32 {sr(P + 9)}, {sr(P + 9)}, 6')
        for k in range(2):
            a.e(f's_mul_i32 {sr(P + 8 + k)}, {sr(P + 8 + k)}, 160\ns_add_u32 {sr(P + 8 + k)}, {sr(P + 8 + k)}, {WS_FW}')
        self.poll_check(mod_loads, tok)
        self.stamp('mod')
        fw_loads = [(f'buffer_load_dwordx2 v[12:13], {vr(VFW)}, {sr(R_WS, 4)}, {sr(P + 8)} offen sc1', 12),
                    (f'buffer_load_dwordx2 v[14:15], {vr(VFW)}, {sr(R_WS, 4)}, {sr(P + 9)} offen sc1', 14)]
        tfw = self.poll_issue(fw_loads)
        self.unpack(52, 53, 44)
        self.unpack(54, 55, 45)
        self.unpack(56, 57, 48)
        self.unpack(58, 59, 49)
        a.ds('ds_write_b128 v42, v[52:55]')
        a.ds('ds_write_b128 v43, v[56:59] offset:1024')
        a.wait_all(vm=False)
        self.barrier()
        tk = []
        for r in range(3):
            a.ds(f'ds_read_b128 {vr(64 + 16 * r, 4)}, v60 offset:{1024 * r + 2560}')
            a.ds(f'ds_read_b128 {vr(68 + 16 * r, 4)}, v60 offset:{1024 * r + 2576}')
            a.ds(f'ds_read_b128 {vr(72 + 16 * r, 4)}, v60 offset:{1024 * r}')
            tk.append(a.ds(f'ds_read_b128 {vr(76 + 16 * r, 4)}, v60 offset:{1024 * r + 16}'))
        for r in range(3):
            a.wait(lg=tk[r])
            for n in range(4):
                x, s, b = X + 8 * r + 2 * n, 64 + 16 * r + 2 * n, 72 + 16 * r + 2 * n
                a.e(f'v_pk_fma_f32 {vr(x, 2)}, {vr(x, 2)}, {vr(s, 2)}, {vr(b, 2)}')
            for n in range(4):
                a.e(f'v_cvt_pk_bf16_f32 {vr(112 + 4 * r + n)}, {vr(X + 8 * r + 2 * n)}, {vr(X + 8 * r + 2 * n + 1)}')
            self.tok_h = a.vmem(f'buffer_store_dwordx4 {vr(112 + 4 * r, 4)}, v61, {sr(R_WS, 4)}, {sr(P + 4 + r)} offen sc1')
        self.stamp('hst')
        self.poll_check(fw_loads, tfw)

    def finish(self):
        a, cfg = self.a, self.cfg
        if cfg.diag:
            self.stamp('end')
            self.wave_flag_off(T, 2, 1, None, WS_DBG, 8)
            a.e('v_lshlrev_b32 v9, 2, v0')
            a.vmem(f'buffer_store_dword {vr(V_STAMP)}, v9, {sr(R_WS, 4)}, {sr(T)} offen')
        if cfg.probe:
            a.wait_all()
            self.stamp('end')
            a.e(f's_add_u32 {sr(S_STAMP + 2)}, {sr(S_STAMP + 2)}, 7000')
            a.label('L_probe')
            a.e(f's_memrealtime {sr(T, 2)}\ns_waitcnt lgkmcnt(0)\ns_sub_u32 {sr(T)}, {sr(T)}, {sr(S_STAMP + 2)}\ns_cmp_lt_i32 {sr(T)}, 0\ns_cbranch_scc1 L_probe')
        a.label('L_end')
        a.e('s_endpgm')

    def advance_epoch(self):
        a = self.a
        a.e(f's_lshl_b32 {sr(T + 15)}, s2, 2\ns_add_u32 {sr(T + 15)}, {sr(T + 15)}, {sr(S_W)}\ns_cmp_eq_u32 {sr(T + 15)}, 0\ns_cselect_b32 {sr(T + 15)}, {WS_EPOCH}, {OOB}')
        self.flag(T + 15)

    def build(self):
        import gen1
        import gen2
        cfg = self.cfg
        self.prologue()
        self.startup()
        ring = gen2.Ring(self)
        for name, fn in (('phase1', gen1.phase1), ('phase2', gen2.phase2), ('phase34', gen2.phase34)):
            if cfg.stop == 'startup':
                break
            fn(self, ring)
            if cfg.stop == name:
                break
        if cfg.stop or cfg.diag:
            self.a.wait_all()
        self.finish()
        body = pad_hazards(self.a.lines)
        head = open(f'cdna_kernels/{NAME}.s.ref').read().split('\n')
        out = []
        for l in head:
            if l.startswith('; @launch'):
                out.append('; @launch grid=(256,1,1) block=(256,1,1) lds=163840')
            else:
                out.append(l)
            if l.startswith(NAME + '_kernel:'):
                break
        out += body
        out += ['.section .rodata,"a"', '.p2align 6', f'.amdhsa_kernel {NAME}_kernel',
                '  .amdhsa_next_free_vgpr 512', '  .amdhsa_next_free_sgpr 102', '  .amdhsa_accum_offset 256',
                '  .amdhsa_group_segment_fixed_size 0', '  .amdhsa_kernarg_size 104', '  .amdhsa_user_sgpr_count 2',
                '  .amdhsa_user_sgpr_kernarg_segment_ptr 1', '  .amdhsa_system_sgpr_workgroup_id_x 1',
                '  .amdhsa_float_denorm_mode_32 3', '.end_amdhsa_kernel', '']
        return '\n'.join(out)


def main():
    cfg = Cfg()
    path = None
    for arg in sys.argv[1:]:
        if '=' in arg:
            k, v = arg.split('=')
            old = getattr(Cfg, k)
            setattr(cfg, k, (v == '1') if isinstance(old, bool) else int(v) if isinstance(old, int) else v)
        else:
            path = arg
    g = Gen(cfg)
    text = g.build()
    open(path, 'w').write(text)
    open(path + '.stamps', 'w').write('\n'.join(g.stamps))
    print('wrote', path, len(text), 'bytes,', text.count('\n'), 'lines')


if __name__ == '__main__':
    import gen
    gen.main()
```

```python
from asmlib import vr, ar, sr
from gen import *


def wphi_frags(g):
    a = g.a
    a.e('v_and_b32 v9, 1, v0\nv_mul_u32_u24 v9, 0x320, v9\nv_bfe_u32 v10, v0, 2, 2\nv_mul_u32_u24 v10, 40, v10\nv_add_u32 v9, v9, v10')
    a.e('v_bfe_u32 v10, v0, 1, 1\nv_bfe_u32 v11, v0, 4, 1\nv_lshl_add_u32 v10, v11, 1, v10\nv_lshl_add_u32 v9, v10, 3, v9')
    a.e(f'v_add_u32 v9, {L_WPHI}, v9')
    a.e('v_bfe_u32 v10, v0, 2, 1\nv_lshrrev_b32 v11, 5, v0\nv_cmp_eq_u32 vcc, v10, v11\nv_cndmask_b32 v10, 0, -1, vcc')
    for t in range(2):
        for s in range(3):
            r = 200 + 12 * t + 4 * s
            a.ds(f'ds_read_b64_tr_b16 {vr(r, 2)}, v9 offset:{32 * t + 320 * s}')
            if s < 2:
                a.ds(f'ds_read_b64_tr_b16 {vr(r + 2, 2)}, v9 offset:{32 * t + 320 * s + 160}')
            else:
                a.e(f'v_mov_b32 {vr(r + 2)}, 0\nv_mov_b32 {vr(r + 3)}, 0')
    a.wait_all(vm=False)
    for t in range(2):
        for n in range(10):
            r = 200 + 12 * t + n
            a.e(f'v_and_b32 {vr(r)}, {vr(r)}, v10')


def addresses(g):
    a = g.a
    g.frag16_addr(VA0, 9)
    a.e(f'v_add_u32 {vr(VA1)}, 0x10000, {vr(VA0)}')
    a.e(f'v_bfe_u32 v9, v0, 2, 2\nv_lshrrev_b32 v10, 1, v9\nv_sub_u32 v9, v9, v10\nv_lshlrev_b32 v9, 8, v9\nv_sub_u32 {vr(VA2)}, {vr(VA0)}, v9')
    a.e(f's_mul_i32 {sr(T)}, {sr(S_W)}, {32 * TP}\ns_add_u32 {sr(T)}, {sr(T)}, {L_TS}\nv_and_b32 v9, 31, v0\nv_mul_u32_u24 v9, {TP}, v9\nv_add_u32 v9, {sr(T)}, v9')
    a.e(f'v_lshrrev_b32 v11, 5, v0\nv_mul_u32_u24 v10, 48, v11\nv_add_u32 {vr(VTW1)}, v10, v9\nv_mul_u32_u24 v11, 80, v11\nv_add_u32 {vr(VTW0)}, v11, v9')
    a.e(f'v_lshrrev_b32 v11, 5, v0\nv_bfe_u32 v12, v0, 2, 2\nv_lshl_add_u32 v11, v11, 3, v12\nv_mul_u32_u24 v11, {TP}, v11')
    a.e('v_bfe_u32 v12, v0, 4, 1\nv_and_b32 v13, 3, v0\nv_lshl_add_u32 v14, v12, 2, v13')
    a.e('v_and_b32 v15, 1, v0\nv_lshlrev_b32 v15, 1, v15\nv_lshl_add_u32 v15, v12, 2, v15\nv_bfe_u32 v13, v0, 1, 1\nv_add_u32 v15, v15, v13')
    a.e(f's_lshr_b32 {sr(T)}, {sr(S_W)}, 1\ns_and_b32 {sr(T + 1)}, {sr(S_W)}, 1\ns_mul_i32 {sr(T + 2)}, {sr(T)}, 80\ns_lshl_b32 {sr(T + 3)}, {sr(T + 1)}, 6')
    a.e(f's_add_u32 {sr(T + 2)}, {sr(T + 2)}, {sr(T + 3)}\ns_add_u32 {sr(T + 2)}, {sr(T + 2)}, {L_TS}\ns_mul_i32 {sr(T + 3)}, {sr(T)}, 48\ns_add_u32 {sr(T + 3)}, {sr(T + 3)}, {L_TS + 160}')
    a.e(f'v_lshl_add_u32 v12, v15, 3, v11\nv_add_u32 {vr(VTR0)}, {sr(T + 2)}, v12\nv_lshl_add_u32 v13, v14, 3, v11\nv_add_u32 {vr(VTR1)}, {sr(T + 3)}, v13')
    a.e(f'v_lshrrev_b32 v9, 5, v0\nv_and_b32 v10, 31, v0\ns_mul_i32 {sr(T)}, {sr(T)}, 5\ns_lshl_b32 {sr(T + 2)}, {sr(T + 1)}, 2\ns_add_u32 {sr(T)}, {sr(T)}, {sr(T + 2)}')
    a.e(f'v_add_u32 v11, {sr(T)}, v9\nv_mul_u32_u24 v11, 21, v11\nv_add_u32 v11, v11, v10\nv_lshlrev_b32 v11, 4, v11')
    a.e(f's_cmp_eq_u32 {sr(T + 1)}, 0\ns_cselect_b32 {sr(T + 2)}, 64, 32\ns_cselect_b32 {sr(T + 3)}, {42 * 16}, {OOB}')
    a.e(f'v_mov_b32 v9, {OOB}\nv_cmp_gt_u32 vcc, 21, v10\nv_cndmask_b32 v11, v9, v11, vcc\nv_cmp_gt_u32 vcc, {sr(T + 2)}, v0\nv_cndmask_b32 {vr(VKS)}, v9, v11, vcc')
    a.e(f's_lshl_b32 {sr(T)}, {sr(S_J1)}, 4\ns_add_u32 {sr(T)}, {sr(T)}, {sr(S_G1)}\ns_mul_i32 {sr(P + 4)}, {sr(T)}, 3456\ns_add_u32 {sr(P + 4)}, {sr(P + 4)}, {WS_KVP}')
    a.e(f's_add_u32 {sr(P + 5)}, {sr(P + 4)}, {sr(T + 3)}')
    g.wave_flag_off(P + 6, S_J1, 16, S_G1, WS_FKV)
    a.e(f's_lshl_b32 {sr(T)}, {sr(S_W)}, 6\nv_add_u32 v9, {sr(T)}, v0\nv_lshlrev_b32 v10, 4, v9\nv_mov_b32 v11, {OOB}')
    a.e(f'v_cmp_gt_u32 vcc, 0xd2, v9\nv_cndmask_b32 {vr(VGL)}, v11, v10, vcc')
    a.e('v_mul_u32_u24 v11, 0x187, v9\nv_lshrrev_b32 v11, 13, v11\nv_mul_u32_u24 v12, 21, v11\nv_sub_u32 v12, v9, v12')
    a.e(f'v_mul_u32_u24 v12, 80, v12\nv_lshl_add_u32 v12, v11, 4, v12\nv_add_u32 v13, {1920 - 80}, v12')
    a.e(f'v_cmp_gt_u32 {sr(T + 2, 2)}, 5, v11\nv_cndmask_b32 v12, v13, v12, {sr(T + 2, 2)}')
    a.e(f'v_mov_b32 v13, 3920\nv_cndmask_b32 v12, v13, v12, vcc\nv_add_u32 {vr(VKW)}, {L_KVR}, v12')
    a.e('v_bfe_u32 v9, v0, 2, 1\nv_bfe_u32 v10, v0, 3, 2\nv_and_b32 v11, 3, v0\nv_lshrrev_b32 v12, 5, v0')
    a.e('v_add_u32 v13, v10, v9\nv_lshl_add_u32 v13, v13, 2, v11')
    a.e('v_lshlrev_b32 v14, 2, v9\nv_sub_u32 v14, 4, v14\nv_cmp_eq_u32 vcc, 0, v10\nv_cndmask_b32 v14, 5, v14, vcc\nv_lshl_add_u32 v14, v14, 2, v11')
    a.e(f'v_mul_u32_u24 v15, 0x780, v9\nv_add_u32 v15, {L_KVR}, v15\nv_mov_b32 v10, {L_KVZ}\nv_cmp_eq_u32 vcc, v9, v12')
    a.e(f'v_mul_u32_u24 v13, 80, v13\nv_add_u32 v13, v13, v15\nv_cndmask_b32 {vr(VO0)}, v10, v13, vcc')
    a.e(f'v_mul_u32_u24 v14, 80, v14\nv_add_u32 v14, v14, v15\nv_cndmask_b32 {vr(VO1)}, v10, v14, vcc')
    a.e(f'v_bfe_u32 v9, v0, 4, 1\nv_mul_u32_u24 v9, 0x5000, v9\nv_and_b32 v10, 0xf0, v1\nv_add_u32 {vr(VOS1)}, v9, v10\nv_mul_u32_u24 v12, 0x300, v12\nv_add_u32 {vr(VOS0)}, {vr(VOS1)}, v12')
    a.e(f'v_lshlrev_b32 {vr(VF128)}, 7, v0')


def feature_map(g, out, mid=None):
    a = g.a
    for t in (1, 0):
        for s in range(3):
            acc = 140 + 16 * t
            a.e(f'v_mfma_f32_32x32x16_bf16 {vr(acc, 16)}, {vr(200 + 12 * t + 4 * s, 4)}, {vr(128 + 4 * s, 4)}, {vr(acc, 16) if s else 0}')
    if mid:
        mid()
    Pr, E = 140, 172
    for op, d in (('max', 192), ('min', 194)):
        a.e(f'v_{op}3_f32 {vr(d)}, {vr(Pr + 16)}, {vr(Pr + 17)}, {vr(Pr + 18)}')
    for op, d in (('max', 192), ('min', 194)):
        a.e(f'v_{op}3_f32 {vr(d + 1)}, {vr(Pr + 19)}, {vr(Pr)}, {vr(Pr + 1)}')
    for k in range(2, 16, 2):
        for op, d in (('max', 192), ('min', 194)):
            dd = d + ((k >> 1) & 1 ^ 1)
            a.e(f'v_{op}3_f32 {vr(dd)}, {vr(dd)}, {vr(Pr + k)}, {vr(Pr + k + 1)}')
    for op, d in (('max', 192), ('min', 194)):
        a.e(f'v_{op}_f32 {vr(d)}, {vr(d)}, {vr(d + 1)}')
    a.e(f'v_mul_f32 v192, {sr(S_L2E)}, v192\nv_mul_f32 v194, {sr(S_L2E)}, v194')
    for n in range(10):
        a.e(f'v_pk_fma_f32 {vr(E + 2 * n, 2)}, {vr(Pr + 2 * n, 2)}, {sr(S_L2E, 2)}, v[192:193] op_sel_hi:[1,1,0] neg_lo:[0,0,1] neg_hi:[0,0,1]')
        a.e(f'v_pk_fma_f32 {vr(Pr + 2 * n, 2)}, {vr(Pr + 2 * n, 2)}, {sr(S_L2E, 2)}, v[194:195] op_sel_hi:[1,1,0] neg_lo:[1,0,0] neg_hi:[1,0,0]')
    for b in (E, Pr):
        for n in range(20):
            a.e(f'v_exp_f32 {vr(b + n)}, {vr(b + n)}')
    for b, d in ((E, 192), (Pr, 196)):
        a.e(f'v_pk_add_f32 {vr(d, 2)}, {vr(b, 2)}, {vr(b + 2, 2)}\nv_pk_add_f32 {vr(d + 2, 2)}, {vr(b + 4, 2)}, {vr(b + 6, 2)}')
    for k in range(8, 20, 4):
        for b, d in ((E, 192), (Pr, 196)):
            a.e(f'v_pk_add_f32 {vr(d, 2)}, {vr(d, 2)}, {vr(b + k, 2)}\nv_pk_add_f32 {vr(d + 2, 2)}, {vr(d + 2, 2)}, {vr(b + k + 2, 2)}')
    for d in (192, 196):
        a.e(f'v_pk_add_f32 {vr(d, 2)}, {vr(d, 2)}, {vr(d + 2, 2)}')
    for d in (192, 196):
        a.e(f'v_add_f32 {vr(d)}, {vr(d)}, {vr(d + 1)}')
    for d in (192, 196):
        a.e(f'v_rcp_f32 {vr(d)}, {vr(d)}')
    for b, d, o in ((E, 192, out), (Pr, 196, out + 10)):
        for n in range(10):
            a.e(f'v_pk_mul_f32 {vr(b + 2 * n, 2)}, {vr(b + 2 * n, 2)}, {vr(d, 2)} op_sel_hi:[1,0]')
        for n in range(10):
            a.e(f'v_cvt_pk_bf16_f32 {vr(o + n)}, {vr(b + 2 * n)}, {vr(b + 2 * n + 1)}')


def phase1(g, ring):
    a, cfg = g.a, g.cfg
    a.c('phase 1: qkv projection')
    SRC, DST, HB = P + 10, P + 11, T + 15
    a.e(f's_mul_i32 {sr(SRC)}, {sr(S_J1)}, 153600\ns_lshl_b32 {sr(DST)}, {sr(S_W)}, 10\ns_add_u32 {sr(SRC)}, {sr(SRC)}, {sr(DST)}\ns_add_u32 {sr(SRC)}, {sr(SRC)}, {WS_WQ}')
    wtok = {}

    def wdma(q):
        if q == 37:
            a.e(f's_cmp_gt_u32 {sr(S_W)}, 1\ns_cselect_b32 {sr(T + 1)}, 2048, 0\ns_sub_u32 {sr(SRC)}, {sr(SRC)}, {sr(T + 1)}\ns_sub_u32 {sr(T + 1)}, {sr(DST)}, {sr(T + 1)}')
        a.e(f's_add_u32 m0, {sr(T + 1 if q == 37 else DST)}, {(q % 25) * 4096}\ns_add_u32 {sr(T)}, {sr(SRC)}, {q * 4096}')
        wtok[q] = a.vmem(f'buffer_load_dwordx4 v1, {sr(R_WS, 4)}, {sr(T)} offen sc1 lds')
    for q in range(cfg.w1a):
        wdma(q)
    a.wait(vm=g.tok_h)
    g.flag(P + 7)
    g.stamp('hpub')
    for q in range(cfg.w1a, 25):
        wdma(q)
    a.e(f's_lshl_b32 {sr(T)}, {sr(S_G1)}, 2\ns_add_u32 {sr(T)}, {sr(T)}, {sr(S_W)}\ns_mul_i32 {sr(HB)}, {sr(T)}, 40960\ns_add_u32 {sr(HB)}, {sr(HB)}, {WS_H}')
    a.e(f's_lshl_b32 {sr(T + 14)}, {sr(T)}, 11\ns_add_u32 {sr(T + 14)}, {sr(T + 14)}, {WS_FH}\nv_and_b32 v40, 15, v0\nv_lshlrev_b32 v40, 7, v40')
    fh = [(f'buffer_load_dwordx2 v[42:43], v40, {sr(R_WS, 4)}, {sr(T + 14)} offen sc1', 42)]
    tok = g.poll_issue(fh)
    wphi_frags(g)
    addresses(g)
    g.job_bc_setup(0, R_B, 30, 31, JB_OFF)
    g.job_bc_setup(1, R_C, 32, 33, JC_OFF)
    a.e(f's_add_u32 {sr(P + 8)}, {sr(HB)}, 20480')
    g.poll_check(fh, tok)
    g.stamp('hready')
    htok = {}

    def hload(s, tt):
        sb = (HB, P + 8)[tt]
        if s and s % 4 == 0:
            a.e(f's_add_u32 {sr(sb)}, {sr(sb)}, 4096')
        htok[s, tt] = a.vmem(f'buffer_load_dwordx4 {ar(8 * s + 4 * tt, 4)}, v1, {sr(R_WS, 4)}, {sr(sb)} offen offset:{(s % 4) * 1024} sc1')
    for s in range(cfg.hpre):
        hload(s, 0)
        hload(s, 1)
    for s in range(cfg.hpre, 20):
        g.fq.append(lambda s=s: hload(s, 0))
        g.fq.append(lambda s=s: hload(s, 1))
    jt = {}

    def jdma(r, n):
        a.e(f's_add_u32 m0, {sr(P + 3)}, {r * 4096 + n * 1024}')
        jt[r] = a.vmem(f'buffer_load_dwordx4 v{30 + 2 * r}, {sr((R_B, R_C)[r], 4)}, {sr((JB_OFF, JC_OFF)[r] + n)} offen{g.nt} lds')
    for r in range(2):
        for n in range(4):
            g.fq.append(lambda r=r, n=n: jdma(r, n))
    a.wait(vm=wtok[24])
    g.barrier()
    LA = 6
    rt = {}

    def wread(f):
        off = f * 1024
        rt[f] = a.ds(f'ds_read_b128 {ar(160 + 4 * (f % 8), 4)}, {vr(VA0 + (off >> 16))} offset:{off & 0xffff}')
    for f in range(LA):
        wread(f)
    for f in range(100):
        s, n = divmod(f, 5)
        a.wait(vm=htok[s, 1] if n == 0 else None, lg=rt[f])
        for tt in range(2):
            acc = 64 + 20 * tt + 4 * n
            a.e(f'v_mfma_f32_16x16x32_bf16 {vr(acc, 4)}, {ar(160 + 4 * (f % 8), 4)}, {ar(8 * s + 4 * tt, 4)}, {vr(acc, 4) if s else 0}')
            if tt == 0 and f + LA < 100:
                wread(f + LA)
            if tt == 1 and f % 2 == 0:
                g.fill(1)
    assert not g.fq
    g.barrier()
    g.stamp('pass1')
    a.c('feature map of k, partial kv')
    for n in range(10):
        a.e(f'v_cvt_pk_bf16_f32 {vr(128 + n)}, {vr(64 + 2 * n)}, {vr(65 + 2 * n)}\nv_cvt_pk_bf16_f32 {vr(40 + n)}, {vr(84 + 2 * n)}, {vr(85 + 2 * n)}')
    a.e('v_mov_b32 v138, 0\nv_mov_b32 v139, 0\nv_mov_b32 v50, 0x3f80\nv_mov_b32 v51, 0')
    for n in range(10):
        a.e(f'v_permlane16_swap_b32 {vr(128 + n)}, {vr(40 + n)}')

    def mid_k():
        for n in range(3):
            a.ds(f'ds_write_b128 {vr(VTW1)}, {vr(40 + 4 * n, 4)} offset:{160 + 16 * n}')
        for q in range(25, 38):
            wdma(q)
    feature_map(g, 224, mid_k)
    for n in range(5):
        a.ds(f'ds_write_b128 {vr(VTW0)}, {vr(224 + 4 * n, 4)} offset:{16 * n}')
    a.wait(vm=wtok[37])
    a.wait_all(vm=False)
    g.barrier()
    tk = []
    for s in range(8):
        for z in range(2):
            a.ds(f'ds_read_b64_tr_b16 {vr(128 + 8 * s + 2 * z, 2)}, {vr(VTR0)} offset:{(16 * s + 4 * z) * TP}')
        for z in range(2):
            t = a.ds(f'ds_read_b64_tr_b16 {vr(132 + 8 * s + 2 * z, 2)}, {vr(VTR1)} offset:{(16 * s + 4 * z) * TP}')
        tk.append(t)
        if s >= 2:
            a.wait(lg=tk[s - 2])
            a.e(f'v_mfma_f32_32x32x16_bf16 v[64:79], {vr(128 + 8 * (s - 2), 4)}, {vr(132 + 8 * (s - 2), 4)}, {"v[64:79]" if s > 2 else 0}')
    for s in (6, 7):
        a.wait(lg=tk[s])
        a.e(f'v_mfma_f32_32x32x16_bf16 v[64:79], {vr(128 + 8 * s, 4)}, {vr(132 + 8 * s, 4)}, v[64:79]')
    rt = {}

    def wread2(f):
        s, n = divmod(f, 3)
        rt[f] = a.ds(f'ds_read_b128 {ar(160 + 4 * (f % 8), 4)}, {vr(VA2 if n == 2 else VA0)} offset:{s * 2560 + n * 1024}')
    for f in range(LA):
        wread2(f)
    for n in range(8):
        a.e(f'v_cvt_pk_bf16_f32 {vr(52 + n)}, {vr(64 + 2 * n)}, {vr(65 + 2 * n)}')
    a.vmem(f'buffer_store_dwordx4 v[52:55], {vr(VKS)}, {sr(R_WS, 4)}, {sr(P + 4)} offen sc1')
    tkv = a.vmem(f'buffer_store_dwordx4 v[56:59], {vr(VKS)}, {sr(R_WS, 4)}, {sr(P + 5)} offen sc1')
    g.stamp('kvst')
    g.fq.extend(g.job_finish_items(lambda: jt[0], 34, 0, 31, 64))
    g.fq.extend(g.job_finish_items(lambda: jt[1], 34, 4096, 33, 84))
    fkv = [(f'buffer_load_dwordx2 v[12:13], {vr(VF128)}, {sr(R_WS, 4)}, {sr(T + 14)} offen sc1', 12)]
    for f in range(60):
        s, n = divmod(f, 3)
        a.wait(lg=rt[f])
        for tt in range(2):
            acc = 104 + 12 * tt + 4 * n
            a.e(f'v_mfma_f32_16x16x32_bf16 {vr(acc, 4)}, {ar(160 + 4 * (f % 8), 4)}, {ar(8 * s + 4 * tt, 4)}, {vr(acc, 4) if s else 0}')
            if tt == 0 and f + LA < 60:
                wread2(f + LA)
            if tt == 1 and f >= 20:
                g.fill(1)
        if f == 19:
            a.wait(vm=tkv)
            g.flag(P + 6)
        if f == 50:
            a.e(f's_lshl_b32 {sr(T + 14)}, {sr(S_J1)}, 13\ns_add_u32 {sr(T + 14)}, {sr(T + 14)}, {WS_FKV}')
    assert not g.fq
    tok = g.poll_issue(fkv)
    g.stamp('pass2')
    for n in range(3):
        for tt in range(2):
            for k in range(2):
                a.e(f'v_cvt_pk_bf16_f32 {vr(128 + 4 * n + 2 * tt + k)}, {vr(104 + 12 * tt + 4 * n + 2 * k)}, {vr(105 + 12 * tt + 4 * n + 2 * k)}')
    a.e(f'v_mov_b32 v60, 0\nv_mov_b32 v61, 0\nv_mov_b32 v62, 0\nv_mov_b32 v63, 0\nv_min_u32 v9, 4, v0\nv_lshlrev_b32 v9, 4, v9\nv_add_u32 v9, {L_KVZ}, v9')
    a.ds('ds_write_b128 v9, v[60:63]')
    for n in range(3):
        for k in range(2):
            a.e(f'v_permlane16_swap_b32 {vr(128 + 4 * n + k)}, {vr(130 + 4 * n + k)}')
    gt = []

    def mid_q():
        g.wave_flag_off(T + 13, 2, 1, None, WS_FRT, 3)
        a.e(f's_mul_i32 {sr(T + 4)}, {sr(S_J1)}, {16 * 3456}\ns_add_u32 {sr(T + 4)}, {sr(T + 4)}, {WS_KVP}')
        g.poll_check(fkv, tok)
        g.flag(T + 13)
        for k in range(16):
            if k:
                a.e(f's_add_u32 {sr(T + 4)}, {sr(T + 4)}, 3456')
            gt.append(a.vmem(f'buffer_load_dwordx4 {vr(64 + 4 * k, 4)}, {vr(VGL)}, {sr(R_WS, 4)}, {sr(T + 4)} offen sc1'))
        g.barrier()
        ring.setup()
        for _ in range(cfg.r0):
            ring.issue()
    feature_map(g, 224, mid_q)
    g.stamp('phiq')
    a.c('reduce kv, o = num / den')
    a.e(f's_mov_b32 {sr(T + 2)}, 0x3f80\ns_mov_b32 {sr(T + 3)}, 0x3f800000')
    for n in range(8):
        a.e(f'v_mov_b32 {vr(52 + n)}, 0')
    for k in range(16):
        a.wait(vm=gt[k])
        for n in range(4):
            a.e(f'v_dot2c_f32_bf16 {vr(52 + 2 * n)}, {sr(T + 2)}, {vr(64 + 4 * k + n)}')
            a.e(f'v_dot2c_f32_bf16 {vr(53 + 2 * n)}, {sr(T + 3)}, {vr(64 + 4 * k + n)}')
    for n in range(4):
        a.e(f'v_cvt_pk_bf16_f32 {vr(60 + n)}, {vr(52 + 2 * n)}, {vr(53 + 2 * n)}')
    a.ds(f'ds_write_b128 {vr(VKW)}, v[60:63]')
    a.e(f's_lshl_b32 {sr(T)}, {sr(S_G1)}, 2\ns_add_u32 {sr(T)}, {sr(T)}, {sr(S_W)}\ns_mul_i32 {sr(T + 7)}, {sr(T)}, 40960\ns_mul_i32 {sr(T)}, {sr(S_J1)}, 1280')
    a.e(f's_add_u32 {sr(T + 7)}, {sr(T + 7)}, {sr(T)}\ns_add_u32 {sr(T + 7)}, {sr(T + 7)}, {WS_O}')
    g.wave_flag_off(P + 6, S_G1, 16, S_J1, WS_FO)
    a.wait_all(vm=False)
    g.barrier()
    tk = []
    for t in (1, 0):
        for s in range(5):
            tk.append(a.ds(f'ds_read_b128 {vr(128 + 20 * t + 4 * s, 4)}, {vr(VO0 + t)} offset:{16 * s}'))
    n = 0
    for t in (1, 0):
        for s in range(5):
            a.wait(lg=tk[n])
            n += 1
            acc = 64 + 16 * t
            a.e(f'v_mfma_f32_32x32x16_bf16 {vr(acc, 16)}, {vr(128 + 20 * t + 4 * s, 4)}, {vr(224 + 4 * s, 4)}, {vr(acc, 16) if s else 0}')
    a.e('v_add_f32 v84, 0x358637bd, v84\nv_rcp_f32 v84, v84')
    for n in (8, 9, 0, 1, 2, 3, 4, 5, 6, 7):
        a.e(f'v_pk_mul_f32 {vr(64 + 2 * n, 2)}, {vr(64 + 2 * n, 2)}, v[84:85] op_sel_hi:[1,0]')
    for n in (8, 9, 0, 1, 2, 3, 4, 5, 6, 7):
        a.e(f'v_cvt_pk_bf16_f32 {vr(128 + n)}, {vr(64 + 2 * n)}, {vr(65 + 2 * n)}')
    a.e('v_permlane32_swap_b32 v136, v138\nv_permlane32_swap_b32 v137, v139')
    a.vmem(f'buffer_store_dwordx4 v[128:131], {vr(VOS0)}, {sr(R_WS, 4)}, {sr(T + 7)} offen sc1')
    a.vmem(f'buffer_store_dwordx4 v[132:135], {vr(VOS0)}, {sr(R_WS, 4)}, {sr(T + 7)} offen offset:256 sc1')
    a.e('s_mov_b32 exec_hi, 0')
    g.tok_o = a.vmem(f'buffer_store_dwordx4 v[136:139], {vr(VOS1)}, {sr(R_WS, 4)}, {sr(T + 7)} offen offset:512 sc1')
    a.e('s_mov_b64 exec, -1')
    g.stamp('ost')
```

```python
from asmlib import vr, ar, sr
from gen import *

V_X1, V_GB, V_GA, V_SB, V_S2 = 16, 36, 208, 104, 228
SRC2, SRC3, SRC4, RDST, RTMP = 12, 13, 14, 15, 16
XOFF, FLG8, BB0, BB1 = 17, 18, 19, 20
VK0, VN0 = 4, 56
VF8 = 7
F_A, F_B, F_2, F_END = 100, 260, 380, 650


class Ring:
    def __init__(self, g):
        self.g = g
        self.tok = {}
        self.issued = 0
        self.published = 0
        self.consumed = 0
        self.total = 163
        self.limit = 25

    def setup(self):
        a = self.g.a
        a.e(f's_lshl_b32 {sr(RDST)}, {sr(S_W)}, 10')
        for d, role, size, base in ((SRC2, S_N2, 102400, WS_WO), (SRC3, S_J3, 286720, WS_W13), (SRC4, S_N2, 276480, WS_W2)):
            a.e(f's_mul_i32 {sr(d)}, {sr(role)}, {size}\ns_add_u32 {sr(d)}, {sr(d)}, {sr(RDST)}\ns_add_u32 {sr(d)}, {sr(d)}, {base}')

    def can_issue(self):
        return self.issued < min(self.total, self.limit) and 4 * (self.issued + 1) - RING <= self.consumed

    def issue(self):
        a = self.g.a
        q = self.issued
        assert self.can_issue(), q
        if q == self.total - 1:
            a.e(f's_cmp_gt_u32 {sr(S_W)}, 1\ns_cselect_b32 {sr(RTMP)}, 2048, 0\ns_sub_u32 {sr(SRC4)}, {sr(SRC4)}, {sr(RTMP)}\ns_sub_u32 {sr(RDST)}, {sr(RDST)}, {sr(RTMP)}')
        src, off = (SRC2, q) if q < 25 else (SRC3, q - 25) if q < 95 else (SRC4, q - 95)
        a.e(f's_add_u32 m0, {sr(RDST)}, {(q % 35) * 4096}\ns_add_u32 {sr(RTMP)}, {sr(src)}, {off * 4096}')
        self.tok[q] = a.vmem(f'buffer_load_dwordx4 v1, {sr(R_WS, 4)}, {sr(RTMP)} offen sc1 lds')
        self.issued += 1

    def issue_n(self, n):
        while n > 0 and self.can_issue():
            self.issue()
            n -= 1

    def sync(self, consumed, need):
        publish = min(-(-need // 4), self.total)
        assert publish <= self.issued, (publish, self.issued)
        if publish > self.published:
            self.g.a.wait(vm=self.tok[publish - 1])
            self.published = publish
        self.g.barrier()
        self.consumed = max(self.consumed, consumed)

    def lds(self, base, f, chk=0):
        assert f + chk < 4 * self.published, f
        off = (f % RING) * 1024
        return f'{vr(base + (off >> 16))} offset:{off & 0xffff}'


def exchange(g, acc):
    a = g.a
    for t in range(5):
        a.ds(f'ds_write_b128 v59, {vr(acc + 20 + 4 * t, 4)} offset:{1024 * t}')
    a.wait_all(vm=False)
    g.barrier()
    tk = [a.ds(f'ds_read_b128 {vr(acc + 20 + 4 * t, 4)}, v60 offset:{1024 * t}') for t in range(5)]
    for t in range(5):
        a.wait(lg=tk[t])
        for n in (0, 2):
            a.e(f'v_pk_add_f32 {vr(acc + 4 * t + n, 2)}, {vr(acc + 4 * t + n, 2)}, {vr(acc + 20 + 4 * t + n, 2)}')


def pair_gemm(g, ring, f0, fend, steps, breg, btok, hook=None, first=True, last=True):
    a = g.a
    rt = g.pair_rt

    def wread(q, t):
        rt[q, t] = a.ds(f'ds_read_b128 {ar(160 + 20 * (q & 1) + 4 * t, 4)}, {ring.lds(VK0, f0 + 10 * q + t, 5)}')
    if first:
        rt.clear()
        for t in range(5):
            wread(steps[0], t)
    for q in steps:
        final = last and q == steps[-1]
        n = 0
        for k in (1, 0) if final else (0, 1):
            a.wait(vm=btok[q, 1 if final else k], lg=rt[q, 4])
            if n == 0 and q and q % 2 == 0:
                ring.sync(f0 + 10 * q, min(f0 + 10 * (q + 3), fend))
            for t in range(5):
                acc = 64 + 20 * k + 4 * t
                a.e(f'v_mfma_f32_16x16x32_bf16 {vr(acc, 4)}, {ar(160 + 20 * (q & 1) + 4 * t, 4)}, {breg(q, k)}, {vr(acc, 4) if q else 0}')
                if n < 5 and not final:
                    wread(q + 1, n)
                if hook:
                    hook(q, n)
                n += 1


def phase2(g, ring):
    a, cfg = g.a, g.cfg
    g.pair_rt = {}
    a.c('phase 2: output projection, residual, LayerNorm 2')
    a.e(f's_lshl_b32 {sr(T)}, {sr(S_M2)}, 2\ns_add_u32 {sr(T)}, {sr(T)}, {sr(S_W)}\ns_mul_i32 {sr(XOFF)}, {sr(T)}, 20480')
    a.e(f's_mul_i32 {sr(T)}, {sr(S_N2)}, 160\ns_add_u32 {sr(XOFF)}, {sr(XOFF)}, {sr(T)}\ns_mov_b32 {sr(T + 1)}, {1280 - 160}')
    for n in range(3):
        a.e(f'v_add_u32 v9, {64 * n}, v0\nv_mul_u32_u24 v10, 0xcd, v9\nv_lshrrev_b32 v10, 11, v10\nv_lshlrev_b32 v9, 4, v9\nv_mad_u32_u24 {vr(61 + n)}, v10, {sr(T + 1)}, v9')
    a.e(f's_mul_i32 {sr(T + 2)}, {sr(S_W)}, 2560\ns_add_u32 {sr(T + 2)}, {sr(T + 2)}, {L_XR}')
    for n in range(3):
        a.e(f's_add_u32 m0, {sr(T + 2)}, {1024 * n}')
        if n == 2:
            a.e('s_mov_b32 exec_hi, 0')
        a.vmem(f'buffer_load_dwordx4 {vr(61 + n)}, {sr(R_X, 4)}, {sr(XOFF)} offen lds')
    a.e('s_mov_b64 exec, -1')
    a.e('v_min_u32 v9, 19, v0\nv_lshrrev_b32 v10, 2, v9\nv_and_b32 v11, 3, v9\nv_lshlrev_b32 v11, 4, v11\nv_lshl_add_u32 v10, v10, 7, v11')
    a.e(f's_mul_i32 {sr(T + 3)}, {sr(S_W)}, 40\ns_mul_i32 {sr(T + 1)}, {sr(S_N2)}, 5\ns_add_u32 {sr(T + 3)}, {sr(T + 3)}, {sr(T + 1)}\ns_add_u32 {sr(T + 3)}, {sr(T + 3)}, 80')
    a.e(f's_lshl_b32 {sr(T + 3)}, {sr(T + 3)}, 7\ns_add_u32 {sr(T + 3)}, {sr(T + 3)}, {WS_MOD}')
    a.e(f's_lshl_b32 {sr(T + 4)}, {sr(S_W)}, 11\ns_add_u32 {sr(T + 4)}, {sr(T + 4)}, {WS_FRT}')
    ld = [(f'buffer_load_dwordx4 v[24:27], v10, {sr(R_WS, 4)}, {sr(T + 3)} offen sc1', 26),
          (f'buffer_load_dwordx4 v[28:31], v1, {sr(R_WS, 4)}, {sr(T + 4)} offen sc1', (28, 30)),
          (f'buffer_load_dwordx4 v[32:35], v1, {sr(R_WS, 4)}, {sr(T + 4)} offen offset:1024 sc1', (32, 34))]
    tok = g.poll_issue(ld)
    ring.issue_n(cfg.r1)
    a.e(f's_mul_i32 {sr(T + 1)}, {sr(S_W)}, 320\ns_add_u32 {sr(T + 1)}, {sr(T + 1)}, {L_PAR}\nv_lshlrev_b32 v9, 4, v9\nv_add_u32 v9, {sr(T + 1)}, v9')
    g.frag16_addr(VN0, 11)
    a.e(f'v_add_u32 {vr(VN0 + 1)}, 0x10000, {vr(VN0)}\nv_add_u32 {vr(VN0 + 2)}, 0x20000, {vr(VN0)}')
    a.e(f's_and_b32 {sr(T + 1)}, {sr(S_W)}, 1\ns_mul_i32 {sr(T)}, {sr(T + 1)}, 5120')
    for k in range(3):
        a.e(f'v_add_u32 {vr(VK0 + k)}, {sr(T)}, {vr(VN0 + k)}')
    a.wait(vm=g.tok_o)
    g.flag(P + 6)
    g.stamp('opub')
    a.e(f's_lshr_b32 {sr(T)}, {sr(S_M2)}, 1\ns_lshl_b32 {sr(T)}, {sr(T)}, 4\ns_lshl_b32 {sr(T + 5)}, {sr(T + 1)}, 3')
    a.e(f's_add_u32 {sr(T)}, {sr(T)}, {sr(T + 5)}\ns_lshl_b32 {sr(T)}, {sr(T)}, 2\ns_and_b32 {sr(T + 5)}, {sr(S_M2)}, 1\ns_lshl_b32 {sr(T + 5)}, {sr(T + 5)}, 1')
    a.e(f's_add_u32 {sr(T)}, {sr(T)}, {sr(T + 5)}\ns_lshr_b32 {sr(T + 5)}, {sr(S_W)}, 1\ns_add_u32 {sr(T)}, {sr(T)}, {sr(T + 5)}')
    a.e(f's_lshl_b32 {sr(FLG8)}, {sr(T)}, 7\ns_add_u32 {sr(T + 14)}, {sr(FLG8)}, {WS_FO}\nv_and_b32 {vr(VF8)}, 7, v0\nv_lshlrev_b32 {vr(VF8)}, 9, {vr(VF8)}')
    a.e(f's_lshl_b32 {sr(T + 5)}, {sr(S_M2)}, 2\ns_add_u32 {sr(T + 5)}, {sr(T + 5)}, {sr(S_W)}\ns_xor_b32 {sr(T + 6)}, {sr(T + 5)}, 1')
    a.e(f's_mul_i32 {sr(T + 7)}, {sr(T + 1)}, 10240\ns_add_u32 {sr(T + 7)}, {sr(T + 7)}, {WS_O}')
    for k in range(2):
        a.e(f's_mul_i32 {sr(BB0 + k)}, {sr(T + 5 + k)}, 20480\ns_add_u32 {sr(BB0 + k)}, {sr(BB0 + k)}, {sr(T + 7)}')
    a.e(f's_mul_i32 {sr(T)}, {sr(S_W)}, 5120\ns_add_u32 {sr(T)}, {sr(T)}, {L_XCH}\nv_add_u32 v59, {sr(T)}, v1')
    a.e(f's_xor_b32 {sr(T)}, {sr(S_W)}, 1\ns_mul_i32 {sr(T)}, {sr(T)}, 5120\ns_add_u32 {sr(T)}, {sr(T)}, {L_XCH}\nv_add_u32 v60, {sr(T)}, v1')
    a.e(f'v_and_b32 v11, 15, v0\nv_mul_u32_u24 v11, 0xa0, v11\nv_add_u32 v11, {sr(T + 2)}, v11\nv_lshrrev_b32 v12, 4, v0')
    a.e('v_lshl_add_u32 v13, v12, 3, v11\nv_lshl_add_u32 v11, v12, 4, v11')
    g.poll_check(ld, tok)
    fo = [(f'buffer_load_dwordx2 v[14:15], {vr(VF8)}, {sr(R_WS, 4)}, {sr(T + 14)} offen sc1', 14)]
    tok = g.poll_issue(fo)
    g.unpack(28, 29, 24)
    g.unpack(30, 31, 25)
    a.ds('ds_write_b128 v9, v[28:31]')
    a.ds('ds_read_b128 v[64:67], v11')
    a.ds('ds_read_b128 v[68:71], v11 offset:64')
    a.ds('ds_read_b64 v[72:73], v13 offset:128')
    a.e(f'v_lshlrev_b32 v11, 4, v12\nv_add_u32 v11, {L_PAR}, v11\nv_lshlrev_b32 v10, 5, v12\nv_add_u32 v10, {L_PAR}, v10')
    a.wait_all(vm=False)
    ring.limit = ring.total
    ring.sync(0, min(100, 4 * ring.issued))
    for n, r in enumerate((V_GA, V_SB, V_S2, V_GB)):
        for k, (v, off) in enumerate(((10, 0), (10, 16), (10, 128), (10, 144), (11, 256))):
            a.ds(f'ds_read_b128 {vr(r + 4 * k, 4)}, v{v} offset:{320 * n + off}')
    for n in range(10):
        g.unpack(V_X1 + 2 * n, V_X1 + 2 * n + 1, 64 + n)
    g.stamp('prep')
    g.poll_check(fo, tok)
    g.stamp('oready')
    ot = {}
    for q in range(10):
        for k in range(2):
            if q and q % 4 == 0:
                a.e(f's_add_u32 {sr(BB0 + k)}, {sr(BB0 + k)}, 4096')
            ot[q, k] = a.vmem(f'buffer_load_dwordx4 {vr(128 + 8 * q + 4 * k, 4)}, v1, {sr(R_WS, 4)}, {sr(BB0 + k)} offen offset:{(q % 4) * 1024} sc1')
    g.advance_epoch()
    budget = [cfg.r2]

    def hook(q, n):
        if n in (6, 8) and q >= 2 and budget[0] > 0 and ring.can_issue():
            ring.issue()
            budget[0] -= 1
    pair_gemm(g, ring, 0, 100, list(range(10)), lambda q, k: vr(128 + 8 * q + 4 * k, 4), ot, hook)
    g.stamp('p2mma')
    exchange(g, 64)
    ring.consumed = 100
    for n in range(10):
        a.e(f'v_pk_fma_f32 {vr(V_X1 + 2 * n, 2)}, {vr(64 + 2 * n, 2)}, {vr(V_GA + 2 * n, 2)}, {vr(V_X1 + 2 * n, 2)}')
    for n in range(10):
        a.e(f'v_cvt_pk_bf16_f32 {vr(128 + n)}, {vr(V_X1 + 2 * n)}, {vr(V_X1 + 2 * n + 1)}')
    a.e(f's_mov_b32 {sr(T + 2)}, 0x3f803f80\nv_mov_b32 v64, 0\nv_mov_b32 v65, 0\nv_mov_b32 v68, 0\nv_mov_b32 v69, 0')
    for n in range(10):
        d = 64 + 4 * (n & 1)
        a.e(f'v_dot2c_f32_bf16 {vr(d)}, {sr(T + 2)}, {vr(128 + n)}\nv_dot2c_f32_bf16 {vr(d + 1)}, {vr(128 + n)}, {vr(128 + n)}')
    a.e(f's_lshl_b32 {sr(T)}, {sr(S_M2)}, 13\ns_lshl_b32 {sr(T + 1)}, {sr(S_W)}, 8\ns_add_u32 {sr(T)}, {sr(T)}, {sr(T + 1)}\ns_add_u32 {sr(T + 14)}, {sr(T)}, {WS_ST}')
    a.e(f's_lshl_b32 {sr(T + 1)}, {sr(S_N2)}, 10\ns_add_u32 {sr(T + 1)}, {sr(T + 1)}, {sr(T + 14)}')
    a.e('v_pk_add_f32 v[64:65], v[64:65], v[68:69]')
    g.sum_rows((64, 65), (66, 67), (4, 5))
    a.e(f'v_mov_b32 v66, {vr(V_TAG)}\nv_mov_b32 v67, {vr(V_TAG + 1)}\ns_mov_b64 exec, 0xffff')
    a.vmem(f'buffer_store_dwordx4 v[64:67], v1, {sr(R_WS, 4)}, {sr(T + 1)} offen sc1')
    a.e('s_mov_b64 exec, -1')
    g.stamp('stpub')
    ring.issue_n(cfg.r3)
    for n in range(10):
        g.unpack(V_X1 + 2 * n, V_X1 + 2 * n + 1, 128 + n)
    a.e('v_lshrrev_b32 v9, 4, v0\nv_and_b32 v10, 0xf0, v1\nv_lshl_add_u32 v11, v9, 11, v10')
    a.e('v_lshrrev_b32 v9, 1, v9\nv_lshl_add_u32 v13, v9, 8, v10')
    a.e(f's_lshl_b32 {sr(T + 2)}, {sr(S_M2)}, 2\ns_add_u32 {sr(T + 2)}, {sr(T + 2)}, {sr(S_W)}\ns_mul_i32 {sr(T + 2)}, {sr(T + 2)}, 20480')
    a.e(f's_mul_i32 {sr(T + 3)}, {sr(S_N2)}, 2560\ns_add_u32 {sr(T + 2)}, {sr(T + 2)}, {sr(T + 3)}\ns_add_u32 {sr(T + 2)}, {sr(T + 2)}, {WS_Y}')
    g.wave_flag_off(T + 6, S_M2, 8, S_N2, WS_FY)
    g.poll([(f'buffer_load_dwordx4 v[68:71], v11, {sr(R_WS, 4)}, {sr(T + 14)} offen sc1', 70),
            (f'buffer_load_dwordx4 v[72:75], v11, {sr(R_WS, 4)}, {sr(T + 14)} offen offset:1024 sc1', 74)])
    g.stamp('stready')
    a.e('v_pk_add_f32 v[64:65], v[68:69], v[72:73]')
    g.sum_rows((64, 65), (66, 67), (4, 5))
    a.e('v_mul_f32 v64, 0x3acccccd, v64\nv_mul_f32 v66, 0x3acccccd, v65\nv_fma_f32 v66, -v64, v64, v66\nv_max_f32 v66, 0, v66')
    a.e('v_add_f32 v66, 0x3727c5ac, v66\nv_rsq_f32 v66, v66')
    order = (8, 9, 0, 1, 2, 3, 4, 5, 6, 7)
    for n in order:
        a.e(f'v_pk_add_f32 {vr(68 + 2 * n, 2)}, {vr(V_X1 + 2 * n, 2)}, v[64:65] op_sel_hi:[1,0] neg_lo:[0,1] neg_hi:[0,1]')
    for n in order:
        a.e(f'v_pk_mul_f32 {vr(68 + 2 * n, 2)}, {vr(68 + 2 * n, 2)}, v[66:67] op_sel_hi:[1,0]')
    for n in order:
        a.e(f'v_pk_fma_f32 {vr(68 + 2 * n, 2)}, {vr(68 + 2 * n, 2)}, {vr(V_S2 + 2 * n, 2)}, {vr(V_SB + 2 * n, 2)}')
    for n in order:
        a.e(f'v_cvt_pk_bf16_f32 {vr(128 + n)}, {vr(68 + 2 * n)}, {vr(69 + 2 * n)}')
    a.e('v_permlane16_swap_b32 v136, v138\nv_permlane16_swap_b32 v137, v139')
    a.vmem(f'buffer_store_dwordx4 v[128:131], v1, {sr(R_WS, 4)}, {sr(T + 2)} offen sc1')
    a.vmem(f'buffer_store_dwordx4 v[132:135], v1, {sr(R_WS, 4)}, {sr(T + 2)} offen offset:1024 sc1')
    a.e('s_mov_b32 exec_lo, 0xffff\ns_mov_b32 exec_hi, 0xffff')
    tok = a.vmem(f'buffer_store_dwordx4 v[136:139], v13, {sr(R_WS, 4)}, {sr(T + 2)} offen offset:2048 sc1')
    a.e('s_mov_b64 exec, -1')
    g.stamp('yst')
    ring.issue_n(cfg.r4)
    a.wait(vm=tok)
    g.flag(T + 6)
    g.stamp('ypub')


def silu_items(G0, U0, G1, U1, E, dst, packed=False):
    G = [G0 + i for i in range(4)] + ([G1 + i for i in range(4)] if G1 is not None else [])
    U = [U0 + i for i in range(4)] + ([U1 + i for i in range(4)] if U1 is not None else [])
    n = len(G)
    it = []
    if packed:
        it += [f'v_pk_mul_f32 {vr(E + i, 2)}, {vr(G[i], 2)}, {sr(S_L2E, 2)} neg_lo:[1,0] neg_hi:[1,0]' for i in range(0, n, 2)]
        it += [f'v_exp_f32 {vr(E + i)}, {vr(E + i)}' for i in range(n)]
        it += [f'v_pk_mul_f32 {vr(G[i], 2)}, {vr(G[i], 2)}, {vr(U[i], 2)}' for i in range(0, n, 2)]
        it += [f'v_pk_add_f32 {vr(E + i, 2)}, {vr(E + i, 2)}, 1.0 op_sel_hi:[1,0]' for i in range(0, n, 2)]
        it += [f'v_rcp_f32 {vr(E + i)}, {vr(E + i)}' for i in range(n)]
        it += [f'v_pk_mul_f32 {vr(G[i], 2)}, {vr(G[i], 2)}, {vr(E + i, 2)}' for i in range(0, n, 2)]
    else:
        it += [f'v_mul_f32 {vr(E + i)}, 0xbfb8aa3b, {vr(G[i])}' for i in range(n)]
        for i in range(n):
            it += [f'v_exp_f32 {vr(E + i)}, {vr(E + i)}', f'v_mul_f32 {vr(G[i])}, {vr(G[i])}, {vr(U[i])}']
        it += [f'v_add_f32 {vr(E + i)}, 1.0, {vr(E + i)}' for i in range(n)]
        it += [f'v_rcp_f32 {vr(E + i)}, {vr(E + i)}' for i in range(n)]
        it += [f'v_mul_f32 {vr(G[i])}, {vr(G[i])}, {vr(E + i)}' for i in range(n)]
    it += [f'v_cvt_pk_bf16_f32 {vr(dst + i // 2)}, {vr(G[i])}, {vr(G[i + 1])}' for i in range(0, n, 2)]
    return it


def phase34(g, ring):
    a, cfg = g.a, g.cfg
    a.c('phase 3: gate / up projection in two passes')
    YB0, YB1, HA, HBo, FA, FB = T + 8, T + 9, T + 10, T + 11, T + 12, T + 13
    a.e(f's_lshl_b32 {sr(T)}, {sr(S_G3)}, 2\ns_add_u32 {sr(T)}, {sr(T)}, {sr(S_W)}')
    a.e(f's_lshr_b32 {sr(T + 1)}, {sr(T)}, 1\ns_lshl_b32 {sr(T + 1)}, {sr(T + 1)}, 5\ns_and_b32 {sr(T + 2)}, {sr(S_W)}, 1\ns_lshl_b32 {sr(T + 2)}, {sr(T + 2)}, 1')
    a.e(f's_add_u32 {sr(T + 1)}, {sr(T + 1)}, {sr(T + 2)}\ns_lshl_b32 {sr(T + 1)}, {sr(T + 1)}, 7\ns_add_u32 {sr(T + 14)}, {sr(T + 1)}, {WS_FY}')
    a.e('v_bfe_u32 v12, v0, 1, 3\nv_and_b32 v13, 1, v0\nv_lshl_add_u32 v12, v12, 2, v13\nv_lshlrev_b32 v12, 7, v12')
    ring.issue_n(99)
    fy = [(f'buffer_load_dwordx2 v[14:15], v12, {sr(R_WS, 4)}, {sr(T + 14)} offen sc1', 14)]
    tok = g.poll_issue(fy)
    a.e(f's_mul_i32 {sr(YB0)}, {sr(T)}, 40960\ns_add_u32 {sr(YB0)}, {sr(YB0)}, {WS_Y}\ns_add_u32 {sr(YB1)}, {sr(YB0)}, 20480')
    a.e(f's_mul_i32 {sr(HA)}, {sr(T)}, 110592\ns_add_u32 {sr(HA)}, {sr(HA)}, {WS_HH}\ns_lshr_b32 {sr(T)}, {sr(S_J3)}, 3\ns_mul_i32 {sr(T)}, {sr(T)}, {108 * 256}')
    a.e(f's_add_u32 {sr(HA)}, {sr(HA)}, {sr(T)}\ns_bfe_u32 {sr(T)}, {sr(S_J3)}, 0x20001\ns_mul_i32 {sr(T)}, {sr(T)}, 11\ns_and_b32 {sr(T + 1)}, {sr(S_J3)}, 1')
    a.e(f's_mul_i32 {sr(T + 2)}, {sr(T + 1)}, 6\ns_add_u32 {sr(T)}, {sr(T)}, {sr(T + 2)}\ns_add_u32 {sr(T)}, {sr(T)}, 64\ns_lshl_b32 {sr(T)}, {sr(T)}, 8\ns_add_u32 {sr(HBo)}, {sr(HA)}, {sr(T)}')
    a.e(f's_and_b32 {sr(T)}, {sr(S_J3)}, 7\ns_lshl_b32 {sr(T)}, {sr(T)}, 11\ns_add_u32 {sr(HA)}, {sr(HA)}, {sr(T)}')
    a.e('v_add_u32 v10, 0xd800, v1\nv_bfe_u32 v9, v0, 4, 1\nv_mul_u32_u24 v9, 0xd800, v9\nv_and_b32 v11, 0xf0, v1\nv_add_u32 v9, v9, v11\nv_lshrrev_b32 v11, 5, v0\nv_lshl_add_u32 v9, v11, 8, v9')
    a.e(f's_cmp_eq_u32 {sr(T + 1)}, 1\ns_cselect_b32 {sr(T + 3)}, 32, 64\nv_mov_b32 v11, {OOB}\nv_cmp_gt_u32 vcc, {sr(T + 3)}, v0\nv_cndmask_b32 v9, v11, v9, vcc')
    g.wave_flag_off(FA, S_G3, 16, S_J3, WS_FHA)
    a.e(f's_add_u32 {sr(FB)}, {sr(FA)}, {WS_FHB - WS_FHA}')
    a.e(f's_lshl_b32 {sr(T + 2)}, {sr(S_M2)}, 2\ns_add_u32 {sr(T + 2)}, {sr(T + 2)}, {sr(S_W)}\ns_xor_b32 {sr(T + 3)}, {sr(T + 2)}, 1')
    a.e(f's_and_b32 {sr(T + 1)}, {sr(S_W)}, 1\ns_mul_i32 {sr(T + 4)}, {sr(T + 1)}, 27648\ns_add_u32 {sr(T + 4)}, {sr(T + 4)}, {WS_HH}')
    for k in range(2):
        a.e(f's_mul_i32 {sr(BB0 + k)}, {sr(T + 2 + k)}, 55296\ns_add_u32 {sr(BB0 + k)}, {sr(BB0 + k)}, {sr(T + 4)}')
    srd(a, R_OUT, S_OUT, 2048 * 1280)
    g.poll_check(fy, tok)
    g.stamp('yready')
    yt = {}

    def yload(s, tt):
        sb = YB0 + tt
        if s and s % 4 == 0:
            a.e(f's_add_u32 {sr(sb)}, {sr(sb)}, 4096')
        yt[s, tt] = a.vmem(f'buffer_load_dwordx4 {ar(8 * s + 4 * tt, 4)}, v1, {sr(R_WS, 4)}, {sr(sb)} offen offset:{(s % 4) * 1024} sc1')
    for s in range(cfg.ypre):
        yload(s, 0)
        yload(s, 1)
    yq = [(s, tt) for s in range(cfg.ypre, 20) for tt in range(2)]
    SY = 24
    ring.sync(F_A, F_A + 2 * SY + 8)
    LA = 6
    rt = {}

    def wread(f):
        rt[f] = a.ds(f'ds_read_b128 {ar(160 + 4 * (f % 8), 4)}, {ring.lds(VN0, f)}')
    for f in range(F_A, F_A + LA):
        wread(f)

    def acc_of(f, tt):
        if f < F_B:
            s, fi = divmod(f - F_A, 8)
            return s, 64 + 32 * tt + 4 * fi
        s, fi = divmod(f - F_B, 6)
        return s, 128 + 24 * tt + 4 * fi
    ht = {}

    def breg(q, k):
        if q < 7:
            return ar(200 + 8 * q + 4 * k, 4)
        if q < 14:
            return vr(192 + 8 * (q - 7) + 4 * k, 4)
        return ar(8 * (q - 14) + 4 * k, 4)

    def hload(q, k):
        if q and q % 4 == 0:
            a.e(f's_add_u32 {sr(BB0 + k)}, {sr(BB0 + k)}, 4096')
        ht[q, k] = a.vmem(f'buffer_load_dwordx4 {breg(q, k)}, v1, {sr(R_WS, 4)}, {sr(BB0 + k)} offen offset:{(q % 4) * 1024} sc1')
    st = {}
    fa = [(f'buffer_load_dwordx2 v[14:15], {vr(VF8)}, {sr(R_WS, 4)}, {sr(T + 14)} offen sc1', 14)]
    hq = []
    for f in range(F_A, F_2):
        s, _ = acc_of(f, 0)
        first_of_step = f == (F_A + 8 * s if f < F_B else F_B + 6 * s)
        a.wait(vm=yt[s, 1] if f < F_B and first_of_step else None, lg=rt[f])
        if f == F_B:
            g.stamp('passA')
            for tt in range(2):
                for pp in range(2):
                    b = 64 + 32 * tt + 16 * pp
                    g.fq.extend(silu_items(b, b + 4, b + 8, b + 12, 176 + 8 * pp, b + 4))

                    def sto(tt=tt, pp=pp, b=b):
                        st['A'] = a.vmem(f'buffer_store_dwordx4 {vr(b + 4, 4)}, v{1 if tt == 0 else 10}, {sr(R_WS, 4)}, {sr(HA)} offen offset:{1024 * pp} sc1')
                    g.fq.append(sto)
            g.fq.append(lambda: st.__setitem__('Af', f))
        for tt in range(2):
            _, acc = acc_of(f, tt)
            a.e(f'v_mfma_f32_16x16x32_bf16 {vr(acc, 4)}, {ar(160 + 4 * (f % 8), 4)}, {ar(8 * s + 4 * tt, 4)}, {vr(acc, 4) if s else 0}')
            if tt == 0 and f + LA < F_2:
                wread(f + LA)
            if tt == 1:
                if yq and f % 2 == 0:
                    yload(*yq.pop(0))
                elif hq:
                    hload(*hq.pop(0))
                elif ring.can_issue() and (f % 2 == 1 or not yq):
                    ring.issue()
            if f >= F_B:
                g.fill(cfg.fillb - (tt == 0))
        if (f - F_A) % SY == SY - 1 and f + 1 < F_2:
            ring.sync(f + 1, min(f + 1 + 2 * SY + 8, 4 * ring.issued))
        if 'Af' in st and 'Aflag' not in st and f >= st['Af'] + 20:
            a.wait(vm=st['A'])
            g.flag(FA)
            st['Aflag'] = f
        if f == F_B + 6 * cfg.chk_a:
            a.e(f's_add_u32 {sr(T + 14)}, {sr(FLG8)}, {WS_FHA}')
            st['fa'] = g.poll_issue(fa)
    g.flush()
    if 'Aflag' not in st:
        a.wait(vm=st['A'])
        g.flag(FA)
    if 'fa' not in st:
        a.e(f's_add_u32 {sr(T + 14)}, {sr(FLG8)}, {WS_FHA}')
        st['fa'] = g.poll_issue(fa)
    g.stamp('passB')
    g.poll_check(fa, st['fa'])
    g.stamp('haready')
    for q in range(16):
        hload(q, 0)
        hload(q, 1)
    ring.sync(F_2, min(F_2 + 30, 4 * ring.issued))
    items = []
    for tt in range(2):
        b = 128 + 24 * tt
        items += silu_items(b, b + 4, b + 8, b + 12, 176 + 8 * tt, b + 4, not cfg.epib_inline)

        def stb(tt=tt, b=b):
            a.vmem(f'buffer_store_dwordx4 {vr(b + 4, 4)}, v{1 if tt == 0 else 10}, {sr(R_WS, 4)}, {sr(HBo)} offen sc1')
        items.append(stb)
    items += silu_items(144, 148, 168, 172, 176, 148, not cfg.epib_inline)
    items += ['v_permlane16_swap_b32 v148, v150', 'v_permlane16_swap_b32 v149, v151']

    def stc():
        st['B'] = a.vmem(f'buffer_store_dwordx4 v[148:151], v9, {sr(R_WS, 4)}, {sr(HBo)} offen offset:1024 sc1')
        st['Bq'] = st.get('q', -1)
    items.append(stc)
    g.fq.extend(items)
    if not cfg.epib_inline:
        g.flush()
    g.stamp('hbst')
    a.c('phase 4: down projection, residual')
    fb = [(f'buffer_load_dwordx2 v[14:15], {vr(VF8)}, {sr(R_WS, 4)}, {sr(T + 14)} offen sc1', 14)]

    def hook_a(q, n):
        st['q'] = q
        if g.fq:
            g.fill(1 if n < 5 else 2)
        elif n in (6, 7, 8) and ring.can_issue():
            ring.issue()
        if n == 9 and 'B' in st and 'Bflag' not in st and q >= st['Bq'] + 4:
            a.wait(vm=st['B'])
            g.flag(FB)
            st['Bflag'] = q
        if n == 9 and q == 12:
            a.e(f's_add_u32 {sr(T + 14)}, {sr(FLG8)}, {WS_FHB}')
            st['fb'] = g.poll_issue(fb)
    pair_gemm(g, ring, F_2, F_END, list(range(16)), breg, ht, hook_a, True, False)
    assert 'Bflag' in st and not g.fq
    g.stamp('p4a')
    g.poll_check(fb, st['fb'])
    g.stamp('hbready')
    for q in range(16, 27):
        hload(q, 0)
        hload(q, 1)

    def hook_b(q, n):
        if n in (6, 7, 8) and ring.can_issue():
            ring.issue()
    pair_gemm(g, ring, F_2, F_END, list(range(16, 27)), breg, ht, hook_b, False, True)
    g.stamp('p4mma')
    a.e(f's_mul_i32 {sr(T + 2)}, {sr(S_W)}, 2560\nv_and_b32 v11, 15, v0\nv_mul_u32_u24 v11, 0xa0, v11\nv_add_u32 v11, {sr(T + 2)}, v11\nv_lshrrev_b32 v12, 4, v0')
    a.e(f'v_lshl_add_u32 v13, v12, 3, v11\nv_lshl_add_u32 v11, v12, 4, v11\nv_add_u32 v12, {sr(T + 2)}, v1')
    exchange(g, 64)
    for n in range(10):
        a.e(f'v_pk_fma_f32 {vr(64 + 2 * n, 2)}, {vr(64 + 2 * n, 2)}, {vr(V_GB + 2 * n, 2)}, {vr(V_X1 + 2 * n, 2)}')
    for n in range(10):
        a.e(f'v_cvt_pk_bf16_f32 {vr(128 + n)}, {vr(64 + 2 * n)}, {vr(65 + 2 * n)}')
    a.ds('ds_write_b128 v11, v[128:131]')
    a.ds('ds_write_b128 v11, v[132:135] offset:64')
    a.ds('ds_write_b64 v13, v[136:137] offset:128')
    tk = [a.ds(f'ds_read_b128 {vr(140 + 4 * n, 4)}, v12 offset:{1024 * n}') for n in range(3)]
    for n in range(3):
        a.wait(lg=tk[n])
        if n == 2:
            a.e('s_mov_b32 exec_hi, 0')
        a.vmem(f'buffer_store_dwordx4 {vr(140 + 4 * n, 4)}, {vr(61 + n)}, {sr(R_OUT, 4)}, {sr(XOFF)} offen')
    a.e('s_mov_b64 exec, -1')
```

```python
import sys
from collections import deque
from asmlib import Asm, pad_hazards, vr, ar, sr

NAME = 'adaLN_cond__linear_kernel_hedgehog__glu_gated_swiglu__prompt'

WS_EPOCH = 0
WS_FW = 0x1000
WS_FRT = 0x4000
WS_FH = 0x10000
WS_FKV = 0x30000
WS_FO = 0x50000
WS_FY = 0x70000
WS_FHA = 0x90000
WS_FHB = 0xB0000
WS_MOD = 0xD0000
WS_ST = 0xE0000
WS_KVP = 0x120000
WS_WQ = 0x200000
WS_H = 0x480000
WS_O = 0x700000
WS_Y = 0x980000
WS_WO = 0xC00000
WS_W13 = 0xD00000
WS_W2 = 0x1180000
WS_HH = 0x1400000
WS_SPARE = 0x1AC0000
WS_DBG = 0x1B00000
WS_SIZE = 0x1C00000
OOB_VAL = 0x40000000
OOB = 's3'

L_XS = 20480
L_JA = 32768
L_JB = 102400
L_TS = 51200
L_MISC = 153600
L_MODP = L_XS
L_SILU = L_MISC + 5120
L_LNRED = L_MISC + 6400
L_WPHI = L_MISC + 6656
L_KVR = L_MISC
L_KVZ = L_KVR + 3840
L_PAR = L_MISC + 8704
L_MT2 = 135168
L_XCH = 143360
L_XR = 143360
TP = 336
RING = 140

S_X, S_WQKV, S_WPHI, S_WO, S_W1, S_W3, S_W2, S_C, S_WMOD, S_OUT, S_DBG, S_WS = 4, 6, 8, 10, 14, 16, 18, 20, 22, 24, 26, 28
S_TAG = 30
R_WS, R_A, R_B, R_C, R_X, R_OUT = 32, 36, 40, 44, 48, 52
S_W, S_XC, S_I, S_G1, S_J1, S_M2, S_N2, S_G3, S_J3 = 56, 57, 58, 59, 60, 61, 62, 63, 64
S_SPIN = 65
S_SPARE = 21
S_TB = 26
S_L2E = 66
T = 68
P = 84
S_PM = 96
S_STAMP = 98
JB_OFF, JC_OFF = 4, 8

V_TAG = 2
V_STAMP = 255
VA0, VA1, VA2, VTW0, VTW1, VTR0, VTR1, VKS, VGL, VKW, VO0, VO1 = range(16, 28)
VOS0, VOS1, VF128, VFW = 36, 37, 38, 39
VGM, VGT, VGB = 244, 245, 246


class Cfg:
    diag = False
    probe = None
    stop = None
    map2 = '8x1'
    map3 = '4x2'
    spin = 200000
    pfcode = 1
    nt = 1
    skip = 'issued,prep,yst,xin'
    ackw = 1
    ja_at = 1
    map1 = '2x4'
    cold0 = 58
    coldp = 4
    late1 = 4
    late2 = 0
    jfin = 0
    wspan = 0
    kvpub = 19
    jb_at = 1
    w1b = 20
    r5 = 9
    w1a = 10
    hpre = 8
    r0 = 25
    r1 = 0
    r2 = 10
    r3 = 8
    r4 = 8
    ypre = 8
    fillb = 2
    lead = 80
    wait2 = 0
    puba = 12
    pubb = 3
    chk_b = 9
    chk_a = 11
    epib_inline = 0


def srd(a, r, ptr, size):
    a.e(f's_mov_b32 {sr(r)}, {sr(ptr)}\ns_mov_b32 {sr(r + 1)}, {sr(ptr + 1)}\n'
        f's_mov_b32 {sr(r + 2)}, {size}\ns_mov_b32 {sr(r + 3)}, 0x20000')


class Gen:
    def __init__(self, cfg):
        self.cfg = cfg
        self.a = Asm()
        self.stamps = []
        self.nt = ' nt' if cfg.nt else ''
        self.fq = deque()

    def stamp(self, name):
        a = self.a
        if self.cfg.probe:
            if name == 'start':
                a.e(f's_memrealtime {sr(S_STAMP, 2)}')
                a.wait_all(vm=False)
            if name == self.cfg.probe:
                a.e(f's_memrealtime {sr(S_STAMP + 2, 2)}')
                a.wait_all(vm=False)
            return
        if not self.cfg.diag or name in self.cfg.skip.split(','):
            return
        idx = len(self.stamps)
        self.stamps.append(name)
        a.e(f's_memrealtime {sr(S_STAMP, 2)}\ns_memtime {sr(S_STAMP + 2, 2)}')
        a.wait_all(vm=False)
        a.e(f'v_writelane_b32 {vr(V_STAMP)}, {sr(S_STAMP)}, {idx}\nv_writelane_b32 {vr(V_STAMP)}, {sr(S_STAMP + 2)}, {idx + 32}')

    def barrier(self):
        self.a.e('s_barrier')

    def fill(self, n):
        while n > 0 and self.fq:
            f = self.fq.popleft()
            if callable(f):
                f()
            else:
                self.a.e(f)
            n -= 1

    def flush(self):
        self.fill(1 << 30)

    def _cmp_tags(self, loads):
        a = self.a
        first = True
        byte = [-t for _, t in loads if not isinstance(t, tuple) and t < 0]
        if byte:
            for n, b in enumerate(byte):
                for r in range(4):
                    a.e(f'v_xor_b32 {vr(b + r)}, {sr(S_TB + r)}, {vr(b + r)}')
                a.e(f'v_or3_b32 v9, {vr(b)}, {vr(b + 1)}, {"v9" if n else vr(b)}\nv_or3_b32 v9, {vr(b + 2)}, {vr(b + 3)}, v9')
            a.e('v_and_b32 v9, 0xff, v9\nv_cmp_ne_u32 vcc, 0, v9')
            first = False
        for _, tags in loads:
            for t in (tags if isinstance(tags, tuple) else (tags,)):
                if t < 0:
                    continue
                if first:
                    a.e(f'v_cmp_ne_u64 vcc, {sr(S_TAG, 2)}, {vr(t, 2)}')
                    first = False
                else:
                    a.e(f'v_cmp_ne_u64 {sr(S_PM, 2)}, {sr(S_TAG, 2)}, {vr(t, 2)}\ns_or_b64 vcc, vcc, {sr(S_PM, 2)}')

    def poll_issue(self, loads):
        tok = None
        for text, _ in loads:
            tok = self.a.vmem(text)
        return tok

    def poll_check(self, loads, tok):
        a = self.a
        top, done = a.newlabel('poll'), a.newlabel('polled')
        a.wait(vm=tok)
        self._cmp_tags(loads)
        a.e(f's_cbranch_vccz {done}\ns_mov_b32 {sr(S_SPIN)}, {self.cfg.spin}')
        a.label(top)
        for text, _ in loads:
            a.e(text)
        a.e('s_waitcnt vmcnt(0)')
        self._cmp_tags(loads)
        a.e(f's_cbranch_vccz {done}')
        a.e(f's_sub_u32 {sr(S_SPIN)}, {sr(S_SPIN)}, 1\ns_cmp_lg_u32 {sr(S_SPIN)}, 0\ns_cbranch_scc1 {top}')
        a.label(done)

    def poll(self, loads):
        self.poll_check(loads, self.poll_issue(loads))

    def flag(self, soff):
        a = self.a
        a.e('s_mov_b64 exec, 1')
        tok = a.vmem(f'buffer_store_dwordx2 {vr(V_TAG, 2)}, off, {sr(R_WS, 4)}, {sr(soff)} sc1')
        a.e('s_mov_b64 exec, -1')
        return tok

    def wg_flag_off(self, dst, hi, mul, lo, base, shift=7, spare=False):
        a = self.a
        a.e(f's_mul_i32 {sr(dst)}, {sr(hi)}, {mul}')
        if lo is not None:
            a.e(f's_add_u32 {sr(dst)}, {sr(dst)}, {sr(lo)}')
        a.e(f's_lshl_b32 {sr(dst)}, {sr(dst)}, {shift}\ns_add_u32 {sr(dst)}, {sr(dst)}, {base}')
        a.e(f's_cmp_eq_u32 {sr(S_W)}, 0\ns_cselect_b32 {sr(dst)}, {sr(dst)}, {sr(S_SPARE) if spare else OOB}')

    def publish(self, tok, soff):
        self.a.wait(vm=tok)
        self.barrier()
        return self.flag(soff)

    def wave_flag_off(self, dst, hi, mul, lo, base, shift=7):
        a = self.a
        a.e(f's_mul_i32 {sr(dst)}, {sr(hi)}, {mul}')
        if lo is not None:
            a.e(f's_add_u32 {sr(dst)}, {sr(dst)}, {sr(lo)}')
        a.e(f's_lshl_b32 {sr(dst)}, {sr(dst)}, 2\ns_add_u32 {sr(dst)}, {sr(dst)}, {sr(S_W)}')
        a.e(f's_lshl_b32 {sr(dst)}, {sr(dst)}, {shift}\ns_add_u32 {sr(dst)}, {sr(dst)}, {base}')

    def unpack(self, lo, hi, src):
        self.a.e(f'v_lshlrev_b32 {vr(lo)}, 16, {vr(src)}\nv_and_b32 {vr(hi)}, 0xffff0000, {vr(src)}')

    def round_pair(self, lo, tmp):
        self.a.e(f'v_cvt_pk_bf16_f32 {vr(tmp)}, {vr(lo)}, {vr(lo + 1)}')
        self.unpack(lo, lo + 1, tmp)

    def sum_rows(self, regs, tmps, bits):
        a = self.a
        for b in bits:
            if b == 3:
                for r in regs:
                    a.e(f'v_add_f32_dpp {vr(r)}, {vr(r)}, {vr(r)} row_ror:8 row_mask:0xf bank_mask:0xf')
            else:
                for r, t in zip(regs, tmps):
                    a.e(f'v_mov_b32 {vr(t)}, {vr(r)}')
                for r, t in zip(regs, tmps):
                    a.e(f'v_permlane{16 if b == 4 else 32}_swap_b32 {vr(r)}, {vr(t)}')
                for r, t in zip(regs, tmps):
                    a.e(f'v_add_f32 {vr(r)}, {vr(r)}, {vr(t)}')

    def frag16_addr(self, vd, t):
        a = self.a
        a.e(f'v_bfe_u32 {vr(t)}, v0, 2, 2\nv_lshlrev_b32 {vr(vd)}, 8, {vr(t)}\nv_and_b32 {vr(t)}, 2, {vr(t)}')
        a.e(f'v_lshrrev_b32 {vr(t + 1)}, 4, v0\nv_xor_b32 {vr(t)}, {vr(t)}, {vr(t + 1)}\nv_lshl_add_u32 {vr(vd)}, {vr(t)}, 6, {vr(vd)}')
        a.e(f'v_add_u32 {vr(vd)}, {vr(vd)}, v8')

    def gemv_role(self, first, count, s_src, s_dst):
        a = self.a
        a.e(f's_lshr_b32 {sr(T)}, {sr(S_I)}, 2\ns_lshl_b32 {sr(T)}, {sr(T)}, 3\ns_add_u32 {sr(T)}, {sr(T)}, {sr(S_XC)}')
        a.e(f's_and_b32 {sr(T + 1)}, {sr(S_I)}, 3\ns_mul_i32 {sr(s_src)}, {sr(T + 1)}, 160\ns_mul_i32 {sr(s_dst)}, {sr(S_W)}, 40\ns_add_u32 {sr(s_src)}, {sr(s_src)}, {sr(s_dst)}')
        a.e(f's_mul_i32 {sr(s_src)}, {sr(s_src)}, 7680\ns_lshl_b32 {sr(s_dst)}, {sr(T)}, 7\ns_add_u32 {sr(s_src)}, {sr(s_src)}, {sr(s_dst)}')
        a.e(f's_lshl_b32 {sr(s_dst)}, {sr(T)}, 2\ns_add_u32 {sr(s_dst)}, {sr(s_dst)}, {sr(T + 1)}\ns_lshl_b32 {sr(s_dst)}, {sr(s_dst)}, 2\ns_add_u32 {sr(s_dst)}, {sr(s_dst)}, {sr(S_W)}')
        a.e(f's_lshl_b32 {sr(s_dst)}, {sr(s_dst)}, 6\ns_add_u32 {sr(s_dst)}, {sr(s_dst)}, {WS_MOD}')
        a.e(f's_sub_u32 {sr(T)}, {sr(T)}, {first}\ns_cmp_lt_u32 {sr(T)}, {count}\ns_cselect_b32 {sr(s_src)}, {sr(s_src)}, {OOB}\ns_cselect_b32 {sr(s_dst)}, {sr(s_dst)}, {OOB}')

    def gemv_dma(self, n, s_src, lds):
        a = self.a
        a.e(f's_mul_i32 {sr(T)}, {sr(S_W)}, 5120\ns_add_u32 m0, {sr(T)}, {lds + n * 1024}\ns_add_u32 {sr(T)}, {sr(s_src)}, {n * 8 * 7680}')
        return a.vmem(f'buffer_load_dwordx4 {vr(VGM)}, {sr(R_A, 4)}, {sr(T)} offen{self.nt} lds')

    def gemv_items(self, lds, s_dst, base):
        a = self.a
        tk = {}
        A, B, D = base, base + 20, base + 40
        it = [f'v_add_u32 {vr(D + 4)}, {lds}, {vr(VGT)}']
        for s in range(5):
            it.append(lambda s=s: a.ds(f'ds_read_b128 {vr(B + 4 * s, 4)}, {vr(VGB)} offset:{64 * s}'))
            it.append(lambda s=s: a.ds(f'ds_read_b64_tr_b16 {vr(A + 4 * s, 2)}, {vr(D + 4)} offset:{4096 * s}'))
            it.append(lambda s=s: tk.__setitem__(s, a.ds(f'ds_read_b64_tr_b16 {vr(A + 4 * s + 2, 2)}, {vr(D + 4)} offset:{4096 * s + 512}')))
        for s in range(5):
            def mm(s=s):
                a.wait(lg=tk[s])
                a.e(f'v_mfma_f32_16x16x32_bf16 {vr(D, 4)}, {vr(A + 4 * s, 4)}, {vr(B + 4 * s, 4)}, {vr(D, 4) if s else 0}')
            it.append(mm)

        def fin():
            for op in ('v_add_u32 {d}, 0x80, {d}', 'v_and_b32 {d}, 0xffffff00, {d}', 'v_or_b32 {d}, {t}, {d}'):
                for r in range(4):
                    a.e(op.format(d=vr(D + r), t=sr(S_TB + r)))
            a.e('s_mov_b32 exec_lo, 0x00010001\ns_mov_b32 exec_hi, 0x00010001')
            a.vmem(f'buffer_store_dwordx4 {vr(D, 4)}, v0, {sr(R_WS, 4)}, {sr(s_dst)} offen sc1')
            a.e('s_mov_b64 exec, -1')
        it.append(fin)
        return it

    def mod_finish(self, base, n, s_add):
        a = self.a
        for h in (0, 2):
            a.e(f'v_pk_add_f32 {vr(base + h, 2)}, {vr(base + h, 2)}, {vr(base + 4 + h, 2)}\nv_pk_add_f32 {vr(base + 8 + h, 2)}, {vr(base + 8 + h, 2)}, {vr(base + 12 + h, 2)}')
        for h in (0, 2):
            a.e(f'v_pk_add_f32 {vr(base + h, 2)}, {vr(base + h, 2)}, {vr(base + 8 + h, 2)}')
        self.round_pair(base, base + 4)
        self.round_pair(base + 2, base + 5)
        for h in (0, 2):
            a.e(f'v_pk_add_f32 {vr(base + h, 2)}, {vr(base + h, 2)}, {sr(s_add, 2)}')
        self.round_pair(base, base + 4)
        self.round_pair(base + 2, base + 5)

    def prologue(self):
        a, cfg = self.a, self.cfg
        a.e('s_cmp_ge_u32 s2, 256\ns_cbranch_scc1 L_end')
        a.e('s_load_dwordx16 s[4:19], s[0:1], 0\ns_load_dwordx8 s[20:27], s[0:1], 64\ns_load_dwordx2 s[28:29], s[0:1], 96')
        a.e(f's_mov_b32 s3, {OOB_VAL}')
        a.e('v_lshrrev_b32 v1, 6, v0\nv_and_b32 v0, 63, v0')
        a.e(f'v_readfirstlane_b32 {sr(S_W)}, v1\nv_lshlrev_b32 v1, 4, v0')
        if cfg.diag:
            a.e(f'v_mov_b32 {vr(V_STAMP)}, 0')
        a.e(f's_and_b32 {sr(S_XC)}, s2, 7\ns_lshr_b32 {sr(S_I)}, s2, 3')
        if cfg.pfcode:
            self.prefetch_code()
        a.e('v_bfe_u32 v9, v0, 4, 1\nv_and_b32 v10, 7, v0\nv_xor_b32 v4, v10, v9\nv_lshlrev_b32 v4, 4, v4\nv_lshrrev_b32 v5, 3, v0')
        a.e(f's_mov_b32 {sr(T)}, 1280\nv_xor_b32 v11, v10, v5\nv_lshlrev_b32 v11, 4, v11\nv_mad_u32_u24 v12, v5, {sr(T)}, v11')
        a.e(f's_mov_b32 {sr(T)}, 7680\nv_and_b32 v11, 2, v5\nv_xor_b32 v11, v10, v11\nv_lshlrev_b32 v11, 4, v11\nv_mad_u32_u24 {vr(VGM)}, v5, {sr(T)}, v11')
        a.e(f's_mul_i32 {sr(T + 2)}, s2, 10240\ns_lshl_b32 {sr(T + 1)}, {sr(S_W)}, 7\ns_add_u32 {sr(T + 2)}, {sr(T + 2)}, {sr(T + 1)}')
        a.e(f's_cmp_lt_u32 {sr(S_W)}, 2\ns_cselect_b32 {sr(T + 3)}, {sr(T + 2)}, {OOB}')
        a.e(f's_mul_i32 {sr(T + 5)}, {sr(S_W)}, 3072\ns_add_u32 {sr(T + 5)}, {sr(T + 5)}, {L_XS}')
        self.gemv_role(0, 20, T + 4, P)
        a.e('s_waitcnt lgkmcnt(0)')
        srd(a, R_A, S_WMOD, 640 * 7680)
        srd(a, R_X, S_X, 2048 * 1280)
        srd(a, R_WS, S_WS, WS_SIZE)
        self.stamp('start')

    def prefetch_code(self):
        a = self.a
        a.e(f's_getpc_b64 {sr(T, 2)}')
        a.label('L_pc')
        a.e(f's_and_b32 {sr(T + 2)}, {sr(S_I)}, 1\ns_lshl_b32 {sr(T + 2)}, {sr(T + 2)}, 2\ns_add_u32 {sr(T + 2)}, {sr(T + 2)}, {sr(S_W)}')
        a.e(f's_lshl_b32 {sr(T + 2)}, {sr(T + 2)}, 13\nv_lshlrev_b32 v4, 7, v0\nv_add_u32 v4, {sr(T + 2)}, v4')
        a.e(f'v_min_u32 v4, L_end-L_pc, v4\nv_mov_b32 v5, {sr(T + 1)}\nv_add_co_u32 v4, vcc, {sr(T)}, v4\nv_addc_co_u32 v5, vcc, 0, v5, vcc')
        a.vmem('global_load_dword v254, v[4:5], off')

    def roles(self):
        a, cfg = self.a, self.cfg

        def role(dm, dn, xm_shift, nn_bits_x, i_shift):
            a.e(f's_lshr_b32 {sr(T)}, {sr(S_XC)}, {xm_shift}\ns_lshl_b32 {sr(T)}, {sr(T)}, {5 - i_shift}')
            a.e(f's_lshr_b32 {sr(T + 1)}, {sr(S_I)}, {i_shift}\ns_add_u32 {sr(dm)}, {sr(T)}, {sr(T + 1)}')
            a.e(f's_and_b32 {sr(T)}, {sr(S_XC)}, {(1 << nn_bits_x) - 1}\ns_lshl_b32 {sr(T)}, {sr(T)}, {i_shift}')
            a.e(f's_and_b32 {sr(T + 1)}, {sr(S_I)}, {(1 << i_shift) - 1}\ns_add_u32 {sr(dn)}, {sr(T)}, {sr(T + 1)}')
        role(S_G1, S_J1, *{'8x1': (0, 0, 4), '4x2': (1, 1, 3), '2x4': (2, 2, 2), '1x8': (3, 3, 1)}[cfg.map1])
        role(S_M2, S_N2, *{'8x1': (0, 0, 3), '4x2': (1, 1, 2), '2x4': (2, 2, 1)}[cfg.map2])
        role(S_G3, S_J3, *{'8x1': (0, 0, 4), '4x2': (1, 1, 3), '2x4': (2, 2, 2)}[cfg.map3])
        self.wave_flag_off(S_SPARE, 2, 1, None, WS_SPARE)
        a.e(f's_mov_b32 {sr(S_L2E)}, 0x3fb8aa3b\ns_mov_b32 {sr(S_L2E + 1)}, 0x3fb8aa3b')

    def make_tag(self):
        a = self.a
        a.wait(vm=self.tok_epoch)
        a.e(f'v_readfirstlane_b32 {sr(S_TAG)}, {vr(V_TAG)}\nv_readfirstlane_b32 {sr(S_TAG + 1)}, {vr(V_TAG + 1)}')
        a.e(f's_mul_i32 {sr(S_TAG)}, {sr(S_TAG)}, 1664525\ns_add_u32 {sr(S_TAG)}, {sr(S_TAG)}, 1013904223')
        a.e(f's_mul_i32 {sr(S_TAG + 1)}, {sr(S_TAG + 1)}, 22695477\ns_add_u32 {sr(S_TAG + 1)}, {sr(S_TAG + 1)}, 0x3c6ef35f')
        a.e(f'v_mov_b32 {vr(V_TAG)}, {sr(S_TAG)}\nv_mov_b32 {vr(V_TAG + 1)}, {sr(S_TAG + 1)}')
        for r in range(4):
            a.e(f's_bfe_u32 {sr(S_TB + r)}, {sr(S_TAG)}, {0x80000 + 8 * r}')

    def job_tr_bases(self):
        a = self.a
        a.e('v_lshrrev_b32 v6, 4, v0\nv_lshlrev_b32 v6, 10, v6\nv_bfe_u32 v9, v0, 2, 2\nv_lshl_add_u32 v6, v9, 7, v6')
        a.e('v_lshrrev_b32 v9, 1, v9\nv_and_b32 v8, 3, v0\nv_lshl_or_b32 v9, v8, 1, v9\nv_lshl_add_u32 v6, v9, 4, v6\nv_lshlrev_b32 v8, 4, v8')
        a.e(f's_lshl_b32 {sr(T)}, {sr(S_W)}, 13\ns_add_u32 {sr(P + 3)}, {sr(T)}, {L_JB}\nv_add_u32 v34, {sr(P + 3)}, v6\nv_xor_b32 v35, 16, v34')
        a.e(f's_lshl_b32 {sr(T)}, {sr(S_W)}, 12\ns_add_u32 {sr(T)}, {sr(T)}, {L_JA}\nv_add_u32 v6, {sr(T)}, v6\nv_xor_b32 v7, 16, v6')

    def job_finish_items(self, tok, vb, off, vdest, base):
        a = self.a
        st = {}
        items = [lambda: a.wait(vm=tok())]
        for n in range(4):
            for z in range(2):
                def rd(n=n, z=z):
                    st[n] = a.ds(f'ds_read_b64_tr_b16 {vr(base + 4 * n + 2 * z, 2)}, v{vb + (n >> 1)} offset:{off + z * 512 + (n & 1) * 8}')
                items.append(rd)
        for n in range(4):
            items.append(f'v_add_u32_dpp {vr(base + 16 + n)}, {vr(vdest)}, v8 quad_perm:[{n},{n},{n},{n}] row_mask:0xf bank_mask:0xf')
        for n in range(4):
            def sto(n=n):
                a.wait(lg=st[n])
                self.tok_job = a.vmem(f'buffer_store_dwordx4 {vr(base + 4 * n, 4)}, {vr(base + 16 + n)}, {sr(R_WS, 4)}, 0 offen sc1')
            items.append(sto)
        return items

    def piece_swizzle(self, acc, g):
        self.a.e(f'v_and_b32 {vr(g)}, 2, {vr(g)}\nv_lshrrev_b32 v15, 4, v0\nv_xor_b32 {vr(g)}, {vr(g)}, v15\nv_lshl_add_u32 {vr(acc)}, {vr(g)}, 6, {vr(acc)}')

    def dest_A(self, vd, s_blk, s_kb, s_base):
        a = self.a
        a.e(f's_mul_i32 {sr(T)}, {sr(s_blk)}, 205\ns_lshr_b32 {sr(T)}, {sr(T)}, 11')
        a.e(f's_mul_i32 {sr(T + 1)}, {sr(T)}, 10\ns_sub_u32 {sr(T + 1)}, {sr(s_blk)}, {sr(T + 1)}\ns_lshl_b32 {sr(T + 1)}, {sr(T + 1)}, 4')
        a.e(f'v_and_b32 v9, 15, v0\nv_add_u32 v9, {sr(T + 1)}, v9')
        a.e('v_mul_u32_u24 v10, 103, v9\nv_lshrrev_b32 v10, 9, v10')
        a.e('v_mul_u32_u24 v11, 5, v10\nv_sub_u32 v11, v9, v11')
        a.e('v_and_b32 v12, 1, v10\nv_lshlrev_b32 v14, 1, v12')
        a.e(f's_lshr_b32 {sr(T + 1)}, {sr(T)}, 1\nv_add_u32 v13, {sr(T + 1)}, v14\nv_lshlrev_b32 v13, 8, v13\nv_lshl_add_u32 v13, v11, 10, v13')
        a.e('v_and_b32 v9, 1, v11\nv_add_u32 v9, v9, v14\nv_cmp_gt_u32 vcc, 4, v11\nv_cndmask_b32 v9, v12, v9, vcc')
        a.e('v_lshlrev_b32 v9, 8, v9\nv_lshrrev_b32 v11, 1, v11\nv_lshl_add_u32 v9, v11, 10, v9')
        a.e(f's_cmp_eq_u32 {sr(T)}, 0\ns_cselect_b64 vcc, -1, 0\ns_mul_i32 {sr(T + 1)}, {sr(s_kb)}, 5120\ns_mul_i32 {sr(T + 2)}, {sr(s_kb)}, 2560')
        a.e(f's_add_u32 {sr(T + 2)}, {sr(T + 2)}, 102400\ns_cmp_eq_u32 {sr(T)}, 0\ns_cselect_b32 {sr(T + 1)}, {sr(T + 2)}, {sr(T + 1)}')
        a.e(f's_add_u32 {sr(T + 1)}, {sr(T + 1)}, {sr(s_base)}\nv_cndmask_b32 v13, v13, v9, vcc')
        self.piece_swizzle(13, 14)
        a.e(f's_mov_b32 {sr(T + 2)}, 153600\nv_lshrrev_b32 v10, 1, v10\nv_mad_u32_u24 v13, v10, {sr(T + 2)}, v13')
        a.e(f'v_add_u32 {vr(vd)}, {sr(T + 1)}, v13')

    def dest_B(self, vd, s_blk, s_kb, s_up):
        a = self.a
        a.e(f's_lshl_b32 {sr(T)}, {sr(s_blk)}, 4\nv_and_b32 v9, 15, v0\nv_add_u32 v9, {sr(T)}, v9')
        a.e('v_lshrrev_b32 v10, 1, v9\nv_and_b32 v9, 1, v9')
        a.e('v_mul_u32_u24 v11, 19, v10\nv_lshrrev_b32 v11, 9, v11')
        a.e('v_mul_u32_u24 v12, 27, v11\nv_sub_u32 v12, v10, v12')
        a.e('v_cmp_le_u32 vcc, 14, v12\nv_lshlrev_b32 v11, 1, v11\nv_subrev_u32 v13, 14, v12')
        a.e('v_cndmask_b32 v12, v12, v13, vcc\nv_addc_co_u32 v11, vcc, 0, v11, vcc')
        a.e('v_lshrrev_b32 v13, 2, v12\nv_lshl_add_u32 v13, v13, 1, v9\nv_and_b32 v14, 3, v12')
        a.e('v_lshl_add_u32 v10, v14, 1, v9\nv_cmp_gt_u32 vcc, 12, v12\nv_cndmask_b32 v13, 6, v13, vcc\nv_cndmask_b32 v14, v10, v14, vcc')
        a.e(f's_lshl_b32 {sr(T)}, {sr(s_kb)}, 13\ns_mul_i32 {sr(T + 1)}, {sr(s_kb)}, 6144\ns_add_u32 {sr(T + 1)}, {sr(T + 1)}, {163840 - 8192}')
        a.e(f'v_mov_b32 v9, {sr(T)}\nv_mov_b32 v10, {sr(T + 1)}\nv_cmp_gt_u32 vcc, 4, v13\nv_cndmask_b32 v9, v10, v9, vcc')
        a.e('v_lshl_add_u32 v13, v13, 11, v9\nv_lshl_add_u32 v13, v14, 8, v13')
        self.piece_swizzle(13, 14)
        a.e(f's_mov_b32 {sr(T)}, 286720\nv_mad_u32_u24 v13, v11, {sr(T)}, v13')
        a.e(f's_lshl_b32 {sr(T)}, {sr(s_up)}, 10\ns_add_u32 {sr(T)}, {sr(T)}, {WS_W13}\nv_add_u32 {vr(vd)}, {sr(T)}, v13')

    def dest_C(self, vd, s_blk, s_kb, half, s_base, stride):
        a = self.a
        a.e(f's_sub_u32 {sr(T + 1)}, {sr(s_kb)}, {half}\ns_lshl_b32 {sr(T + 1)}, {sr(T + 1)}, 1\ns_add_u32 {sr(T + 1)}, {sr(T + 1)}, 1')
        a.e(f's_lshl_b32 {sr(T + 2)}, {sr(s_kb)}, 1\ns_cmp_lt_u32 {sr(s_kb)}, {half}\ns_cselect_b32 {sr(T + 1)}, {sr(T + 2)}, {sr(T + 1)}')
        a.e(f's_mul_i32 {sr(T + 1)}, {sr(T + 1)}, 5120\ns_add_u32 {sr(T + 1)}, {sr(T + 1)}, {sr(s_base)}')
        a.e(f's_lshl_b32 {sr(T)}, {sr(s_blk)}, 4\nv_and_b32 v9, 15, v0\nv_add_u32 v9, {sr(T)}, v9')
        a.e('v_mul_u32_u24 v10, 103, v9\nv_lshrrev_b32 v10, 11, v10')
        a.e('v_mul_u32_u24 v11, 20, v10\nv_sub_u32 v11, v9, v11')
        a.e('v_lshrrev_b32 v12, 3, v11\nv_lshlrev_b32 v12, 1, v12\nv_and_b32 v13, 1, v11\nv_add_u32 v13, v12, v13')
        a.e('v_bfe_u32 v14, v11, 1, 2\nv_and_b32 v15, 3, v11\nv_cmp_gt_u32 vcc, 16, v11')
        a.e('v_cndmask_b32 v13, 4, v13, vcc\nv_cndmask_b32 v14, v15, v14, vcc')
        a.e('v_lshlrev_b32 v13, 10, v13\nv_lshl_add_u32 v13, v14, 8, v13')
        self.piece_swizzle(13, 14)
        a.e(f's_mov_b32 {sr(T)}, {stride}\nv_mad_u32_u24 v13, v10, {sr(T)}, v13\nv_add_u32 {vr(vd)}, {sr(T + 1)}, v13')

    def job_bc_setup(self, rnd, rs, voff, vd, offs):
        a = self.a
        J, BLK, KB = T + 4, T + 5, T + 6
        lw2, ldone = a.newlabel('jw2'), a.newlabel('jdone')
        a.e(f's_lshl_b32 {sr(J)}, s2, 2\ns_add_u32 {sr(J)}, {sr(J)}, {sr(S_W)}')
        if rnd:
            a.e(f's_add_u32 {sr(J)}, {sr(J)}, 1024\ns_cmp_ge_u32 {sr(J)}, 1080\ns_cbranch_scc1 {lw2}')
        a.e(f's_cmp_ge_u32 {sr(J)}, 540\ns_cselect_b32 {sr(T + 8)}, 1, 0')
        a.e(f's_cselect_b32 {sr(rs)}, {sr(S_W3)}, {sr(S_W1)}\ns_cselect_b32 {sr(rs + 1)}, {sr(S_W3 + 1)}, {sr(S_W1 + 1)}')
        a.e(f's_cselect_b32 {sr(T + 9)}, 540, 0\ns_sub_u32 {sr(J)}, {sr(J)}, {sr(T + 9)}')
        a.e(f's_mov_b32 {sr(rs + 2)}, {640 * 3456}\ns_mov_b32 {sr(rs + 3)}, 0x20000')
        a.e(f's_mul_i32 {sr(KB)}, {sr(J)}, 607\ns_lshr_b32 {sr(KB)}, {sr(KB)}, 14')
        a.e(f's_mul_i32 {sr(BLK)}, {sr(KB)}, 27\ns_sub_u32 {sr(BLK)}, {sr(J)}, {sr(BLK)}')
        self.dest_B(vd, BLK, KB, T + 8)
        a.e(f's_mov_b32 {sr(T)}, 3456\nv_mad_u32_u24 {vr(voff)}, v5, {sr(T)}, v4')
        a.e(f's_mul_i32 {sr(T + 10)}, {sr(KB)}, {32 * 3456}\ns_lshl_b32 {sr(BLK)}, {sr(BLK)}, 7\ns_add_u32 {sr(T + 10)}, {sr(T + 10)}, {sr(BLK)}')
        for n in range(1, 4):
            a.e(f's_add_u32 {sr(T + 10 + n)}, {sr(T + 10)}, {n * 8 * 3456}')
        if rnd:
            a.e(f's_branch {ldone}')
            a.label(lw2)
            srd(a, rs, S_W2, 1728 * 1280)
            a.e(f's_sub_u32 {sr(J)}, {sr(J)}, 1080\ns_mov_b32 {sr(T + 9)}, {WS_W2}')
            a.e(f's_cmp_lt_u32 {sr(J)}, 540\ns_cselect_b32 {sr(T + 9)}, {sr(T + 9)}, {OOB}\ns_cselect_b32 {sr(T + 8)}, 0, {OOB}\ns_cselect_b32 {sr(J)}, {sr(J)}, 0')
            a.e(f's_mul_i32 {sr(KB)}, {sr(J)}, 205\ns_lshr_b32 {sr(KB)}, {sr(KB)}, 11')
            a.e(f's_mul_i32 {sr(BLK)}, {sr(KB)}, 10\ns_sub_u32 {sr(BLK)}, {sr(J)}, {sr(BLK)}')
            self.dest_C(vd, BLK, KB, 27, T + 9, 276480)
            a.e(f's_mov_b32 {sr(T)}, 1280\nv_mad_u32_u24 {vr(voff)}, v5, {sr(T)}, v4')
            a.e(f's_lshl_b32 {sr(BLK)}, {sr(BLK)}, 7\ns_add_u32 {sr(BLK)}, {sr(BLK)}, {sr(T + 8)}')
            a.e(f's_cmp_ge_u32 {sr(KB)}, 27\ns_cselect_b32 {sr(T + 7)}, 108, 0\ns_cselect_b32 {sr(T)}, 27, 0\ns_sub_u32 {sr(KB)}, {sr(KB)}, {sr(T)}\ns_lshl_b32 {sr(KB)}, {sr(KB)}, 2')
            for n in range(4):
                U, JS, UU = T, T + 1, T + 2
                a.e(f's_add_u32 {sr(U)}, {sr(KB)}, {n}\ns_sub_u32 {sr(T + 3)}, {sr(U)}, 64\ns_max_i32 {sr(T + 3)}, {sr(T + 3)}, 0')
                a.e(f's_mul_i32 {sr(JS)}, {sr(T + 3)}, 47\ns_lshr_b32 {sr(JS)}, {sr(JS)}, 9\ns_mul_i32 {sr(UU)}, {sr(JS)}, 11\ns_sub_u32 {sr(UU)}, {sr(T + 3)}, {sr(UU)}')
                a.e(f's_mul_i32 {sr(JS)}, {sr(JS)}, 27\ns_cmp_ge_u32 {sr(UU)}, 6\ns_cselect_b32 {sr(T + 3)}, 16, 8\ns_add_u32 {sr(UU)}, {sr(UU)}, {sr(T + 3)}\ns_add_u32 {sr(UU)}, {sr(UU)}, {sr(JS)}')
                a.e(f's_lshr_b32 {sr(JS)}, {sr(U)}, 4\ns_mul_i32 {sr(JS)}, {sr(JS)}, 27\ns_bfe_u32 {sr(T + 3)}, {sr(U)}, 0x10003\ns_mul_i32 {sr(T + 3)}, {sr(T + 3)}, 14')
                a.e(f's_add_u32 {sr(JS)}, {sr(JS)}, {sr(T + 3)}\ns_and_b32 {sr(T + 3)}, {sr(U)}, 7\ns_add_u32 {sr(JS)}, {sr(JS)}, {sr(T + 3)}')
                a.e(f's_cmp_lt_u32 {sr(U)}, 64\ns_cselect_b32 {sr(UU)}, {sr(JS)}, {sr(UU)}\ns_add_u32 {sr(UU)}, {sr(UU)}, {sr(T + 7)}')
                a.e(f's_mul_i32 {sr(UU)}, {sr(UU)}, {8 * 1280}\ns_add_u32 {sr(T + 10 + n)}, {sr(UU)}, {sr(BLK)}')
            a.label(ldone)
        for n in range(4):
            a.e(f's_mov_b32 {sr(offs + n)}, {sr(T + 10 + n)}')

    def startup(self):
        import gen1
        a, cfg = self.a, self.cfg
        lskip = a.newlabel('noc')
        a.e(f's_cmp_lg_u32 {sr(S_W)}, 0\ns_cbranch_scc1 {lskip}')
        srd(a, R_B, S_C, 1280)
        a.e(f'v_lshlrev_b32 v9, 2, v0\nbuffer_load_dwordx4 v[64:67], v1, {sr(R_B, 4)}, 0 offen\nbuffer_load_dword v68, v9, {sr(R_B, 4)}, 0 offen offset:1024')
        a.label(lskip)
        self.tok_epoch = a.vmem(f'buffer_load_dwordx2 {vr(V_TAG, 2)}, off, {sr(R_WS, 4)}, 0 sc1')
        for r in range(3):
            a.e(f's_add_u32 m0, {sr(T + 5)}, {r * 512}')
            tx = a.vmem(f'buffer_load_dwordx4 v12, {sr(R_X, 4)}, {sr(T + 2 + (r == 2))} offen offset:{r * 512}{self.nt} lds')
        for n in range(5):
            tt = self.gemv_dma(n, T + 4, 0)
        self.stamp('issued')
        self.roles()
        self.job_tr_bases()
        J, BLK, KB, VALD, PITCH = T + 4, T + 5, T + 6, T + 7, T + 8
        lwn, lj = a.newlabel('jqkv'), a.newlabel('jgo')
        a.e(f's_cmp_lg_u32 {sr(S_W)}, 0\ns_cbranch_scc1 {lwn}')
        srd(a, R_OUT, S_WO, 640 * 1280)
        a.e(f's_cmp_lt_u32 s2, 200\ns_cselect_b32 {sr(VALD)}, 0, {OOB}\ns_cselect_b32 {sr(J)}, s2, 0')
        a.e(f's_mul_i32 {sr(KB)}, {sr(J)}, 205\ns_lshr_b32 {sr(KB)}, {sr(KB)}, 11\ns_mul_i32 {sr(BLK)}, {sr(KB)}, 10\ns_sub_u32 {sr(BLK)}, {sr(J)}, {sr(BLK)}')
        a.e(f's_mov_b32 {sr(PITCH)}, 1280\ns_add_u32 {sr(T + 9)}, {sr(VALD)}, {WS_WO}')
        self.dest_C(29, BLK, KB, 10, T + 9, 102400)
        a.e(f's_branch {lj}')
        a.label(lwn)
        srd(a, R_OUT, S_WQKV, 640 * 3840)
        a.e(f's_mul_i32 {sr(J)}, s2, 3\ns_add_u32 {sr(J)}, {sr(J)}, {sr(S_W)}\ns_sub_u32 {sr(J)}, {sr(J)}, 1')
        a.e(f's_cmp_lt_u32 {sr(J)}, 600\ns_cselect_b32 {sr(VALD)}, 0, {OOB}\ns_cselect_b32 {sr(J)}, {sr(J)}, 0')
        a.e(f's_mul_i32 {sr(BLK)}, {sr(J)}, 205\ns_lshr_b32 {sr(BLK)}, {sr(BLK)}, 12\ns_mul_i32 {sr(KB)}, {sr(BLK)}, 20\ns_sub_u32 {sr(KB)}, {sr(J)}, {sr(KB)}')
        a.e(f's_mov_b32 {sr(PITCH)}, 3840\ns_add_u32 {sr(T + 9)}, {sr(VALD)}, {WS_WQ}')
        self.dest_A(29, BLK, KB, T + 9)
        a.label(lj)
        a.e(f's_lshl_b32 {sr(P + 10)}, {sr(PITCH)}, 3\ns_mul_i32 {sr(P + 9)}, {sr(P + 10)}, {sr(KB)}\ns_lshl_b32 {sr(P + 9)}, {sr(P + 9)}, 2')
        a.e(f's_lshl_b32 {sr(T)}, {sr(BLK)}, 7\ns_add_u32 {sr(P + 9)}, {sr(P + 9)}, {sr(T)}\ns_add_u32 {sr(P + 9)}, {sr(P + 9)}, {sr(VALD)}')
        a.e(f'v_mad_u32_u24 v28, v5, {sr(PITCH)}, v4')
        ja = {}

        def job_a_issue():
            a.e(f's_lshl_b32 {sr(T)}, {sr(S_W)}, 12\ns_add_u32 {sr(T)}, {sr(T)}, {L_JA}')
            for n in range(4):
                a.e(f's_add_u32 m0, {sr(T)}, {n * 1024}')
                if n:
                    a.e(f's_add_u32 {sr(P + 9)}, {sr(P + 9)}, {sr(P + 10)}')
                ja['t'] = a.vmem(f'buffer_load_dwordx4 v28, {sr(R_OUT, 4)}, {sr(P + 9)} offen{self.nt} lds')
            srd(a, R_B, S_WPHI, 32 * 800)
            a.e(f's_mul_i32 {sr(T)}, {sr(S_J1)}, 1600\ns_lshl_b32 {sr(T + 1)}, {sr(S_W)}, 9\ns_add_u32 {sr(T)}, {sr(T)}, {sr(T + 1)}')
            a.e(f's_add_u32 m0, {sr(T + 1)}, {L_WPHI}\ns_mov_b32 exec_hi, 0')
            a.vmem(f'buffer_load_dwordx4 v1, {sr(R_B, 4)}, {sr(T)} offen lds')
            a.e('s_mov_b64 exec, -1')
        if cfg.ja_at == 0:
            job_a_issue()
        a.e('v_lshrrev_b32 v9, 4, v0\nv_bfe_u32 v10, v0, 2, 2\nv_lshl_add_u32 v11, v9, 3, v10\nv_lshlrev_b32 v11, 7, v11')
        a.e(f'v_lshrrev_b32 v10, 1, v10\nv_xor_b32 v10, {sr(S_W)}, v10\nv_lshl_add_u32 v11, v10, 5, v11\nv_and_b32 v10, 3, v0\nv_lshl_add_u32 {vr(VGT)}, v10, 3, v11')
        a.e(f's_and_b32 {sr(T)}, {sr(S_I)}, 3\ns_mul_i32 {sr(T)}, {sr(T)}, 320\ns_add_u32 {sr(T)}, {sr(T)}, {L_SILU}\nv_lshlrev_b32 v9, 4, v9\nv_add_u32 {vr(VGB)}, {sr(T)}, v9')
        gen1.addresses(self)
        lj = a.newlabel('nosilu')
        a.e(f's_cmp_lg_u32 {sr(S_W)}, 0\ns_cbranch_scc1 {lj}')
        st = a.state()
        a.wait(vm=self.tok_epoch)
        for n in range(5):
            self.unpack(70 + 2 * n, 71 + 2 * n, 64 + n)
        for op in ('v_mul_f32 {d}, 0xbfb8aa3b, {s}', 'v_exp_f32 {d}, {d}', 'v_add_f32 {d}, 1.0, {d}', 'v_rcp_f32 {d}, {d}', 'v_mul_f32 {d}, {s}, {d}'):
            for n in range(10):
                a.e(op.format(d=vr(80 + n), s=vr(70 + n)))
        for n in range(5):
            a.e(f'v_cvt_pk_bf16_f32 {vr(64 + n)}, {vr(80 + 2 * n)}, {vr(81 + 2 * n)}')
        a.e(f'v_add_u32 v9, {L_SILU}, v1\nv_lshlrev_b32 v10, 2, v0\nv_add_u32 v10, {L_SILU + 1024}, v10')
        a.e('ds_write_b128 v9, v[64:67]\nds_write_b32 v10, v68\ns_waitcnt lgkmcnt(0)')
        a.set_state(st)
        a.label(lj)
        self.make_tag()
        if cfg.ja_at == 1:
            job_a_issue()
        self.jt = {}

        def jdma(r, n):
            a.e(f's_add_u32 m0, {sr(P + 3)}, {r * 4096 + n * 1024}')
            self.jt[r] = a.vmem(f'buffer_load_dwordx4 v{30 + 2 * r}, {sr((R_B, R_C)[r], 4)}, {sr((JB_OFF, JC_OFF)[r] + n)} offen{self.nt} lds')
        self.late = [lambda r=r, n=n: jdma(r, n) for r in range(2) for n in range(4)]
        self.stamp('setup')
        a.c('LayerNorm 1')
        a.e('v_and_b32 v9, 7, v0\nv_xor_b32 v10, v9, v5\nv_lshlrev_b32 v10, 4, v10\nv_lshl_add_u32 v10, v9, 7, v10')
        a.e(f's_mul_i32 {sr(T)}, {sr(S_W)}, 3072\ns_add_u32 {sr(T)}, {sr(T)}, {L_XS}\nv_add_u32 v11, {sr(T)}, v10')
        a.e(f'v_lshlrev_b32 v9, 4, v9\ns_lshl_b32 {sr(T)}, {sr(S_W)}, 2\ns_add_u32 {sr(T)}, {sr(T)}, {L_LNRED}\nv_add_u32 v10, {sr(T)}, v9\nv_add_u32 v9, {L_LNRED}, v9')
        a.e(f's_cmp_lt_u32 {sr(S_W)}, 2\ns_cselect_b32 {sr(T + 2)}, 1.0, 0')
        a.wait(vm=tx)
        self.stamp('xin')
        tk = [a.ds(f'ds_read_b128 {vr(112 + 4 * r, 4)}, v11 offset:{1024 * r}') for r in range(3)]
        X = 128
        for r in range(3):
            a.wait(lg=tk[r])
            for n in range(4):
                self.unpack(X + 8 * r + 2 * n, X + 8 * r + 2 * n + 1, 112 + 4 * r + n)

        def tree(dst, src, n):
            a.e(f'v_pk_add_f32 {vr(dst, 2)}, {vr(src, 2)}, {vr(src + 2, 2)}')
            for k in range(4, n, 2):
                a.e(f'v_pk_add_f32 {vr(dst, 2)}, {vr(dst, 2)}, {vr(src + k, 2)}')

        def all_sum(r, off, pre=None):
            self.sum_rows((r,), (11,), (3, 4, 5))
            a.ds(f'ds_write_b32 v10, {vr(r)} offset:{off}')
            if pre:
                pre()
            a.wait_all(vm=False)
            self.barrier()

        def read_sum(r, off):
            t = a.ds(f'ds_read_b128 v[12:15], v9 offset:{off}')
            a.wait(lg=t)
            a.e(f'v_add_f32 v12, v12, v13\nv_add_f32 v14, v14, v15\nv_add_f32 {vr(r)}, v12, v14\nv_mul_f32 {vr(r)}, 0x3acccccd, {vr(r)}')
        tree(152, X, 12)
        tree(154, X + 12, 12)
        a.e('v_pk_add_f32 v[152:153], v[152:153], v[154:155]\nv_add_f32 v152, v152, v153')
        all_sum(152, 0, pre=lambda: a.wait(vm=tt))
        self.stamp('tilein')
        self.fq.extend(self.gemv_items(0, P, 64))
        self.flush()
        self.stamp('gemv')
        read_sum(152, 0)
        for n in range(12):
            a.e(f'v_pk_add_f32 {vr(X + 2 * n, 2)}, {vr(X + 2 * n, 2)}, v[152:153] op_sel_hi:[1,0] neg_lo:[0,1] neg_hi:[0,1]')
        a.e(f'v_pk_mul_f32 v[154:155], {vr(X, 2)}, {vr(X, 2)}\nv_pk_mul_f32 v[156:157], {vr(X + 16, 2)}, {vr(X + 16, 2)}')
        for n in range(1, 8):
            a.e(f'v_pk_fma_f32 v[154:155], {vr(X + 2 * n, 2)}, {vr(X + 2 * n, 2)}, v[154:155]')
            if n < 4:
                a.e(f'v_pk_fma_f32 v[156:157], {vr(X + 16 + 2 * n, 2)}, {vr(X + 16 + 2 * n, 2)}, v[156:157]')
        a.e(f'v_add_f32 v154, v154, v155\nv_add_f32 v156, v156, v157\nv_fma_f32 v154, v156, {sr(T + 2)}, v154')
        all_sum(154, 128)
        read_sum(154, 128)
        a.e('v_add_f32 v154, 0x3727c5ac, v154\nv_rsq_f32 v154, v154')
        for n in range(12):
            a.e(f'v_pk_mul_f32 {vr(X + 2 * n, 2)}, {vr(X + 2 * n, 2)}, v[154:155] op_sel_hi:[1,0]')
        self.fq.extend(self.job_finish_items(lambda: ja['t'], 6, 0, 29, 44))
        self.flush()
        self.stamp('jobA')
        a.e(f's_mul_i32 {sr(T + 14)}, {sr(S_W)}, 5120\ns_add_u32 {sr(T + 14)}, {sr(T + 14)}, {WS_MOD}\ns_add_u32 {sr(T + 15)}, {sr(T + 14)}, 4096')
        a.e('v_and_b32 v41, 0xf0, v1\nv_lshrrev_b32 v40, 4, v0\nv_lshl_add_u32 v40, v40, 10, v41')
        mod_loads = [(f'buffer_load_dwordx4 {vr(64 + 4 * k, 4)}, v40, {sr(R_WS, 4)}, {sr(T + 14)} offen offset:{256 * k} sc1', -(64 + 4 * k)) for k in range(4)]
        mod_loads += [(f'buffer_load_dwordx4 {vr(80 + 4 * k, 4)}, v41, {sr(R_WS, 4)}, {sr(T + 15)} offen offset:{256 * k} sc1', -(80 + 4 * k)) for k in range(4)]
        self.wg_flag_off(P + 2, 2, 1, None, WS_FW, 3)
        self.gemv_role(20, 40, P + 1, P)
        self.publish(self.tok_job, P + 2)
        self.stamp('fw')
        tok = self.poll_issue(mod_loads)
        for n in range(5):
            self.gemv_dma(n, P + 1, L_MT2)
        self.job_bc_setup(0, R_B, 30, 31, JB_OFF)
        for _ in range(min(cfg.late1, 4)):
            self.late.pop(0)()
        self.job_bc_setup(1, R_C, 32, 33, JC_OFF)
        for _ in range(cfg.late1 - 4):
            self.late.pop(0)()
        a.e(f's_mul_i32 {sr(T + 1)}, {sr(S_W)}, 1280\ns_add_u32 {sr(T + 1)}, {sr(T + 1)}, {L_MODP}')
        a.e(f'v_add_u32 v42, {sr(T + 1)}, v1\nv_add_u32 v43, {sr(T + 1)}, v41')
        a.e(f's_lshl_b32 {sr(T + 2)}, {sr(S_W)}, 8\ns_add_u32 {sr(T + 2)}, {sr(T + 2)}, {L_MODP}\nv_lshlrev_b32 v62, 5, v5\nv_add_u32 v62, {sr(T + 2)}, v62')
        a.e('v_and_b32 v63, 7, v0\nv_lshlrev_b32 v63, 4, v63\nv_lshl_add_u32 v63, v5, 8, v63')
        H0 = T + 8
        a.e(f's_lshr_b32 {sr(H0)}, s2, 1\ns_mul_i32 {sr(H0)}, {sr(H0)}, 20480\ns_and_b32 {sr(T)}, s2, 1\ns_lshl_b32 {sr(T)}, {sr(T)}, 7')
        a.e(f's_add_u32 {sr(H0)}, {sr(H0)}, {sr(T)}\ns_lshl_b32 {sr(T)}, {sr(S_W)}, 11\ns_add_u32 {sr(H0)}, {sr(H0)}, {sr(T)}')
        a.e(f's_add_u32 {sr(H0)}, {sr(H0)}, {WS_H}\ns_add_u32 {sr(H0 + 1)}, {sr(H0)}, 8192\ns_add_u32 {sr(H0 + 2)}, {sr(H0)}, 16384')
        a.e(f's_cmp_lt_u32 {sr(S_W)}, 2\ns_cselect_b32 {sr(H0 + 2)}, {sr(H0 + 2)}, {OOB}\ns_cselect_b32 {sr(T + 12)}, 0, 1.0\ns_mov_b32 {sr(T + 13)}, {sr(T + 12)}')
        self.wg_flag_off(P + 7, 2, 1, None, WS_FH, spare=True)
        a.e(f'v_min_u32 v9, 49, v0\nv_lshlrev_b32 {vr(VFW)}, 5, v9\ns_mov_b32 {sr(P + 8)}, {WS_FW}')
        self.poll_check(mod_loads, tok)
        self.stamp('mod')
        self.mod_finish(64, 0, T + 12)
        a.ds('ds_write_b128 v42, v[64:67]')
        self.mod_finish(80, 1, T + 12)
        a.ds('ds_write_b128 v43, v[80:83] offset:1024')
        a.wait_all(vm=False)
        self.barrier()
        tk = []
        for r in range(3):
            a.ds(f'ds_read_b128 {vr(64 + 16 * r, 4)}, v62 offset:{1024 * r + 2560}')
            a.ds(f'ds_read_b128 {vr(68 + 16 * r, 4)}, v62 offset:{1024 * r + 2576}')
            a.ds(f'ds_read_b128 {vr(72 + 16 * r, 4)}, v62 offset:{1024 * r}')
            tk.append(a.ds(f'ds_read_b128 {vr(76 + 16 * r, 4)}, v62 offset:{1024 * r + 16}'))
        for r in range(3):
            a.wait(lg=tk[r])
            for n in range(4):
                x, s, b = X + 8 * r + 2 * n, 64 + 16 * r + 2 * n, 72 + 16 * r + 2 * n
                a.e(f'v_pk_fma_f32 {vr(x, 2)}, {vr(x, 2)}, {vr(s, 2)}, {vr(b, 2)}')
            for n in range(4):
                a.e(f'v_cvt_pk_bf16_f32 {vr(112 + 4 * r + n)}, {vr(X + 8 * r + 2 * n)}, {vr(X + 8 * r + 2 * n + 1)}')
            self.tok_h = a.vmem(f'buffer_store_dwordx4 {vr(112 + 4 * r, 4)}, v63, {sr(R_WS, 4)}, {sr(H0 + r)} offen sc1')
        self.stamp('hst')
        fw_loads = [(f'buffer_load_dwordx4 v[12:15], {vr(VFW)}, {sr(R_WS, 4)}, {sr(P + 8)} offen sc1', (12, 14)),
                    (f'buffer_load_dwordx4 v[40:43], {vr(VFW)}, {sr(R_WS, 4)}, {sr(P + 8)} offen offset:16 sc1', (40, 42))]
        self.fw = (fw_loads, self.poll_issue(fw_loads))
        for _ in range(cfg.late2):
            self.late.pop(0)()


    def finish(self):
        a, cfg = self.a, self.cfg
        if cfg.diag:
            self.stamp('end')
            self.wave_flag_off(T, 2, 1, None, WS_DBG, 8)
            a.e('v_lshlrev_b32 v9, 2, v0')
            a.vmem(f'buffer_store_dword {vr(V_STAMP)}, v9, {sr(R_WS, 4)}, {sr(T)} offen')
        if cfg.probe:
            a.wait_all()
            self.stamp('end')
            a.e(f's_add_u32 {sr(S_STAMP + 2)}, {sr(S_STAMP + 2)}, 7000')
            a.label('L_probe')
            a.e(f's_memrealtime {sr(T, 2)}\ns_waitcnt lgkmcnt(0)\ns_sub_u32 {sr(T)}, {sr(T)}, {sr(S_STAMP + 2)}\ns_cmp_lt_i32 {sr(T)}, 0\ns_cbranch_scc1 L_probe')
        a.label('L_end')
        a.e('s_endpgm')

    def advance_epoch(self):
        a = self.a
        a.e(f's_lshl_b32 {sr(T + 15)}, s2, 2\ns_add_u32 {sr(T + 15)}, {sr(T + 15)}, {sr(S_W)}\ns_cmp_eq_u32 {sr(T + 15)}, 0\ns_cselect_b32 {sr(T + 15)}, {WS_EPOCH}, {OOB}')
        self.flag(T + 15)

    def build(self):
        import gen1
        import gen2
        cfg = self.cfg
        self.prologue()
        self.startup()
        ring = gen2.Ring(self)
        for name, fn in (('phase1', gen1.phase1), ('phase2', gen2.phase2), ('phase34', gen2.phase34)):
            if cfg.stop == 'startup':
                break
            fn(self, ring)
            if cfg.stop == name:
                break
        if cfg.stop or cfg.diag:
            self.a.wait_all()
        self.finish()
        body = pad_hazards(self.a.lines)
        head = open(f'cdna_kernels/{NAME}.s.ref').read().split('\n')
        out = []
        for l in head:
            if l.startswith('; @launch'):
                out.append('; @launch grid=(256,1,1) block=(256,1,1) lds=163840')
            else:
                out.append(l)
            if l.startswith(NAME + '_kernel:'):
                break
        out += body
        out += ['.section .rodata,"a"', '.p2align 6', f'.amdhsa_kernel {NAME}_kernel',
                '  .amdhsa_next_free_vgpr 512', '  .amdhsa_next_free_sgpr 102', '  .amdhsa_accum_offset 256',
                '  .amdhsa_group_segment_fixed_size 0', '  .amdhsa_kernarg_size 104', '  .amdhsa_user_sgpr_count 2',
                '  .amdhsa_user_sgpr_kernarg_segment_ptr 1', '  .amdhsa_system_sgpr_workgroup_id_x 1',
                '  .amdhsa_float_denorm_mode_32 3', '.end_amdhsa_kernel', '']
        return '\n'.join(out)


def main():
    cfg = Cfg()
    path = None
    for arg in sys.argv[1:]:
        if '=' in arg:
            k, v = arg.split('=')
            old = getattr(Cfg, k)
            setattr(cfg, k, (v == '1') if isinstance(old, bool) else int(v) if isinstance(old, int) else v)
        else:
            path = arg
    g = Gen(cfg)
    text = g.build()
    open(path, 'w').write(text)
    open(path + '.stamps', 'w').write('\n'.join(g.stamps))
    print('wrote', path, len(text), 'bytes,', text.count('\n'), 'lines')


if __name__ == '__main__':
    import gen
    gen.main()
```

```python
import re

TRANS = ('v_exp_f32', 'v_log_f32', 'v_rcp_f32', 'v_rsq_f32', 'v_sqrt_f32', 'v_sin_f32', 'v_cos_f32',
         'v_rcp_iflag_f32')


def vr(a, n=1):
    return f'v{a}' if n == 1 else f'v[{a}:{a + n - 1}]'


def ar(a, n=1):
    return f'a{a}' if n == 1 else f'a[{a}:{a + n - 1}]'


def sr(a, n=1):
    return f's{a}' if n == 1 else f's[{a}:{a + n - 1}]'


_REG = re.compile(r'^-?(?:abs\(|\|)?([vas])(?:(\d+)|\[(\d+):(\d+)\])\)?\|?$')


def regs_of(op):
    op = op.strip()
    if op in ('vcc',):
        return {('s', 'vcc')}
    if op in ('vcc_lo', 'vcc_hi'):
        return {('s', 'vcc')}
    if op in ('exec', 'exec_lo', 'exec_hi'):
        return {('s', 'exec')}
    if op == 'm0':
        return {('s', 'm0')}
    m = _REG.match(op)
    if not m:
        return set()
    k = m.group(1)
    if m.group(2) is not None:
        return {(k, int(m.group(2)))}
    return {(k, i) for i in range(int(m.group(3)), int(m.group(4)) + 1)}


class Ins:
    def __init__(self, text):
        self.text = text
        t = text.split(';')[0].strip()
        self.label = t.endswith(':')
        self.directive = t.startswith('.')
        self.op = t.split()[0] if t else ''
        rest = t[len(self.op):].strip()
        parts = [p.strip() for p in re.split(r',(?![^\[]*\])', rest)] if rest else []
        self.mods = ''
        if parts:
            last = parts[-1].split()
            if last:
                parts[-1] = last[0]
                self.mods = ' '.join(last[1:])
        self.ops = parts
        self.defs = set()
        self.uses = set()
        op = self.op
        R = [regs_of(p) for p in parts]
        self.kind = 'other'
        self.srcC = set()
        self.srcAB = set()
        self.sdata = set()
        if self.label or self.directive or not op:
            return
        if op.startswith('v_mfma'):
            self.kind = 'mfma'
            self.passes = 8 if '32x32' in op else 4
            self.defs = R[0]
            self.srcAB = R[1] | R[2]
            self.srcC = R[3]
            self.uses = self.srcAB | self.srcC
        elif op.startswith('v_'):
            self.kind = 'valu'
            base = op.replace('_e32', '').replace('_e64', '').replace('_dpp', '').replace('_sdwa', '')
            self.base = base
            if base.startswith('v_cmp'):
                self.defs = R[0]
                self.uses = set().union(*R[1:])
            elif base in ('v_permlane32_swap_b32', 'v_permlane16_swap_b32', 'v_swap_b32'):
                self.defs = R[0] | R[1]
                self.uses = R[0] | R[1]
            elif base in ('v_add_co_u32', 'v_sub_co_u32', 'v_addc_co_u32', 'v_subb_co_u32', 'v_div_scale_f32',
                          'v_mad_u64_u32'):
                self.defs = R[0] | R[1]
                self.uses = set().union(*R[2:])
            elif base == 'v_nop':
                pass
            else:
                self.defs = R[0]
                self.uses = set().union(*R[1:]) if len(R) > 1 else set()
                if base in ('v_fmac_f32', 'v_dot2c_f32_bf16', 'v_writelane_b32') or 'dpp' in op or 'quad_perm' in self.mods \
                        or 'row_' in self.mods:
                    self.uses |= R[0]
                if base == 'v_div_fmas_f32':
                    self.uses |= {('s', 'vcc')}
            self.trans = base in TRANS
            self.dot = base.startswith('v_dot')
            self.dpp = 'dpp' in op or 'quad_perm' in self.mods or 'row_' in self.mods
            self.permlane = base.startswith('v_permlane')
            self.readlane = base in ('v_readfirstlane_b32', 'v_readlane_b32')
        elif op.startswith('ds_'):
            self.kind = 'ds'
            if op.startswith('ds_read') or op.startswith('ds_bpermute') or op.startswith('ds_permute') \
                    or op.startswith('ds_swizzle'):
                self.defs = R[0]
                self.uses = set().union(*R[1:])
            else:
                self.uses = set().union(*R)
        elif op.startswith('buffer_') or op.startswith('global_'):
            self.kind = 'vmem'
            lds = ' lds' in (' ' + self.mods) or 'load_lds' in op
            self.lds = lds
            if 'load' in op and not lds:
                self.defs = R[0]
                self.uses = set().union(*R[1:])
            elif lds:
                self.uses = set().union(*R) | {('s', 'm0')}
            else:
                self.uses = set().union(*R)
                if 'x3' in op or 'x4' in op:
                    self.sdata = R[0] if op.startswith('buffer_') else R[1]
        elif op.startswith('s_'):
            self.kind = 'salu'
            if op in ('s_waitcnt', 's_barrier', 's_nop', 's_endpgm', 's_branch', 's_sleep', 's_setprio') \
                    or op.startswith('s_cbranch'):
                self.kind = 'ctl'
            elif op.startswith('s_cmp') or op.startswith('s_bitcmp'):
                self.uses = set().union(*R)
            else:
                self.defs = R[0] if R else set()
                self.uses = set().union(*R[1:]) if len(R) > 1 else set()
                if 'saveexec' in op:
                    self.defs = self.defs | {('s', 'exec')}

    def states(self):
        if self.label or self.directive or not self.op:
            return 0
        if self.op == 's_nop':
            return int(self.ops[0], 0) + 1
        return 1


def _vec(s):
    return {r for r in s if r[0] in 'va'}


def _sca(s):
    return {r for r in s if r[0] == 's'}


def required_gap(p, c):
    need = 0
    if p.kind == 'valu':
        pv, ps = _vec(p.defs), _sca(p.defs)
        if c.kind == 'mfma' and pv & c.uses:
            need = max(need, 3 if p.dot else 2)
        if c.kind == 'valu':
            if pv & c.uses:
                if p.trans and not c.trans:
                    need = max(need, 1)
                if c.permlane or c.dpp:
                    need = max(need, 2)
                if c.readlane:
                    need = max(need, 1)
            if p.dot and pv & (c.uses | c.defs):
                same_acc = c.dot and c.base == p.base and len(c.ops) >= 3 and \
                    not (pv & (regs_of(c.ops[1]) | regs_of(c.ops[2])))
                if not same_acc:
                    need = max(need, 3)
            if ps & c.uses:
                need = max(need, 4 if c.base in ('v_readlane_b32', 'v_writelane_b32', 'v_div_fmas_f32') else 2)
        if p.dot and c.kind in ('ds', 'vmem') and pv & c.uses:
            need = max(need, 3)
        if c.kind == 'vmem' and ps & c.uses:
            need = max(need, 5)
        if c.kind in ('salu',) and ps & c.uses:
            need = max(need, 1)
    elif p.kind == 'mfma':
        big = p.passes == 8
        if c.kind == 'mfma':
            if p.defs & c.srcAB:
                need = max(need, 12 if big else 8)
            if p.defs & c.srcC and not (p.defs == c.srcC and p.passes == c.passes):
                need = max(need, 10 if big else 6)
            if p.defs & c.defs and not (p.defs == c.srcC and p.passes == c.passes):
                need = max(need, 10 if big else 6)
        elif c.kind in ('valu', 'ds', 'vmem'):
            if p.defs & (c.uses | c.defs):
                need = max(need, 12 if big else 8)
            if c.kind == 'valu' and p.srcC & c.defs:
                need = max(need, 7 if big else 3)
    elif p.kind == 'vmem':
        if p.sdata & c.defs:
            need = max(need, 2)
    elif p.kind == 'salu':
        if ('s', 'm0') in p.defs and c.kind == 'vmem' and c.lds:
            need = max(need, 1)
    return need


def pad_hazards(lines):
    ins = [Ins(l) for l in lines]
    out = []
    branch_hist = {}
    WINDOW = 22

    def history():
        h = []
        d = 0
        for q in reversed(out):
            if q.op in ('s_branch', 's_endpgm'):
                break
            s = q.states()
            if s:
                h.append((q, d))
                d += s
            if q.label and q.op[:-1] in branch_hist:
                for bh in branch_hist[q.op[:-1]]:
                    h.extend((x, dd + d) for x, dd in bh)
            if d >= WINDOW:
                break
        return h

    for c in ins:
        if c.states() and c.kind != 'ctl':
            need = 0
            for p, d in history():
                g = required_gap(p, c)
                if g > d:
                    need = max(need, g - d)
            while need > 0:
                n = min(need, 16)
                out.append(Ins(f'    s_nop {n - 1}'))
                need -= n
        if c.op == 's_branch' or c.op.startswith('s_cbranch'):
            tgt = c.ops[0]
            branch_hist.setdefault(tgt, []).append([(q, d + 1) for q, d in history()])
        out.append(c)
    return [q.text for q in out]


class Asm:
    def __init__(self):
        self.lines = []
        self.vm = 0
        self.vm_done = 0
        self.lg = 0
        self.lg_done = 0
        self.nlabel = 0

    def e(self, text):
        for t in text.split('\n'):
            t = t.strip()
            if t:
                self.lines.append('    ' + t)

    def c(self, text):
        self.lines.append('    ; ' + text)

    def label(self, name):
        self.lines.append(name + ':')

    def newlabel(self, stem):
        self.nlabel += 1
        return f'L_{stem}_{self.nlabel}'

    def vmem(self, text):
        self.e(text)
        self.vm += 1
        return self.vm

    def ds(self, text):
        self.e(text)
        self.lg += 1
        return self.lg

    def wait(self, vm=None, lg=None):
        parts = []
        if vm is not None and vm > self.vm_done:
            n = self.vm - vm
            if n > 63:
                n = 63
            parts.append(f'vmcnt({n})')
            self.vm_done = self.vm - n
        if lg is not None and lg > self.lg_done:
            n = self.lg - lg
            if n > 15:
                n = 15
            parts.append(f'lgkmcnt({n})')
            self.lg_done = self.lg - n
        if parts:
            self.e('s_waitcnt ' + ' '.join(parts))

    def wait_all(self, vm=True, lg=True):
        parts = []
        if vm:
            parts.append('vmcnt(0)')
            self.vm_done = self.vm
        if lg:
            parts.append('lgkmcnt(0)')
            self.lg_done = self.lg
        self.e('s_waitcnt ' + ' '.join(parts))

    def state(self):
        return (self.vm, self.vm_done, self.lg, self.lg_done)

    def set_state(self, st):
        self.vm, self.vm_done, self.lg, self.lg_done = st


_WIDEN = ('v_exp_f32', 'v_rcp_f32', 'v_rsq_f32', 'v_mov_b32', 'v_add_f32', 'v_mul_f32', 'v_max_f32', 'v_min_f32', 'v_add_u32', 'v_sub_u32',
          'v_lshlrev_b32', 'v_lshrrev_b32', 'v_and_b32', 'v_or_b32', 'v_xor_b32', 'v_min_u32', 'v_mul_u32_u24', 'v_sqrt_f32')


def instruction_sizes(lines):
    import subprocess
    import tempfile
    src = ['.amdgcn_target "amdgcn-amd-amdhsa--gfx950"', '.text', 'k_:'] + lines
    with tempfile.TemporaryDirectory() as d:
        open(d + '/a.s', 'w').write('\n'.join(src) + '\n')
        subprocess.run(['clang', '-x', 'assembler', '-target', 'amdgcn-amd-amdhsa', '-mcpu=gfx950', '-c', d + '/a.s', '-o', d + '/a.o'],
                       check=True)
        out = subprocess.run(['llvm-objdump', '-d', '--mcpu=gfx950', d + '/a.o'], capture_output=True, text=True).stdout
    sz = [4 * len(l.split('//')[1].split(':')[1].split()) for l in out.split('\n') if '//' in l]
    res = []
    k = 0
    for l in lines:
        if Ins(l).states():
            res.append(sz[k])
            k += 1
        else:
            res.append(0)
    assert k == len(sz), (k, len(sz))
    return res


def align_runs(lines, min_widen=3, min_nop=6):
    sz = instruction_sizes(lines)
    idx = [i for i, s in enumerate(sz) if s]
    out = list(lines)
    extra = {}
    addr = 0
    p = 0
    while p < len(idx):
        i = idx[p]
        if sz[i] != 8:
            addr += sz[i]
            p += 1
            continue
        q = p
        nm = 0
        while q < len(idx) and sz[idx[q]] == 8:
            nm += 'v_mfma' in lines[idx[q]]
            q += 1
        n = q - p
        if addr % 8 == 4 and 3 * nm < n and n >= min_widen and p > 0:
            j = idx[p - 1]
            prev = Ins(lines[j])
            if prev.op in _WIDEN and not prev.mods:
                out[j] = lines[j].replace(prev.op, prev.op + '_e64', 1)
                addr += 4
            elif n >= min_nop:
                extra[i] = '    s_nop 0'
                addr += 4
        addr += 8 * n
        p = q
    res = []
    for i, l in enumerate(out):
        if i in extra:
            res.append(extra[i])
        res.append(l)
    return res
```

```python
from asmlib import vr, ar, sr
from gen import *
import gen2


def wphi_frags(g):
    a = g.a
    a.e('v_and_b32 v9, 1, v0\nv_mul_u32_u24 v9, 0x320, v9\nv_bfe_u32 v10, v0, 2, 2\nv_mul_u32_u24 v10, 40, v10\nv_add_u32 v9, v9, v10')
    a.e('v_bfe_u32 v10, v0, 1, 1\nv_bfe_u32 v11, v0, 4, 1\nv_lshl_add_u32 v10, v11, 1, v10\nv_lshl_add_u32 v9, v10, 3, v9')
    a.e(f'v_add_u32 v9, {L_WPHI}, v9')
    a.e('v_bfe_u32 v10, v0, 2, 1\nv_lshrrev_b32 v11, 5, v0\nv_cmp_eq_u32 vcc, v10, v11\nv_cndmask_b32 v10, 0, -1, vcc')
    for t in range(2):
        for s in range(3):
            r = 200 + 12 * t + 4 * s
            a.ds(f'ds_read_b64_tr_b16 {vr(r, 2)}, v9 offset:{32 * t + 320 * s}')
            if s < 2:
                a.ds(f'ds_read_b64_tr_b16 {vr(r + 2, 2)}, v9 offset:{32 * t + 320 * s + 160}')
            else:
                a.e(f'v_mov_b32 {vr(r + 2)}, 0\nv_mov_b32 {vr(r + 3)}, 0')
    a.wait_all(vm=False)
    for t in range(2):
        for n in range(10):
            r = 200 + 12 * t + n
            a.e(f'v_and_b32 {vr(r)}, {vr(r)}, v10')


def addresses(g):
    a = g.a
    g.frag16_addr(VA0, 9)
    a.e(f'v_add_u32 {vr(VA1)}, 0x10000, {vr(VA0)}')
    a.e(f'v_bfe_u32 v9, v0, 2, 2\nv_lshrrev_b32 v10, 1, v9\nv_sub_u32 v9, v9, v10\nv_lshlrev_b32 v9, 8, v9\nv_sub_u32 {vr(VA2)}, {vr(VA0)}, v9')
    a.e(f's_mul_i32 {sr(T)}, {sr(S_W)}, {32 * TP}\ns_add_u32 {sr(T)}, {sr(T)}, {L_TS}\nv_and_b32 v9, 31, v0\nv_mul_u32_u24 v9, {TP}, v9\nv_add_u32 v9, {sr(T)}, v9')
    a.e(f'v_lshrrev_b32 v11, 5, v0\nv_mul_u32_u24 v10, 48, v11\nv_add_u32 {vr(VTW1)}, v10, v9\nv_mul_u32_u24 v11, 80, v11\nv_add_u32 {vr(VTW0)}, v11, v9')
    a.e(f'v_lshrrev_b32 v11, 5, v0\nv_bfe_u32 v12, v0, 2, 2\nv_lshl_add_u32 v11, v11, 3, v12\nv_mul_u32_u24 v11, {TP}, v11')
    a.e('v_bfe_u32 v12, v0, 4, 1\nv_and_b32 v13, 3, v0\nv_lshl_add_u32 v14, v12, 2, v13')
    a.e('v_and_b32 v15, 1, v0\nv_lshlrev_b32 v15, 1, v15\nv_lshl_add_u32 v15, v12, 2, v15\nv_bfe_u32 v13, v0, 1, 1\nv_add_u32 v15, v15, v13')
    a.e(f's_lshr_b32 {sr(T)}, {sr(S_W)}, 1\ns_and_b32 {sr(T + 1)}, {sr(S_W)}, 1\ns_mul_i32 {sr(T + 2)}, {sr(T)}, 80\ns_lshl_b32 {sr(T + 3)}, {sr(T + 1)}, 6')
    a.e(f's_add_u32 {sr(T + 2)}, {sr(T + 2)}, {sr(T + 3)}\ns_add_u32 {sr(T + 2)}, {sr(T + 2)}, {L_TS}\ns_mul_i32 {sr(T + 3)}, {sr(T)}, 48\ns_add_u32 {sr(T + 3)}, {sr(T + 3)}, {L_TS + 160}')
    a.e(f'v_lshl_add_u32 v12, v15, 3, v11\nv_add_u32 {vr(VTR0)}, {sr(T + 2)}, v12\nv_lshl_add_u32 v13, v14, 3, v11\nv_add_u32 {vr(VTR1)}, {sr(T + 3)}, v13')
    a.e(f'v_lshrrev_b32 v9, 5, v0\nv_and_b32 v10, 31, v0\ns_mul_i32 {sr(T)}, {sr(T)}, 5\ns_lshl_b32 {sr(T + 2)}, {sr(T + 1)}, 2\ns_add_u32 {sr(T)}, {sr(T)}, {sr(T + 2)}')
    a.e(f'v_add_u32 v11, {sr(T)}, v9\nv_mul_u32_u24 v11, 21, v11\nv_add_u32 v11, v11, v10\nv_lshlrev_b32 v11, 4, v11')
    a.e(f's_cmp_eq_u32 {sr(T + 1)}, 0\ns_cselect_b32 {sr(T + 2)}, 64, 32\ns_cselect_b32 {sr(T + 3)}, {42 * 16}, {OOB}')
    a.e(f'v_mov_b32 v9, {OOB}\nv_cmp_gt_u32 vcc, 21, v10\nv_cndmask_b32 v11, v9, v11, vcc\nv_cmp_gt_u32 vcc, {sr(T + 2)}, v0\nv_cndmask_b32 {vr(VKS)}, v9, v11, vcc')
    a.e(f's_lshl_b32 {sr(T)}, {sr(S_J1)}, 4\ns_add_u32 {sr(T)}, {sr(T)}, {sr(S_G1)}\ns_mul_i32 {sr(P + 4)}, {sr(T)}, 3456\ns_add_u32 {sr(P + 4)}, {sr(P + 4)}, {WS_KVP}')
    a.e(f's_add_u32 {sr(P + 5)}, {sr(P + 4)}, {sr(T + 3)}')
    g.wg_flag_off(P + 6, S_J1, 16, S_G1, WS_FKV)
    a.e(f's_lshl_b32 {sr(T)}, {sr(S_W)}, 6\nv_add_u32 v9, {sr(T)}, v0\nv_lshlrev_b32 v10, 4, v9\nv_mov_b32 v11, {OOB}')
    a.e(f'v_cmp_gt_u32 vcc, 0xd2, v9\nv_cndmask_b32 {vr(VGL)}, v11, v10, vcc')
    a.e('v_mul_u32_u24 v11, 0x187, v9\nv_lshrrev_b32 v11, 13, v11\nv_mul_u32_u24 v12, 21, v11\nv_sub_u32 v12, v9, v12')
    a.e(f'v_mul_u32_u24 v12, 80, v12\nv_lshl_add_u32 v12, v11, 4, v12\nv_add_u32 v13, {1920 - 80}, v12')
    a.e(f'v_cmp_gt_u32 {sr(T + 2, 2)}, 5, v11\nv_cndmask_b32 v12, v13, v12, {sr(T + 2, 2)}')
    a.e(f'v_mov_b32 v13, 3920\nv_cndmask_b32 v12, v13, v12, vcc\nv_add_u32 {vr(VKW)}, {L_KVR}, v12')
    a.e('v_bfe_u32 v9, v0, 2, 1\nv_bfe_u32 v10, v0, 3, 2\nv_and_b32 v11, 3, v0\nv_lshrrev_b32 v12, 5, v0')
    a.e('v_add_u32 v13, v10, v9\nv_lshl_add_u32 v13, v13, 2, v11')
    a.e('v_lshlrev_b32 v14, 2, v9\nv_sub_u32 v14, 4, v14\nv_cmp_eq_u32 vcc, 0, v10\nv_cndmask_b32 v14, 5, v14, vcc\nv_lshl_add_u32 v14, v14, 2, v11')
    a.e(f'v_mul_u32_u24 v15, 0x780, v9\nv_add_u32 v15, {L_KVR}, v15\nv_mov_b32 v10, {L_KVZ}\nv_cmp_eq_u32 vcc, v9, v12')
    a.e(f'v_mul_u32_u24 v13, 80, v13\nv_add_u32 v13, v13, v15\nv_cndmask_b32 {vr(VO0)}, v10, v13, vcc')
    a.e(f'v_mul_u32_u24 v14, 80, v14\nv_add_u32 v14, v14, v15\nv_cndmask_b32 {vr(VO1)}, v10, v14, vcc')
    a.e(f'v_bfe_u32 v9, v0, 4, 1\nv_mul_u32_u24 v9, 0x5000, v9\nv_and_b32 v10, 0xf0, v1\nv_add_u32 {vr(VOS1)}, v9, v10\nv_mul_u32_u24 v12, 0x300, v12\nv_add_u32 {vr(VOS0)}, {vr(VOS1)}, v12')
    a.e(f'v_and_b32 v9, 15, v0\nv_lshlrev_b32 {vr(VF128)}, 7, v9')


class Paced:
    def __init__(self, g, every):
        self.g, self.every, self.n = g, every, 0

    def e(self, text):
        for t in text.split('\n'):
            self.g.a.e(t)
            self.n += 1
            if self.n % self.every == 0:
                self.g.fill(1)


def feature_map(g, out, mid=None, every=8, half=None):
    a = g.a
    for t in (1, 0):
        for s in range(3):
            acc = 140 + 16 * t
            a.e(f'v_mfma_f32_32x32x16_bf16 {vr(acc, 16)}, {vr(200 + 12 * t + 4 * s, 4)}, {vr(128 + 4 * s, 4)}, {vr(acc, 16) if s else 0}')
    if mid:
        mid()
    a = Paced(g, every)
    Pr, E = 140, 172
    for op, d in (('max', 192), ('min', 194)):
        a.e(f'v_{op}3_f32 {vr(d)}, {vr(Pr + 16)}, {vr(Pr + 17)}, {vr(Pr + 18)}')
    for op, d in (('max', 192), ('min', 194)):
        a.e(f'v_{op}3_f32 {vr(d + 1)}, {vr(Pr + 19)}, {vr(Pr)}, {vr(Pr + 1)}')
    for k in range(2, 16, 2):
        for op, d in (('max', 192), ('min', 194)):
            dd = d + ((k >> 1) & 1 ^ 1)
            a.e(f'v_{op}3_f32 {vr(dd)}, {vr(dd)}, {vr(Pr + k)}, {vr(Pr + k + 1)}')
    for op, d in (('max', 192), ('min', 194)):
        a.e(f'v_{op}_f32 {vr(d)}, {vr(d)}, {vr(d + 1)}')
    a.e(f'v_mul_f32 v192, {sr(S_L2E)}, v192\nv_mul_f32 v194, {sr(S_L2E)}, v194')
    for n in range(10):
        a.e(f'v_pk_fma_f32 {vr(E + 2 * n, 2)}, {vr(Pr + 2 * n, 2)}, {sr(S_L2E, 2)}, v[192:193] op_sel_hi:[1,1,0] neg_lo:[0,0,1] neg_hi:[0,0,1]')
        a.e(f'v_pk_fma_f32 {vr(Pr + 2 * n, 2)}, {vr(Pr + 2 * n, 2)}, {sr(S_L2E, 2)}, v[194:195] op_sel_hi:[1,1,0] neg_lo:[1,0,0] neg_hi:[1,0,0]')
    for b in (E, Pr):
        for n in range(20):
            a.e(f'v_exp_f32 {vr(b + n)}, {vr(b + n)}')
    for b, d in ((E, 192), (Pr, 196)):
        a.e(f'v_pk_add_f32 {vr(d, 2)}, {vr(b, 2)}, {vr(b + 2, 2)}\nv_pk_add_f32 {vr(d + 2, 2)}, {vr(b + 4, 2)}, {vr(b + 6, 2)}')
    for k in range(8, 20, 4):
        for b, d in ((E, 192), (Pr, 196)):
            a.e(f'v_pk_add_f32 {vr(d, 2)}, {vr(d, 2)}, {vr(b + k, 2)}\nv_pk_add_f32 {vr(d + 2, 2)}, {vr(d + 2, 2)}, {vr(b + k + 2, 2)}')
    for d in (192, 196):
        a.e(f'v_pk_add_f32 {vr(d, 2)}, {vr(d, 2)}, {vr(d + 2, 2)}')
    for d in (192, 196):
        a.e(f'v_add_f32 {vr(d)}, {vr(d)}, {vr(d + 1)}')
    for d in (192, 196):
        a.e(f'v_rcp_f32 {vr(d)}, {vr(d)}')
    for b, d, o in ((E, 192, out), (Pr, 196, out + 10)):
        for n in range(10):
            a.e(f'v_pk_mul_f32 {vr(b + 2 * n, 2)}, {vr(b + 2 * n, 2)}, {vr(d, 2)} op_sel_hi:[1,0]')
        for n in range(10):
            a.e(f'v_cvt_pk_bf16_f32 {vr(o + n)}, {vr(b + 2 * n)}, {vr(b + 2 * n + 1)}')
            if half and (o - out + n) % 4 == 3:
                half((o - out + n) // 4)


def phase1(g, ring):
    a, cfg = g.a, g.cfg
    a.c('phase 1: qkv projection')
    SRC, DST, HB = P + 10, P + 11, T + 15
    a.e(f's_mul_i32 {sr(SRC)}, {sr(S_J1)}, 153600\ns_lshl_b32 {sr(DST)}, {sr(S_W)}, 10\ns_add_u32 {sr(SRC)}, {sr(SRC)}, {sr(DST)}\ns_add_u32 {sr(SRC)}, {sr(SRC)}, {WS_WQ}')
    wtok = {}

    def wdma(q):
        if q == 37:
            a.e(f's_cmp_gt_u32 {sr(S_W)}, 1\ns_cselect_b32 {sr(T + 1)}, 2048, 0\ns_sub_u32 {sr(SRC)}, {sr(SRC)}, {sr(T + 1)}\ns_sub_u32 {sr(T + 1)}, {sr(DST)}, {sr(T + 1)}')
        a.e(f's_add_u32 m0, {sr(T + 1 if q == 37 else DST)}, {(q % 25) * 4096}\ns_add_u32 {sr(T)}, {sr(SRC)}, {q * 4096}')
        wtok[q] = a.vmem(f'buffer_load_dwordx4 v1, {sr(R_WS, 4)}, {sr(T)} offen sc1 lds')
    tf = g.publish(g.tok_h, P + 7, 'h')
    g.stamp('hpub')
    g.poll_check(*g.fw)
    for q in range(cfg.w1a):
        wdma(q)
    a.e(f's_lshl_b32 {sr(T)}, {sr(S_G1)}, 2\ns_add_u32 {sr(T)}, {sr(T)}, {sr(S_W)}\ns_mul_i32 {sr(HB)}, {sr(T)}, 40960\ns_add_u32 {sr(HB)}, {sr(HB)}, {WS_H}')
    a.e(f's_lshl_b32 {sr(T + 14)}, {sr(T)}, 9\ns_add_u32 {sr(T + 14)}, {sr(T + 14)}, {WS_FH}\nv_and_b32 v40, 3, v0\nv_lshlrev_b32 v40, 7, v40')
    fh = [(f'buffer_load_dwordx2 v[42:43], v40, {sr(R_WS, 4)}, {sr(T + 14)} offen sc1', 42)]
    wphi_frags(g)
    a.e(f's_add_u32 {sr(P + 8)}, {sr(HB)}, 20480')
    if cfg.ackw:
        a.wait(vm=tf)
    tok = g.poll_issue(fh)
    for q in range(cfg.w1a, cfg.w1b):
        wdma(q)
    gemv_early = 'g' in g.jt and not any('gemv' in f.__code__.co_names[-1:] or 'gemv_dma' in f.__code__.co_names for f in g.late)
    if gemv_early:
        g.fq.extend(g.gemv_items(L_MT2, P, 64))
        g.flush()
    g.poll_check(fh, tok)
    g.stamp('hready')
    htok = {}

    def hload(s, tt):
        sb = (HB, P + 8)[tt]
        if s and s % 4 == 0:
            a.e(f's_add_u32 {sr(sb)}, {sr(sb)}, 4096')
        htok[s, tt] = a.vmem(f'buffer_load_dwordx4 {ar(8 * s + 4 * tt, 4)}, v1, {sr(R_WS, 4)}, {sr(sb)} offen offset:{(s % 4) * 1024}{g.sc("H")}')
    for s in range(cfg.hpre):
        hload(s, 0)
        hload(s, 1)
    wq = list(range(cfg.w1b, 25))
    for s in range(cfg.hpre, 20):
        g.fq.append(lambda s=s: hload(s, 0))
        g.fq.append(lambda s=s: hload(s, 1))
        if wq:
            g.fq.append(lambda q=wq.pop(0): wdma(q))
    assert not wq
    jt, late = g.jt, g.late
    fin = g.job_finish_items(lambda: jt[0], 34, 0, 31, 128) + g.job_finish_items(lambda: jt[1], 34, 4096, 33, 148)
    a.wait(vm=wtok[cfg.w1b - 1])
    g.barrier()
    LA = 6
    rt = {}

    def wread(f):
        if f == 4 * cfg.w1b:
            a.wait(vm=wtok[24])
            g.barrier()
        off = f * 1024
        rt[f] = a.ds(f'ds_read_b128 {ar(160 + 4 * (f % 8), 4)}, {vr(VA0 + (off >> 16))} offset:{off & 0xffff}')
    for f in range(LA):
        wread(f)
    for f in range(100):
        s, n = divmod(f, 5)
        a.wait(vm=htok[s, 1] if n == 0 else None, lg=rt[min(f + (f & 1 ^ 1), 99)])
        for tt in range(2):
            acc = 64 + 20 * tt + 4 * n
            a.e(f'v_mfma_f32_16x16x32_bf16 {vr(acc, 4)}, {ar(160 + 4 * (f % 8), 4)}, {ar(8 * s + 4 * tt, 4)}, {vr(acc, 4) if s else 0}')
            if tt == 0 and f + LA < 100:
                wread(f + LA)
            if tt == 1 and f % 2 == 0:
                g.fill(1)
            if tt == 1 and f >= cfg.cold0 and (f - cfg.cold0) % cfg.coldp == 1 and late:
                late.pop(0)()
            if cfg.jfin and f >= 62 and not late and fin:
                g.fq.append(fin.pop(0))
                g.fill(1)
    assert not g.fq
    g.barrier()
    g.stamp('pass1')
    a.c('feature map of k, partial kv')
    for n in range(10):
        a.e(f'v_cvt_pk_bf16_f32 {vr(128 + n)}, {vr(64 + 2 * n)}, {vr(65 + 2 * n)}\nv_cvt_pk_bf16_f32 {vr(40 + n)}, {vr(84 + 2 * n)}, {vr(85 + 2 * n)}')
    a.e('v_mov_b32 v138, 0\nv_mov_b32 v139, 0\nv_mov_b32 v50, 0x3f80\nv_mov_b32 v51, 0')
    for n in range(10):
        a.e(f'v_permlane16_swap_b32 {vr(128 + n)}, {vr(40 + n)}')

    def mid_k():
        for n in range(3):
            a.ds(f'ds_write_b128 {vr(VTW1)}, {vr(40 + 4 * n, 4)} offset:{160 + 16 * n}')
        wl = [lambda q=q: wdma(q) for q in range(25, 38)]
        n = len(late)
        order = sorted([(i / max(n, 1), f) for i, f in enumerate(late)] + [(i / 13 * cfg.wspan, f) for i, f in enumerate(wl)], key=lambda x: x[0])
        g.fq.extend([f for _, f in order])
    feature_map(g, 224, mid_k, 150 // (13 + len(late)), lambda n: a.ds(f'ds_write_b128 {vr(VTW0)}, {vr(224 + 4 * n, 4)} offset:{16 * n}'))
    g.flush()
    a.wait_all(vm=False)
    g.barrier()
    tk = []
    for s in range(8):
        for z in range(2):
            a.ds(f'ds_read_b64_tr_b16 {vr(128 + 8 * s + 2 * z, 2)}, {vr(VTR0)} offset:{(16 * s + 4 * z) * TP}')
        for z in range(2):
            t = a.ds(f'ds_read_b64_tr_b16 {vr(132 + 8 * s + 2 * z, 2)}, {vr(VTR1)} offset:{(16 * s + 4 * z) * TP}')
        tk.append(t)
        if s >= 2:
            a.wait(lg=tk[s - 2])
            a.e(f'v_mfma_f32_32x32x16_bf16 v[64:79], {vr(128 + 8 * (s - 2), 4)}, {vr(132 + 8 * (s - 2), 4)}, {"v[64:79]" if s > 2 else 0}')
    for s in (6, 7):
        a.wait(lg=tk[s])
        a.e(f'v_mfma_f32_32x32x16_bf16 v[64:79], {vr(128 + 8 * s, 4)}, {vr(132 + 8 * s, 4)}, v[64:79]')
    rt = {}

    def wread2(f):
        s, n = divmod(f, 3)
        rt[f] = a.ds(f'ds_read_b128 {ar(160 + 4 * (f % 8), 4)}, {vr(VA2 if n == 2 else VA0)} offset:{s * 2560 + n * 1024}')
    for n in range(8):
        a.e(f'v_cvt_pk_bf16_f32 {vr(52 + n)}, {vr(64 + 2 * n)}, {vr(65 + 2 * n)}')
    a.vmem(f'buffer_store_dwordx4 v[52:55], {vr(VKS)}, {sr(R_WS, 4)}, {sr(P + 4)} offen sc1')
    tkv = a.vmem(f'buffer_store_dwordx4 v[56:59], {vr(VKS)}, {sr(R_WS, 4)}, {sr(P + 5)} offen sc1')
    g.stamp('kvst')
    a.wait(vm=wtok[37])
    g.barrier()
    for f in range(LA):
        wread2(f)
    g.fq.extend(fin)
    if not gemv_early:
        g.fq.extend(g.gemv_items(L_MT2, P, 52))
    fkv = [(f'buffer_load_dwordx2 v[12:13], {vr(VF128)}, {sr(R_WS, 4)}, {sr(T + 14)} offen sc1', 12)]
    for f in range(60):
        s, n = divmod(f, 3)
        a.wait(lg=rt[min(f + (f & 1 ^ 1), 59)])
        for tt in range(2):
            acc = 104 + 12 * tt + 4 * n
            a.e(f'v_mfma_f32_16x16x32_bf16 {vr(acc, 4)}, {ar(160 + 4 * (f % 8), 4)}, {ar(8 * s + 4 * tt, 4)}, {vr(acc, 4) if s else 0}')
            if tt == 0 and f + LA < 60:
                wread2(f + LA)
            if f > cfg.kvpub:
                g.fill(1)
        if f == cfg.kvpub:
            g.publish(tkv, P + 6)
            if cfg.jfin:
                g.wg_flag_off(T + 13, 2, 1, None, WS_FRT, 3)
                g.flag(T + 13)
        if f == 50:
            a.e(f's_lshl_b32 {sr(T + 14)}, {sr(S_J1)}, 11\ns_add_u32 {sr(T + 14)}, {sr(T + 14)}, {WS_FKV}')
    assert not g.fq
    tok = g.poll_issue(fkv)
    g.stamp('pass2')
    for n in range(3):
        for tt in range(2):
            for k in range(2):
                a.e(f'v_cvt_pk_bf16_f32 {vr(128 + 4 * n + 2 * tt + k)}, {vr(104 + 12 * tt + 4 * n + 2 * k)}, {vr(105 + 12 * tt + 4 * n + 2 * k)}')
    a.e(f'v_mov_b32 v60, 0\nv_mov_b32 v61, 0\nv_mov_b32 v62, 0\nv_mov_b32 v63, 0\nv_min_u32 v9, 4, v0\nv_lshlrev_b32 v9, 4, v9\nv_add_u32 v9, {L_KVZ}, v9')
    a.ds('ds_write_b128 v9, v[60:63]')
    for n in range(3):
        for k in range(2):
            a.e(f'v_permlane16_swap_b32 {vr(128 + 4 * n + k)}, {vr(130 + 4 * n + k)}')
    gt = []

    def mid_q():
        if not cfg.jfin:
            g.wg_flag_off(T + 13, 2, 1, None, WS_FRT, 3)
        a.e(f's_mul_i32 {sr(T + 4)}, {sr(S_J1)}, {16 * 3456}\ns_add_u32 {sr(T + 4)}, {sr(T + 4)}, {WS_KVP}')
        gen2.phase2_addresses(g)
        g.poll_check(fkv, tok)
        g.barrier()
        if not cfg.jfin:
            g.flag(T + 13)
        ring.setup()
        ring.vfrag, ring.pre_max = VA0, 16
        if cfg.rt_early:
            a.e(f's_mov_b32 {sr(T + 13)}, {WS_FRT}')

        def gl(k):
            if k:
                a.e(f's_add_u32 {sr(T + 4)}, {sr(T + 4)}, 3456')
            gt.append(a.vmem(f'buffer_load_dwordx4 {vr(64 + 4 * k, 4)}, {vr(VGL)}, {sr(R_WS, 4)}, {sr(T + 4)} offen sc1'))
        g.fq.extend([lambda k=k: gl(k) for k in range(16)])
        g.fq.extend([ring.issue] * 8)
        if cfg.rt_early:
            g.fq.append(lambda: rtk.append(g.poll_issue(frt)))
        g.fq.extend([ring.issue] * 17)
    rtk = []
    frt = [(f'buffer_load_dwordx4 v[40:43], v1, {sr(R_WS, 4)}, {sr(T + 13)} offen sc1', (40, 42)),
           (f'buffer_load_dwordx4 v[44:47], v1, {sr(R_WS, 4)}, {sr(T + 13)} offen offset:1024 sc1', (44, 46))]
    feature_map(g, 224, mid_q, cfg.qpace)
    g.stamp('phiq')
    a.c('reduce kv, o = num / den')
    a.e(f's_mov_b32 {sr(T + 2)}, 0x3f80\ns_mov_b32 {sr(T + 3)}, 0x3f800000')
    for n in range(8):
        a.e(f'v_mov_b32 {vr(52 + n)}, 0')
    if cfg.rt_early:
        g.flush()
        assert cfg.jfin
        g.poll_check(frt, rtk[0])
        ring.limit = 35
        g.fq.extend([ring.bulk] * cfg.r0)
    while len(gt) < 16:
        g.fill(1)
    g.fq.extendleft(reversed(gen2.phase2_loads(g, ring)))
    for k in range(16):
        a.wait(vm=gt[k])
        if k % cfg.gpace == 0:
            g.fill(1)
        for n in range(4):
            a.e(f'v_dot2c_f32_bf16 {vr(52 + 2 * n)}, {sr(T + 2)}, {vr(64 + 4 * k + n)}')
            a.e(f'v_dot2c_f32_bf16 {vr(53 + 2 * n)}, {sr(T + 3)}, {vr(64 + 4 * k + n)}')
    for n in range(4):
        a.e(f'v_cvt_pk_bf16_f32 {vr(60 + n)}, {vr(52 + 2 * n)}, {vr(53 + 2 * n)}')
    a.ds(f'ds_write_b128 {vr(VKW)}, v[60:63]')
    a.e(f's_lshl_b32 {sr(T)}, {sr(S_G1)}, 2\ns_add_u32 {sr(T)}, {sr(T)}, {sr(S_W)}\ns_mul_i32 {sr(T + 7)}, {sr(T)}, 40960\ns_mul_i32 {sr(T)}, {sr(S_J1)}, 1280')
    a.e(f's_add_u32 {sr(T + 7)}, {sr(T + 7)}, {sr(T)}\ns_add_u32 {sr(T + 7)}, {sr(T + 7)}, {WS_O}')
    g.wg_flag_off(P + 6, S_G1, 16, S_J1, WS_FO, spare=True)
    a.wait_all(vm=False)
    g.barrier()
    tk = []
    for t in (1, 0):
        for s in range(5):
            tk.append(a.ds(f'ds_read_b128 {vr(128 + 20 * t + 4 * s, 4)}, {vr(VO0 + t)} offset:{16 * s}'))
    n = 0
    for t in (1, 0):
        for s in range(5):
            a.wait(lg=tk[n])
            n += 1
            acc = 64 + 16 * t
            a.e(f'v_mfma_f32_32x32x16_bf16 {vr(acc, 16)}, {vr(128 + 20 * t + 4 * s, 4)}, {vr(224 + 4 * s, 4)}, {vr(acc, 16) if s else 0}')
            g.fill(1)
    if cfg.rt_early:
        g.fq.clear()
    g.flush()
    a.e('v_add_f32 v84, 0x358637bd, v84\nv_rcp_f32 v84, v84')
    for n in (8, 9, 0, 1, 2, 3, 4, 5, 6, 7):
        a.e(f'v_pk_mul_f32 {vr(64 + 2 * n, 2)}, {vr(64 + 2 * n, 2)}, v[84:85] op_sel_hi:[1,0]')
    for n in (8, 9, 0, 1, 2, 3, 4, 5, 6, 7):
        a.e(f'v_cvt_pk_bf16_f32 {vr(128 + n)}, {vr(64 + 2 * n)}, {vr(65 + 2 * n)}')
    a.e('v_permlane32_swap_b32 v136, v138\nv_permlane32_swap_b32 v137, v139')
    a.vmem(f'buffer_store_dwordx4 v[128:131], {vr(VOS0)}, {sr(R_WS, 4)}, {sr(T + 7)} offen{g.sc("o")}')
    a.vmem(f'buffer_store_dwordx4 v[132:135], {vr(VOS0)}, {sr(R_WS, 4)}, {sr(T + 7)} offen offset:256{g.sc("o")}')
    a.e('s_mov_b32 exec_hi, 0')
    g.tok_o = a.vmem(f'buffer_store_dwordx4 v[136:139], {vr(VOS1)}, {sr(R_WS, 4)}, {sr(T + 7)} offen offset:512{g.sc("o")}')
    a.e('s_mov_b64 exec, -1')
    g.stamp('ost')
    assert not g.fq
```

```python
from asmlib import vr, ar, sr
from gen import *

V_X1P, V_GBP = 16, 26
VK0, VN0, VF8, VXO = 4, 36, 7, 39
VXW, VXR, VH1, VH6, VHL, VRING = 42, 43, 44, 45, 46, 253
VTB = 168
ACC = 48
V_GA, V_SB, V_S2, V_X1, V_GB = 88, 108, 128, 148, 68
SRC2, SRC3, SRC4, RDST, RTMP = 12, 13, 14, 15, 16
XOFF, FLG8, BB0, PSRC = 17, 18, 4, 19
F_A, F_B, F_2, F_END = 100, 260, 380, 520
HT = 57344


class Ring:
    def __init__(self, g):
        self.g = g
        self.tok = {}
        self.issued = 0
        self.published = 0
        self.consumed = 0
        self.total = 130
        self.limit = 25
        self.pre = {}

    def setup(self):
        a = self.g.a
        a.e(f's_lshl_b32 {sr(RDST)}, {sr(S_W)}, 10')
        for d, role, size, base in ((SRC2, S_N2, 102400, WS_WO), (SRC3, S_J3, 286720, WS_W13), (PSRC, S_N2, 286720, WS_W2)):
            a.e(f's_mul_i32 {sr(d)}, {sr(role)}, {size}\ns_add_u32 {sr(d)}, {sr(d)}, {base}')
        a.e(f's_mul_i32 {sr(RTMP)}, {sr(S_W)}, 71680\ns_add_u32 {sr(PSRC)}, {sr(PSRC)}, {sr(RTMP)}\ns_add_u32 {sr(SRC4)}, {sr(PSRC)}, 35840')
        self.delta = None
        self.m0_for = None

    def can_issue(self):
        return self.issued < min(self.total, self.limit) and 4 * (self.issued + 1) - RING <= self.consumed

    def issue(self):
        a = self.g.a
        q = self.issued
        assert self.can_issue(), q
        if self.m0_for != q:
            a.e(f's_add_u32 m0, {sr(RDST)}, {(q % 40) * 4096}')
        if q < 95:
            src, off = (SRC2, q) if q < 25 else (SRC3, q - 25)
            delta = (src, (off - q % 40) * 4096)
            if delta != self.delta:
                self.delta = delta
                a.e(f's_add_u32 {sr(RTMP)}, {sr(src)}, {delta[1] & 0xffffffff}\nv_add_u32 {vr(VRING)}, {sr(RTMP)}, v1')
            self.tok[q] = a.vmem(f'buffer_load_dwordx4 {vr(VRING)}, {sr(R_WS, 4)}, m0 offen{self.g.sc("W")} lds')
        else:
            self.tok[q] = a.vmem(f'buffer_load_dwordx4 v1, {sr(R_WS, 4)}, {sr(SRC4)} offen{self.g.sc("W")} lds')
            a.e(f's_add_u32 {sr(SRC4)}, {sr(SRC4)}, 1024')
        self.issued += 1
        if q + 1 < self.total:
            a.e(f's_add_u32 m0, {sr(RDST)}, {((q + 1) % 40) * 4096}')
            self.m0_for = q + 1

    @staticmethod
    def pre_reg(i):
        return ar(192 + 4 * i, 4) if i < 16 else vr(176 + 4 * (i - 16), 4)

    def preload(self):
        a = self.g.a
        i = len(self.pre)
        if i and i % 4 == 0:
            a.e(f's_add_u32 {sr(PSRC)}, {sr(PSRC)}, 4096')
        self.pre[i] = a.vmem(f'buffer_load_dwordx4 {self.pre_reg(i)}, {vr(self.vfrag)}, {sr(R_WS, 4)}, {sr(PSRC)} offen offset:{(i % 4) * 1024}{self.g.sc("W")}')

    def bulk(self):
        if self.can_issue():
            self.issue()
        elif self.limit > 25 and len(self.pre) < self.pre_max:
            self.preload()
        else:
            return False
        return True

    def bulk_n(self, n):
        while n > 0 and self.bulk():
            n -= 1

    def sync(self, consumed, need):
        publish = min(-(-need // 4), self.total)
        assert publish <= self.issued, (publish, self.issued)
        if publish > self.published:
            self.g.a.wait(vm=self.tok[publish - 1])
            self.published = publish
        self.g.barrier()
        self.consumed = max(self.consumed, consumed)

    def lds(self, base, f, chk=0):
        assert chk is None or f + chk < 4 * self.published, f
        off = (f % RING) * 1024
        return f'{vr(base + (off >> 16))} offset:{off & 0xffff}'


def phase2_addresses(g):
    a = g.a
    a.e(f's_lshl_b32 {sr(T)}, {sr(S_M2)}, 2\ns_add_u32 {sr(T)}, {sr(T)}, {sr(S_W)}\ns_mul_i32 {sr(XOFF)}, {sr(T)}, 20480')
    a.e(f's_mul_i32 {sr(T)}, {sr(S_N2)}, 160\ns_add_u32 {sr(XOFF)}, {sr(XOFF)}, {sr(T)}\ns_mov_b32 {sr(T + 1)}, {1280 - 160}')
    for n in range(3):
        a.e(f'v_add_u32 v9, {64 * n}, v0\nv_mul_u32_u24 v10, 0xcd, v9\nv_lshrrev_b32 v10, 11, v10\nv_lshlrev_b32 v9, 4, v9\nv_mad_u32_u24 {vr(VXO + n)}, v10, {sr(T + 1)}, v9')
    a.e(f's_mul_i32 {sr(P + 1)}, {sr(S_W)}, 2560\ns_add_u32 {sr(P + 1)}, {sr(P + 1)}, {L_XR}')
    a.e(f's_mul_i32 {sr(T)}, {sr(S_W)}, 160\ns_mul_i32 {sr(T + 1)}, {sr(S_N2)}, 20\ns_add_u32 {sr(T)}, {sr(T)}, {sr(T + 1)}\ns_add_u32 {sr(T)}, {sr(T)}, 320')
    a.e(f'v_min_u32 v19, 19, v0\nv_add_u32 v17, {sr(T)}, v19\nv_lshrrev_b32 v18, 4, v17\nv_and_b32 v17, 15, v17\nv_lshlrev_b32 v17, 4, v17\nv_lshl_add_u32 v17, v18, 10, v17')
    a.e(f'v_add_u32 v17, {WS_MOD}, v17\nv_add_u32 v18, {WS_FRT}, v1')
    a.e(f's_mul_i32 {sr(T)}, {sr(S_W)}, 320\ns_add_u32 {sr(T)}, {sr(T)}, {L_PAR}\nv_lshlrev_b32 v19, 4, v19\nv_add_u32 v19, {sr(T)}, v19')


def phase2_loads(g, ring):
    a, cfg = g.a, g.cfg

    def xdma(n):
        ring.m0_for = None
        a.e(f's_add_u32 m0, {sr(P + 1)}, {1024 * n}')
        if n == 2:
            a.e('s_mov_b32 exec_hi, 0')
        a.vmem(f'buffer_load_dwordx4 {vr(VXO + n)}, {sr(R_X, 4)}, {sr(XOFF)} offen lds')
        if n == 2:
            a.e('s_mov_b64 exec, -1')
    g.ld = [(f'buffer_load_dwordx4 {vr(168 + 4 * k, 4)}, v17, {sr(R_WS, 4)}, 0 offen offset:{256 * k} sc1', -(168 + 4 * k)) for k in range(4)]
    if not cfg.rt_early:
        g.ld += [(f'buffer_load_dwordx4 v[184:187], v18, {sr(R_WS, 4)}, 0 offen sc1', (184, 186)),
                 (f'buffer_load_dwordx4 v[188:191], v18, {sr(R_WS, 4)}, 0 offen offset:1024 sc1', (188, 190))]

    def ld1(text):
        g.ld_tok = a.vmem(text)
    return [lambda n=n: xdma(n) for n in range(3)] + [lambda t=t: ld1(t) for t, _ in g.ld]


def phase2(g, ring):
    a, cfg = g.a, g.cfg
    a.c('phase 2: output projection, residual, LayerNorm 2')
    a.e(f's_cmp_eq_u32 {sr(S_W)}, 2\ns_cselect_b32 {sr(T + 8)}, 1.0, 0\ns_mov_b32 {sr(T + 9)}, {sr(T + 8)}')
    a.e(f'v_and_b32 v14, 15, v0\nv_mul_u32_u24 v14, 0xa0, v14\nv_add_u32 v14, {sr(P + 1)}, v14\nv_lshrrev_b32 v12, 4, v0')
    a.e('v_lshl_add_u32 v13, v12, 3, v14\nv_lshl_add_u32 v14, v12, 4, v14')
    g.poll_check(g.ld, g.ld_tok)
    a.ds('ds_read_b128 v[64:67], v14')
    a.ds('ds_read_b128 v[68:71], v14 offset:64')
    a.ds('ds_read_b64 v[72:73], v13 offset:128')
    g.mod_finish(168, 0, T + 8)
    a.ds('ds_write_b128 v19, v[168:171]')
    a.e(f'v_mov_b32 {vr(VN0)}, {vr(VA0)}\nv_add_u32 {vr(VN0 + 1)}, 0x10000, {vr(VN0)}\nv_add_u32 {vr(VN0 + 2)}, 0x20000, {vr(VN0)}')
    ring.vfrag, ring.pre_max = VN0, 35
    a.e(f's_and_b32 {sr(T + 1)}, {sr(S_W)}, 1\ns_mul_i32 {sr(T)}, {sr(T + 1)}, 5120')
    for k in range(2):
        a.e(f'v_add_u32 {vr(VK0 + k)}, {sr(T)}, {vr(VN0 + k)}')
    if cfg.p2split:
        a.e(f's_lshr_b32 {sr(T)}, {sr(S_M2)}, 1\ns_lshl_b32 {sr(FLG8)}, {sr(T)}, 11\ns_lshl_b32 {sr(T + 5)}, {sr(T + 1)}, 10\ns_add_u32 {sr(T + 14)}, {sr(FLG8)}, {sr(T + 5)}')
        a.e(f's_add_u32 {sr(T + 14)}, {sr(T + 14)}, {WS_FO}\nv_and_b32 {vr(VF8)}, 7, v0\nv_lshlrev_b32 {vr(VF8)}, 7, {vr(VF8)}')
        a.e(f's_lshl_b32 {sr(T + 5)}, {sr(S_M2)}, 2\ns_add_u32 {sr(T + 5)}, {sr(T + 5)}, {sr(S_W)}\ns_xor_b32 {sr(T + 6)}, {sr(T + 5)}, 1')
        a.e(f's_mul_i32 {sr(T + 7)}, {sr(T + 1)}, 10240\ns_add_u32 {sr(T + 7)}, {sr(T + 7)}, {WS_O}')
        for k in range(2):
            a.e(f's_mul_i32 {sr(BB0 + k)}, {sr(T + 5 + k)}, 20480\ns_add_u32 {sr(BB0 + k)}, {sr(BB0 + k)}, {sr(T + 7)}')
    else:
        a.e(f's_lshr_b32 {sr(T)}, {sr(S_M2)}, 1\ns_lshl_b32 {sr(FLG8)}, {sr(T)}, 11\ns_add_u32 {sr(T + 14)}, {sr(FLG8)}, {WS_FO}')
        a.e(f'v_and_b32 {vr(VF8)}, 15, v0\nv_lshlrev_b32 {vr(VF8)}, 7, {vr(VF8)}')
        a.e(f's_lshl_b32 {sr(T + 5)}, {sr(S_M2)}, 2\ns_add_u32 {sr(T + 5)}, {sr(T + 5)}, {sr(S_W)}\ns_mul_i32 {sr(BB0)}, {sr(T + 5)}, 20480\ns_add_u32 {sr(BB0)}, {sr(BB0)}, {WS_O}')
    a.wait_all(vm=False)
    a.wait(vm=max(g.tok_o, ring.tok[24]))
    ring.sync(0, 100)
    tf = g.flag(P + 6, 'o')
    ring.limit = 35
    g.stamp('opub')
    ring.bulk_n(cfg.r0b)
    a.e(f's_mul_i32 {sr(T)}, {sr(S_W)}, 5120\ns_add_u32 {sr(T)}, {sr(T)}, {L_XCH}\nv_add_u32 {vr(VXW)}, {sr(T)}, v1')
    a.e(f's_xor_b32 {sr(T)}, {sr(S_W)}, 1\ns_mul_i32 {sr(T)}, {sr(T)}, 5120\ns_add_u32 {sr(T)}, {sr(T)}, {L_XCH}\nv_add_u32 {vr(VXR)}, {sr(T)}, v1')
    fo = [(f'buffer_load_dwordx2 v[14:15], {vr(VF8)}, {sr(R_WS, 4)}, {sr(T + 14)} offen sc1', 14)]
    a.e(f'v_lshlrev_b32 v11, 4, v12\nv_add_u32 v11, {L_PAR}, v11\nv_lshlrev_b32 v10, 5, v12\nv_add_u32 v10, {L_PAR}, v10')
    par = ((10, 0), (10, 16), (10, 128), (10, 144), (11, 256))
    for n in range(10):
        g.unpack(V_X1 + 2 * n, V_X1 + 2 * n + 1, 64 + n)
    tk = [a.ds(f'ds_read_b128 {vr(V_GB + 4 * k, 4)}, v{v} offset:{960 + off}') for k, (v, off) in enumerate(par)]
    for n in range(15):
        v, off = par[n % 5]
        a.ds(f'ds_read_b128 {vr((V_GA, V_SB, V_S2)[n // 5] + 4 * (n % 5), 4)}, v{v} offset:{320 * (n // 5) + off}')
    if cfg.ackw:
        a.wait(vm=tf)
    tok = g.poll_issue(fo)
    ring.bulk_n(cfg.r1)
    a.e(f'v_and_b32 v9, 1, v0\nv_lshlrev_b32 v9, 4, v9\nv_lshrrev_b32 v9, v9, {vr(V_TAG)}\nv_and_b32 {vr(VTB)}, 0xff, v9\nv_bfe_u32 {vr(VTB + 1)}, v9, 8, 8')
    a.e(f'v_and_b32 v9, 15, v0\nv_lshlrev_b32 {vr(VTB + 2)}, 3, v9')
    a.wait(lg=tk[-1])
    for n in range(10):
        a.e(f'v_cvt_pk_bf16_f32 {vr(V_GBP + n)}, {vr(V_GB + 2 * n)}, {vr(V_GB + 2 * n + 1)}')
    g.poll_check(fo, tok)
    g.stamp('oready')
    if cfg.p2split:
        ot = {}
        for q in range(10):
            for k in range(2):
                if q and q % 4 == 0:
                    a.e(f's_add_u32 {sr(BB0 + k)}, {sr(BB0 + k)}, 4096')
                ot[q, k] = a.vmem(f'buffer_load_dwordx4 {ar(8 * q + 4 * k, 4)}, v1, {sr(R_WS, 4)}, {sr(BB0 + k)} offen offset:{(q % 4) * 1024}{g.sc("O")}')
        g.advance_epoch()
        rt = {}

        def wread(q, t):
            rt[q, t] = a.ds(f'ds_read_b128 {ar(80 + 20 * (q & 1) + 4 * t, 4)}, {ring.lds(VK0, 10 * q + t, 5)}')
        for t in range(5):
            wread(0, t)
        budget = cfg.r2
        for q in range(10):
            n = 0
            for k in (1, 0) if q == 9 else (0, 1):
                a.wait(vm=ot[q, 1 if q == 9 else k], lg=rt[q, 4])
                for t in range(5):
                    acc = ACC + 20 * k + 4 * t
                    a.e(f'v_mfma_f32_16x16x32_bf16 {vr(acc, 4)}, {ar(80 + 20 * (q & 1) + 4 * t, 4)}, {ar(8 * q + 4 * k, 4)}, {vr(acc, 4) if q else 0}')
                    if n < 5 and q < 9:
                        wread(q + 1, n)
                    if n in (6, 8) and budget > 0 and ring.bulk():
                        budget -= 1
                    n += 1
            if q == 4:
                g.barrier()
        g.stamp('p2mma')
        for t in range(5):
            a.ds(f'ds_write_b128 {vr(VXW)}, {vr(ACC + 20 + 4 * t, 4)} offset:{1024 * t}')
        a.wait_all(vm=False)
        g.barrier()
        ring.consumed = 100
        tk = [a.ds(f'ds_read_b128 {vr(ACC + 20 + 4 * t, 4)}, {vr(VXR)} offset:{1024 * t}') for t in range(5)]
        for t in range(5):
            a.wait(lg=tk[t])
            for n in (0, 2):
                a.e(f'v_pk_add_f32 {vr(ACC + 4 * t + n, 2)}, {vr(ACC + 4 * t + n, 2)}, {vr(ACC + 20 + 4 * t + n, 2)}')
    else:
        ot = {}
        for q in range(20):
            if q and q % 4 == 0:
                a.e(f's_add_u32 {sr(BB0)}, {sr(BB0)}, 4096')
            ot[q] = a.vmem(f'buffer_load_dwordx4 {ar(4 * q, 4)}, v1, {sr(R_WS, 4)}, {sr(BB0)} offen offset:{(q % 4) * 1024} sc1')
        a.e(f'v_and_b32 {vr(VF8)}, 0x380, {vr(VF8)}')
        g.advance_epoch()
        rt = {}
        NB = 18

        def wread(f):
            rt[f] = a.ds(f'ds_read_b128 {ar(80 + 4 * (f % 20), 4)}, {ring.lds(VN0, f)}')
        for f in range(NB):
            wread(f)
        budget = cfg.r2
        for f in range(100):
            q, t = divmod(f, 5)
            a.wait(vm=ot[q] if t == 0 else None, lg=rt[min(f + 4, 99)] if t == 0 else None)
            acc = ACC + 4 * t
            a.e(f'v_mfma_f32_16x16x32_bf16 {vr(acc, 4)}, {ar(80 + 4 * (f % 20), 4)}, {ar(4 * q, 4)}, {vr(acc, 4) if q else 0}')
            if f + NB < 100:
                wread(f + NB)
            if t == 2 and budget > 0 and ring.bulk():
                budget -= 1
        g.stamp('p2mma')
    for n in range(10):
        a.e(f'v_pk_fma_f32 {vr(V_X1 + 2 * n, 2)}, {vr(ACC + 2 * n, 2)}, {vr(V_GA + 2 * n, 2)}, {vr(V_X1 + 2 * n, 2)}')
    for n in range(10):
        a.e(f'v_cvt_pk_bf16_f32 {vr(V_X1P + n)}, {vr(V_X1 + 2 * n)}, {vr(V_X1 + 2 * n + 1)}')
    a.e(f's_mov_b32 {sr(T + 2)}, 0x3f803f80\nv_mov_b32 v48, 0\nv_mov_b32 v49, 0\nv_mov_b32 v52, 0\nv_mov_b32 v53, 0')
    for n in range(10):
        d = 48 + 4 * (n & 1)
        a.e(f'v_dot2c_f32_bf16 {vr(d)}, {sr(T + 2)}, {vr(V_X1P + n)}\nv_dot2c_f32_bf16 {vr(d + 1)}, {vr(V_X1P + n)}, {vr(V_X1P + n)}')
    a.e(f's_lshl_b32 {sr(T)}, {sr(S_M2)}, 12\ns_lshl_b32 {sr(T + 1)}, {sr(S_W)}, 7\ns_add_u32 {sr(T)}, {sr(T)}, {sr(T + 1)}\ns_add_u32 {sr(T + 14)}, {sr(T)}, {WS_ST}')
    a.e(f's_lshl_b32 {sr(T + 1)}, {sr(S_N2)}, 9\ns_add_u32 {sr(T + 1)}, {sr(T + 1)}, {sr(T + 14)}')
    a.e('v_pk_add_f32 v[48:49], v[48:49], v[52:53]')
    g.sum_rows((48, 49), (50, 51), (4, 5))
    for op in ('v_add_u32 {d}, 0x80, {d}', 'v_and_b32 {d}, 0xffffff00, {d}', 'v_or_b32 {d}, {d}, {t}'):
        for r in range(2):
            a.e(op.format(d=vr(48 + r), t=vr(VTB + r)))
    a.e('s_mov_b64 exec, 0xffff')
    tf = a.vmem(f'buffer_store_dwordx2 v[48:49], {vr(VTB + 2)}, {sr(R_WS, 4)}, {sr(T + 1)} offen{g.sc("s")}')
    a.e('s_mov_b64 exec, -1')
    g.stamp('stpub')
    ring.bulk_n(cfg.r3)
    for n in range(10):
        g.unpack(V_X1 + 2 * n, V_X1 + 2 * n + 1, V_X1P + n)
    a.e(f'v_lshrrev_b32 v9, 4, v0\nv_and_b32 v10, 0xf0, v1\nv_lshl_add_u32 v11, v9, 10, {vr(VTB + 2)}')
    a.e('v_lshrrev_b32 v9, 1, v9\nv_lshl_add_u32 v13, v9, 8, v10')
    a.e(f's_lshl_b32 {sr(T + 2)}, {sr(S_M2)}, 2\ns_add_u32 {sr(T + 2)}, {sr(T + 2)}, {sr(S_W)}\ns_mul_i32 {sr(T + 2)}, {sr(T + 2)}, 20480')
    a.e(f's_mul_i32 {sr(T + 3)}, {sr(S_N2)}, 2560\ns_add_u32 {sr(T + 2)}, {sr(T + 2)}, {sr(T + 3)}\ns_add_u32 {sr(T + 2)}, {sr(T + 2)}, {WS_Y}')
    g.wg_flag_off(T + 6, S_M2, 8, S_N2, WS_FY, spare=True)
    if cfg.ackw:
        a.wait(vm=tf)
    sl = [(f'buffer_load_dwordx2 v[52:53], v11, {sr(R_WS, 4)}, {sr(T + 14)} offen sc1', ('pair', 52, VTB)),
          (f'buffer_load_dwordx2 v[56:57], v11, {sr(R_WS, 4)}, {sr(T + 14)} offen offset:512 sc1', ('pair', 56, VTB))]
    tok = g.poll_issue(sl)
    if cfg.stbar:
        g.barrier()
        ring.consumed = 100
        ring.limit = ring.total
    ring.bulk_n(cfg.r3b)
    for n in range(10):
        a.e(f'v_pk_mul_f32 {vr(V_X1 + 2 * n, 2)}, {vr(V_X1 + 2 * n, 2)}, {vr(V_S2 + 2 * n, 2)}')
    g.poll_check(sl, tok)
    g.stamp('stready')
    a.e('v_pk_add_f32 v[48:49], v[52:53], v[56:57]')
    g.sum_rows((48, 49), (50, 51), (4, 5))
    a.e('v_mul_f32 v48, 0x3acccccd, v48\nv_mul_f32 v50, 0x3acccccd, v49\nv_fma_f32 v50, -v48, v48, v50\nv_max_f32 v50, 0, v50')
    a.e('v_add_f32 v50, 0x3727c5ac, v50\nv_rsq_f32 v50, v50')
    a.e('v_mul_f32 v48, v48, v50')
    order = (8, 9, 0, 1, 2, 3, 4, 5, 6, 7)
    for n in order:
        a.e(f'v_pk_fma_f32 {vr(V_SB + 2 * n, 2)}, {vr(V_S2 + 2 * n, 2)}, v[48:49], {vr(V_SB + 2 * n, 2)} op_sel_hi:[1,0,1] neg_lo:[0,1,0] neg_hi:[0,1,0]')
    for n in order:
        a.e(f'v_pk_fma_f32 {vr(V_X1 + 2 * n, 2)}, {vr(V_X1 + 2 * n, 2)}, v[50:51], {vr(V_SB + 2 * n, 2)} op_sel_hi:[1,0,1]')
    for n in order:
        a.e(f'v_cvt_pk_bf16_f32 {vr(52 + n)}, {vr(V_X1 + 2 * n)}, {vr(V_X1 + 2 * n + 1)}')
    a.e('v_permlane16_swap_b32 v60, v62\nv_permlane16_swap_b32 v61, v63')
    a.vmem(f'buffer_store_dwordx4 v[52:55], v1, {sr(R_WS, 4)}, {sr(T + 2)} offen{g.sc("y")}')
    a.vmem(f'buffer_store_dwordx4 v[56:59], v1, {sr(R_WS, 4)}, {sr(T + 2)} offen offset:1024{g.sc("y")}')
    a.e('s_mov_b32 exec_lo, 0xffff\ns_mov_b32 exec_hi, 0xffff')
    tok = a.vmem(f'buffer_store_dwordx4 v[60:63], v13, {sr(R_WS, 4)}, {sr(T + 2)} offen offset:2048{g.sc("y")}')
    a.e('s_mov_b64 exec, -1')
    g.stamp('yst')
    ring.bulk_n(cfg.r4)
    g.tf = g.publish(tok, T + 6, 'y')
    ring.consumed = 100
    ring.limit = ring.total
    g.stamp('ypub')


def silu_items(G0, U0, G1, U1, E, dst):
    G = [G0 + i for i in range(4)] + [G1 + i for i in range(4)]
    U = [U0 + i for i in range(4)] + [U1 + i for i in range(4)]
    it = [f'v_pk_mul_f32 {vr(E + i, 2)}, {vr(G[i], 2)}, {sr(S_L2E, 2)} neg_lo:[1,0] neg_hi:[1,0]' for i in range(0, 8, 2)]
    it += [f'v_exp_f32 {vr(E + i)}, {vr(E + i)}' for i in range(8)]
    it += [f'v_pk_mul_f32 {vr(G[i], 2)}, {vr(G[i], 2)}, {vr(U[i], 2)}' for i in range(0, 8, 2)]
    it += [f'v_pk_add_f32 {vr(E + i, 2)}, {vr(E + i, 2)}, 1.0 op_sel_hi:[1,0]' for i in range(0, 8, 2)]
    it += [f'v_rcp_f32 {vr(E + i)}, {vr(E + i)}' for i in range(8)]
    it += [f'v_pk_mul_f32 {vr(G[i], 2)}, {vr(G[i], 2)}, {vr(E + i, 2)}' for i in range(0, 8, 2)]
    it += [f'v_cvt_pk_bf16_f32 {vr(dst + i // 2)}, {vr(G[i])}, {vr(G[i + 1])}' for i in range(0, 8, 2)]
    return it


def phase34(g, ring):
    a, cfg = g.a, g.cfg
    a.c('phase 3: gate / up projection in two passes')
    YB0, HA, HBo, FA, FB = T + 8, T + 10, T + 11, T + 12, T + 13
    a.e(f's_lshl_b32 {sr(T)}, {sr(S_G3)}, 2\ns_add_u32 {sr(T)}, {sr(T)}, {sr(S_W)}')
    a.e(f's_lshr_b32 {sr(T + 1)}, {sr(T)}, 1\ns_lshl_b32 {sr(T + 1)}, {sr(T + 1)}, 10\ns_add_u32 {sr(T + 14)}, {sr(T + 1)}, {WS_FY}')
    ring.bulk_n(cfg.r5)
    fy = [(f'buffer_load_dwordx2 v[14:15], {vr(VF8)}, {sr(R_WS, 4)}, {sr(T + 14)} offen sc1', 14)]
    a.e(f's_mul_i32 {sr(YB0)}, {sr(T)}, 40960\ns_add_u32 {sr(YB0)}, {sr(YB0)}, {WS_Y}\ns_add_u32 {sr(YB0 + 1)}, {sr(YB0)}, 20480')
    a.e(f's_mul_i32 {sr(HA)}, {sr(T)}, {2 * HT}\ns_add_u32 {sr(HA)}, {sr(HA)}, {WS_HH}\ns_lshr_b32 {sr(T)}, {sr(S_J3)}, 2\ns_mul_i32 {sr(T)}, {sr(T)}, {56 * 256}')
    a.e(f's_add_u32 {sr(HA)}, {sr(HA)}, {sr(T)}\ns_bfe_u32 {sr(T)}, {sr(S_J3)}, 0x10001\ns_mul_i32 {sr(T)}, {sr(T)}, 11\ns_and_b32 {sr(T + 1)}, {sr(S_J3)}, 1')
    a.e(f's_mul_i32 {sr(T + 2)}, {sr(T + 1)}, 6\ns_add_u32 {sr(T)}, {sr(T)}, {sr(T + 2)}\ns_add_u32 {sr(T)}, {sr(T)}, 32\ns_lshl_b32 {sr(T)}, {sr(T)}, 8\ns_add_u32 {sr(HBo)}, {sr(HA)}, {sr(T)}')
    a.e(f's_and_b32 {sr(T)}, {sr(S_J3)}, 3\ns_lshl_b32 {sr(T)}, {sr(T)}, 11\ns_add_u32 {sr(HA)}, {sr(HA)}, {sr(T)}')
    if cfg.ackw:
        a.wait(vm=g.tf)
    tok = g.poll_issue(fy)
    ring.bulk_n(cfg.r6)
    a.e(f'v_add_u32 {vr(VH1)}, {HT}, v1\nv_bfe_u32 v9, v0, 4, 1\nv_mul_u32_u24 v9, {HT}, v9\nv_and_b32 v11, 0xf0, v1\nv_add_u32 v9, v9, v11\nv_lshrrev_b32 v11, 5, v0\nv_lshl_add_u32 v9, v11, 8, v9')
    a.e(f's_cmp_eq_u32 {sr(T + 1)}, 1\ns_cselect_b32 {sr(T + 3)}, 32, 64\nv_mov_b32 v11, {OOB}\nv_cmp_gt_u32 vcc, {sr(T + 3)}, v0\nv_cndmask_b32 {vr(VH6)}, v11, v9, vcc')
    a.e(f'v_cmp_gt_u32 vcc, 32, v0\nv_cndmask_b32 {vr(VHL)}, v11, v1, vcc')
    g.wg_flag_off(FA, S_G3, 16, S_J3, WS_FHA)
    a.e(f's_add_u32 {sr(FB)}, {sr(FA)}, {WS_FHB - WS_FHA}')
    a.e(f's_lshl_b32 {sr(T + 2)}, {sr(S_M2)}, 2\ns_add_u32 {sr(T + 2)}, {sr(T + 2)}, {sr(S_W)}\ns_mul_i32 {sr(T + 4)}, {sr(S_W)}, 14336\ns_add_u32 {sr(T + 4)}, {sr(T + 4)}, {WS_HH}')
    for k in range(4):
        a.e(f's_xor_b32 {sr(T + 3)}, {sr(T + 2)}, {k}\ns_mul_i32 {sr(BB0 + k)}, {sr(T + 3)}, {HT}\ns_add_u32 {sr(BB0 + k)}, {sr(BB0 + k)}, {sr(T + 4)}')
    a.e(f's_lshl_b32 {sr(T)}, {sr(S_W)}, 9\ns_add_u32 {sr(FLG8)}, {sr(FLG8)}, {sr(T)}')
    for k in range(3):
        a.e(f'v_add_u32 {vr(VK0 + k)}, {sr(RDST)}, {vr(VN0 + k)}')
    srd(a, R_OUT, S_OUT, 2048 * 1280)
    g.poll_check(fy, tok)
    g.stamp('yready')
    a.e(f'v_and_b32 {vr(VF8)}, 0x180, {vr(VF8)}')
    yt = {}

    def yload(s, tt):
        sb = YB0 + tt
        if s and s % 4 == 0:
            a.e(f's_add_u32 {sr(sb)}, {sr(sb)}, 4096')
        yt[s, tt] = a.vmem(f'buffer_load_dwordx4 {ar(8 * s + 4 * tt, 4)}, v1, {sr(R_WS, 4)}, {sr(sb)} offen offset:{(s % 4) * 1024}{g.sc("Y")}')
    for s in range(cfg.ypre):
        yload(s, 0)
        yload(s, 1)
    yq = [(s, tt) for s in range(cfg.ypre, 20) for tt in range(2)]
    SY = cfg.sy
    ring.sync(F_A, min(F_A + SY + 12, 4 * ring.issued))
    LA = 6
    rt = {}

    def wread(f):
        rt[f] = a.ds(f'ds_read_b128 {ar(160 + 4 * (f % 8), 4)}, {ring.lds(VN0, f)}')
    for f in range(F_A, F_A + LA):
        wread(f)

    def acc_of(f, tt):
        if f < F_B:
            s, fi = divmod(f - F_A, 8)
            return s, ACC + 32 * tt + 4 * fi
        s, fi = divmod(f - F_B, 6)
        return s, ACC + 64 + 24 * tt + 4 * fi
    ht = {}

    def hslot(q, k):
        return 4 * q + k if q < 10 else 4 * (q - 10) + k

    def hload(q, k):
        if q and q % 4 == 0:
            a.e(f's_add_u32 {sr(BB0 + k)}, {sr(BB0 + k)}, 4096')
        ht[q, k] = a.vmem(f'buffer_load_dwordx4 {ar(4 * hslot(q, k), 4)}, {vr(VHL) if q == 13 else "v1"}, {sr(R_WS, 4)}, {sr(BB0 + k)} offen offset:{(q % 4) * 1024}{g.sc("A")}')
    st = {'free': 0}
    fa = [(f'buffer_load_dwordx2 v[14:15], {vr(VF8)}, {sr(R_WS, 4)}, {sr(T + 14)} offen sc1', 14)]
    hq = []

    def h_ok():
        return hq and (hslot(*hq[0]) + (40 if hq[0][0] >= 10 else 0)) < st['free']

    def vm_slot(f):
        if ring.can_issue() and 4 * ring.issued < min(f + cfg.lead, F_2):
            ring.issue()
        elif yq:
            yload(*yq.pop(0))
        elif len(ring.pre) < 35:
            ring.preload()
        elif h_ok():
            hload(*hq.pop(0))
        elif ring.can_issue():
            ring.issue()

    def run_pass(f0, f1):
        for f in range(f0, f1):
            s, _ = acc_of(f, 0)
            first_of_step = f == (F_A + 8 * s if f < F_B else F_B + 6 * s)
            if f >= F_B:
                st['free'] = 2 * s
            a.wait(vm=yt[s, 1] if f < F_B and first_of_step else None, lg=rt[min(f + (f & 1 ^ 1), F_2 - 1)] if cfg.wait2 else rt[f])
            for tt in range(2):
                _, acc = acc_of(f, tt)
                a.e(f'v_mfma_f32_16x16x32_bf16 {vr(acc, 4)}, {ar(160 + 4 * (f % 8), 4)}, {ar(8 * s + 4 * tt, 4)}, {vr(acc, 4) if s else 0}')
                if tt == 0 and f + LA < F_2:
                    wread(f + LA)
                if tt == 1 and f % 2 == 0:
                    vm_slot(f)
            if (f - F_A) % SY == SY - 1 and f + 1 < F_2:
                pub = 'A' in st and 'Aflag' not in st and f >= F_B + cfg.puba
                if pub:
                    a.wait(vm=st['A'])
                ring.sync(f + 1, min(f + 1 + SY + 12, F_2))
                if pub:
                    g.flag(FA, 'a')
                    st['Aflag'] = f
            if f == F_B + 6 * cfg.chk_a:
                assert 'Aflag' in st
                a.e(f's_add_u32 {sr(T + 14)}, {sr(FLG8)}, {WS_FHA}')
                st['fa'] = g.poll_issue(fa)
            if f == F_B + 6 * cfg.chk_a + 6 * cfg.chkd:
                g.poll_check(fa, st['fa'])
                hq.extend((q, k) for q in range(8) for k in range(4))

    def epilogue(items, every, f):
        for n, it in enumerate(items):
            g.fq.append(it)
            g.fill(1)
            if n % every == every - 1:
                vm_slot(f)
    run_pass(F_A, F_B)
    g.stamp('passA')
    items = []
    for tt in range(2):
        for pp in range(2):
            b = ACC + 32 * tt + 16 * pp
            items += silu_items(b, b + 4, b + 8, b + 12, 160 + 8 * pp, b + 4)

            def sto(tt=tt, pp=pp, b=b):
                st['A'] = a.vmem(f'buffer_store_dwordx4 {vr(b + 4, 4)}, {vr(VH1) if tt else "v1"}, {sr(R_WS, 4)}, {sr(HA)} offen offset:{1024 * pp}{g.sc("a")}')
            items.append(sto)
    epilogue(items, cfg.epace, F_B)
    g.stamp('epiA')
    run_pass(F_B, F_2)
    g.stamp('passB')
    st['free'] = 40
    ring.sync(F_2, F_2)
    items = []
    B0 = ACC + 64
    for tt in range(2):
        b = B0 + 24 * tt
        items += silu_items(b, b + 4, b + 8, b + 12, 160 + 8 * tt, b + 4)

        def stb(tt=tt, b=b):
            a.vmem(f'buffer_store_dwordx4 {vr(b + 4, 4)}, {vr(VH1) if tt else "v1"}, {sr(R_WS, 4)}, {sr(HBo)} offen{g.sc("a")}')
        items.append(stb)
    items += silu_items(B0 + 16, B0 + 20, B0 + 40, B0 + 44, 160, B0 + 20)
    items += [f'v_permlane16_swap_b32 {vr(B0 + 20)}, {vr(B0 + 22)}', f'v_permlane16_swap_b32 {vr(B0 + 21)}, {vr(B0 + 23)}']

    def stc():
        st['B'] = a.vmem(f'buffer_store_dwordx4 {vr(B0 + 20, 4)}, {vr(VH6)}, {sr(R_WS, 4)}, {sr(HBo)} offen offset:1024{g.sc("a")}')
    items.append(stc)
    epilogue(items, cfg.epace, F_2)
    g.stamp('epiB')
    a.c('phase 4: down projection (four-way split K), residual')
    fb = [(f'buffer_load_dwordx2 v[14:15], {vr(VF8)}, {sr(R_WS, 4)}, {sr(T + 14)} offen sc1', 14)]
    assert len(ring.pre) == 35
    rt = {}
    LB = 4

    def wread4(i):
        while ring.issued <= 95 + i - 35:
            ring.issue()
        a.wait(vm=ring.tok[95 + i - 35])
        rt[i] = a.ds(f'ds_read_b128 {ar(160 + 4 * (i % 8), 4)}, {ring.lds(VK0, F_2 + 4 * (i - 35), None)}')

    def xw(t, k):
        a.ds(f'ds_write_b128 v12, {vr(ACC + 20 * k + 4 * t, 4)} offset:{4096 * (3 * t + k - 1)}')
    for i in range(70):
        q, t = divmod(i, 5)
        st['free'] = 40 + 4 * q
        if t == 0:
            while hq and hq[0][0] <= q:
                hload(*hq.pop(0))
        a.wait(vm=max(ht[q, 3], ring.pre[i] if i < 35 else 0) if t == 0 or i < 35 else None, lg=rt.get(i))
        A = ring.pre_reg(i) if i < 35 else ar(160 + 4 * (i % 8), 4)
        for k in ((1, 2, 3, 0) if q == 13 else range(4)):
            acc = ACC + 20 * k + 4 * t
            a.e(f'v_mfma_f32_16x16x32_bf16 {vr(acc, 4)}, {A}, {ar(4 * hslot(q, k), 4)}, {vr(acc, 4) if q else 0}')
            if k == 1 and 35 <= i + LB < 70:
                wread4(i + LB)
            if k == 2:
                vm_slot(F_2)
        if q == 13 and t:
            for k in range(1, 4):
                xw(t - 1, k)
        if i == 60:
            a.e(f'v_add_u32 v12, {sr(RDST)}, v1\nv_add_u32 v12, 0xf000, v12')
            for k in range(1, 4):
                a.e(f'v_xor_b32 {vr(8 + k)}, {k * 1024}, v12')
        if i == cfg.pubb:
            g.publish(st['B'], FB, 'a')
        if i == cfg.chk_b:
            a.e(f's_add_u32 {sr(T + 14)}, {sr(FLG8)}, {WS_FHB}')
            st['fb'] = g.poll_issue(fb)
        if i == cfg.chk_b + cfg.chkd4:
            g.poll_check(fb, st['fb'])
            hq.extend((qq, k) for qq in range(8, 14) for k in range(4))
        if i in (19, 39):
            g.stamp(f'p4i{i}')
    g.stamp('p4mma')
    for k in range(1, 4):
        xw(4, k)
    for n in range(10):
        g.unpack(128 + 2 * n, 129 + 2 * n, V_X1P + n)
        g.unpack(148 + 2 * n, 149 + 2 * n, V_GBP + n)
    a.e(f's_mul_i32 {sr(T + 2)}, {sr(S_W)}, 2560\nv_and_b32 v13, 15, v0\nv_mul_u32_u24 v13, 0xa0, v13\nv_add_u32 v13, {sr(T + 2)}, v13\nv_lshrrev_b32 v14, 4, v0')
    a.e(f'v_lshl_add_u32 v15, v14, 3, v13\nv_lshl_add_u32 v13, v14, 4, v13\nv_add_u32 v14, {sr(T + 2)}, v1')
    a.wait_all(vm=False)
    g.barrier()
    tk = {}
    for t in range(5):
        for k in range(1, 4):
            tk[t] = a.ds(f'ds_read_b128 {vr(ACC + 20 * k + 4 * t, 4)}, {vr(8 + k)} offset:{4096 * (3 * t + k - 1)}')
    for t in range(5):
        a.wait(lg=tk[t])
        for n in (0, 2):
            r = ACC + 4 * t + n
            a.e(f'v_pk_add_f32 {vr(r, 2)}, {vr(r, 2)}, {vr(r + 20, 2)}\nv_pk_add_f32 {vr(r + 40, 2)}, {vr(r + 40, 2)}, {vr(r + 60, 2)}')
        for n in (0, 2):
            r = ACC + 4 * t + n
            a.e(f'v_pk_add_f32 {vr(r, 2)}, {vr(r, 2)}, {vr(r + 40, 2)}')
        for n in (0, 2):
            r = ACC + 4 * t + n
            a.e(f'v_pk_fma_f32 {vr(r, 2)}, {vr(r, 2)}, {vr(148 + 4 * t + n, 2)}, {vr(128 + 4 * t + n, 2)}')
        for n in (0, 2):
            r = ACC + 4 * t + n
            a.e(f'v_cvt_pk_bf16_f32 {vr(176 + 2 * t + n // 2)}, {vr(r)}, {vr(r + 1)}')
    a.ds('ds_write_b128 v13, v[176:179]')
    a.ds('ds_write_b128 v13, v[180:183] offset:64')
    a.ds('ds_write_b64 v15, v[184:185] offset:128')
    tk = [a.ds(f'ds_read_b128 {vr(188 + 4 * n, 4)}, v14 offset:{1024 * n}') for n in range(3)]
    for n in range(3):
        a.wait(lg=tk[n])
        if n == 2:
            a.e('s_mov_b32 exec_hi, 0')
        a.vmem(f'buffer_store_dwordx4 {vr(188 + 4 * n, 4)}, {vr(VXO + n)}, {sr(R_OUT, 4)}, {sr(XOFF)} offen')
    a.e('s_mov_b64 exec, -1')
```

```python
import sys
from collections import deque
from asmlib import Asm, pad_hazards, vr, ar, sr

NAME = 'adaLN_cond__linear_kernel_hedgehog__glu_gated_swiglu__prompt'

WS_EPOCH = 0
WS_FW = 0x1000
WS_FRT = 0x4000
WS_FH = 0x10000
WS_FKV = 0x30000
WS_FO = 0x50000
WS_FY = 0x70000
WS_FHA = 0x90000
WS_FHB = 0xB0000
WS_MOD = 0xD0000
WS_ST = 0xE0000
WS_KVP = 0x120000
WS_WQ = 0x200000
WS_H = 0x480000
WS_O = 0x700000
WS_Y = 0x980000
WS_WO = 0xC00000
WS_W13 = 0xD00000
WS_W2 = 0x1180000
WS_HH = 0x1400000
WS_SPARE = 0x1AC0000
WS_DBG = 0x1B00000
WS_SIZE = 0x1C00000
OOB_VAL = 0x40000000
OOB = 's3'

L_XS = 20480
L_JA = 32768
L_JB = 102400
L_TS = 51200
L_MISC = 153600
L_MODP = L_XS
L_SILU = L_MISC + 5120
L_LNRED = L_MISC + 6400
L_WPHI = L_MISC + 6656
L_KVR = L_MISC
L_KVZ = L_KVR + 3840
L_PAR = L_MISC + 8704
L_MT2 = 135168
L_XCH = 143360
L_XR = 143360
TP = 336
RING = 140

S_X, S_WQKV, S_WPHI, S_WO, S_W1, S_W3, S_W2, S_C, S_WMOD, S_OUT, S_DBG, S_WS = 4, 6, 8, 10, 14, 16, 18, 20, 22, 24, 26, 28
S_TAG = 30
R_WS, R_A, R_B, R_C, R_X, R_OUT = 32, 36, 40, 44, 48, 52
S_W, S_XC, S_I, S_G1, S_J1, S_M2, S_N2, S_G3, S_J3 = 56, 57, 58, 59, 60, 61, 62, 63, 64
S_SPIN = 65
S_SPARE = 21
S_TB = 26
S_L2E = 66
T = 68
P = 84
S_PM = 96
S_STAMP = 98
JB_OFF, JC_OFF = 4, 8

V_TAG = 2
V_STAMP = 255
VA0, VA1, VA2, VTW0, VTW1, VTR0, VTR1, VKS, VGL, VKW, VO0, VO1 = range(16, 28)
VOS0, VOS1, VF128, VFW = 36, 37, 38, 39
VGM, VGT, VGB = 244, 245, 246


class Cfg:
    diag = False
    probe = None
    stop = None
    map2 = '8x1'
    map3 = '2x4'
    spin = 200000
    pfcode = 1
    nt = 1
    outp = ''
    skip = 'issued,prep,yst,xin'
    ackw = 1
    ja_at = 1
    map1 = '2x4'
    cold0 = 58
    coldp = 4
    late1 = 4
    late2 = 0
    jfin = 0
    wspan = 0
    kvpub = 19
    jb_at = 1
    w1b = 20
    r5 = 9
    w1a = 10
    hpre = 8
    r0 = 25
    r1 = 0
    r2 = 10
    r3 = 8
    r4 = 8
    ypre = 8
    fillb = 2
    lead = 80
    slots4 = 0
    hlead = 3
    chkd = 3
    sy = 24
    sy4 = 2
    wait2 = 0
    puba = 12
    pubb = 3
    chk_b = 9
    chk_a = 11
    epib_inline = 0


def srd(a, r, ptr, size):
    a.e(f's_mov_b32 {sr(r)}, {sr(ptr)}\ns_mov_b32 {sr(r + 1)}, {sr(ptr + 1)}\n'
        f's_mov_b32 {sr(r + 2)}, {size}\ns_mov_b32 {sr(r + 3)}, 0x20000')


class Gen:
    def __init__(self, cfg):
        self.cfg = cfg
        self.a = Asm()
        self.stamps = []
        self.nt = ' nt' if cfg.nt else ''
        self.fq = deque()

    def stamp(self, name):
        a = self.a
        if self.cfg.probe:
            if name == self.cfg.probe:
                a.e(f's_memrealtime {sr(S_STAMP + 2, 2)}')
                a.wait_all(vm=False)
            return
        if not self.cfg.diag or name in self.cfg.skip.split(','):
            return
        idx = len(self.stamps)
        self.stamps.append(name)
        a.e(f's_memrealtime {sr(S_STAMP, 2)}\ns_memtime {sr(S_STAMP + 2, 2)}')
        a.wait_all(vm=False)
        a.e(f'v_writelane_b32 {vr(V_STAMP)}, {sr(S_STAMP)}, {idx}\nv_writelane_b32 {vr(V_STAMP)}, {sr(S_STAMP + 2)}, {idx + 32}')

    def barrier(self):
        self.a.e('s_barrier')

    def fill(self, n):
        while n > 0 and self.fq:
            f = self.fq.popleft()
            if callable(f):
                f()
            else:
                self.a.e(f)
            n -= 1

    def flush(self):
        self.fill(1 << 30)

    def _cmp_tags(self, loads):
        a = self.a
        first = True
        byte = [-t for _, t in loads if not isinstance(t, tuple) and t < 0]
        if byte:
            for n, b in enumerate(byte):
                for r in range(4):
                    a.e(f'v_xor_b32 {vr(b + r)}, {sr(S_TB + r)}, {vr(b + r)}')
                a.e(f'v_or3_b32 v9, {vr(b)}, {vr(b + 1)}, {"v9" if n else vr(b)}\nv_or3_b32 v9, {vr(b + 2)}, {vr(b + 3)}, v9')
            a.e('v_and_b32 v9, 0xff, v9\nv_cmp_ne_u32 vcc, 0, v9')
            first = False
        for _, tags in loads:
            for t in (tags if isinstance(tags, tuple) else (tags,)):
                if t < 0:
                    continue
                if first:
                    a.e(f'v_cmp_ne_u64 vcc, {sr(S_TAG, 2)}, {vr(t, 2)}')
                    first = False
                else:
                    a.e(f'v_cmp_ne_u64 {sr(S_PM, 2)}, {sr(S_TAG, 2)}, {vr(t, 2)}\ns_or_b64 vcc, vcc, {sr(S_PM, 2)}')

    def poll_issue(self, loads):
        tok = None
        for text, _ in loads:
            tok = self.a.vmem(text)
        return tok

    def poll_check(self, loads, tok):
        a = self.a
        top, done = a.newlabel('poll'), a.newlabel('polled')
        a.wait(vm=tok)
        self._cmp_tags(loads)
        a.e(f's_cbranch_vccz {done}\ns_mov_b32 {sr(S_SPIN)}, {self.cfg.spin}')
        a.label(top)
        for text, _ in loads:
            a.e(text)
        a.e('s_waitcnt vmcnt(0)')
        self._cmp_tags(loads)
        a.e(f's_cbranch_vccz {done}')
        a.e(f's_sub_u32 {sr(S_SPIN)}, {sr(S_SPIN)}, 1\ns_cmp_lg_u32 {sr(S_SPIN)}, 0\ns_cbranch_scc1 {top}')
        a.label(done)

    def poll(self, loads):
        self.poll_check(loads, self.poll_issue(loads))

    def flag(self, soff):
        a = self.a
        a.e('s_mov_b64 exec, 1')
        tok = a.vmem(f'buffer_store_dwordx2 {vr(V_TAG, 2)}, off, {sr(R_WS, 4)}, {sr(soff)} sc1')
        a.e('s_mov_b64 exec, -1')
        return tok

    def wg_flag_off(self, dst, hi, mul, lo, base, shift=7, spare=False):
        a = self.a
        a.e(f's_mul_i32 {sr(dst)}, {sr(hi)}, {mul}')
        if lo is not None:
            a.e(f's_add_u32 {sr(dst)}, {sr(dst)}, {sr(lo)}')
        a.e(f's_lshl_b32 {sr(dst)}, {sr(dst)}, {shift}\ns_add_u32 {sr(dst)}, {sr(dst)}, {base}')
        a.e(f's_cmp_eq_u32 {sr(S_W)}, 0\ns_cselect_b32 {sr(dst)}, {sr(dst)}, {sr(S_SPARE) if spare else OOB}')

    def publish(self, tok, soff):
        self.a.wait(vm=tok)
        self.barrier()
        return self.flag(soff)

    def wave_flag_off(self, dst, hi, mul, lo, base, shift=7):
        a = self.a
        a.e(f's_mul_i32 {sr(dst)}, {sr(hi)}, {mul}')
        if lo is not None:
            a.e(f's_add_u32 {sr(dst)}, {sr(dst)}, {sr(lo)}')
        a.e(f's_lshl_b32 {sr(dst)}, {sr(dst)}, 2\ns_add_u32 {sr(dst)}, {sr(dst)}, {sr(S_W)}')
        a.e(f's_lshl_b32 {sr(dst)}, {sr(dst)}, {shift}\ns_add_u32 {sr(dst)}, {sr(dst)}, {base}')

    def unpack(self, lo, hi, src):
        self.a.e(f'v_lshlrev_b32 {vr(lo)}, 16, {vr(src)}\nv_and_b32 {vr(hi)}, 0xffff0000, {vr(src)}')

    def round_pair(self, lo, tmp):
        self.a.e(f'v_cvt_pk_bf16_f32 {vr(tmp)}, {vr(lo)}, {vr(lo + 1)}')
        self.unpack(lo, lo + 1, tmp)

    def sum_rows(self, regs, tmps, bits):
        a = self.a
        for b in bits:
            if b == 3:
                for r in regs:
                    a.e(f'v_add_f32_dpp {vr(r)}, {vr(r)}, {vr(r)} row_ror:8 row_mask:0xf bank_mask:0xf')
            else:
                for r, t in zip(regs, tmps):
                    a.e(f'v_mov_b32 {vr(t)}, {vr(r)}')
                for r, t in zip(regs, tmps):
                    a.e(f'v_permlane{16 if b == 4 else 32}_swap_b32 {vr(r)}, {vr(t)}')
                for r, t in zip(regs, tmps):
                    a.e(f'v_add_f32 {vr(r)}, {vr(r)}, {vr(t)}')

    def frag16_addr(self, vd, t):
        a = self.a
        a.e(f'v_bfe_u32 {vr(t)}, v0, 2, 2\nv_lshlrev_b32 {vr(vd)}, 8, {vr(t)}\nv_and_b32 {vr(t)}, 2, {vr(t)}')
        a.e(f'v_lshrrev_b32 {vr(t + 1)}, 4, v0\nv_xor_b32 {vr(t)}, {vr(t)}, {vr(t + 1)}\nv_lshl_add_u32 {vr(vd)}, {vr(t)}, 6, {vr(vd)}')
        a.e(f'v_add_u32 {vr(vd)}, {vr(vd)}, v8')

    def gemv_role(self, first, count, s_src, s_dst):
        a = self.a
        a.e(f's_lshr_b32 {sr(T)}, {sr(S_I)}, 2\ns_lshl_b32 {sr(T)}, {sr(T)}, 3\ns_add_u32 {sr(T)}, {sr(T)}, {sr(S_XC)}')
        a.e(f's_and_b32 {sr(T + 1)}, {sr(S_I)}, 3\ns_mul_i32 {sr(s_src)}, {sr(T + 1)}, 160\ns_mul_i32 {sr(s_dst)}, {sr(S_W)}, 40\ns_add_u32 {sr(s_src)}, {sr(s_src)}, {sr(s_dst)}')
        a.e(f's_mul_i32 {sr(s_src)}, {sr(s_src)}, 7680\ns_lshl_b32 {sr(s_dst)}, {sr(T)}, 7\ns_add_u32 {sr(s_src)}, {sr(s_src)}, {sr(s_dst)}')
        a.e(f's_lshl_b32 {sr(s_dst)}, {sr(T)}, 2\ns_add_u32 {sr(s_dst)}, {sr(s_dst)}, {sr(T + 1)}\ns_lshl_b32 {sr(s_dst)}, {sr(s_dst)}, 2\ns_add_u32 {sr(s_dst)}, {sr(s_dst)}, {sr(S_W)}')
        a.e(f's_lshl_b32 {sr(s_dst)}, {sr(s_dst)}, 6\ns_add_u32 {sr(s_dst)}, {sr(s_dst)}, {WS_MOD}')
        a.e(f's_sub_u32 {sr(T)}, {sr(T)}, {first}\ns_cmp_lt_u32 {sr(T)}, {count}\ns_cselect_b32 {sr(s_src)}, {sr(s_src)}, {OOB}\ns_cselect_b32 {sr(s_dst)}, {sr(s_dst)}, {OOB}')

    def gemv_dma(self, n, s_src, lds):
        a = self.a
        a.e(f's_mul_i32 {sr(T)}, {sr(S_W)}, 5120\ns_add_u32 m0, {sr(T)}, {lds + n * 1024}\ns_add_u32 {sr(T)}, {sr(s_src)}, {n * 8 * 7680}')
        return a.vmem(f'buffer_load_dwordx4 {vr(VGM)}, {sr(R_A, 4)}, {sr(T)} offen{self.nt} lds')

    def gemv_items(self, lds, s_dst, base):
        a = self.a
        tk = {}
        A, B, D = base, base + 20, base + 40
        it = [f'v_add_u32 {vr(D + 4)}, {lds}, {vr(VGT)}']
        for s in range(5):
            it.append(lambda s=s: a.ds(f'ds_read_b128 {vr(B + 4 * s, 4)}, {vr(VGB)} offset:{64 * s}'))
            it.append(lambda s=s: a.ds(f'ds_read_b64_tr_b16 {vr(A + 4 * s, 2)}, {vr(D + 4)} offset:{4096 * s}'))
            it.append(lambda s=s: tk.__setitem__(s, a.ds(f'ds_read_b64_tr_b16 {vr(A + 4 * s + 2, 2)}, {vr(D + 4)} offset:{4096 * s + 512}')))
        for s in range(5):
            def mm(s=s):
                a.wait(lg=tk[s])
                a.e(f'v_mfma_f32_16x16x32_bf16 {vr(D, 4)}, {vr(A + 4 * s, 4)}, {vr(B + 4 * s, 4)}, {vr(D, 4) if s else 0}')
            it.append(mm)

        def fin():
            for op in ('v_add_u32 {d}, 0x80, {d}', 'v_and_b32 {d}, 0xffffff00, {d}', 'v_or_b32 {d}, {t}, {d}'):
                for r in range(4):
                    a.e(op.format(d=vr(D + r), t=sr(S_TB + r)))
            a.e('s_mov_b32 exec_lo, 0x00010001\ns_mov_b32 exec_hi, 0x00010001')
            a.vmem(f'buffer_store_dwordx4 {vr(D, 4)}, v0, {sr(R_WS, 4)}, {sr(s_dst)} offen sc1')
            a.e('s_mov_b64 exec, -1')
        it.append(fin)
        return it

    def mod_finish(self, base, n, s_add):
        a = self.a
        for h in (0, 2):
            a.e(f'v_pk_add_f32 {vr(base + h, 2)}, {vr(base + h, 2)}, {vr(base + 4 + h, 2)}\nv_pk_add_f32 {vr(base + 8 + h, 2)}, {vr(base + 8 + h, 2)}, {vr(base + 12 + h, 2)}')
        for h in (0, 2):
            a.e(f'v_pk_add_f32 {vr(base + h, 2)}, {vr(base + h, 2)}, {vr(base + 8 + h, 2)}')
        self.round_pair(base, base + 4)
        self.round_pair(base + 2, base + 5)
        for h in (0, 2):
            a.e(f'v_pk_add_f32 {vr(base + h, 2)}, {vr(base + h, 2)}, {sr(s_add, 2)}')
        self.round_pair(base, base + 4)
        self.round_pair(base + 2, base + 5)

    def prologue(self):
        a, cfg = self.a, self.cfg
        a.e('s_cmp_ge_u32 s2, 256\ns_cbranch_scc1 L_end')
        if cfg.probe == 'entry':
            self.stamp('entry')
        a.e('s_load_dwordx16 s[4:19], s[0:1], 0\ns_load_dwordx8 s[20:27], s[0:1], 64\ns_load_dwordx2 s[28:29], s[0:1], 96')
        a.e(f's_mov_b32 s3, {OOB_VAL}')
        a.e('v_lshrrev_b32 v1, 6, v0\nv_and_b32 v0, 63, v0')
        a.e(f'v_readfirstlane_b32 {sr(S_W)}, v1\nv_lshlrev_b32 v1, 4, v0')
        if cfg.diag:
            a.e(f'v_mov_b32 {vr(V_STAMP)}, 0')
        a.e(f's_and_b32 {sr(S_XC)}, s2, 7\ns_lshr_b32 {sr(S_I)}, s2, 3')
        if cfg.pfcode:
            self.prefetch_code()
        a.e('v_bfe_u32 v9, v0, 4, 1\nv_and_b32 v10, 7, v0\nv_xor_b32 v4, v10, v9\nv_lshlrev_b32 v4, 4, v4\nv_lshrrev_b32 v5, 3, v0')
        a.e(f's_mov_b32 {sr(T)}, 1280\nv_xor_b32 v11, v10, v5\nv_lshlrev_b32 v11, 4, v11\nv_mad_u32_u24 v12, v5, {sr(T)}, v11')
        a.e(f's_mov_b32 {sr(T)}, 7680\nv_and_b32 v11, 2, v5\nv_xor_b32 v11, v10, v11\nv_lshlrev_b32 v11, 4, v11\nv_mad_u32_u24 {vr(VGM)}, v5, {sr(T)}, v11')
        a.e(f's_mul_i32 {sr(T + 2)}, s2, 10240\ns_lshl_b32 {sr(T + 1)}, {sr(S_W)}, 7\ns_add_u32 {sr(T + 2)}, {sr(T + 2)}, {sr(T + 1)}')
        a.e(f's_cmp_lt_u32 {sr(S_W)}, 2\ns_cselect_b32 {sr(T + 3)}, {sr(T + 2)}, {OOB}')
        a.e(f's_mul_i32 {sr(T + 5)}, {sr(S_W)}, 3072\ns_add_u32 {sr(T + 5)}, {sr(T + 5)}, {L_XS}')
        self.gemv_role(0, 20, T + 4, P)
        a.e('s_waitcnt lgkmcnt(0)')
        srd(a, R_A, S_WMOD, 640 * 7680)
        srd(a, R_X, S_X, 2048 * 1280)
        srd(a, R_WS, S_WS, WS_SIZE)
        self.stamp('start')

    def prefetch_code(self):
        a = self.a
        a.e(f's_getpc_b64 {sr(T, 2)}')
        a.label('L_pc')
        a.e(f's_and_b32 {sr(T + 2)}, {sr(S_I)}, 1\ns_lshl_b32 {sr(T + 2)}, {sr(T + 2)}, 2\ns_add_u32 {sr(T + 2)}, {sr(T + 2)}, {sr(S_W)}')
        a.e(f's_lshl_b32 {sr(T + 2)}, {sr(T + 2)}, 13\nv_lshlrev_b32 v4, 7, v0\nv_add_u32 v4, {sr(T + 2)}, v4')
        a.e(f'v_min_u32 v4, L_end-L_pc, v4\nv_mov_b32 v5, {sr(T + 1)}\nv_add_co_u32 v4, vcc, {sr(T)}, v4\nv_addc_co_u32 v5, vcc, 0, v5, vcc')
        a.vmem('global_load_dword v254, v[4:5], off')

    def roles(self):
        a, cfg = self.a, self.cfg

        def role(dm, dn, xm_shift, nn_bits_x, i_shift):
            a.e(f's_lshr_b32 {sr(T)}, {sr(S_XC)}, {xm_shift}\ns_lshl_b32 {sr(T)}, {sr(T)}, {5 - i_shift}')
            a.e(f's_lshr_b32 {sr(T + 1)}, {sr(S_I)}, {i_shift}\ns_add_u32 {sr(dm)}, {sr(T)}, {sr(T + 1)}')
            a.e(f's_and_b32 {sr(T)}, {sr(S_XC)}, {(1 << nn_bits_x) - 1}\ns_lshl_b32 {sr(T)}, {sr(T)}, {i_shift}')
            a.e(f's_and_b32 {sr(T + 1)}, {sr(S_I)}, {(1 << i_shift) - 1}\ns_add_u32 {sr(dn)}, {sr(T)}, {sr(T + 1)}')
        role(S_G1, S_J1, *{'8x1': (0, 0, 4), '4x2': (1, 1, 3), '2x4': (2, 2, 2), '1x8': (3, 3, 1)}[cfg.map1])
        role(S_M2, S_N2, *{'8x1': (0, 0, 3), '4x2': (1, 1, 2), '2x4': (2, 2, 1)}[cfg.map2])
        role(S_G3, S_J3, *{'8x1': (0, 0, 4), '4x2': (1, 1, 3), '2x4': (2, 2, 2)}[cfg.map3])
        self.wave_flag_off(S_SPARE, 2, 1, None, WS_SPARE)
        a.e(f's_mov_b32 {sr(S_L2E)}, 0x3fb8aa3b\ns_mov_b32 {sr(S_L2E + 1)}, 0x3fb8aa3b')

    def make_tag(self):
        a = self.a
        a.wait(vm=self.tok_epoch)
        a.e(f'v_readfirstlane_b32 {sr(S_TAG)}, {vr(V_TAG)}\nv_readfirstlane_b32 {sr(S_TAG + 1)}, {vr(V_TAG + 1)}')
        a.e(f's_mul_i32 {sr(S_TAG)}, {sr(S_TAG)}, 1664525\ns_add_u32 {sr(S_TAG)}, {sr(S_TAG)}, 1013904223')
        a.e(f's_mul_i32 {sr(S_TAG + 1)}, {sr(S_TAG + 1)}, 22695477\ns_add_u32 {sr(S_TAG + 1)}, {sr(S_TAG + 1)}, 0x3c6ef35f')
        a.e(f'v_mov_b32 {vr(V_TAG)}, {sr(S_TAG)}\nv_mov_b32 {vr(V_TAG + 1)}, {sr(S_TAG + 1)}')
        for r in range(4):
            a.e(f's_bfe_u32 {sr(S_TB + r)}, {sr(S_TAG)}, {0x80000 + 8 * r}')

    def job_tr_bases(self):
        a = self.a
        a.e('v_lshrrev_b32 v6, 4, v0\nv_lshlrev_b32 v6, 10, v6\nv_bfe_u32 v9, v0, 2, 2\nv_lshl_add_u32 v6, v9, 7, v6')
        a.e('v_lshrrev_b32 v9, 1, v9\nv_and_b32 v8, 3, v0\nv_lshl_or_b32 v9, v8, 1, v9\nv_lshl_add_u32 v6, v9, 4, v6\nv_lshlrev_b32 v8, 4, v8')
        a.e(f's_lshl_b32 {sr(T)}, {sr(S_W)}, 13\ns_add_u32 {sr(P + 3)}, {sr(T)}, {L_JB}\nv_add_u32 v34, {sr(P + 3)}, v6\nv_xor_b32 v35, 16, v34')
        a.e(f's_lshl_b32 {sr(T)}, {sr(S_W)}, 12\ns_add_u32 {sr(T)}, {sr(T)}, {L_JA}\nv_add_u32 v6, {sr(T)}, v6\nv_xor_b32 v7, 16, v6')

    def job_finish_items(self, tok, vb, off, vdest, base):
        a = self.a
        st = {}
        items = [lambda: a.wait(vm=tok())]
        for n in range(4):
            for z in range(2):
                def rd(n=n, z=z):
                    st[n] = a.ds(f'ds_read_b64_tr_b16 {vr(base + 4 * n + 2 * z, 2)}, v{vb + (n >> 1)} offset:{off + z * 512 + (n & 1) * 8}')
                items.append(rd)
        for n in range(4):
            items.append(f'v_add_u32_dpp {vr(base + 16 + n)}, {vr(vdest)}, v8 quad_perm:[{n},{n},{n},{n}] row_mask:0xf bank_mask:0xf')
        for n in range(4):
            def sto(n=n):
                a.wait(lg=st[n])
                self.tok_job = a.vmem(f'buffer_store_dwordx4 {vr(base + 4 * n, 4)}, {vr(base + 16 + n)}, {sr(R_WS, 4)}, 0 offen sc1')
            items.append(sto)
        return items

    def piece_swizzle(self, acc, g):
        self.a.e(f'v_and_b32 {vr(g)}, 2, {vr(g)}\nv_lshrrev_b32 v15, 4, v0\nv_xor_b32 {vr(g)}, {vr(g)}, v15\nv_lshl_add_u32 {vr(acc)}, {vr(g)}, 6, {vr(acc)}')

    def dest_A(self, vd, s_blk, s_kb, s_base):
        a = self.a
        a.e(f's_mul_i32 {sr(T)}, {sr(s_blk)}, 205\ns_lshr_b32 {sr(T)}, {sr(T)}, 11')
        a.e(f's_mul_i32 {sr(T + 1)}, {sr(T)}, 10\ns_sub_u32 {sr(T + 1)}, {sr(s_blk)}, {sr(T + 1)}\ns_lshl_b32 {sr(T + 1)}, {sr(T + 1)}, 4')
        a.e(f'v_and_b32 v9, 15, v0\nv_add_u32 v9, {sr(T + 1)}, v9')
        a.e('v_mul_u32_u24 v10, 103, v9\nv_lshrrev_b32 v10, 9, v10')
        a.e('v_mul_u32_u24 v11, 5, v10\nv_sub_u32 v11, v9, v11')
        a.e('v_and_b32 v12, 1, v10\nv_lshlrev_b32 v14, 1, v12')
        a.e(f's_lshr_b32 {sr(T + 1)}, {sr(T)}, 1\nv_add_u32 v13, {sr(T + 1)}, v14\nv_lshlrev_b32 v13, 8, v13\nv_lshl_add_u32 v13, v11, 10, v13')
        a.e('v_and_b32 v9, 1, v11\nv_add_u32 v9, v9, v14\nv_cmp_gt_u32 vcc, 4, v11\nv_cndmask_b32 v9, v12, v9, vcc')
        a.e('v_lshlrev_b32 v9, 8, v9\nv_lshrrev_b32 v11, 1, v11\nv_lshl_add_u32 v9, v11, 10, v9')
        a.e(f's_cmp_eq_u32 {sr(T)}, 0\ns_cselect_b64 vcc, -1, 0\ns_mul_i32 {sr(T + 1)}, {sr(s_kb)}, 5120\ns_mul_i32 {sr(T + 2)}, {sr(s_kb)}, 2560')
        a.e(f's_add_u32 {sr(T + 2)}, {sr(T + 2)}, 102400\ns_cmp_eq_u32 {sr(T)}, 0\ns_cselect_b32 {sr(T + 1)}, {sr(T + 2)}, {sr(T + 1)}')
        a.e(f's_add_u32 {sr(T + 1)}, {sr(T + 1)}, {sr(s_base)}\nv_cndmask_b32 v13, v13, v9, vcc')
        self.piece_swizzle(13, 14)
        a.e(f's_mov_b32 {sr(T + 2)}, 153600\nv_lshrrev_b32 v10, 1, v10\nv_mad_u32_u24 v13, v10, {sr(T + 2)}, v13')
        a.e(f'v_add_u32 {vr(vd)}, {sr(T + 1)}, v13')

    def dest_B(self, vd, s_blk, s_kb, s_up):
        a = self.a
        a.e(f's_lshl_b32 {sr(T)}, {sr(s_blk)}, 4\nv_and_b32 v9, 15, v0\nv_add_u32 v9, {sr(T)}, v9')
        a.e('v_lshrrev_b32 v10, 1, v9\nv_and_b32 v9, 1, v9')
        a.e('v_mul_u32_u24 v11, 19, v10\nv_lshrrev_b32 v11, 9, v11')
        a.e('v_mul_u32_u24 v12, 27, v11\nv_sub_u32 v12, v10, v12')
        a.e('v_cmp_le_u32 vcc, 14, v12\nv_lshlrev_b32 v11, 1, v11\nv_subrev_u32 v13, 14, v12')
        a.e('v_cndmask_b32 v12, v12, v13, vcc\nv_addc_co_u32 v11, vcc, 0, v11, vcc')
        a.e('v_lshrrev_b32 v13, 2, v12\nv_lshl_add_u32 v13, v13, 1, v9\nv_and_b32 v14, 3, v12')
        a.e('v_lshl_add_u32 v10, v14, 1, v9\nv_cmp_gt_u32 vcc, 12, v12\nv_cndmask_b32 v13, 6, v13, vcc\nv_cndmask_b32 v14, v10, v14, vcc')
        a.e(f's_lshl_b32 {sr(T)}, {sr(s_kb)}, 13\ns_mul_i32 {sr(T + 1)}, {sr(s_kb)}, 6144\ns_add_u32 {sr(T + 1)}, {sr(T + 1)}, {163840 - 8192}')
        a.e(f'v_mov_b32 v9, {sr(T)}\nv_mov_b32 v10, {sr(T + 1)}\nv_cmp_gt_u32 vcc, 4, v13\nv_cndmask_b32 v9, v10, v9, vcc')
        a.e('v_lshl_add_u32 v13, v13, 11, v9\nv_lshl_add_u32 v13, v14, 8, v13')
        self.piece_swizzle(13, 14)
        a.e(f's_mov_b32 {sr(T)}, 286720\nv_mad_u32_u24 v13, v11, {sr(T)}, v13')
        a.e(f's_lshl_b32 {sr(T)}, {sr(s_up)}, 10\ns_add_u32 {sr(T)}, {sr(T)}, {WS_W13}\nv_add_u32 {vr(vd)}, {sr(T)}, v13')

    def dest_C(self, vd, s_blk, s_kb, half, s_base, stride):
        a = self.a
        a.e(f's_sub_u32 {sr(T + 1)}, {sr(s_kb)}, {half}\ns_lshl_b32 {sr(T + 1)}, {sr(T + 1)}, 1\ns_add_u32 {sr(T + 1)}, {sr(T + 1)}, 1')
        a.e(f's_lshl_b32 {sr(T + 2)}, {sr(s_kb)}, 1\ns_cmp_lt_u32 {sr(s_kb)}, {half}\ns_cselect_b32 {sr(T + 1)}, {sr(T + 2)}, {sr(T + 1)}')
        a.e(f's_mul_i32 {sr(T + 1)}, {sr(T + 1)}, 5120\ns_add_u32 {sr(T + 1)}, {sr(T + 1)}, {sr(s_base)}')
        a.e(f's_lshl_b32 {sr(T)}, {sr(s_blk)}, 4\nv_and_b32 v9, 15, v0\nv_add_u32 v9, {sr(T)}, v9')
        a.e('v_mul_u32_u24 v10, 103, v9\nv_lshrrev_b32 v10, 11, v10')
        a.e('v_mul_u32_u24 v11, 20, v10\nv_sub_u32 v11, v9, v11')
        a.e('v_lshrrev_b32 v12, 3, v11\nv_lshlrev_b32 v12, 1, v12\nv_and_b32 v13, 1, v11\nv_add_u32 v13, v12, v13')
        a.e('v_bfe_u32 v14, v11, 1, 2\nv_and_b32 v15, 3, v11\nv_cmp_gt_u32 vcc, 16, v11')
        a.e('v_cndmask_b32 v13, 4, v13, vcc\nv_cndmask_b32 v14, v15, v14, vcc')
        a.e('v_lshlrev_b32 v13, 10, v13\nv_lshl_add_u32 v13, v14, 8, v13')
        self.piece_swizzle(13, 14)
        a.e(f's_mov_b32 {sr(T)}, {stride}\nv_mad_u32_u24 v13, v10, {sr(T)}, v13\nv_add_u32 {vr(vd)}, {sr(T + 1)}, v13')

    def job_bc_setup(self, rnd, rs, voff, vd, offs):
        a = self.a
        J, BLK, KB = T + 4, T + 5, T + 6
        lw2, ldone = a.newlabel('jw2'), a.newlabel('jdone')
        a.e(f's_lshl_b32 {sr(J)}, s2, 2\ns_add_u32 {sr(J)}, {sr(J)}, {sr(S_W)}')
        if rnd:
            a.e(f's_add_u32 {sr(J)}, {sr(J)}, 1024\ns_cmp_ge_u32 {sr(J)}, 1080\ns_cbranch_scc1 {lw2}')
        a.e(f's_cmp_ge_u32 {sr(J)}, 540\ns_cselect_b32 {sr(T + 8)}, 1, 0')
        a.e(f's_cselect_b32 {sr(rs)}, {sr(S_W3)}, {sr(S_W1)}\ns_cselect_b32 {sr(rs + 1)}, {sr(S_W3 + 1)}, {sr(S_W1 + 1)}')
        a.e(f's_cselect_b32 {sr(T + 9)}, 540, 0\ns_sub_u32 {sr(J)}, {sr(J)}, {sr(T + 9)}')
        a.e(f's_mov_b32 {sr(rs + 2)}, {640 * 3456}\ns_mov_b32 {sr(rs + 3)}, 0x20000')
        a.e(f's_mul_i32 {sr(KB)}, {sr(J)}, 607\ns_lshr_b32 {sr(KB)}, {sr(KB)}, 14')
        a.e(f's_mul_i32 {sr(BLK)}, {sr(KB)}, 27\ns_sub_u32 {sr(BLK)}, {sr(J)}, {sr(BLK)}')
        self.dest_B(vd, BLK, KB, T + 8)
        a.e(f's_mov_b32 {sr(T)}, 3456\nv_mad_u32_u24 {vr(voff)}, v5, {sr(T)}, v4')
        a.e(f's_mul_i32 {sr(T + 10)}, {sr(KB)}, {32 * 3456}\ns_lshl_b32 {sr(BLK)}, {sr(BLK)}, 7\ns_add_u32 {sr(T + 10)}, {sr(T + 10)}, {sr(BLK)}')
        for n in range(1, 4):
            a.e(f's_add_u32 {sr(T + 10 + n)}, {sr(T + 10)}, {n * 8 * 3456}')
        if rnd:
            a.e(f's_branch {ldone}')
            a.label(lw2)
            srd(a, rs, S_W2, 1728 * 1280)
            a.e(f's_sub_u32 {sr(J)}, {sr(J)}, 1080\ns_mov_b32 {sr(T + 9)}, {WS_W2}')
            a.e(f's_cmp_lt_u32 {sr(J)}, 540\ns_cselect_b32 {sr(T + 9)}, {sr(T + 9)}, {OOB}\ns_cselect_b32 {sr(T + 8)}, 0, {OOB}\ns_cselect_b32 {sr(J)}, {sr(J)}, 0')
            a.e(f's_mul_i32 {sr(KB)}, {sr(J)}, 205\ns_lshr_b32 {sr(KB)}, {sr(KB)}, 11')
            a.e(f's_mul_i32 {sr(BLK)}, {sr(KB)}, 10\ns_sub_u32 {sr(BLK)}, {sr(J)}, {sr(BLK)}')
            self.dest_C(vd, BLK, KB, 27, T + 9, 276480)
            a.e(f's_mov_b32 {sr(T)}, 1280\nv_mad_u32_u24 {vr(voff)}, v5, {sr(T)}, v4')
            a.e(f's_lshl_b32 {sr(BLK)}, {sr(BLK)}, 7\ns_add_u32 {sr(BLK)}, {sr(BLK)}, {sr(T + 8)}')
            a.e(f's_cmp_ge_u32 {sr(KB)}, 27\ns_cselect_b32 {sr(T + 7)}, 108, 0\ns_cselect_b32 {sr(T)}, 27, 0\ns_sub_u32 {sr(KB)}, {sr(KB)}, {sr(T)}\ns_lshl_b32 {sr(KB)}, {sr(KB)}, 2')
            for n in range(4):
                U, JS, UU = T, T + 1, T + 2
                a.e(f's_add_u32 {sr(U)}, {sr(KB)}, {n}\ns_sub_u32 {sr(T + 3)}, {sr(U)}, 64\ns_max_i32 {sr(T + 3)}, {sr(T + 3)}, 0')
                a.e(f's_mul_i32 {sr(JS)}, {sr(T + 3)}, 47\ns_lshr_b32 {sr(JS)}, {sr(JS)}, 9\ns_mul_i32 {sr(UU)}, {sr(JS)}, 11\ns_sub_u32 {sr(UU)}, {sr(T + 3)}, {sr(UU)}')
                a.e(f's_mul_i32 {sr(JS)}, {sr(JS)}, 27\ns_cmp_ge_u32 {sr(UU)}, 6\ns_cselect_b32 {sr(T + 3)}, 16, 8\ns_add_u32 {sr(UU)}, {sr(UU)}, {sr(T + 3)}\ns_add_u32 {sr(UU)}, {sr(UU)}, {sr(JS)}')
                a.e(f's_lshr_b32 {sr(JS)}, {sr(U)}, 4\ns_mul_i32 {sr(JS)}, {sr(JS)}, 27\ns_bfe_u32 {sr(T + 3)}, {sr(U)}, 0x10003\ns_mul_i32 {sr(T + 3)}, {sr(T + 3)}, 14')
                a.e(f's_add_u32 {sr(JS)}, {sr(JS)}, {sr(T + 3)}\ns_and_b32 {sr(T + 3)}, {sr(U)}, 7\ns_add_u32 {sr(JS)}, {sr(JS)}, {sr(T + 3)}')
                a.e(f's_cmp_lt_u32 {sr(U)}, 64\ns_cselect_b32 {sr(UU)}, {sr(JS)}, {sr(UU)}\ns_add_u32 {sr(UU)}, {sr(UU)}, {sr(T + 7)}')
                a.e(f's_mul_i32 {sr(UU)}, {sr(UU)}, {8 * 1280}\ns_add_u32 {sr(T + 10 + n)}, {sr(UU)}, {sr(BLK)}')
            a.label(ldone)
        for n in range(4):
            a.e(f's_mov_b32 {sr(offs + n)}, {sr(T + 10 + n)}')

    def startup(self):
        import gen1
        a, cfg = self.a, self.cfg
        lskip = a.newlabel('noc')
        a.e(f's_cmp_lg_u32 {sr(S_W)}, 0\ns_cbranch_scc1 {lskip}')
        srd(a, R_B, S_C, 1280)
        a.e(f'v_lshlrev_b32 v9, 2, v0\nbuffer_load_dwordx4 v[64:67], v1, {sr(R_B, 4)}, 0 offen\nbuffer_load_dword v68, v9, {sr(R_B, 4)}, 0 offen offset:1024')
        a.label(lskip)
        self.tok_epoch = a.vmem(f'buffer_load_dwordx2 {vr(V_TAG, 2)}, off, {sr(R_WS, 4)}, 0 sc1')
        for r in range(3):
            a.e(f's_add_u32 m0, {sr(T + 5)}, {r * 512}')
            tx = a.vmem(f'buffer_load_dwordx4 v12, {sr(R_X, 4)}, {sr(T + 2 + (r == 2))} offen offset:{r * 512}{self.nt} lds')
        for n in range(5):
            tt = self.gemv_dma(n, T + 4, 0)
        self.stamp('issued')
        self.roles()
        self.job_tr_bases()
        J, BLK, KB, VALD, PITCH = T + 4, T + 5, T + 6, T + 7, T + 8
        lwn, lj = a.newlabel('jqkv'), a.newlabel('jgo')
        a.e(f's_cmp_lg_u32 {sr(S_W)}, 0\ns_cbranch_scc1 {lwn}')
        srd(a, R_OUT, S_WO, 640 * 1280)
        a.e(f's_cmp_lt_u32 s2, 200\ns_cselect_b32 {sr(VALD)}, 0, {OOB}\ns_cselect_b32 {sr(J)}, s2, 0')
        a.e(f's_mul_i32 {sr(KB)}, {sr(J)}, 205\ns_lshr_b32 {sr(KB)}, {sr(KB)}, 11\ns_mul_i32 {sr(BLK)}, {sr(KB)}, 10\ns_sub_u32 {sr(BLK)}, {sr(J)}, {sr(BLK)}')
        a.e(f's_mov_b32 {sr(PITCH)}, 1280\ns_add_u32 {sr(T + 9)}, {sr(VALD)}, {WS_WO}')
        self.dest_C(29, BLK, KB, 10, T + 9, 102400)
        a.e(f's_branch {lj}')
        a.label(lwn)
        srd(a, R_OUT, S_WQKV, 640 * 3840)
        a.e(f's_mul_i32 {sr(J)}, s2, 3\ns_add_u32 {sr(J)}, {sr(J)}, {sr(S_W)}\ns_sub_u32 {sr(J)}, {sr(J)}, 1')
        a.e(f's_cmp_lt_u32 {sr(J)}, 600\ns_cselect_b32 {sr(VALD)}, 0, {OOB}\ns_cselect_b32 {sr(J)}, {sr(J)}, 0')
        a.e(f's_mul_i32 {sr(BLK)}, {sr(J)}, 205\ns_lshr_b32 {sr(BLK)}, {sr(BLK)}, 12\ns_mul_i32 {sr(KB)}, {sr(BLK)}, 20\ns_sub_u32 {sr(KB)}, {sr(J)}, {sr(KB)}')
        a.e(f's_mov_b32 {sr(PITCH)}, 3840\ns_add_u32 {sr(T + 9)}, {sr(VALD)}, {WS_WQ}')
        self.dest_A(29, BLK, KB, T + 9)
        a.label(lj)
        a.e(f's_lshl_b32 {sr(P + 10)}, {sr(PITCH)}, 3\ns_mul_i32 {sr(P + 9)}, {sr(P + 10)}, {sr(KB)}\ns_lshl_b32 {sr(P + 9)}, {sr(P + 9)}, 2')
        a.e(f's_lshl_b32 {sr(T)}, {sr(BLK)}, 7\ns_add_u32 {sr(P + 9)}, {sr(P + 9)}, {sr(T)}\ns_add_u32 {sr(P + 9)}, {sr(P + 9)}, {sr(VALD)}')
        a.e(f'v_mad_u32_u24 v28, v5, {sr(PITCH)}, v4')
        ja = {}

        def job_a_issue():
            a.e(f's_lshl_b32 {sr(T)}, {sr(S_W)}, 12\ns_add_u32 {sr(T)}, {sr(T)}, {L_JA}')
            for n in range(4):
                a.e(f's_add_u32 m0, {sr(T)}, {n * 1024}')
                if n:
                    a.e(f's_add_u32 {sr(P + 9)}, {sr(P + 9)}, {sr(P + 10)}')
                ja['t'] = a.vmem(f'buffer_load_dwordx4 v28, {sr(R_OUT, 4)}, {sr(P + 9)} offen{self.nt} lds')
            srd(a, R_B, S_WPHI, 32 * 800)
            a.e(f's_mul_i32 {sr(T)}, {sr(S_J1)}, 1600\ns_lshl_b32 {sr(T + 1)}, {sr(S_W)}, 9\ns_add_u32 {sr(T)}, {sr(T)}, {sr(T + 1)}')
            a.e(f's_add_u32 m0, {sr(T + 1)}, {L_WPHI}\ns_mov_b32 exec_hi, 0')
            a.vmem(f'buffer_load_dwordx4 v1, {sr(R_B, 4)}, {sr(T)} offen lds')
            a.e('s_mov_b64 exec, -1')
        if cfg.ja_at == 0:
            job_a_issue()
        a.e('v_lshrrev_b32 v9, 4, v0\nv_bfe_u32 v10, v0, 2, 2\nv_lshl_add_u32 v11, v9, 3, v10\nv_lshlrev_b32 v11, 7, v11')
        a.e(f'v_lshrrev_b32 v10, 1, v10\nv_xor_b32 v10, {sr(S_W)}, v10\nv_lshl_add_u32 v11, v10, 5, v11\nv_and_b32 v10, 3, v0\nv_lshl_add_u32 {vr(VGT)}, v10, 3, v11')
        a.e(f's_and_b32 {sr(T)}, {sr(S_I)}, 3\ns_mul_i32 {sr(T)}, {sr(T)}, 320\ns_add_u32 {sr(T)}, {sr(T)}, {L_SILU}\nv_lshlrev_b32 v9, 4, v9\nv_add_u32 {vr(VGB)}, {sr(T)}, v9')
        gen1.addresses(self)
        lj = a.newlabel('nosilu')
        a.e(f's_cmp_lg_u32 {sr(S_W)}, 0\ns_cbranch_scc1 {lj}')
        st = a.state()
        a.wait(vm=self.tok_epoch)
        for n in range(5):
            self.unpack(70 + 2 * n, 71 + 2 * n, 64 + n)
        for op in ('v_mul_f32 {d}, 0xbfb8aa3b, {s}', 'v_exp_f32 {d}, {d}', 'v_add_f32 {d}, 1.0, {d}', 'v_rcp_f32 {d}, {d}', 'v_mul_f32 {d}, {s}, {d}'):
            for n in range(10):
                a.e(op.format(d=vr(80 + n), s=vr(70 + n)))
        for n in range(5):
            a.e(f'v_cvt_pk_bf16_f32 {vr(64 + n)}, {vr(80 + 2 * n)}, {vr(81 + 2 * n)}')
        a.e(f'v_add_u32 v9, {L_SILU}, v1\nv_lshlrev_b32 v10, 2, v0\nv_add_u32 v10, {L_SILU + 1024}, v10')
        a.e('ds_write_b128 v9, v[64:67]\nds_write_b32 v10, v68\ns_waitcnt lgkmcnt(0)')
        a.set_state(st)
        a.label(lj)
        self.make_tag()
        if cfg.ja_at == 1:
            job_a_issue()
        self.jt = {}

        def jdma(r, n):
            a.e(f's_add_u32 m0, {sr(P + 3)}, {r * 4096 + n * 1024}')
            self.jt[r] = a.vmem(f'buffer_load_dwordx4 v{30 + 2 * r}, {sr((R_B, R_C)[r], 4)}, {sr((JB_OFF, JC_OFF)[r] + n)} offen{self.nt} lds')
        self.late = [lambda r=r, n=n: jdma(r, n) for r in range(2) for n in range(4)]
        self.stamp('setup')
        a.c('LayerNorm 1')
        a.e('v_and_b32 v9, 7, v0\nv_xor_b32 v10, v9, v5\nv_lshlrev_b32 v10, 4, v10\nv_lshl_add_u32 v10, v9, 7, v10')
        a.e(f's_mul_i32 {sr(T)}, {sr(S_W)}, 3072\ns_add_u32 {sr(T)}, {sr(T)}, {L_XS}\nv_add_u32 v11, {sr(T)}, v10')
        a.e(f'v_lshlrev_b32 v9, 4, v9\ns_lshl_b32 {sr(T)}, {sr(S_W)}, 2\ns_add_u32 {sr(T)}, {sr(T)}, {L_LNRED}\nv_add_u32 v10, {sr(T)}, v9\nv_add_u32 v9, {L_LNRED}, v9')
        a.e(f's_cmp_lt_u32 {sr(S_W)}, 2\ns_cselect_b32 {sr(T + 2)}, 1.0, 0')
        a.wait(vm=tx)
        self.stamp('xin')
        tk = [a.ds(f'ds_read_b128 {vr(112 + 4 * r, 4)}, v11 offset:{1024 * r}') for r in range(3)]
        X = 128
        for r in range(3):
            a.wait(lg=tk[r])
            for n in range(4):
                self.unpack(X + 8 * r + 2 * n, X + 8 * r + 2 * n + 1, 112 + 4 * r + n)

        def tree(dst, src, n):
            a.e(f'v_pk_add_f32 {vr(dst, 2)}, {vr(src, 2)}, {vr(src + 2, 2)}')
            for k in range(4, n, 2):
                a.e(f'v_pk_add_f32 {vr(dst, 2)}, {vr(dst, 2)}, {vr(src + k, 2)}')

        def all_sum(r, off, pre=None):
            self.sum_rows((r,), (11,), (3, 4, 5))
            a.ds(f'ds_write_b32 v10, {vr(r)} offset:{off}')
            if pre:
                pre()
            a.wait_all(vm=False)
            self.barrier()

        def read_sum(r, off):
            t = a.ds(f'ds_read_b128 v[12:15], v9 offset:{off}')
            a.wait(lg=t)
            a.e(f'v_add_f32 v12, v12, v13\nv_add_f32 v14, v14, v15\nv_add_f32 {vr(r)}, v12, v14\nv_mul_f32 {vr(r)}, 0x3acccccd, {vr(r)}')
        tree(152, X, 12)
        tree(154, X + 12, 12)
        a.e('v_pk_add_f32 v[152:153], v[152:153], v[154:155]\nv_add_f32 v152, v152, v153')
        all_sum(152, 0, pre=lambda: a.wait(vm=tt))
        self.stamp('tilein')
        self.fq.extend(self.gemv_items(0, P, 64))
        self.flush()
        self.stamp('gemv')
        read_sum(152, 0)
        for n in range(12):
            a.e(f'v_pk_add_f32 {vr(X + 2 * n, 2)}, {vr(X + 2 * n, 2)}, v[152:153] op_sel_hi:[1,0] neg_lo:[0,1] neg_hi:[0,1]')
        a.e(f'v_pk_mul_f32 v[154:155], {vr(X, 2)}, {vr(X, 2)}\nv_pk_mul_f32 v[156:157], {vr(X + 16, 2)}, {vr(X + 16, 2)}')
        for n in range(1, 8):
            a.e(f'v_pk_fma_f32 v[154:155], {vr(X + 2 * n, 2)}, {vr(X + 2 * n, 2)}, v[154:155]')
            if n < 4:
                a.e(f'v_pk_fma_f32 v[156:157], {vr(X + 16 + 2 * n, 2)}, {vr(X + 16 + 2 * n, 2)}, v[156:157]')
        a.e(f'v_add_f32 v154, v154, v155\nv_add_f32 v156, v156, v157\nv_fma_f32 v154, v156, {sr(T + 2)}, v154')
        all_sum(154, 128)
        read_sum(154, 128)
        a.e('v_add_f32 v154, 0x3727c5ac, v154\nv_rsq_f32 v154, v154')
        for n in range(12):
            a.e(f'v_pk_mul_f32 {vr(X + 2 * n, 2)}, {vr(X + 2 * n, 2)}, v[154:155] op_sel_hi:[1,0]')
        self.fq.extend(self.job_finish_items(lambda: ja['t'], 6, 0, 29, 44))
        self.flush()
        self.stamp('jobA')
        a.e(f's_mul_i32 {sr(T + 14)}, {sr(S_W)}, 5120\ns_add_u32 {sr(T + 14)}, {sr(T + 14)}, {WS_MOD}\ns_add_u32 {sr(T + 15)}, {sr(T + 14)}, 4096')
        a.e('v_and_b32 v41, 0xf0, v1\nv_lshrrev_b32 v40, 4, v0\nv_lshl_add_u32 v40, v40, 10, v41')
        mod_loads = [(f'buffer_load_dwordx4 {vr(64 + 4 * k, 4)}, v40, {sr(R_WS, 4)}, {sr(T + 14)} offen offset:{256 * k} sc1', -(64 + 4 * k)) for k in range(4)]
        mod_loads += [(f'buffer_load_dwordx4 {vr(80 + 4 * k, 4)}, v41, {sr(R_WS, 4)}, {sr(T + 15)} offen offset:{256 * k} sc1', -(80 + 4 * k)) for k in range(4)]
        self.wg_flag_off(P + 2, 2, 1, None, WS_FW, 3)
        self.gemv_role(20, 40, P + 1, P)
        self.publish(self.tok_job, P + 2)
        self.stamp('fw')
        tok = self.poll_issue(mod_loads)
        for n in range(5):
            self.gemv_dma(n, P + 1, L_MT2)
        self.job_bc_setup(0, R_B, 30, 31, JB_OFF)
        for _ in range(min(cfg.late1, 4)):
            self.late.pop(0)()
        self.job_bc_setup(1, R_C, 32, 33, JC_OFF)
        for _ in range(cfg.late1 - 4):
            self.late.pop(0)()
        a.e(f's_mul_i32 {sr(T + 1)}, {sr(S_W)}, 1280\ns_add_u32 {sr(T + 1)}, {sr(T + 1)}, {L_MODP}')
        a.e(f'v_add_u32 v42, {sr(T + 1)}, v1\nv_add_u32 v43, {sr(T + 1)}, v41')
        a.e(f's_lshl_b32 {sr(T + 2)}, {sr(S_W)}, 8\ns_add_u32 {sr(T + 2)}, {sr(T + 2)}, {L_MODP}\nv_lshlrev_b32 v62, 5, v5\nv_add_u32 v62, {sr(T + 2)}, v62')
        a.e('v_and_b32 v63, 7, v0\nv_lshlrev_b32 v63, 4, v63\nv_lshl_add_u32 v63, v5, 8, v63')
        H0 = T + 8
        a.e(f's_lshr_b32 {sr(H0)}, s2, 1\ns_mul_i32 {sr(H0)}, {sr(H0)}, 20480\ns_and_b32 {sr(T)}, s2, 1\ns_lshl_b32 {sr(T)}, {sr(T)}, 7')
        a.e(f's_add_u32 {sr(H0)}, {sr(H0)}, {sr(T)}\ns_lshl_b32 {sr(T)}, {sr(S_W)}, 11\ns_add_u32 {sr(H0)}, {sr(H0)}, {sr(T)}')
        a.e(f's_add_u32 {sr(H0)}, {sr(H0)}, {WS_H}\ns_add_u32 {sr(H0 + 1)}, {sr(H0)}, 8192\ns_add_u32 {sr(H0 + 2)}, {sr(H0)}, 16384')
        a.e(f's_cmp_lt_u32 {sr(S_W)}, 2\ns_cselect_b32 {sr(H0 + 2)}, {sr(H0 + 2)}, {OOB}\ns_cselect_b32 {sr(T + 12)}, 0, 1.0\ns_mov_b32 {sr(T + 13)}, {sr(T + 12)}')
        self.wg_flag_off(P + 7, 2, 1, None, WS_FH, spare=True)
        a.e(f'v_min_u32 v9, 49, v0\nv_lshlrev_b32 {vr(VFW)}, 5, v9\ns_mov_b32 {sr(P + 8)}, {WS_FW}')
        self.poll_check(mod_loads, tok)
        self.stamp('mod')
        self.mod_finish(64, 0, T + 12)
        a.ds('ds_write_b128 v42, v[64:67]')
        self.mod_finish(80, 1, T + 12)
        a.ds('ds_write_b128 v43, v[80:83] offset:1024')
        a.wait_all(vm=False)
        self.barrier()
        tk = []
        for r in range(3):
            a.ds(f'ds_read_b128 {vr(64 + 16 * r, 4)}, v62 offset:{1024 * r + 2560}')
            a.ds(f'ds_read_b128 {vr(68 + 16 * r, 4)}, v62 offset:{1024 * r + 2576}')
            a.ds(f'ds_read_b128 {vr(72 + 16 * r, 4)}, v62 offset:{1024 * r}')
            tk.append(a.ds(f'ds_read_b128 {vr(76 + 16 * r, 4)}, v62 offset:{1024 * r + 16}'))
        for r in range(3):
            a.wait(lg=tk[r])
            for n in range(4):
                x, s, b = X + 8 * r + 2 * n, 64 + 16 * r + 2 * n, 72 + 16 * r + 2 * n
                a.e(f'v_pk_fma_f32 {vr(x, 2)}, {vr(x, 2)}, {vr(s, 2)}, {vr(b, 2)}')
            for n in range(4):
                a.e(f'v_cvt_pk_bf16_f32 {vr(112 + 4 * r + n)}, {vr(X + 8 * r + 2 * n)}, {vr(X + 8 * r + 2 * n + 1)}')
            self.tok_h = a.vmem(f'buffer_store_dwordx4 {vr(112 + 4 * r, 4)}, v63, {sr(R_WS, 4)}, {sr(H0 + r)} offen sc1')
        self.stamp('hst')
        fw_loads = [(f'buffer_load_dwordx4 v[12:15], {vr(VFW)}, {sr(R_WS, 4)}, {sr(P + 8)} offen sc1', (12, 14)),
                    (f'buffer_load_dwordx4 v[40:43], {vr(VFW)}, {sr(R_WS, 4)}, {sr(P + 8)} offen offset:16 sc1', (40, 42))]
        self.fw = (fw_loads, self.poll_issue(fw_loads))
        for _ in range(cfg.late2):
            self.late.pop(0)()


    def finish(self):
        a, cfg = self.a, self.cfg
        if cfg.diag:
            self.stamp('end')
            self.wave_flag_off(T, 2, 1, None, WS_DBG, 8)
            a.e('v_lshlrev_b32 v9, 2, v0')
            a.vmem(f'buffer_store_dword {vr(V_STAMP)}, v9, {sr(R_WS, 4)}, {sr(T)} offen')
        if cfg.probe:
            a.wait_all()
            self.stamp('end')
            a.e(f's_add_u32 {sr(S_STAMP + 2)}, {sr(S_STAMP + 2)}, 7000')
            a.label('L_probe')
            a.e(f's_memrealtime {sr(T, 2)}\ns_waitcnt lgkmcnt(0)\ns_sub_u32 {sr(T)}, {sr(T)}, {sr(S_STAMP + 2)}\ns_cmp_lt_i32 {sr(T)}, 0\ns_cbranch_scc1 L_probe')
        a.label('L_end')
        a.e('s_endpgm')

    def advance_epoch(self):
        a = self.a
        a.e(f's_lshl_b32 {sr(T + 15)}, s2, 2\ns_add_u32 {sr(T + 15)}, {sr(T + 15)}, {sr(S_W)}\ns_cmp_eq_u32 {sr(T + 15)}, 0\ns_cselect_b32 {sr(T + 15)}, {WS_EPOCH}, {OOB}')
        self.flag(T + 15)

    def build(self):
        import gen1
        import gen2
        cfg = self.cfg
        self.prologue()
        self.startup()
        ring = gen2.Ring(self)
        for name, fn in (('phase1', gen1.phase1), ('phase2', gen2.phase2), ('phase34', gen2.phase34)):
            if cfg.stop == 'startup':
                break
            fn(self, ring)
            if cfg.stop == name:
                break
        if cfg.stop or cfg.diag:
            self.a.wait_all()
        self.finish()
        body = pad_hazards(self.a.lines)
        head = open(f'cdna_kernels/{NAME}.s.ref').read().split('\n')
        out = []
        for l in head:
            if l.startswith('; @launch'):
                out.append('; @launch grid=(256,1,1) block=(256,1,1) lds=163840')
            else:
                out.append(l)
            if l.startswith(NAME + '_kernel:'):
                break
        out += body
        out += ['.section .rodata,"a"', '.p2align 6', f'.amdhsa_kernel {NAME}_kernel',
                '  .amdhsa_next_free_vgpr 512', '  .amdhsa_next_free_sgpr 102', '  .amdhsa_accum_offset 256',
                '  .amdhsa_group_segment_fixed_size 0', '  .amdhsa_kernarg_size 104', '  .amdhsa_user_sgpr_count 2',
                '  .amdhsa_user_sgpr_kernarg_segment_ptr 1', '  .amdhsa_system_sgpr_workgroup_id_x 1',
                '  .amdhsa_float_denorm_mode_32 3', '.end_amdhsa_kernel', '']
        return '\n'.join(out)


def main():
    cfg = Cfg()
    path = None
    for arg in sys.argv[1:]:
        if '=' in arg:
            k, v = arg.split('=')
            old = getattr(Cfg, k)
            setattr(cfg, k, (v == '1') if isinstance(old, bool) else int(v) if isinstance(old, int) else v)
        else:
            path = arg
    g = Gen(cfg)
    text = g.build()
    open(path, 'w').write(text)
    open(path + '.stamps', 'w').write('\n'.join(g.stamps))
    print('wrote', path, len(text), 'bytes,', text.count('\n'), 'lines')


if __name__ == '__main__':
    import gen
    gen.main()
```

```python
from asmlib import vr, ar, sr
from gen import *

V_X1, V_GB, V_GA, V_SB, V_S2 = 16, 36, 208, 104, 228
SRC2, SRC3, SRC4, RDST, RTMP = 12, 13, 14, 15, 16
XOFF, FLG8, BB0, BB1 = 17, 18, 19, 20
VK0, VN0 = 4, 56
VF8 = 7
VRING = 253
F_A, F_B, F_2, F_END = 100, 260, 380, 650


class Ring:
    def __init__(self, g):
        self.g = g
        self.tok = {}
        self.issued = 0
        self.published = 0
        self.consumed = 0
        self.total = 163
        self.limit = 25

    def setup(self):
        a = self.g.a
        a.e(f's_lshl_b32 {sr(RDST)}, {sr(S_W)}, 10')
        for d, role, size, base in ((SRC2, S_N2, 102400, WS_WO), (SRC3, S_J3, 286720, WS_W13), (SRC4, S_N2, 276480, WS_W2)):
            a.e(f's_mul_i32 {sr(d)}, {sr(role)}, {size}\ns_add_u32 {sr(d)}, {sr(d)}, {base}')
        self.delta = None
        self.m0_for = None

    def can_issue(self):
        return self.issued < min(self.total, self.limit) and 4 * (self.issued + 1) - RING <= self.consumed

    def issue(self):
        a = self.g.a
        q = self.issued
        assert self.can_issue(), q
        if q == self.total - 1:
            a.e(f's_cmp_gt_u32 {sr(S_W)}, 1\ns_cselect_b32 {sr(RTMP)}, 2048, 0\ns_sub_u32 {sr(RDST)}, {sr(RDST)}, {sr(RTMP)}')
        src, off = (SRC2, q) if q < 25 else (SRC3, q - 25) if q < 95 else (SRC4, q - 95)
        delta = (src, (off - q % 35) * 4096)
        if delta != self.delta:
            self.delta = delta
            a.e(f's_add_u32 {sr(RTMP)}, {sr(src)}, {delta[1] & 0xffffffff}\nv_add_u32 {vr(VRING)}, {sr(RTMP)}, v1')
        if self.m0_for != q:
            a.e(f's_add_u32 m0, {sr(RDST)}, {(q % 35) * 4096}')
        self.tok[q] = a.vmem(f'buffer_load_dwordx4 {vr(VRING)}, {sr(R_WS, 4)}, m0 offen sc1 lds')
        self.issued += 1
        if q + 2 < self.total:
            a.e(f's_add_u32 m0, {sr(RDST)}, {((q + 1) % 35) * 4096}')
            self.m0_for = q + 1

    def issue_n(self, n):
        while n > 0 and self.can_issue():
            self.issue()
            n -= 1

    def sync(self, consumed, need):
        publish = min(-(-need // 4), self.total)
        assert publish <= self.issued, (publish, self.issued)
        if publish > self.published:
            self.g.a.wait(vm=self.tok[publish - 1])
            self.published = publish
        self.g.barrier()
        self.consumed = max(self.consumed, consumed)

    def lds(self, base, f, chk=0):
        assert f + chk < 4 * self.published, f
        off = (f % RING) * 1024
        return f'{vr(base + (off >> 16))} offset:{off & 0xffff}'


def exchange(g, acc):
    a = g.a
    for t in range(5):
        a.ds(f'ds_write_b128 v59, {vr(acc + 20 + 4 * t, 4)} offset:{1024 * t}')
    a.wait_all(vm=False)
    g.barrier()
    tk = [a.ds(f'ds_read_b128 {vr(acc + 20 + 4 * t, 4)}, v60 offset:{1024 * t}') for t in range(5)]
    for t in range(5):
        a.wait(lg=tk[t])
        for n in (0, 2):
            a.e(f'v_pk_add_f32 {vr(acc + 4 * t + n, 2)}, {vr(acc + 4 * t + n, 2)}, {vr(acc + 20 + 4 * t + n, 2)}')


def pair_gemm(g, ring, f0, fend, steps, breg, btok, hook=None, first=True, last=True):
    a = g.a
    rt = g.pair_rt

    def wread(q, t):
        rt[q, t] = a.ds(f'ds_read_b128 {ar(160 + 20 * (q & 1) + 4 * t, 4)}, {ring.lds(VK0, f0 + 10 * q + t, 5)}')
    if first:
        rt.clear()
        for t in range(5):
            wread(steps[0], t)
    for q in steps:
        final = last and q == steps[-1]
        n = 0
        for k in (1, 0) if final else (0, 1):
            a.wait(vm=btok[q, 1 if final else k], lg=rt[q, 4])
            if n == 0 and q and q % g.cfg.sy4 == 0:
                ring.sync(f0 + 10 * q, min(f0 + 10 * (q + g.cfg.sy4 + 1), fend))
            for t in range(5):
                acc = 64 + 20 * k + 4 * t
                a.e(f'v_mfma_f32_16x16x32_bf16 {vr(acc, 4)}, {ar(160 + 20 * (q & 1) + 4 * t, 4)}, {breg(q, k)}, {vr(acc, 4) if q else 0}')
                if n < 5 and not final:
                    wread(q + 1, n)
                if hook:
                    hook(q, n)
                n += 1


def phase2(g, ring):
    a, cfg = g.a, g.cfg
    g.pair_rt = {}
    a.c('phase 2: output projection, residual, LayerNorm 2')
    a.e(f's_lshl_b32 {sr(T)}, {sr(S_M2)}, 2\ns_add_u32 {sr(T)}, {sr(T)}, {sr(S_W)}\ns_mul_i32 {sr(XOFF)}, {sr(T)}, 20480')
    a.e(f's_mul_i32 {sr(T)}, {sr(S_N2)}, 160\ns_add_u32 {sr(XOFF)}, {sr(XOFF)}, {sr(T)}\ns_mov_b32 {sr(T + 1)}, {1280 - 160}')
    for n in range(3):
        a.e(f'v_add_u32 v9, {64 * n}, v0\nv_mul_u32_u24 v10, 0xcd, v9\nv_lshrrev_b32 v10, 11, v10\nv_lshlrev_b32 v9, 4, v9\nv_mad_u32_u24 {vr(61 + n)}, v10, {sr(T + 1)}, v9')
    a.e(f's_mul_i32 {sr(T + 2)}, {sr(S_W)}, 2560\ns_add_u32 {sr(T + 2)}, {sr(T + 2)}, {L_XR}')
    ring.m0_for = None
    for n in range(3):
        a.e(f's_add_u32 m0, {sr(T + 2)}, {1024 * n}')
        if n == 2:
            a.e('s_mov_b32 exec_hi, 0')
        a.vmem(f'buffer_load_dwordx4 {vr(61 + n)}, {sr(R_X, 4)}, {sr(XOFF)} offen lds')
    a.e('s_mov_b64 exec, -1')
    a.e(f's_mul_i32 {sr(T + 3)}, {sr(S_W)}, 160\ns_mul_i32 {sr(T + 1)}, {sr(S_N2)}, 20\ns_add_u32 {sr(T + 3)}, {sr(T + 3)}, {sr(T + 1)}\ns_add_u32 {sr(T + 3)}, {sr(T + 3)}, 320')
    a.e(f'v_min_u32 v16, 19, v0\nv_add_u32 v17, {sr(T + 3)}, v16\nv_lshrrev_b32 v18, 4, v17\nv_and_b32 v17, 15, v17\nv_lshlrev_b32 v17, 4, v17\nv_lshl_add_u32 v17, v18, 10, v17')
    a.e(f's_mov_b32 {sr(T + 3)}, {WS_MOD}\ns_cmp_eq_u32 {sr(S_W)}, 2\ns_cselect_b32 {sr(T + 8)}, 1.0, 0\ns_mov_b32 {sr(T + 9)}, {sr(T + 8)}')
    a.e(f's_mov_b32 {sr(T + 4)}, {WS_FRT}')
    ld = [(f'buffer_load_dwordx4 {vr(36 + 4 * k, 4)}, v17, {sr(R_WS, 4)}, {sr(T + 3)} offen offset:{256 * k} sc1', -(36 + 4 * k)) for k in range(4)]
    ld += [(f'buffer_load_dwordx4 v[28:31], v1, {sr(R_WS, 4)}, {sr(T + 4)} offen sc1', (28, 30)),
           (f'buffer_load_dwordx4 v[32:35], v1, {sr(R_WS, 4)}, {sr(T + 4)} offen offset:1024 sc1', (32, 34))]
    tok = g.poll_issue(ld)
    ring.issue_n(cfg.r1)
    a.e(f's_mul_i32 {sr(T + 1)}, {sr(S_W)}, 320\ns_add_u32 {sr(T + 1)}, {sr(T + 1)}, {L_PAR}\nv_lshlrev_b32 v16, 4, v16\nv_add_u32 v16, {sr(T + 1)}, v16')
    g.frag16_addr(VN0, 11)
    a.e(f'v_add_u32 {vr(VN0 + 1)}, 0x10000, {vr(VN0)}\nv_add_u32 {vr(VN0 + 2)}, 0x20000, {vr(VN0)}')
    a.e(f's_and_b32 {sr(T + 1)}, {sr(S_W)}, 1\ns_mul_i32 {sr(T)}, {sr(T + 1)}, 5120')
    for k in range(3):
        a.e(f'v_add_u32 {vr(VK0 + k)}, {sr(T)}, {vr(VN0 + k)}')
    tf = g.publish(g.tok_o, P + 6)
    g.stamp('opub')
    a.e(f's_lshr_b32 {sr(T)}, {sr(S_M2)}, 1\ns_lshl_b32 {sr(T)}, {sr(T)}, 4\ns_lshl_b32 {sr(T + 5)}, {sr(T + 1)}, 3\ns_add_u32 {sr(T)}, {sr(T)}, {sr(T + 5)}')
    a.e(f's_lshl_b32 {sr(FLG8)}, {sr(T)}, 7\ns_add_u32 {sr(T + 14)}, {sr(FLG8)}, {WS_FO}\nv_and_b32 {vr(VF8)}, 7, v0\nv_lshlrev_b32 {vr(VF8)}, 7, {vr(VF8)}')
    a.e(f's_lshl_b32 {sr(T + 5)}, {sr(S_M2)}, 2\ns_add_u32 {sr(T + 5)}, {sr(T + 5)}, {sr(S_W)}\ns_xor_b32 {sr(T + 6)}, {sr(T + 5)}, 1')
    a.e(f's_mul_i32 {sr(T + 7)}, {sr(T + 1)}, 10240\ns_add_u32 {sr(T + 7)}, {sr(T + 7)}, {WS_O}')
    for k in range(2):
        a.e(f's_mul_i32 {sr(BB0 + k)}, {sr(T + 5 + k)}, 20480\ns_add_u32 {sr(BB0 + k)}, {sr(BB0 + k)}, {sr(T + 7)}')
    a.e(f's_mul_i32 {sr(T)}, {sr(S_W)}, 5120\ns_add_u32 {sr(T)}, {sr(T)}, {L_XCH}\nv_add_u32 v59, {sr(T)}, v1')
    a.e(f's_xor_b32 {sr(T)}, {sr(S_W)}, 1\ns_mul_i32 {sr(T)}, {sr(T)}, 5120\ns_add_u32 {sr(T)}, {sr(T)}, {L_XCH}\nv_add_u32 v60, {sr(T)}, v1')
    a.e(f'v_and_b32 v18, 15, v0\nv_mul_u32_u24 v18, 0xa0, v18\nv_add_u32 v18, {sr(T + 2)}, v18\nv_lshrrev_b32 v12, 4, v0')
    a.e('v_lshl_add_u32 v13, v12, 3, v18\nv_lshl_add_u32 v18, v12, 4, v18')
    fo = [(f'buffer_load_dwordx2 v[14:15], {vr(VF8)}, {sr(R_WS, 4)}, {sr(T + 14)} offen sc1', 14)]
    g.poll_check(ld, tok)
    g.mod_finish(36, 0, T + 8)
    a.ds('ds_write_b128 v16, v[36:39]')
    a.ds('ds_read_b128 v[64:67], v18')
    a.ds('ds_read_b128 v[68:71], v18 offset:64')
    a.ds('ds_read_b64 v[72:73], v13 offset:128')
    if cfg.ackw:
        a.wait(vm=tf)
    tok = g.poll_issue(fo)
    a.e(f'v_lshlrev_b32 v11, 4, v12\nv_add_u32 v11, {L_PAR}, v11\nv_lshlrev_b32 v10, 5, v12\nv_add_u32 v10, {L_PAR}, v10')
    a.wait_all(vm=False)
    for n in range(10):
        g.unpack(V_X1 + 2 * n, V_X1 + 2 * n + 1, 64 + n)
    ring.limit = ring.total
    ring.sync(0, min(100, 4 * ring.issued))
    g.poll_check(fo, tok)
    g.stamp('oready')
    ot = {}
    for q in range(10):
        for k in range(2):
            if q and q % 4 == 0:
                a.e(f's_add_u32 {sr(BB0 + k)}, {sr(BB0 + k)}, 4096')
            ot[q, k] = a.vmem(f'buffer_load_dwordx4 {vr(128 + 8 * q + 4 * k, 4)}, v1, {sr(R_WS, 4)}, {sr(BB0 + k)} offen offset:{(q % 4) * 1024} sc1')
            n = 2 * q + k
            r, (v, off) = (V_GA, V_SB, V_S2, V_GB)[n // 5], ((10, 0), (10, 16), (10, 128), (10, 144), (11, 256))[n % 5]
            a.ds(f'ds_read_b128 {vr(r + 4 * (n % 5), 4)}, v{v} offset:{320 * (n // 5) + off}')
    g.advance_epoch()
    budget = [cfg.r2]

    def hook(q, n):
        if n in (6, 8) and q >= 2 and budget[0] > 0 and ring.can_issue():
            ring.issue()
            budget[0] -= 1
    pair_gemm(g, ring, 0, 100, list(range(10)), lambda q, k: vr(128 + 8 * q + 4 * k, 4), ot, hook)
    g.stamp('p2mma')
    exchange(g, 64)
    ring.consumed = 100
    for n in range(10):
        a.e(f'v_pk_fma_f32 {vr(V_X1 + 2 * n, 2)}, {vr(64 + 2 * n, 2)}, {vr(V_GA + 2 * n, 2)}, {vr(V_X1 + 2 * n, 2)}')
    for n in range(10):
        a.e(f'v_cvt_pk_bf16_f32 {vr(128 + n)}, {vr(V_X1 + 2 * n)}, {vr(V_X1 + 2 * n + 1)}')
    a.e(f's_mov_b32 {sr(T + 2)}, 0x3f803f80\nv_mov_b32 v64, 0\nv_mov_b32 v65, 0\nv_mov_b32 v68, 0\nv_mov_b32 v69, 0')
    for n in range(10):
        d = 64 + 4 * (n & 1)
        a.e(f'v_dot2c_f32_bf16 {vr(d)}, {sr(T + 2)}, {vr(128 + n)}\nv_dot2c_f32_bf16 {vr(d + 1)}, {vr(128 + n)}, {vr(128 + n)}')
    a.e(f's_lshl_b32 {sr(T)}, {sr(S_M2)}, 13\ns_lshl_b32 {sr(T + 1)}, {sr(S_W)}, 8\ns_add_u32 {sr(T)}, {sr(T)}, {sr(T + 1)}\ns_add_u32 {sr(T + 14)}, {sr(T)}, {WS_ST}')
    a.e(f's_lshl_b32 {sr(T + 1)}, {sr(S_N2)}, 10\ns_add_u32 {sr(T + 1)}, {sr(T + 1)}, {sr(T + 14)}')
    a.e('v_pk_add_f32 v[64:65], v[64:65], v[68:69]')
    g.sum_rows((64, 65), (66, 67), (4, 5))
    a.e(f'v_mov_b32 v66, {vr(V_TAG)}\nv_mov_b32 v67, {vr(V_TAG + 1)}\ns_mov_b64 exec, 0xffff')
    tf = a.vmem(f'buffer_store_dwordx4 v[64:67], v1, {sr(R_WS, 4)}, {sr(T + 1)} offen sc1')
    a.e('s_mov_b64 exec, -1')
    g.stamp('stpub')
    ring.issue_n(cfg.r3)
    for n in range(10):
        g.unpack(V_X1 + 2 * n, V_X1 + 2 * n + 1, 128 + n)
    a.e('v_lshrrev_b32 v9, 4, v0\nv_and_b32 v10, 0xf0, v1\nv_lshl_add_u32 v11, v9, 11, v10')
    a.e('v_lshrrev_b32 v9, 1, v9\nv_lshl_add_u32 v13, v9, 8, v10')
    a.e(f's_lshl_b32 {sr(T + 2)}, {sr(S_M2)}, 2\ns_add_u32 {sr(T + 2)}, {sr(T + 2)}, {sr(S_W)}\ns_mul_i32 {sr(T + 2)}, {sr(T + 2)}, 20480')
    a.e(f's_mul_i32 {sr(T + 3)}, {sr(S_N2)}, 2560\ns_add_u32 {sr(T + 2)}, {sr(T + 2)}, {sr(T + 3)}\ns_add_u32 {sr(T + 2)}, {sr(T + 2)}, {WS_Y}')
    g.wg_flag_off(T + 6, S_M2, 8, S_N2, WS_FY, spare=True)
    if cfg.ackw:
        a.wait(vm=tf)
    g.poll([(f'buffer_load_dwordx4 v[68:71], v11, {sr(R_WS, 4)}, {sr(T + 14)} offen sc1', 70),
            (f'buffer_load_dwordx4 v[72:75], v11, {sr(R_WS, 4)}, {sr(T + 14)} offen offset:1024 sc1', 74)])
    g.stamp('stready')
    a.e('v_pk_add_f32 v[64:65], v[68:69], v[72:73]')
    g.sum_rows((64, 65), (66, 67), (4, 5))
    a.e('v_mul_f32 v64, 0x3acccccd, v64\nv_mul_f32 v66, 0x3acccccd, v65\nv_fma_f32 v66, -v64, v64, v66\nv_max_f32 v66, 0, v66')
    a.e('v_add_f32 v66, 0x3727c5ac, v66\nv_rsq_f32 v66, v66')
    order = (8, 9, 0, 1, 2, 3, 4, 5, 6, 7)
    for n in order:
        a.e(f'v_pk_add_f32 {vr(68 + 2 * n, 2)}, {vr(V_X1 + 2 * n, 2)}, v[64:65] op_sel_hi:[1,0] neg_lo:[0,1] neg_hi:[0,1]')
    for n in order:
        a.e(f'v_pk_mul_f32 {vr(68 + 2 * n, 2)}, {vr(68 + 2 * n, 2)}, v[66:67] op_sel_hi:[1,0]')
    for n in order:
        a.e(f'v_pk_fma_f32 {vr(68 + 2 * n, 2)}, {vr(68 + 2 * n, 2)}, {vr(V_S2 + 2 * n, 2)}, {vr(V_SB + 2 * n, 2)}')
    for n in order:
        a.e(f'v_cvt_pk_bf16_f32 {vr(128 + n)}, {vr(68 + 2 * n)}, {vr(69 + 2 * n)}')
    a.e('v_permlane16_swap_b32 v136, v138\nv_permlane16_swap_b32 v137, v139')
    a.vmem(f'buffer_store_dwordx4 v[128:131], v1, {sr(R_WS, 4)}, {sr(T + 2)} offen sc1')
    a.vmem(f'buffer_store_dwordx4 v[132:135], v1, {sr(R_WS, 4)}, {sr(T + 2)} offen offset:1024 sc1')
    a.e('s_mov_b32 exec_lo, 0xffff\ns_mov_b32 exec_hi, 0xffff')
    tok = a.vmem(f'buffer_store_dwordx4 v[136:139], v13, {sr(R_WS, 4)}, {sr(T + 2)} offen offset:2048 sc1')
    a.e('s_mov_b64 exec, -1')
    g.stamp('yst')
    ring.issue_n(cfg.r4)
    g.tf = g.publish(tok, T + 6)
    g.stamp('ypub')


def silu_items(G0, U0, G1, U1, E, dst, packed=False):
    G = [G0 + i for i in range(4)] + ([G1 + i for i in range(4)] if G1 is not None else [])
    U = [U0 + i for i in range(4)] + ([U1 + i for i in range(4)] if U1 is not None else [])
    n = len(G)
    it = []
    if packed:
        it += [f'v_pk_mul_f32 {vr(E + i, 2)}, {vr(G[i], 2)}, {sr(S_L2E, 2)} neg_lo:[1,0] neg_hi:[1,0]' for i in range(0, n, 2)]
        it += [f'v_exp_f32 {vr(E + i)}, {vr(E + i)}' for i in range(n)]
        it += [f'v_pk_mul_f32 {vr(G[i], 2)}, {vr(G[i], 2)}, {vr(U[i], 2)}' for i in range(0, n, 2)]
        it += [f'v_pk_add_f32 {vr(E + i, 2)}, {vr(E + i, 2)}, 1.0 op_sel_hi:[1,0]' for i in range(0, n, 2)]
        it += [f'v_rcp_f32 {vr(E + i)}, {vr(E + i)}' for i in range(n)]
        it += [f'v_pk_mul_f32 {vr(G[i], 2)}, {vr(G[i], 2)}, {vr(E + i, 2)}' for i in range(0, n, 2)]
    else:
        it += [f'v_mul_f32 {vr(E + i)}, 0xbfb8aa3b, {vr(G[i])}' for i in range(n)]
        for i in range(n):
            it += [f'v_exp_f32 {vr(E + i)}, {vr(E + i)}', f'v_mul_f32 {vr(G[i])}, {vr(G[i])}, {vr(U[i])}']
        it += [f'v_add_f32 {vr(E + i)}, 1.0, {vr(E + i)}' for i in range(n)]
        it += [f'v_rcp_f32 {vr(E + i)}, {vr(E + i)}' for i in range(n)]
        it += [f'v_mul_f32 {vr(G[i])}, {vr(G[i])}, {vr(E + i)}' for i in range(n)]
    it += [f'v_cvt_pk_bf16_f32 {vr(dst + i // 2)}, {vr(G[i])}, {vr(G[i + 1])}' for i in range(0, n, 2)]
    return it


def phase34(g, ring):
    a, cfg = g.a, g.cfg
    a.c('phase 3: gate / up projection in two passes')
    YB0, YB1, HA, HBo, FA, FB = T + 8, T + 9, T + 10, T + 11, T + 12, T + 13
    a.e(f's_lshl_b32 {sr(T)}, {sr(S_G3)}, 2\ns_add_u32 {sr(T)}, {sr(T)}, {sr(S_W)}')
    a.e(f's_lshr_b32 {sr(T + 1)}, {sr(T)}, 1\ns_lshl_b32 {sr(T + 1)}, {sr(T + 1)}, 10\ns_add_u32 {sr(T + 14)}, {sr(T + 1)}, {WS_FY}')
    ring.issue_n(cfg.r5)
    fy = [(f'buffer_load_dwordx2 v[14:15], {vr(VF8)}, {sr(R_WS, 4)}, {sr(T + 14)} offen sc1', 14)]
    a.e(f's_mul_i32 {sr(YB0)}, {sr(T)}, 40960\ns_add_u32 {sr(YB0)}, {sr(YB0)}, {WS_Y}\ns_add_u32 {sr(YB1)}, {sr(YB0)}, 20480')
    a.e(f's_mul_i32 {sr(HA)}, {sr(T)}, 110592\ns_add_u32 {sr(HA)}, {sr(HA)}, {WS_HH}\ns_lshr_b32 {sr(T)}, {sr(S_J3)}, 3\ns_mul_i32 {sr(T)}, {sr(T)}, {108 * 256}')
    a.e(f's_add_u32 {sr(HA)}, {sr(HA)}, {sr(T)}\ns_bfe_u32 {sr(T)}, {sr(S_J3)}, 0x20001\ns_mul_i32 {sr(T)}, {sr(T)}, 11\ns_and_b32 {sr(T + 1)}, {sr(S_J3)}, 1')
    a.e(f's_mul_i32 {sr(T + 2)}, {sr(T + 1)}, 6\ns_add_u32 {sr(T)}, {sr(T)}, {sr(T + 2)}\ns_add_u32 {sr(T)}, {sr(T)}, 64\ns_lshl_b32 {sr(T)}, {sr(T)}, 8\ns_add_u32 {sr(HBo)}, {sr(HA)}, {sr(T)}')
    a.e(f's_and_b32 {sr(T)}, {sr(S_J3)}, 7\ns_lshl_b32 {sr(T)}, {sr(T)}, 11\ns_add_u32 {sr(HA)}, {sr(HA)}, {sr(T)}')
    a.e('v_add_u32 v10, 0xd800, v1\nv_bfe_u32 v9, v0, 4, 1\nv_mul_u32_u24 v9, 0xd800, v9\nv_and_b32 v11, 0xf0, v1\nv_add_u32 v9, v9, v11\nv_lshrrev_b32 v11, 5, v0\nv_lshl_add_u32 v9, v11, 8, v9')
    a.e(f's_cmp_eq_u32 {sr(T + 1)}, 1\ns_cselect_b32 {sr(T + 3)}, 32, 64\nv_mov_b32 v11, {OOB}\nv_cmp_gt_u32 vcc, {sr(T + 3)}, v0\nv_cndmask_b32 v9, v11, v9, vcc')
    g.wg_flag_off(FA, S_G3, 16, S_J3, WS_FHA)
    a.e(f's_add_u32 {sr(FB)}, {sr(FA)}, {WS_FHB - WS_FHA}')
    a.e(f's_lshl_b32 {sr(T + 2)}, {sr(S_M2)}, 2\ns_add_u32 {sr(T + 2)}, {sr(T + 2)}, {sr(S_W)}\ns_xor_b32 {sr(T + 3)}, {sr(T + 2)}, 1')
    a.e(f's_and_b32 {sr(T + 1)}, {sr(S_W)}, 1\ns_mul_i32 {sr(T + 4)}, {sr(T + 1)}, 27648\ns_add_u32 {sr(T + 4)}, {sr(T + 4)}, {WS_HH}')
    for k in range(2):
        a.e(f's_mul_i32 {sr(BB0 + k)}, {sr(T + 2 + k)}, 55296\ns_add_u32 {sr(BB0 + k)}, {sr(BB0 + k)}, {sr(T + 4)}')
    srd(a, R_OUT, S_OUT, 2048 * 1280)
    if cfg.ackw:
        a.wait(vm=g.tf)
    g.poll(fy)
    g.stamp('yready')
    yt = {}

    def yload(s, tt):
        sb = YB0 + tt
        if s and s % 4 == 0:
            a.e(f's_add_u32 {sr(sb)}, {sr(sb)}, 4096')
        yt[s, tt] = a.vmem(f'buffer_load_dwordx4 {ar(8 * s + 4 * tt, 4)}, v1, {sr(R_WS, 4)}, {sr(sb)} offen offset:{(s % 4) * 1024} sc1')
    for s in range(cfg.ypre):
        yload(s, 0)
        yload(s, 1)
    yq = [(s, tt) for s in range(cfg.ypre, 20) for tt in range(2)]
    SY = cfg.sy
    ring.sync(F_A, min(F_A + SY + 12, 4 * ring.issued))
    LA = 6
    rt = {}

    def wread(f):
        rt[f] = a.ds(f'ds_read_b128 {ar(160 + 4 * (f % 8), 4)}, {ring.lds(VN0, f)}')
    for f in range(F_A, F_A + LA):
        wread(f)

    def acc_of(f, tt):
        if f < F_B:
            s, fi = divmod(f - F_A, 8)
            return s, 64 + 32 * tt + 4 * fi
        s, fi = divmod(f - F_B, 6)
        return s, 128 + 24 * tt + 4 * fi
    ht = {}

    def breg(q, k):
        if q < 7:
            return ar(200 + 8 * q + 4 * k, 4)
        if q < 14:
            return vr(192 + 8 * (q - 7) + 4 * k, 4)
        return ar(8 * (q - 14) + 4 * k, 4)

    def hload(q, k):
        if q and q % 4 == 0:
            a.e(f's_add_u32 {sr(BB0 + k)}, {sr(BB0 + k)}, 4096')
        ht[q, k] = a.vmem(f'buffer_load_dwordx4 {breg(q, k)}, v1, {sr(R_WS, 4)}, {sr(BB0 + k)} offen offset:{(q % 4) * 1024} sc1')
    st = {}
    fa = [(f'buffer_load_dwordx2 v[14:15], {vr(VF8)}, {sr(R_WS, 4)}, {sr(T + 14)} offen sc1', 14)]
    hq = []

    def vm_slot(f):
        urgent = ring.can_issue() and 4 * ring.issued < f + cfg.lead
        if urgent:
            ring.issue()
        elif yq:
            yload(*yq.pop(0))
        elif hq:
            hload(*hq.pop(0))
        elif ring.can_issue():
            ring.issue()

    def run_pass(f0, f1):
        for f in range(f0, f1):
            s, _ = acc_of(f, 0)
            first_of_step = f == (F_A + 8 * s if f < F_B else F_B + 6 * s)
            a.wait(vm=yt[s, 1] if f < F_B and first_of_step else None, lg=rt[min(f + (f & 1 ^ 1), F_2 - 1)] if cfg.wait2 else rt[f])
            for tt in range(2):
                _, acc = acc_of(f, tt)
                a.e(f'v_mfma_f32_16x16x32_bf16 {vr(acc, 4)}, {ar(160 + 4 * (f % 8), 4)}, {ar(8 * s + 4 * tt, 4)}, {vr(acc, 4) if s else 0}')
                if tt == 0 and f + LA < F_2:
                    wread(f + LA)
                if tt == 1 and f % 2 == 0:
                    vm_slot(f)
            if (f - F_A) % SY == SY - 1 and f + 1 < F_2:
                pub = 'A' in st and 'Aflag' not in st and f >= F_B + cfg.puba
                if pub:
                    a.wait(vm=st['A'])
                ring.sync(f + 1, min(f + 1 + SY + 12, 4 * ring.issued))
                if pub:
                    g.flag(FA)
                    st['Aflag'] = f
            if f == F_B + 6 * cfg.chk_a:
                assert 'Aflag' in st
                a.e(f's_add_u32 {sr(T + 14)}, {sr(FLG8)}, {WS_FHA}')
                st['fa'] = g.poll_issue(fa)
            if f == F_B + 6 * cfg.chk_a + 6 * cfg.chkd:
                g.poll_check(fa, st['fa'])
                hq.extend((q, k) for q in range(14) for k in range(2))

    def epilogue(items, every):
        for n, it in enumerate(items):
            g.fq.append(it)
            g.fill(1)
            if n % every == every - 1:
                vm_slot(1 << 20)
    run_pass(F_A, F_B)
    g.stamp('passA')
    items = []
    for tt in range(2):
        for pp in range(2):
            b = 64 + 32 * tt + 16 * pp
            items += silu_items(b, b + 4, b + 8, b + 12, 176 + 8 * pp, b + 4, True)

            def sto(tt=tt, pp=pp, b=b):
                st['A'] = a.vmem(f'buffer_store_dwordx4 {vr(b + 4, 4)}, v{1 if tt == 0 else 10}, {sr(R_WS, 4)}, {sr(HA)} offen offset:{1024 * pp} sc1')
            items.append(sto)
    epilogue(items, 12)
    g.stamp('epiA')
    run_pass(F_B, F_2)
    g.stamp('passB')
    ring.sync(F_2, min(F_2 + 10 * (cfg.sy4 + 1), 4 * ring.issued))
    hq.extend((q, k) for q in (14, 15) for k in range(2))
    items = []
    for tt in range(2):
        b = 128 + 24 * tt
        items += silu_items(b, b + 4, b + 8, b + 12, 176 + 8 * tt, b + 4, True)

        def stb(tt=tt, b=b):
            a.vmem(f'buffer_store_dwordx4 {vr(b + 4, 4)}, v{1 if tt == 0 else 10}, {sr(R_WS, 4)}, {sr(HBo)} offen sc1')
        items.append(stb)
    items += silu_items(144, 148, 168, 172, 176, 148, True)
    items += ['v_permlane16_swap_b32 v148, v150', 'v_permlane16_swap_b32 v149, v151']

    def stc():
        st['B'] = a.vmem(f'buffer_store_dwordx4 v[148:151], v9, {sr(R_WS, 4)}, {sr(HBo)} offen offset:1024 sc1')
    items.append(stc)
    cfg_lead, cfg.lead = cfg.lead, -(1 << 20)
    epilogue(items, 10)
    cfg.lead = cfg_lead
    g.stamp('epiB')
    a.c('phase 4: down projection, residual')
    fb = [(f'buffer_load_dwordx2 v[14:15], {vr(VF8)}, {sr(R_WS, 4)}, {sr(T + 14)} offen sc1', 14)]

    def hook(q, n):
        if n in ((5, 7, 9), (3, 5, 7, 9), (1, 3, 5, 7, 9))[cfg.slots4]:
            if hq and hq[0][0] <= q + cfg.hlead:
                hload(*hq.pop(0))
            else:
                vm_slot(F_2 + 10 * q)
        if n == 9 and q == cfg.pubb:
            g.publish(st['B'], FB)
        if n == 9 and q == cfg.chk_b:
            a.e(f's_add_u32 {sr(T + 14)}, {sr(FLG8)}, {WS_FHB}')
            st['fb'] = g.poll_issue(fb)
        if n == 9 and q == cfg.chk_b + cfg.chkd:
            g.poll_check(fb, st['fb'])
            hq.extend((qq, k) for qq in range(16, 27) for k in range(2))
        if n == 9 and q in (7, 15, 21):
            g.stamp(f'p4q{q}')
        if n == 9:
            while hq and hq[0][0] <= q + 1:
                hload(*hq.pop(0))
    while hq and hq[0][0] <= 1:
        hload(*hq.pop(0))
    pair_gemm(g, ring, F_2, F_END, list(range(27)), breg, ht, hook)
    g.stamp('p4mma')
    a.e(f's_mul_i32 {sr(T + 2)}, {sr(S_W)}, 2560\nv_and_b32 v11, 15, v0\nv_mul_u32_u24 v11, 0xa0, v11\nv_add_u32 v11, {sr(T + 2)}, v11\nv_lshrrev_b32 v12, 4, v0')
    a.e(f'v_lshl_add_u32 v13, v12, 3, v11\nv_lshl_add_u32 v11, v12, 4, v11\nv_add_u32 v12, {sr(T + 2)}, v1')
    exchange(g, 64)
    for n in range(10):
        a.e(f'v_pk_fma_f32 {vr(64 + 2 * n, 2)}, {vr(64 + 2 * n, 2)}, {vr(V_GB + 2 * n, 2)}, {vr(V_X1 + 2 * n, 2)}')
    for n in range(10):
        a.e(f'v_cvt_pk_bf16_f32 {vr(128 + n)}, {vr(64 + 2 * n)}, {vr(65 + 2 * n)}')
    a.ds('ds_write_b128 v11, v[128:131]')
    a.ds('ds_write_b128 v11, v[132:135] offset:64')
    a.ds('ds_write_b64 v13, v[136:137] offset:128')
    tk = [a.ds(f'ds_read_b128 {vr(140 + 4 * n, 4)}, v12 offset:{1024 * n}') for n in range(3)]
    for n in range(3):
        a.wait(lg=tk[n])
        if n == 2:
            a.e('s_mov_b32 exec_hi, 0')
        a.vmem(f'buffer_store_dwordx4 {vr(140 + 4 * n, 4)}, {vr(61 + n)}, {sr(R_OUT, 4)}, {sr(XOFF)} offen {cfg.outp.replace("+", " ")}')
    a.e('s_mov_b64 exec, -1')
```

```python
import sys
from collections import deque
from asmlib import Asm, pad_hazards, vr, ar, sr

NAME = 'adaLN_cond__linear_kernel_hedgehog__glu_gated_swiglu__prompt'

WS_EPOCH = 0
WS_FW = 0x1000
WS_FRT = 0x4000
WS_FH = 0x10000
WS_FKV = 0x30000
WS_FO = 0x50000
WS_FY = 0x70000
WS_FHA = 0x90000
WS_FHB = 0xB0000
WS_MOD = 0xD0000
WS_ST = 0xE0000
WS_KVP = 0x120000
WS_WQ = 0x200000
WS_H = 0x480000
WS_O = 0x700000
WS_Y = 0x980000
WS_WO = 0xC00000
WS_W13 = 0xD00000
WS_W2 = 0x1180000
WS_HH = 0x1400000
WS_SPARE = 0x1B00000
WS_DBG = 0x1B40000
WS_SIZE = 0x1C00000
OOB_VAL = 0x40000000
OOB = 's3'

L_XS = 20480
L_JA = 32768
L_JB = 102400
L_TS = 51200
L_MISC = 153600
L_MODP = L_XS
L_SILU = L_MISC + 5120
L_LNRED = L_MISC + 6400
L_WPHI = L_MISC + 6656
L_KVR = L_MISC
L_KVZ = L_KVR + 3840
L_PAR = L_MISC + 8704
L_MT2 = 135168
L_XCH = 143360
L_XR = 143360
TP = 336
RING = 160

S_X, S_WQKV, S_WPHI, S_WO, S_W1, S_W3, S_W2, S_C, S_WMOD, S_OUT, S_DBG, S_WS = 4, 6, 8, 10, 14, 16, 18, 20, 22, 24, 26, 28
S_TAG = 30
R_WS, R_A, R_B, R_C, R_X, R_OUT = 32, 36, 40, 44, 48, 52
S_W, S_XC, S_I, S_G1, S_J1, S_M2, S_N2, S_G3, S_J3 = 56, 57, 58, 59, 60, 61, 62, 63, 64
S_SPIN = 65
S_SPARE = 21
S_TB = 26
S_L2E = 66
T = 68
P = 84
S_PM = 96
S_STAMP = 98
JB_OFF, JC_OFF = 4, 8

V_TAG = 2
V_STAMP = 255
VA0, VA1, VA2, VTW0, VTW1, VTR0, VTR1, VKS, VGL, VKW, VO0, VO1 = range(16, 28)
VOS0, VOS1, VF128, VFW = 36, 37, 38, 39
VGM, VGT, VGB = 244, 245, 246


class Cfg:
    diag = False
    probe = None
    stop = None
    map2 = '8x1'
    map3 = '2x4'
    spin = 200000
    pfcode = 1
    nt = 1
    only = ''
    outp = ''
    skip = 'issued,prep,yst,xin'
    ackw = 1
    ja_at = 1
    map1 = '2x4'
    cold0 = 58
    coldp = 4
    late1 = 4
    gm_first = 0
    kpace = 0
    late2 = 0
    jfin = 0
    wspan = 0
    kvpub = 19
    jb_at = 1
    w1b = 20
    w1a = 10
    hpre = 8
    rt_early = 0
    qpace = 6
    r0b = 6
    p2split = 1
    gpace = 1
    epace = 14
    r0 = 26
    r1 = 8
    r2 = 20
    r3 = 10
    r3b = 12
    r4 = 10
    r5 = 10
    r6 = 10
    ypre = 5
    lead = 80
    wait2 = 1
    sy = 24
    puba = 12
    chk_a = 11
    chkd = 3
    pubb = 8
    chk_b = 18
    chkd4 = 10


def srd(a, r, ptr, size):
    a.e(f's_mov_b32 {sr(r)}, {sr(ptr)}\ns_mov_b32 {sr(r + 1)}, {sr(ptr + 1)}\n'
        f's_mov_b32 {sr(r + 2)}, {size}\ns_mov_b32 {sr(r + 3)}, 0x20000')


class Gen:
    def __init__(self, cfg):
        self.cfg = cfg
        self.a = Asm()
        self.stamps = []
        self.nt = ' nt' if cfg.nt else ''
        self.fq = deque()

    def stamp(self, name):
        a = self.a
        if self.cfg.probe:
            if name == self.cfg.probe:
                a.e(f's_memrealtime {sr(S_STAMP + 2, 2)}')
                a.wait_all(vm=False)
            return
        if not self.cfg.diag or name in self.cfg.skip.split(','):
            return
        if self.cfg.only and name not in self.cfg.only.split(',') + ['start', 'end']:
            return
        idx = len(self.stamps)
        self.stamps.append(name)
        a.e(f's_memrealtime {sr(S_STAMP, 2)}\ns_memtime {sr(S_STAMP + 2, 2)}')
        a.wait_all(vm=False)
        a.e(f'v_writelane_b32 {vr(V_STAMP)}, {sr(S_STAMP)}, {idx}\nv_writelane_b32 {vr(V_STAMP)}, {sr(S_STAMP + 2)}, {idx + 32}')

    def barrier(self):
        self.a.e('s_barrier')

    def fill(self, n):
        while n > 0 and self.fq:
            f = self.fq.popleft()
            if callable(f):
                f()
            else:
                self.a.e(f)
            n -= 1

    def flush(self):
        self.fill(1 << 30)

    def _cmp_tags(self, loads):
        a = self.a
        first = True
        pairs = [t for _, t in loads if isinstance(t, tuple) and t[0] == 'pair']
        if pairs:
            for n, (_, b, tb) in enumerate(pairs):
                a.e(f'v_xor_b32 {vr(b)}, {vr(b)}, {vr(tb)}\nv_xor_b32 {vr(b + 1)}, {vr(b + 1)}, {vr(tb + 1)}')
                a.e(f'v_or3_b32 v9, {vr(b)}, {vr(b + 1)}, {"v9" if n else vr(b)}')
            a.e('v_and_b32 v9, 0xff, v9\nv_cmp_ne_u32 vcc, 0, v9')
            return
        byte = [-t for _, t in loads if not isinstance(t, tuple) and t < 0]
        if byte:
            for n, b in enumerate(byte):
                for r in range(4):
                    a.e(f'v_xor_b32 {vr(b + r)}, {sr(S_TB + r)}, {vr(b + r)}')
                a.e(f'v_or3_b32 v9, {vr(b)}, {vr(b + 1)}, {"v9" if n else vr(b)}\nv_or3_b32 v9, {vr(b + 2)}, {vr(b + 3)}, v9')
            a.e('v_and_b32 v9, 0xff, v9\nv_cmp_ne_u32 vcc, 0, v9')
            first = False
        for _, tags in loads:
            for t in (tags if isinstance(tags, tuple) else (tags,)):
                if t < 0:
                    continue
                if first:
                    a.e(f'v_cmp_ne_u64 vcc, {sr(S_TAG, 2)}, {vr(t, 2)}')
                    first = False
                else:
                    a.e(f'v_cmp_ne_u64 {sr(S_PM, 2)}, {sr(S_TAG, 2)}, {vr(t, 2)}\ns_or_b64 vcc, vcc, {sr(S_PM, 2)}')

    def poll_issue(self, loads):
        tok = None
        for text, _ in loads:
            tok = self.a.vmem(text)
        return tok

    def poll_check(self, loads, tok):
        a = self.a
        top, done = a.newlabel('poll'), a.newlabel('polled')
        a.wait(vm=tok)
        self._cmp_tags(loads)
        a.e(f's_cbranch_vccz {done}\ns_mov_b32 {sr(S_SPIN)}, {self.cfg.spin}')
        a.label(top)
        for text, _ in loads:
            a.e(text)
        a.e('s_waitcnt vmcnt(0)')
        self._cmp_tags(loads)
        a.e(f's_cbranch_vccz {done}')
        a.e(f's_sub_u32 {sr(S_SPIN)}, {sr(S_SPIN)}, 1\ns_cmp_lg_u32 {sr(S_SPIN)}, 0\ns_cbranch_scc1 {top}')
        a.label(done)

    def poll(self, loads):
        self.poll_check(loads, self.poll_issue(loads))

    def flag(self, soff):
        a = self.a
        a.e('s_mov_b64 exec, 1')
        tok = a.vmem(f'buffer_store_dwordx2 {vr(V_TAG, 2)}, off, {sr(R_WS, 4)}, {sr(soff)} sc1')
        a.e('s_mov_b64 exec, -1')
        return tok

    def wg_flag_off(self, dst, hi, mul, lo, base, shift=7, spare=False):
        a = self.a
        a.e(f's_mul_i32 {sr(dst)}, {sr(hi)}, {mul}')
        if lo is not None:
            a.e(f's_add_u32 {sr(dst)}, {sr(dst)}, {sr(lo)}')
        a.e(f's_lshl_b32 {sr(dst)}, {sr(dst)}, {shift}\ns_add_u32 {sr(dst)}, {sr(dst)}, {base}')
        a.e(f's_cmp_eq_u32 {sr(S_W)}, 0\ns_cselect_b32 {sr(dst)}, {sr(dst)}, {sr(S_SPARE) if spare else OOB}')

    def publish(self, tok, soff):
        self.a.wait(vm=tok)
        self.barrier()
        return self.flag(soff)

    def wave_flag_off(self, dst, hi, mul, lo, base, shift=7):
        a = self.a
        a.e(f's_mul_i32 {sr(dst)}, {sr(hi)}, {mul}')
        if lo is not None:
            a.e(f's_add_u32 {sr(dst)}, {sr(dst)}, {sr(lo)}')
        a.e(f's_lshl_b32 {sr(dst)}, {sr(dst)}, 2\ns_add_u32 {sr(dst)}, {sr(dst)}, {sr(S_W)}')
        a.e(f's_lshl_b32 {sr(dst)}, {sr(dst)}, {shift}\ns_add_u32 {sr(dst)}, {sr(dst)}, {base}')

    def unpack(self, lo, hi, src):
        self.a.e(f'v_lshlrev_b32 {vr(lo)}, 16, {vr(src)}\nv_and_b32 {vr(hi)}, 0xffff0000, {vr(src)}')

    def round_pair(self, lo, tmp):
        self.a.e(f'v_cvt_pk_bf16_f32 {vr(tmp)}, {vr(lo)}, {vr(lo + 1)}')
        self.unpack(lo, lo + 1, tmp)

    def sum_rows(self, regs, tmps, bits):
        a = self.a
        for b in bits:
            if b == 3:
                for r in regs:
                    a.e(f'v_add_f32_dpp {vr(r)}, {vr(r)}, {vr(r)} row_ror:8 row_mask:0xf bank_mask:0xf')
            else:
                for r, t in zip(regs, tmps):
                    a.e(f'v_mov_b32 {vr(t)}, {vr(r)}')
                for r, t in zip(regs, tmps):
                    a.e(f'v_permlane{16 if b == 4 else 32}_swap_b32 {vr(r)}, {vr(t)}')
                for r, t in zip(regs, tmps):
                    a.e(f'v_add_f32 {vr(r)}, {vr(r)}, {vr(t)}')

    def frag16_addr(self, vd, t):
        a = self.a
        a.e(f'v_bfe_u32 {vr(t)}, v0, 2, 2\nv_lshlrev_b32 {vr(vd)}, 8, {vr(t)}\nv_and_b32 {vr(t)}, 2, {vr(t)}')
        a.e(f'v_lshrrev_b32 {vr(t + 1)}, 4, v0\nv_xor_b32 {vr(t)}, {vr(t)}, {vr(t + 1)}\nv_lshl_add_u32 {vr(vd)}, {vr(t)}, 6, {vr(vd)}')
        a.e(f'v_add_u32 {vr(vd)}, {vr(vd)}, v8')

    def gemv_role(self, first, count, s_src, s_dst):
        a = self.a
        a.e(f's_lshr_b32 {sr(T)}, {sr(S_I)}, 2\ns_lshl_b32 {sr(T)}, {sr(T)}, 3\ns_add_u32 {sr(T)}, {sr(T)}, {sr(S_XC)}')
        a.e(f's_and_b32 {sr(T + 1)}, {sr(S_I)}, 3\ns_mul_i32 {sr(s_src)}, {sr(T + 1)}, 160\ns_mul_i32 {sr(s_dst)}, {sr(S_W)}, 40\ns_add_u32 {sr(s_src)}, {sr(s_src)}, {sr(s_dst)}')
        a.e(f's_mul_i32 {sr(s_src)}, {sr(s_src)}, 7680\ns_lshl_b32 {sr(s_dst)}, {sr(T)}, 7\ns_add_u32 {sr(s_src)}, {sr(s_src)}, {sr(s_dst)}')
        a.e(f's_lshl_b32 {sr(s_dst)}, {sr(T)}, 2\ns_add_u32 {sr(s_dst)}, {sr(s_dst)}, {sr(T + 1)}\ns_lshl_b32 {sr(s_dst)}, {sr(s_dst)}, 2\ns_add_u32 {sr(s_dst)}, {sr(s_dst)}, {sr(S_W)}')
        a.e(f's_lshl_b32 {sr(s_dst)}, {sr(s_dst)}, 6\ns_add_u32 {sr(s_dst)}, {sr(s_dst)}, {WS_MOD}')
        a.e(f's_sub_u32 {sr(T)}, {sr(T)}, {first}\ns_cmp_lt_u32 {sr(T)}, {count}\ns_cselect_b32 {sr(s_src)}, {sr(s_src)}, {OOB}\ns_cselect_b32 {sr(s_dst)}, {sr(s_dst)}, {OOB}')

    def gemv_dma(self, n, s_src, lds):
        a = self.a
        a.e(f's_mul_i32 {sr(T)}, {sr(S_W)}, 5120\ns_add_u32 m0, {sr(T)}, {lds + n * 1024}\ns_add_u32 {sr(T)}, {sr(s_src)}, {n * 8 * 7680}')
        return a.vmem(f'buffer_load_dwordx4 {vr(VGM)}, {sr(R_A, 4)}, {sr(T)} offen{self.nt} lds')

    def gemv_items(self, lds, s_dst, base):
        a = self.a
        tk = {}
        A, B, D = base, base + 20, base + 40
        it = [f'v_add_u32 {vr(D + 4)}, {lds}, {vr(VGT)}']
        for s in range(5):
            it.append(lambda s=s: a.ds(f'ds_read_b128 {vr(B + 4 * s, 4)}, {vr(VGB)} offset:{64 * s}'))
            it.append(lambda s=s: a.ds(f'ds_read_b64_tr_b16 {vr(A + 4 * s, 2)}, {vr(D + 4)} offset:{4096 * s}'))
            it.append(lambda s=s: tk.__setitem__(s, a.ds(f'ds_read_b64_tr_b16 {vr(A + 4 * s + 2, 2)}, {vr(D + 4)} offset:{4096 * s + 512}')))
        for s in range(5):
            def mm(s=s):
                a.wait(lg=tk[s])
                a.e(f'v_mfma_f32_16x16x32_bf16 {vr(D, 4)}, {vr(A + 4 * s, 4)}, {vr(B + 4 * s, 4)}, {vr(D, 4) if s else 0}')
            it.append(mm)

        def fin():
            for op in ('v_add_u32 {d}, 0x80, {d}', 'v_and_b32 {d}, 0xffffff00, {d}', 'v_or_b32 {d}, {t}, {d}'):
                for r in range(4):
                    a.e(op.format(d=vr(D + r), t=sr(S_TB + r)))
            a.e('s_mov_b32 exec_lo, 0x00010001\ns_mov_b32 exec_hi, 0x00010001')
            a.vmem(f'buffer_store_dwordx4 {vr(D, 4)}, v0, {sr(R_WS, 4)}, {sr(s_dst)} offen sc1')
            a.e('s_mov_b64 exec, -1')
        it.append(fin)
        return it

    def mod_finish(self, base, n, s_add):
        a = self.a
        for h in (0, 2):
            a.e(f'v_pk_add_f32 {vr(base + h, 2)}, {vr(base + h, 2)}, {vr(base + 4 + h, 2)}\nv_pk_add_f32 {vr(base + 8 + h, 2)}, {vr(base + 8 + h, 2)}, {vr(base + 12 + h, 2)}')
        for h in (0, 2):
            a.e(f'v_pk_add_f32 {vr(base + h, 2)}, {vr(base + h, 2)}, {vr(base + 8 + h, 2)}')
        self.round_pair(base, base + 4)
        self.round_pair(base + 2, base + 5)
        for h in (0, 2):
            a.e(f'v_pk_add_f32 {vr(base + h, 2)}, {vr(base + h, 2)}, {sr(s_add, 2)}')
        self.round_pair(base, base + 4)
        self.round_pair(base + 2, base + 5)

    def prologue(self):
        a, cfg = self.a, self.cfg
        a.e('s_cmp_ge_u32 s2, 256\ns_cbranch_scc1 L_end')
        if cfg.probe == 'entry':
            self.stamp('entry')
        a.e('s_load_dwordx16 s[4:19], s[0:1], 0\ns_load_dwordx8 s[20:27], s[0:1], 64\ns_load_dwordx2 s[28:29], s[0:1], 96')
        a.e(f's_mov_b32 s3, {OOB_VAL}')
        a.e('v_lshrrev_b32 v1, 6, v0\nv_and_b32 v0, 63, v0')
        a.e(f'v_readfirstlane_b32 {sr(S_W)}, v1\nv_lshlrev_b32 v1, 4, v0')
        if cfg.diag:
            a.e(f'v_mov_b32 {vr(V_STAMP)}, 0')
        a.e(f's_and_b32 {sr(S_XC)}, s2, 7\ns_lshr_b32 {sr(S_I)}, s2, 3')
        if cfg.pfcode:
            self.prefetch_code()
        a.e('v_bfe_u32 v9, v0, 4, 1\nv_and_b32 v10, 7, v0\nv_xor_b32 v4, v10, v9\nv_lshlrev_b32 v4, 4, v4\nv_lshrrev_b32 v5, 3, v0')
        a.e(f's_mov_b32 {sr(T)}, 1280\nv_xor_b32 v11, v10, v5\nv_lshlrev_b32 v11, 4, v11\nv_mad_u32_u24 v12, v5, {sr(T)}, v11')
        a.e(f's_mov_b32 {sr(T)}, 7680\nv_and_b32 v11, 2, v5\nv_xor_b32 v11, v10, v11\nv_lshlrev_b32 v11, 4, v11\nv_mad_u32_u24 {vr(VGM)}, v5, {sr(T)}, v11')
        a.e(f's_mul_i32 {sr(T + 2)}, s2, 10240\ns_lshl_b32 {sr(T + 1)}, {sr(S_W)}, 7\ns_add_u32 {sr(T + 2)}, {sr(T + 2)}, {sr(T + 1)}')
        a.e(f's_cmp_lt_u32 {sr(S_W)}, 2\ns_cselect_b32 {sr(T + 3)}, {sr(T + 2)}, {OOB}')
        a.e(f's_mul_i32 {sr(T + 5)}, {sr(S_W)}, 3072\ns_add_u32 {sr(T + 5)}, {sr(T + 5)}, {L_XS}')
        self.gemv_role(0, 20, T + 4, P)
        a.e('s_waitcnt lgkmcnt(0)')
        srd(a, R_A, S_WMOD, 640 * 7680)
        srd(a, R_X, S_X, 2048 * 1280)
        srd(a, R_WS, S_WS, WS_SIZE)
        self.stamp('start')

    def prefetch_code(self):
        a = self.a
        a.e(f's_getpc_b64 {sr(T, 2)}')
        a.label('L_pc')
        a.e(f's_and_b32 {sr(T + 2)}, {sr(S_I)}, 1\ns_lshl_b32 {sr(T + 2)}, {sr(T + 2)}, 2\ns_add_u32 {sr(T + 2)}, {sr(T + 2)}, {sr(S_W)}')
        a.e(f's_lshl_b32 {sr(T + 2)}, {sr(T + 2)}, 13\nv_lshlrev_b32 v4, 7, v0\nv_add_u32 v4, {sr(T + 2)}, v4')
        a.e(f'v_min_u32 v4, L_end-L_pc, v4\nv_mov_b32 v5, {sr(T + 1)}\nv_add_co_u32 v4, vcc, {sr(T)}, v4\nv_addc_co_u32 v5, vcc, 0, v5, vcc')
        a.vmem('global_load_dword v254, v[4:5], off')

    def roles(self):
        a, cfg = self.a, self.cfg

        def role(dm, dn, xm_shift, nn_bits_x, i_shift):
            a.e(f's_lshr_b32 {sr(T)}, {sr(S_XC)}, {xm_shift}\ns_lshl_b32 {sr(T)}, {sr(T)}, {5 - i_shift}')
            a.e(f's_lshr_b32 {sr(T + 1)}, {sr(S_I)}, {i_shift}\ns_add_u32 {sr(dm)}, {sr(T)}, {sr(T + 1)}')
            a.e(f's_and_b32 {sr(T)}, {sr(S_XC)}, {(1 << nn_bits_x) - 1}\ns_lshl_b32 {sr(T)}, {sr(T)}, {i_shift}')
            a.e(f's_and_b32 {sr(T + 1)}, {sr(S_I)}, {(1 << i_shift) - 1}\ns_add_u32 {sr(dn)}, {sr(T)}, {sr(T + 1)}')
        role(S_G1, S_J1, *{'8x1': (0, 0, 4), '4x2': (1, 1, 3), '2x4': (2, 2, 2), '1x8': (3, 3, 1)}[cfg.map1])
        role(S_M2, S_N2, *{'8x1': (0, 0, 3), '4x2': (1, 1, 2), '2x4': (2, 2, 1)}[cfg.map2])
        role(S_G3, S_J3, *{'8x1': (0, 0, 4), '4x2': (1, 1, 3), '2x4': (2, 2, 2)}[cfg.map3])
        self.wave_flag_off(S_SPARE, 2, 1, None, WS_SPARE)
        a.e(f's_mov_b32 {sr(S_L2E)}, 0x3fb8aa3b\ns_mov_b32 {sr(S_L2E + 1)}, 0x3fb8aa3b')

    def make_tag(self):
        a = self.a
        a.wait(vm=self.tok_epoch)
        a.e(f'v_readfirstlane_b32 {sr(S_TAG)}, {vr(V_TAG)}\nv_readfirstlane_b32 {sr(S_TAG + 1)}, {vr(V_TAG + 1)}')
        a.e(f's_mul_i32 {sr(S_TAG)}, {sr(S_TAG)}, 1664525\ns_add_u32 {sr(S_TAG)}, {sr(S_TAG)}, 1013904223')
        a.e(f's_mul_i32 {sr(S_TAG + 1)}, {sr(S_TAG + 1)}, 22695477\ns_add_u32 {sr(S_TAG + 1)}, {sr(S_TAG + 1)}, 0x3c6ef35f')
        a.e(f'v_mov_b32 {vr(V_TAG)}, {sr(S_TAG)}\nv_mov_b32 {vr(V_TAG + 1)}, {sr(S_TAG + 1)}')
        for r in range(4):
            a.e(f's_bfe_u32 {sr(S_TB + r)}, {sr(S_TAG)}, {0x80000 + 8 * r}')

    def job_tr_bases(self):
        a = self.a
        a.e('v_lshrrev_b32 v6, 4, v0\nv_lshlrev_b32 v6, 10, v6\nv_bfe_u32 v9, v0, 2, 2\nv_lshl_add_u32 v6, v9, 7, v6')
        a.e('v_lshrrev_b32 v9, 1, v9\nv_and_b32 v8, 3, v0\nv_lshl_or_b32 v9, v8, 1, v9\nv_lshl_add_u32 v6, v9, 4, v6\nv_lshlrev_b32 v8, 4, v8')
        a.e(f's_lshl_b32 {sr(T)}, {sr(S_W)}, 13\ns_add_u32 {sr(P + 3)}, {sr(T)}, {L_JB}\nv_add_u32 v34, {sr(P + 3)}, v6\nv_xor_b32 v35, 16, v34')
        a.e(f's_lshl_b32 {sr(T)}, {sr(S_W)}, 12\ns_add_u32 {sr(T)}, {sr(T)}, {L_JA}\nv_add_u32 v6, {sr(T)}, v6\nv_xor_b32 v7, 16, v6')

    def job_finish_items(self, tok, vb, off, vdest, base):
        a = self.a
        st = {}
        items = [lambda: a.wait(vm=tok())]
        for n in range(4):
            for z in range(2):
                def rd(n=n, z=z):
                    st[n] = a.ds(f'ds_read_b64_tr_b16 {vr(base + 4 * n + 2 * z, 2)}, v{vb + (n >> 1)} offset:{off + z * 512 + (n & 1) * 8}')
                items.append(rd)
        for n in range(4):
            items.append(f'v_add_u32_dpp {vr(base + 16 + n)}, {vr(vdest)}, v8 quad_perm:[{n},{n},{n},{n}] row_mask:0xf bank_mask:0xf')
        for n in range(4):
            def sto(n=n):
                a.wait(lg=st[n])
                self.tok_job = a.vmem(f'buffer_store_dwordx4 {vr(base + 4 * n, 4)}, {vr(base + 16 + n)}, {sr(R_WS, 4)}, 0 offen sc1')
            items.append(sto)
        return items

    def piece_swizzle(self, acc, g):
        self.a.e(f'v_and_b32 {vr(g)}, 2, {vr(g)}\nv_lshrrev_b32 v15, 4, v0\nv_xor_b32 {vr(g)}, {vr(g)}, v15\nv_lshl_add_u32 {vr(acc)}, {vr(g)}, 6, {vr(acc)}')

    def dest_A(self, vd, s_blk, s_kb, s_base):
        a = self.a
        a.e(f's_mul_i32 {sr(T)}, {sr(s_blk)}, 205\ns_lshr_b32 {sr(T)}, {sr(T)}, 11')
        a.e(f's_mul_i32 {sr(T + 1)}, {sr(T)}, 10\ns_sub_u32 {sr(T + 1)}, {sr(s_blk)}, {sr(T + 1)}\ns_lshl_b32 {sr(T + 1)}, {sr(T + 1)}, 4')
        a.e(f'v_and_b32 v9, 15, v0\nv_add_u32 v9, {sr(T + 1)}, v9')
        a.e('v_mul_u32_u24 v10, 103, v9\nv_lshrrev_b32 v10, 9, v10')
        a.e('v_mul_u32_u24 v11, 5, v10\nv_sub_u32 v11, v9, v11')
        a.e('v_and_b32 v12, 1, v10\nv_lshlrev_b32 v14, 1, v12')
        a.e(f's_lshr_b32 {sr(T + 1)}, {sr(T)}, 1\nv_add_u32 v13, {sr(T + 1)}, v14\nv_lshlrev_b32 v13, 8, v13\nv_lshl_add_u32 v13, v11, 10, v13')
        a.e('v_and_b32 v9, 1, v11\nv_add_u32 v9, v9, v14\nv_cmp_gt_u32 vcc, 4, v11\nv_cndmask_b32 v9, v12, v9, vcc')
        a.e('v_lshlrev_b32 v9, 8, v9\nv_lshrrev_b32 v11, 1, v11\nv_lshl_add_u32 v9, v11, 10, v9')
        a.e(f's_cmp_eq_u32 {sr(T)}, 0\ns_cselect_b64 vcc, -1, 0\ns_mul_i32 {sr(T + 1)}, {sr(s_kb)}, 5120\ns_mul_i32 {sr(T + 2)}, {sr(s_kb)}, 2560')
        a.e(f's_add_u32 {sr(T + 2)}, {sr(T + 2)}, 102400\ns_cmp_eq_u32 {sr(T)}, 0\ns_cselect_b32 {sr(T + 1)}, {sr(T + 2)}, {sr(T + 1)}')
        a.e(f's_add_u32 {sr(T + 1)}, {sr(T + 1)}, {sr(s_base)}\nv_cndmask_b32 v13, v13, v9, vcc')
        self.piece_swizzle(13, 14)
        a.e(f's_mov_b32 {sr(T + 2)}, 153600\nv_lshrrev_b32 v10, 1, v10\nv_mad_u32_u24 v13, v10, {sr(T + 2)}, v13')
        a.e(f'v_add_u32 {vr(vd)}, {sr(T + 1)}, v13')

    def dest_B(self, vd, s_blk, s_kb, s_up):
        a = self.a
        a.e(f's_lshl_b32 {sr(T)}, {sr(s_blk)}, 4\nv_and_b32 v9, 15, v0\nv_add_u32 v9, {sr(T)}, v9')
        a.e('v_lshrrev_b32 v10, 1, v9\nv_and_b32 v9, 1, v9')
        a.e('v_mul_u32_u24 v11, 19, v10\nv_lshrrev_b32 v11, 9, v11')
        a.e('v_mul_u32_u24 v12, 27, v11\nv_sub_u32 v12, v10, v12')
        a.e('v_cmp_le_u32 vcc, 14, v12\nv_lshlrev_b32 v11, 1, v11\nv_subrev_u32 v13, 14, v12')
        a.e('v_cndmask_b32 v12, v12, v13, vcc\nv_addc_co_u32 v11, vcc, 0, v11, vcc')
        a.e('v_lshrrev_b32 v13, 2, v12\nv_lshl_add_u32 v13, v13, 1, v9\nv_and_b32 v14, 3, v12')
        a.e('v_lshl_add_u32 v10, v14, 1, v9\nv_cmp_gt_u32 vcc, 12, v12\nv_cndmask_b32 v13, 6, v13, vcc\nv_cndmask_b32 v14, v10, v14, vcc')
        a.e(f's_lshl_b32 {sr(T)}, {sr(s_kb)}, 13\ns_mul_i32 {sr(T + 1)}, {sr(s_kb)}, 6144\ns_add_u32 {sr(T + 1)}, {sr(T + 1)}, {163840 - 8192}')
        a.e(f'v_mov_b32 v9, {sr(T)}\nv_mov_b32 v10, {sr(T + 1)}\nv_cmp_gt_u32 vcc, 4, v13\nv_cndmask_b32 v9, v10, v9, vcc')
        a.e('v_lshl_add_u32 v13, v13, 11, v9\nv_lshl_add_u32 v13, v14, 8, v13')
        self.piece_swizzle(13, 14)
        a.e(f's_mov_b32 {sr(T)}, 286720\nv_mad_u32_u24 v13, v11, {sr(T)}, v13')
        a.e(f's_lshl_b32 {sr(T)}, {sr(s_up)}, 10\ns_add_u32 {sr(T)}, {sr(T)}, {WS_W13}\nv_add_u32 {vr(vd)}, {sr(T)}, v13')

    def dest_C(self, vd, s_blk, s_kb, half, s_base, stride):
        a = self.a
        if half is None:
            a.e(f's_mov_b32 {sr(T + 1)}, {sr(s_kb)}')
        else:
            a.e(f's_sub_u32 {sr(T + 1)}, {sr(s_kb)}, {half}\ns_lshl_b32 {sr(T + 1)}, {sr(T + 1)}, 1\ns_add_u32 {sr(T + 1)}, {sr(T + 1)}, 1')
            a.e(f's_lshl_b32 {sr(T + 2)}, {sr(s_kb)}, 1\ns_cmp_lt_u32 {sr(s_kb)}, {half}\ns_cselect_b32 {sr(T + 1)}, {sr(T + 2)}, {sr(T + 1)}')
        a.e(f's_mul_i32 {sr(T + 1)}, {sr(T + 1)}, 5120\ns_add_u32 {sr(T + 1)}, {sr(T + 1)}, {sr(s_base)}')
        a.e(f's_lshl_b32 {sr(T)}, {sr(s_blk)}, 4\nv_and_b32 v9, 15, v0\nv_add_u32 v9, {sr(T)}, v9')
        a.e('v_mul_u32_u24 v10, 103, v9\nv_lshrrev_b32 v10, 11, v10')
        a.e('v_mul_u32_u24 v11, 20, v10\nv_sub_u32 v11, v9, v11')
        a.e('v_lshrrev_b32 v12, 3, v11\nv_lshlrev_b32 v12, 1, v12\nv_and_b32 v13, 1, v11\nv_add_u32 v13, v12, v13')
        a.e('v_bfe_u32 v14, v11, 1, 2\nv_and_b32 v15, 3, v11\nv_cmp_gt_u32 vcc, 16, v11')
        a.e('v_cndmask_b32 v13, 4, v13, vcc\nv_cndmask_b32 v14, v15, v14, vcc')
        a.e('v_lshlrev_b32 v13, 10, v13\nv_lshl_add_u32 v13, v14, 8, v13')
        self.piece_swizzle(13, 14)
        a.e(f's_mov_b32 {sr(T)}, {stride}\nv_mad_u32_u24 v13, v10, {sr(T)}, v13\nv_add_u32 {vr(vd)}, {sr(T + 1)}, v13')

    def job_bc_setup(self, rnd, rs, voff, vd, offs):
        a = self.a
        J, BLK, KB = T + 4, T + 5, T + 6
        lw2, ldone = a.newlabel('jw2'), a.newlabel('jdone')
        a.e(f's_lshl_b32 {sr(J)}, s2, 2\ns_add_u32 {sr(J)}, {sr(J)}, {sr(S_W)}')
        if rnd:
            a.e(f's_add_u32 {sr(J)}, {sr(J)}, 1024\ns_cmp_ge_u32 {sr(J)}, 1080\ns_cbranch_scc1 {lw2}')
        a.e(f's_cmp_ge_u32 {sr(J)}, 540\ns_cselect_b32 {sr(T + 8)}, 1, 0')
        a.e(f's_cselect_b32 {sr(rs)}, {sr(S_W3)}, {sr(S_W1)}\ns_cselect_b32 {sr(rs + 1)}, {sr(S_W3 + 1)}, {sr(S_W1 + 1)}')
        a.e(f's_cselect_b32 {sr(T + 9)}, 540, 0\ns_sub_u32 {sr(J)}, {sr(J)}, {sr(T + 9)}')
        a.e(f's_mov_b32 {sr(rs + 2)}, {640 * 3456}\ns_mov_b32 {sr(rs + 3)}, 0x20000')
        a.e(f's_mul_i32 {sr(KB)}, {sr(J)}, 607\ns_lshr_b32 {sr(KB)}, {sr(KB)}, 14')
        a.e(f's_mul_i32 {sr(BLK)}, {sr(KB)}, 27\ns_sub_u32 {sr(BLK)}, {sr(J)}, {sr(BLK)}')
        self.dest_B(vd, BLK, KB, T + 8)
        a.e(f's_mov_b32 {sr(T)}, 3456\nv_mad_u32_u24 {vr(voff)}, v5, {sr(T)}, v4')
        a.e(f's_mul_i32 {sr(T + 10)}, {sr(KB)}, {32 * 3456}\ns_lshl_b32 {sr(BLK)}, {sr(BLK)}, 7\ns_add_u32 {sr(T + 10)}, {sr(T + 10)}, {sr(BLK)}')
        for n in range(1, 4):
            a.e(f's_add_u32 {sr(T + 10 + n)}, {sr(T + 10)}, {n * 8 * 3456}')
        if rnd:
            a.e(f's_branch {ldone}')
            a.label(lw2)
            srd(a, rs, S_W2, 1728 * 1280)
            a.e(f's_sub_u32 {sr(J)}, {sr(J)}, 1080\ns_mov_b32 {sr(T + 9)}, {WS_W2}')
            a.e(f's_cmp_lt_u32 {sr(J)}, 560\ns_cselect_b32 {sr(T + 9)}, {sr(T + 9)}, {OOB}\ns_cselect_b32 {sr(T + 8)}, 0, {OOB}\ns_cselect_b32 {sr(J)}, {sr(J)}, 0')
            a.e(f's_mul_i32 {sr(KB)}, {sr(J)}, 205\ns_lshr_b32 {sr(KB)}, {sr(KB)}, 11')
            a.e(f's_mul_i32 {sr(BLK)}, {sr(KB)}, 10\ns_sub_u32 {sr(BLK)}, {sr(J)}, {sr(BLK)}')
            self.dest_C(vd, BLK, KB, None, T + 9, 286720)
            a.e(f's_mov_b32 {sr(T)}, 1280\nv_mad_u32_u24 {vr(voff)}, v5, {sr(T)}, v4')
            a.e(f's_lshl_b32 {sr(BLK)}, {sr(BLK)}, 7\ns_add_u32 {sr(BLK)}, {sr(BLK)}, {sr(T + 8)}')
            a.e(f's_mul_i32 {sr(T + 7)}, {sr(KB)}, 37\ns_lshr_b32 {sr(T + 7)}, {sr(T + 7)}, 9\ns_mul_i32 {sr(T)}, {sr(T + 7)}, 14\ns_sub_u32 {sr(KB)}, {sr(KB)}, {sr(T)}')
            a.e(f's_lshl_b32 {sr(KB)}, {sr(KB)}, 2\ns_mul_i32 {sr(T + 7)}, {sr(T + 7)}, 54')
            a.e(f's_lshr_b32 {sr(T)}, {sr(KB)}, 4\ns_mul_i32 {sr(T)}, {sr(T)}, 27\ns_bfe_u32 {sr(T + 1)}, {sr(KB)}, 0x10003\ns_mul_i32 {sr(T + 1)}, {sr(T + 1)}, 14')
            a.e(f's_add_u32 {sr(T)}, {sr(T)}, {sr(T + 1)}\ns_and_b32 {sr(T + 1)}, {sr(KB)}, 7\ns_add_u32 {sr(T + 4)}, {sr(T)}, {sr(T + 1)}')
            for n in range(4):
                R, UU = T, T + 1
                a.e(f's_add_u32 {sr(R)}, {sr(KB)}, {n - 32}\ns_add_u32 {sr(UU)}, {sr(R)}, 8')
                for lim in (6, 11, 17):
                    a.e(f's_cmp_ge_i32 {sr(R)}, {lim}\ns_cselect_b32 {sr(T + 2)}, 8, 0\ns_add_u32 {sr(UU)}, {sr(UU)}, {sr(T + 2)}')
                a.e(f's_add_u32 {sr(T + 2)}, {sr(T + 4)}, {n}\ns_cmp_lt_i32 {sr(R)}, 0\ns_cselect_b32 {sr(UU)}, {sr(T + 2)}, {sr(UU)}')
                a.e(f's_add_u32 {sr(UU)}, {sr(UU)}, {sr(T + 7)}\ns_mul_i32 {sr(UU)}, {sr(UU)}, {8 * 1280}\ns_add_u32 {sr(UU)}, {sr(UU)}, {sr(BLK)}')
                a.e(f's_cmp_ge_i32 {sr(R)}, 22\ns_cselect_b32 {sr(T + 10 + n)}, {OOB}, {sr(UU)}')
            a.label(ldone)
        for n in range(4):
            a.e(f's_mov_b32 {sr(offs + n)}, {sr(T + 10 + n)}')

    def startup(self):
        import gen1
        a, cfg = self.a, self.cfg
        lskip = a.newlabel('noc')
        a.e(f's_cmp_lg_u32 {sr(S_W)}, 0\ns_cbranch_scc1 {lskip}')
        srd(a, R_B, S_C, 1280)
        a.e(f'v_lshlrev_b32 v9, 2, v0\nbuffer_load_dwordx4 v[64:67], v1, {sr(R_B, 4)}, 0 offen\nbuffer_load_dword v68, v9, {sr(R_B, 4)}, 0 offen offset:1024')
        a.label(lskip)
        self.tok_epoch = a.vmem(f'buffer_load_dwordx2 {vr(V_TAG, 2)}, off, {sr(R_WS, 4)}, 0 sc1')
        for r in range(3):
            a.e(f's_add_u32 m0, {sr(T + 5)}, {r * 512}')
            tx = a.vmem(f'buffer_load_dwordx4 v12, {sr(R_X, 4)}, {sr(T + 2 + (r == 2))} offen offset:{r * 512}{self.nt} lds')
        for n in range(5):
            tt = self.gemv_dma(n, T + 4, 0)
        self.stamp('issued')
        self.roles()
        self.job_tr_bases()
        J, BLK, KB, VALD, PITCH = T + 4, T + 5, T + 6, T + 7, T + 8
        lwn, lj = a.newlabel('jqkv'), a.newlabel('jgo')
        a.e(f's_cmp_lg_u32 {sr(S_W)}, 0\ns_cbranch_scc1 {lwn}')
        srd(a, R_OUT, S_WO, 640 * 1280)
        a.e(f's_cmp_lt_u32 s2, 200\ns_cselect_b32 {sr(VALD)}, 0, {OOB}\ns_cselect_b32 {sr(J)}, s2, 0')
        a.e(f's_mul_i32 {sr(KB)}, {sr(J)}, 205\ns_lshr_b32 {sr(KB)}, {sr(KB)}, 11\ns_mul_i32 {sr(BLK)}, {sr(KB)}, 10\ns_sub_u32 {sr(BLK)}, {sr(J)}, {sr(BLK)}')
        a.e(f's_mov_b32 {sr(PITCH)}, 1280\ns_add_u32 {sr(T + 9)}, {sr(VALD)}, {WS_WO}')
        self.dest_C(29, BLK, KB, 10 if cfg.p2split else None, T + 9, 102400)
        a.e(f's_branch {lj}')
        a.label(lwn)
        srd(a, R_OUT, S_WQKV, 640 * 3840)
        a.e(f's_mul_i32 {sr(J)}, s2, 3\ns_add_u32 {sr(J)}, {sr(J)}, {sr(S_W)}\ns_sub_u32 {sr(J)}, {sr(J)}, 1')
        a.e(f's_cmp_lt_u32 {sr(J)}, 600\ns_cselect_b32 {sr(VALD)}, 0, {OOB}\ns_cselect_b32 {sr(J)}, {sr(J)}, 0')
        a.e(f's_mul_i32 {sr(BLK)}, {sr(J)}, 205\ns_lshr_b32 {sr(BLK)}, {sr(BLK)}, 12\ns_mul_i32 {sr(KB)}, {sr(BLK)}, 20\ns_sub_u32 {sr(KB)}, {sr(J)}, {sr(KB)}')
        a.e(f's_mov_b32 {sr(PITCH)}, 3840\ns_add_u32 {sr(T + 9)}, {sr(VALD)}, {WS_WQ}')
        self.dest_A(29, BLK, KB, T + 9)
        a.label(lj)
        a.e(f's_lshl_b32 {sr(P + 10)}, {sr(PITCH)}, 3\ns_mul_i32 {sr(P + 9)}, {sr(P + 10)}, {sr(KB)}\ns_lshl_b32 {sr(P + 9)}, {sr(P + 9)}, 2')
        a.e(f's_lshl_b32 {sr(T)}, {sr(BLK)}, 7\ns_add_u32 {sr(P + 9)}, {sr(P + 9)}, {sr(T)}\ns_add_u32 {sr(P + 9)}, {sr(P + 9)}, {sr(VALD)}')
        a.e(f'v_mad_u32_u24 v28, v5, {sr(PITCH)}, v4')
        ja = {}

        def job_a_issue():
            a.e(f's_lshl_b32 {sr(T)}, {sr(S_W)}, 12\ns_add_u32 {sr(T)}, {sr(T)}, {L_JA}')
            for n in range(4):
                a.e(f's_add_u32 m0, {sr(T)}, {n * 1024}')
                if n:
                    a.e(f's_add_u32 {sr(P + 9)}, {sr(P + 9)}, {sr(P + 10)}')
                ja['t'] = a.vmem(f'buffer_load_dwordx4 v28, {sr(R_OUT, 4)}, {sr(P + 9)} offen{self.nt} lds')
            srd(a, R_B, S_WPHI, 32 * 800)
            a.e(f's_mul_i32 {sr(T)}, {sr(S_J1)}, 1600\ns_lshl_b32 {sr(T + 1)}, {sr(S_W)}, 9\ns_add_u32 {sr(T)}, {sr(T)}, {sr(T + 1)}')
            a.e(f's_add_u32 m0, {sr(T + 1)}, {L_WPHI}\ns_mov_b32 exec_hi, 0')
            a.vmem(f'buffer_load_dwordx4 v1, {sr(R_B, 4)}, {sr(T)} offen lds')
            a.e('s_mov_b64 exec, -1')
        if cfg.ja_at == 0:
            job_a_issue()
        a.e('v_lshrrev_b32 v9, 4, v0\nv_bfe_u32 v10, v0, 2, 2\nv_lshl_add_u32 v11, v9, 3, v10\nv_lshlrev_b32 v11, 7, v11')
        a.e(f'v_lshrrev_b32 v10, 1, v10\nv_xor_b32 v10, {sr(S_W)}, v10\nv_lshl_add_u32 v11, v10, 5, v11\nv_and_b32 v10, 3, v0\nv_lshl_add_u32 {vr(VGT)}, v10, 3, v11')
        a.e(f's_and_b32 {sr(T)}, {sr(S_I)}, 3\ns_mul_i32 {sr(T)}, {sr(T)}, 320\ns_add_u32 {sr(T)}, {sr(T)}, {L_SILU}\nv_lshlrev_b32 v9, 4, v9\nv_add_u32 {vr(VGB)}, {sr(T)}, v9')
        lj = a.newlabel('nosilu')
        a.e(f's_cmp_lg_u32 {sr(S_W)}, 0\ns_cbranch_scc1 {lj}')
        st = a.state()
        a.wait(vm=self.tok_epoch)
        for n in range(5):
            self.unpack(70 + 2 * n, 71 + 2 * n, 64 + n)
        for op in ('v_mul_f32 {d}, 0xbfb8aa3b, {s}', 'v_exp_f32 {d}, {d}', 'v_add_f32 {d}, 1.0, {d}', 'v_rcp_f32 {d}, {d}', 'v_mul_f32 {d}, {s}, {d}'):
            for n in range(10):
                a.e(op.format(d=vr(80 + n), s=vr(70 + n)))
        for n in range(5):
            a.e(f'v_cvt_pk_bf16_f32 {vr(64 + n)}, {vr(80 + 2 * n)}, {vr(81 + 2 * n)}')
        a.e(f'v_add_u32 v9, {L_SILU}, v1\nv_lshlrev_b32 v10, 2, v0\nv_add_u32 v10, {L_SILU + 1024}, v10')
        a.e('ds_write_b128 v9, v[64:67]\nds_write_b32 v10, v68\ns_waitcnt lgkmcnt(0)')
        a.set_state(st)
        a.label(lj)
        self.make_tag()
        if cfg.ja_at == 1:
            job_a_issue()
        self.jt = {}

        def jdma(r, n):
            a.e(f's_add_u32 m0, {sr(P + 3)}, {r * 4096 + n * 1024}')
            self.jt[r] = a.vmem(f'buffer_load_dwordx4 v{30 + 2 * r}, {sr((R_B, R_C)[r], 4)}, {sr((JB_OFF, JC_OFF)[r] + n)} offen{self.nt} lds')
        self.late = [lambda r=r, n=n: jdma(r, n) for r in range(2) for n in range(4)]
        self.stamp('setup')
        a.c('LayerNorm 1')
        a.e('v_and_b32 v9, 7, v0\nv_xor_b32 v10, v9, v5\nv_lshlrev_b32 v10, 4, v10\nv_lshl_add_u32 v10, v9, 7, v10')
        a.e(f's_mul_i32 {sr(T)}, {sr(S_W)}, 3072\ns_add_u32 {sr(T)}, {sr(T)}, {L_XS}\nv_add_u32 v11, {sr(T)}, v10')
        a.e(f'v_lshlrev_b32 v9, 4, v9\ns_lshl_b32 {sr(T)}, {sr(S_W)}, 2\ns_add_u32 {sr(T)}, {sr(T)}, {L_LNRED}\nv_add_u32 v10, {sr(T)}, v9\nv_add_u32 v9, {L_LNRED}, v9')
        a.e(f's_cmp_lt_u32 {sr(S_W)}, 2\ns_cselect_b32 {sr(T + 2)}, 1.0, 0')
        a.wait(vm=tx)
        self.stamp('xin')
        tk = [a.ds(f'ds_read_b128 {vr(112 + 4 * r, 4)}, v11 offset:{1024 * r}') for r in range(3)]
        X = 128
        for r in range(3):
            a.wait(lg=tk[r])
            for n in range(4):
                self.unpack(X + 8 * r + 2 * n, X + 8 * r + 2 * n + 1, 112 + 4 * r + n)

        def tree(dst, src, n):
            a.e(f'v_pk_add_f32 {vr(dst, 2)}, {vr(src, 2)}, {vr(src + 2, 2)}')
            for k in range(4, n, 2):
                a.e(f'v_pk_add_f32 {vr(dst, 2)}, {vr(dst, 2)}, {vr(src + k, 2)}')

        def all_sum(r, off, pre=None):
            self.sum_rows((r,), (11,), (3, 4, 5))
            a.ds(f'ds_write_b32 v10, {vr(r)} offset:{off}')
            if pre:
                pre()
            a.wait_all(vm=False)
            self.barrier()

        def read_sum(r, off):
            t = a.ds(f'ds_read_b128 v[12:15], v9 offset:{off}')
            a.wait(lg=t)
            a.e(f'v_add_f32 v12, v12, v13\nv_add_f32 v14, v14, v15\nv_add_f32 {vr(r)}, v12, v14\nv_mul_f32 {vr(r)}, 0x3acccccd, {vr(r)}')
        tree(152, X, 12)
        tree(154, X + 12, 12)
        a.e('v_pk_add_f32 v[152:153], v[152:153], v[154:155]\nv_add_f32 v152, v152, v153')
        all_sum(152, 0, pre=lambda: a.wait(vm=tt))
        self.stamp('tilein')
        self.fq.extend(self.gemv_items(0, P, 64))
        self.flush()
        self.stamp('gemv')
        read_sum(152, 0)
        for n in range(12):
            a.e(f'v_pk_add_f32 {vr(X + 2 * n, 2)}, {vr(X + 2 * n, 2)}, v[152:153] op_sel_hi:[1,0] neg_lo:[0,1] neg_hi:[0,1]')
        a.e(f'v_pk_mul_f32 v[154:155], {vr(X, 2)}, {vr(X, 2)}\nv_pk_mul_f32 v[156:157], {vr(X + 16, 2)}, {vr(X + 16, 2)}')
        for n in range(1, 8):
            a.e(f'v_pk_fma_f32 v[154:155], {vr(X + 2 * n, 2)}, {vr(X + 2 * n, 2)}, v[154:155]')
            if n < 4:
                a.e(f'v_pk_fma_f32 v[156:157], {vr(X + 16 + 2 * n, 2)}, {vr(X + 16 + 2 * n, 2)}, v[156:157]')
        a.e(f'v_add_f32 v154, v154, v155\nv_add_f32 v156, v156, v157\nv_fma_f32 v154, v156, {sr(T + 2)}, v154')
        all_sum(154, 128)
        read_sum(154, 128)
        a.e('v_add_f32 v154, 0x3727c5ac, v154\nv_rsq_f32 v154, v154')
        for n in range(12):
            a.e(f'v_pk_mul_f32 {vr(X + 2 * n, 2)}, {vr(X + 2 * n, 2)}, v[154:155] op_sel_hi:[1,0]')
        self.fq.extend(self.job_finish_items(lambda: ja['t'], 6, 0, 29, 44))
        self.flush()
        self.stamp('jobA')
        a.e(f's_mul_i32 {sr(T + 14)}, {sr(S_W)}, 5120\ns_add_u32 {sr(T + 14)}, {sr(T + 14)}, {WS_MOD}\ns_add_u32 {sr(T + 15)}, {sr(T + 14)}, 4096')
        a.e('v_and_b32 v41, 0xf0, v1\nv_lshrrev_b32 v40, 4, v0\nv_lshl_add_u32 v40, v40, 10, v41')
        mod_loads = [(f'buffer_load_dwordx4 {vr(64 + 4 * k, 4)}, v40, {sr(R_WS, 4)}, {sr(T + 14)} offen offset:{256 * k} sc1', -(64 + 4 * k)) for k in range(4)]
        mod_loads += [(f'buffer_load_dwordx4 {vr(80 + 4 * k, 4)}, v41, {sr(R_WS, 4)}, {sr(T + 15)} offen offset:{256 * k} sc1', -(80 + 4 * k)) for k in range(4)]
        self.wg_flag_off(P + 2, 2, 1, None, WS_FW, 3)
        self.gemv_role(20, 40, P + 1, P)
        gm = [lambda n=n: self.jt.__setitem__('g', self.gemv_dma(n, P + 1, L_MT2)) for n in range(5)]
        self.late = gm + self.late if cfg.gm_first else self.late + gm
        a.e(f's_mul_i32 {sr(T + 1)}, {sr(S_W)}, 1280\ns_add_u32 {sr(T + 1)}, {sr(T + 1)}, {L_MODP}')
        a.e(f'v_add_u32 v42, {sr(T + 1)}, v1\nv_add_u32 v43, {sr(T + 1)}, v41')
        a.e(f's_lshl_b32 {sr(T + 2)}, {sr(S_W)}, 8\ns_add_u32 {sr(T + 2)}, {sr(T + 2)}, {L_MODP}\nv_lshlrev_b32 v158, 5, v5\nv_add_u32 v158, {sr(T + 2)}, v158')
        a.e('v_and_b32 v159, 7, v0\nv_lshlrev_b32 v159, 4, v159\nv_lshl_add_u32 v159, v5, 8, v159')
        H0 = P + 4
        a.e(f's_lshr_b32 {sr(H0)}, s2, 1\ns_mul_i32 {sr(H0)}, {sr(H0)}, 20480\ns_and_b32 {sr(T)}, s2, 1\ns_lshl_b32 {sr(T)}, {sr(T)}, 7')
        a.e(f's_add_u32 {sr(H0)}, {sr(H0)}, {sr(T)}\ns_lshl_b32 {sr(T)}, {sr(S_W)}, 11\ns_add_u32 {sr(H0)}, {sr(H0)}, {sr(T)}')
        a.e(f's_add_u32 {sr(H0)}, {sr(H0)}, {WS_H}\ns_add_u32 {sr(H0 + 1)}, {sr(H0)}, 8192\ns_add_u32 {sr(H0 + 2)}, {sr(H0)}, 16384')
        a.e(f's_cmp_lt_u32 {sr(S_W)}, 2\ns_cselect_b32 {sr(H0 + 2)}, {sr(H0 + 2)}, {OOB}\ns_cselect_b32 {sr(P + 10)}, 0, 1.0\ns_mov_b32 {sr(P + 11)}, {sr(P + 10)}')
        self.wg_flag_off(P + 7, 2, 1, None, WS_FH, spare=True)
        a.e(f'v_min_u32 v9, 49, v0\nv_lshlrev_b32 {vr(VFW)}, 5, v9\ns_mov_b32 {sr(P + 8)}, {WS_FW}')
        self.job_bc_setup(0, R_B, 30, 31, JB_OFF)
        self.publish(self.tok_job, P + 2)
        self.stamp('fw')
        tok = self.poll_issue(mod_loads)
        n1 = min(cfg.late1, 9 if cfg.gm_first else 4)
        for _ in range(n1):
            self.late.pop(0)()
        self.job_bc_setup(1, R_C, 32, 33, JC_OFF)
        for _ in range(cfg.late1 - n1):
            self.late.pop(0)()
        self.poll_check(mod_loads, tok)
        self.stamp('mod')
        self.mod_finish(64, 0, P + 10)
        a.ds('ds_write_b128 v42, v[64:67]')
        self.mod_finish(80, 1, P + 10)
        a.ds('ds_write_b128 v43, v[80:83] offset:1024')
        a.wait_all(vm=False)
        self.barrier()
        tk = []
        for r in range(3):
            a.ds(f'ds_read_b128 {vr(64 + 16 * r, 4)}, v158 offset:{1024 * r + 2560}')
            a.ds(f'ds_read_b128 {vr(68 + 16 * r, 4)}, v158 offset:{1024 * r + 2576}')
            a.ds(f'ds_read_b128 {vr(72 + 16 * r, 4)}, v158 offset:{1024 * r}')
            tk.append(a.ds(f'ds_read_b128 {vr(76 + 16 * r, 4)}, v158 offset:{1024 * r + 16}'))
        for r in range(3):
            a.wait(lg=tk[r])
            for n in range(4):
                x, s, b = X + 8 * r + 2 * n, 64 + 16 * r + 2 * n, 72 + 16 * r + 2 * n
                a.e(f'v_pk_fma_f32 {vr(x, 2)}, {vr(x, 2)}, {vr(s, 2)}, {vr(b, 2)}')
            for n in range(4):
                a.e(f'v_cvt_pk_bf16_f32 {vr(112 + 4 * r + n)}, {vr(X + 8 * r + 2 * n)}, {vr(X + 8 * r + 2 * n + 1)}')
            self.tok_h = a.vmem(f'buffer_store_dwordx4 {vr(112 + 4 * r, 4)}, v159, {sr(R_WS, 4)}, {sr(H0 + r)} offen sc1')
        self.stamp('hst')
        fw_loads = [(f'buffer_load_dwordx4 v[44:47], {vr(VFW)}, {sr(R_WS, 4)}, {sr(P + 8)} offen sc1', (44, 46)),
                    (f'buffer_load_dwordx4 v[40:43], {vr(VFW)}, {sr(R_WS, 4)}, {sr(P + 8)} offen offset:16 sc1', (40, 42))]
        self.fw = (fw_loads, self.poll_issue(fw_loads))
        for _ in range(cfg.late2):
            self.late.pop(0)()
        gen1.addresses(self)


    def finish(self):
        a, cfg = self.a, self.cfg
        if cfg.diag:
            self.stamp('end')
            self.wave_flag_off(T, 2, 1, None, WS_DBG, 8)
            a.e('v_lshlrev_b32 v9, 2, v0')
            a.vmem(f'buffer_store_dword {vr(V_STAMP)}, v9, {sr(R_WS, 4)}, {sr(T)} offen')
        if cfg.probe:
            a.wait_all()
            self.stamp('end')
            a.e(f's_add_u32 {sr(S_STAMP + 2)}, {sr(S_STAMP + 2)}, 7000')
            a.label('L_probe')
            a.e(f's_memrealtime {sr(T, 2)}\ns_waitcnt lgkmcnt(0)\ns_sub_u32 {sr(T)}, {sr(T)}, {sr(S_STAMP + 2)}\ns_cmp_lt_i32 {sr(T)}, 0\ns_cbranch_scc1 L_probe')
        a.label('L_end')
        a.e('s_endpgm')

    def advance_epoch(self):
        a = self.a
        a.e(f's_lshl_b32 {sr(T + 15)}, s2, 2\ns_add_u32 {sr(T + 15)}, {sr(T + 15)}, {sr(S_W)}\ns_cmp_eq_u32 {sr(T + 15)}, 0\ns_cselect_b32 {sr(T + 15)}, {WS_EPOCH}, {OOB}')
        self.flag(T + 15)

    def build(self):
        import gen1
        import gen2
        cfg = self.cfg
        self.prologue()
        self.startup()
        ring = gen2.Ring(self)
        for name, fn in (('phase1', gen1.phase1), ('phase2', gen2.phase2), ('phase34', gen2.phase34)):
            if cfg.stop == 'startup':
                break
            fn(self, ring)
            if cfg.stop == name:
                break
        if cfg.stop or cfg.diag:
            self.a.wait_all()
        self.finish()
        body = pad_hazards(self.a.lines)
        head = open(f'cdna_kernels/{NAME}.s.ref').read().split('\n')
        out = []
        for l in head:
            if l.startswith('; @launch'):
                out.append('; @launch grid=(256,1,1) block=(256,1,1) lds=163840')
            else:
                out.append(l)
            if l.startswith(NAME + '_kernel:'):
                break
        out += body
        out += ['.section .rodata,"a"', '.p2align 6', f'.amdhsa_kernel {NAME}_kernel',
                '  .amdhsa_next_free_vgpr 512', '  .amdhsa_next_free_sgpr 102', '  .amdhsa_accum_offset 256',
                '  .amdhsa_group_segment_fixed_size 0', '  .amdhsa_kernarg_size 104', '  .amdhsa_user_sgpr_count 2',
                '  .amdhsa_user_sgpr_kernarg_segment_ptr 1', '  .amdhsa_system_sgpr_workgroup_id_x 1',
                '  .amdhsa_float_denorm_mode_32 3', '.end_amdhsa_kernel', '']
        return '\n'.join(out)


def main():
    cfg = Cfg()
    path = None
    for arg in sys.argv[1:]:
        if '=' in arg:
            k, v = arg.split('=')
            old = getattr(Cfg, k)
            setattr(cfg, k, (v == '1') if isinstance(old, bool) else int(v) if isinstance(old, int) else v)
        else:
            path = arg
    g = Gen(cfg)
    text = g.build()
    open(path, 'w').write(text)
    open(path + '.stamps', 'w').write('\n'.join(g.stamps))
    print('wrote', path, len(text), 'bytes,', text.count('\n'), 'lines')


if __name__ == '__main__':
    import gen
    gen.main()
```

```python
from asmlib import vr, ar, sr
from gen import *
import gen2


def wphi_frags(g):
    a = g.a
    a.e('v_and_b32 v9, 1, v0\nv_mul_u32_u24 v9, 0x320, v9\nv_bfe_u32 v10, v0, 2, 2\nv_mul_u32_u24 v10, 40, v10\nv_add_u32 v9, v9, v10')
    a.e('v_bfe_u32 v10, v0, 1, 1\nv_bfe_u32 v11, v0, 4, 1\nv_lshl_add_u32 v10, v11, 1, v10\nv_lshl_add_u32 v9, v10, 3, v9')
    a.e(f'v_add_u32 v9, {L_WPHI}, v9')
    a.e('v_bfe_u32 v10, v0, 2, 1\nv_lshrrev_b32 v11, 5, v0\nv_cmp_eq_u32 vcc, v10, v11\nv_cndmask_b32 v10, 0, -1, vcc')
    for t in range(2):
        for s in range(3):
            r = 200 + 12 * t + 4 * s
            a.ds(f'ds_read_b64_tr_b16 {vr(r, 2)}, v9 offset:{32 * t + 320 * s}')
            if s < 2:
                a.ds(f'ds_read_b64_tr_b16 {vr(r + 2, 2)}, v9 offset:{32 * t + 320 * s + 160}')
            else:
                a.e(f'v_mov_b32 {vr(r + 2)}, 0\nv_mov_b32 {vr(r + 3)}, 0')
    a.wait_all(vm=False)
    for t in range(2):
        for n in range(10):
            r = 200 + 12 * t + n
            a.e(f'v_and_b32 {vr(r)}, {vr(r)}, v10')


def addresses(g):
    a = g.a
    g.frag16_addr(VA0, 9)
    a.e(f'v_add_u32 {vr(VA1)}, 0x10000, {vr(VA0)}')
    a.e(f'v_bfe_u32 v9, v0, 2, 2\nv_lshrrev_b32 v10, 1, v9\nv_sub_u32 v9, v9, v10\nv_lshlrev_b32 v9, 8, v9\nv_sub_u32 {vr(VA2)}, {vr(VA0)}, v9')
    a.e(f's_mul_i32 {sr(T)}, {sr(S_W)}, {32 * TP}\ns_add_u32 {sr(T)}, {sr(T)}, {L_TS}\nv_and_b32 v9, 31, v0\nv_mul_u32_u24 v9, {TP}, v9\nv_add_u32 v9, {sr(T)}, v9')
    a.e(f'v_lshrrev_b32 v11, 5, v0\nv_mul_u32_u24 v10, 48, v11\nv_add_u32 {vr(VTW1)}, v10, v9\nv_mul_u32_u24 v11, 80, v11\nv_add_u32 {vr(VTW0)}, v11, v9')
    a.e(f'v_lshrrev_b32 v11, 5, v0\nv_bfe_u32 v12, v0, 2, 2\nv_lshl_add_u32 v11, v11, 3, v12\nv_mul_u32_u24 v11, {TP}, v11')
    a.e('v_bfe_u32 v12, v0, 4, 1\nv_and_b32 v13, 3, v0\nv_lshl_add_u32 v14, v12, 2, v13')
    a.e('v_and_b32 v15, 1, v0\nv_lshlrev_b32 v15, 1, v15\nv_lshl_add_u32 v15, v12, 2, v15\nv_bfe_u32 v13, v0, 1, 1\nv_add_u32 v15, v15, v13')
    a.e(f's_lshr_b32 {sr(T)}, {sr(S_W)}, 1\ns_and_b32 {sr(T + 1)}, {sr(S_W)}, 1\ns_mul_i32 {sr(T + 2)}, {sr(T)}, 80\ns_lshl_b32 {sr(T + 3)}, {sr(T + 1)}, 6')
    a.e(f's_add_u32 {sr(T + 2)}, {sr(T + 2)}, {sr(T + 3)}\ns_add_u32 {sr(T + 2)}, {sr(T + 2)}, {L_TS}\ns_mul_i32 {sr(T + 3)}, {sr(T)}, 48\ns_add_u32 {sr(T + 3)}, {sr(T + 3)}, {L_TS + 160}')
    a.e(f'v_lshl_add_u32 v12, v15, 3, v11\nv_add_u32 {vr(VTR0)}, {sr(T + 2)}, v12\nv_lshl_add_u32 v13, v14, 3, v11\nv_add_u32 {vr(VTR1)}, {sr(T + 3)}, v13')
    a.e(f'v_lshrrev_b32 v9, 5, v0\nv_and_b32 v10, 31, v0\ns_mul_i32 {sr(T)}, {sr(T)}, 5\ns_lshl_b32 {sr(T + 2)}, {sr(T + 1)}, 2\ns_add_u32 {sr(T)}, {sr(T)}, {sr(T + 2)}')
    a.e(f'v_add_u32 v11, {sr(T)}, v9\nv_mul_u32_u24 v11, 21, v11\nv_add_u32 v11, v11, v10\nv_lshlrev_b32 v11, 4, v11')
    a.e(f's_cmp_eq_u32 {sr(T + 1)}, 0\ns_cselect_b32 {sr(T + 2)}, 64, 32\ns_cselect_b32 {sr(T + 3)}, {42 * 16}, {OOB}')
    a.e(f'v_mov_b32 v9, {OOB}\nv_cmp_gt_u32 vcc, 21, v10\nv_cndmask_b32 v11, v9, v11, vcc\nv_cmp_gt_u32 vcc, {sr(T + 2)}, v0\nv_cndmask_b32 {vr(VKS)}, v9, v11, vcc')
    a.e(f's_lshl_b32 {sr(T)}, {sr(S_J1)}, 4\ns_add_u32 {sr(T)}, {sr(T)}, {sr(S_G1)}\ns_mul_i32 {sr(P + 4)}, {sr(T)}, 3456\ns_add_u32 {sr(P + 4)}, {sr(P + 4)}, {WS_KVP}')
    a.e(f's_add_u32 {sr(P + 5)}, {sr(P + 4)}, {sr(T + 3)}')
    g.wg_flag_off(P + 6, S_J1, 16, S_G1, WS_FKV)
    a.e(f's_lshl_b32 {sr(T)}, {sr(S_W)}, 6\nv_add_u32 v9, {sr(T)}, v0\nv_lshlrev_b32 v10, 4, v9\nv_mov_b32 v11, {OOB}')
    a.e(f'v_cmp_gt_u32 vcc, 0xd2, v9\nv_cndmask_b32 {vr(VGL)}, v11, v10, vcc')
    a.e('v_mul_u32_u24 v11, 0x187, v9\nv_lshrrev_b32 v11, 13, v11\nv_mul_u32_u24 v12, 21, v11\nv_sub_u32 v12, v9, v12')
    a.e(f'v_mul_u32_u24 v12, 80, v12\nv_lshl_add_u32 v12, v11, 4, v12\nv_add_u32 v13, {1920 - 80}, v12')
    a.e(f'v_cmp_gt_u32 {sr(T + 2, 2)}, 5, v11\nv_cndmask_b32 v12, v13, v12, {sr(T + 2, 2)}')
    a.e(f'v_mov_b32 v13, 3920\nv_cndmask_b32 v12, v13, v12, vcc\nv_add_u32 {vr(VKW)}, {L_KVR}, v12')
    a.e('v_bfe_u32 v9, v0, 2, 1\nv_bfe_u32 v10, v0, 3, 2\nv_and_b32 v11, 3, v0\nv_lshrrev_b32 v12, 5, v0')
    a.e('v_add_u32 v13, v10, v9\nv_lshl_add_u32 v13, v13, 2, v11')
    a.e('v_lshlrev_b32 v14, 2, v9\nv_sub_u32 v14, 4, v14\nv_cmp_eq_u32 vcc, 0, v10\nv_cndmask_b32 v14, 5, v14, vcc\nv_lshl_add_u32 v14, v14, 2, v11')
    a.e(f'v_mul_u32_u24 v15, 0x780, v9\nv_add_u32 v15, {L_KVR}, v15\nv_mov_b32 v10, {L_KVZ}\nv_cmp_eq_u32 vcc, v9, v12')
    a.e(f'v_mul_u32_u24 v13, 80, v13\nv_add_u32 v13, v13, v15\nv_cndmask_b32 {vr(VO0)}, v10, v13, vcc')
    a.e(f'v_mul_u32_u24 v14, 80, v14\nv_add_u32 v14, v14, v15\nv_cndmask_b32 {vr(VO1)}, v10, v14, vcc')
    a.e(f'v_bfe_u32 v9, v0, 4, 1\nv_mul_u32_u24 v9, 0x5000, v9\nv_and_b32 v10, 0xf0, v1\nv_add_u32 {vr(VOS1)}, v9, v10\nv_mul_u32_u24 v12, 0x300, v12\nv_add_u32 {vr(VOS0)}, {vr(VOS1)}, v12')
    a.e(f'v_and_b32 v9, 15, v0\nv_lshlrev_b32 {vr(VF128)}, 7, v9')


class Paced:
    def __init__(self, g, every):
        self.g, self.every, self.n = g, every, 0

    def e(self, text):
        for t in text.split('\n'):
            self.g.a.e(t)
            self.n += 1
            if self.n % self.every == 0:
                self.g.fill(1)


def feature_map(g, out, mid=None, every=8):
    a = g.a
    for t in (1, 0):
        for s in range(3):
            acc = 140 + 16 * t
            a.e(f'v_mfma_f32_32x32x16_bf16 {vr(acc, 16)}, {vr(200 + 12 * t + 4 * s, 4)}, {vr(128 + 4 * s, 4)}, {vr(acc, 16) if s else 0}')
    if mid:
        mid()
    a = Paced(g, every)
    Pr, E = 140, 172
    for op, d in (('max', 192), ('min', 194)):
        a.e(f'v_{op}3_f32 {vr(d)}, {vr(Pr + 16)}, {vr(Pr + 17)}, {vr(Pr + 18)}')
    for op, d in (('max', 192), ('min', 194)):
        a.e(f'v_{op}3_f32 {vr(d + 1)}, {vr(Pr + 19)}, {vr(Pr)}, {vr(Pr + 1)}')
    for k in range(2, 16, 2):
        for op, d in (('max', 192), ('min', 194)):
            dd = d + ((k >> 1) & 1 ^ 1)
            a.e(f'v_{op}3_f32 {vr(dd)}, {vr(dd)}, {vr(Pr + k)}, {vr(Pr + k + 1)}')
    for op, d in (('max', 192), ('min', 194)):
        a.e(f'v_{op}_f32 {vr(d)}, {vr(d)}, {vr(d + 1)}')
    a.e(f'v_mul_f32 v192, {sr(S_L2E)}, v192\nv_mul_f32 v194, {sr(S_L2E)}, v194')
    for n in range(10):
        a.e(f'v_pk_fma_f32 {vr(E + 2 * n, 2)}, {vr(Pr + 2 * n, 2)}, {sr(S_L2E, 2)}, v[192:193] op_sel_hi:[1,1,0] neg_lo:[0,0,1] neg_hi:[0,0,1]')
        a.e(f'v_pk_fma_f32 {vr(Pr + 2 * n, 2)}, {vr(Pr + 2 * n, 2)}, {sr(S_L2E, 2)}, v[194:195] op_sel_hi:[1,1,0] neg_lo:[1,0,0] neg_hi:[1,0,0]')
    for b in (E, Pr):
        for n in range(20):
            a.e(f'v_exp_f32 {vr(b + n)}, {vr(b + n)}')
    for b, d in ((E, 192), (Pr, 196)):
        a.e(f'v_pk_add_f32 {vr(d, 2)}, {vr(b, 2)}, {vr(b + 2, 2)}\nv_pk_add_f32 {vr(d + 2, 2)}, {vr(b + 4, 2)}, {vr(b + 6, 2)}')
    for k in range(8, 20, 4):
        for b, d in ((E, 192), (Pr, 196)):
            a.e(f'v_pk_add_f32 {vr(d, 2)}, {vr(d, 2)}, {vr(b + k, 2)}\nv_pk_add_f32 {vr(d + 2, 2)}, {vr(d + 2, 2)}, {vr(b + k + 2, 2)}')
    for d in (192, 196):
        a.e(f'v_pk_add_f32 {vr(d, 2)}, {vr(d, 2)}, {vr(d + 2, 2)}')
    for d in (192, 196):
        a.e(f'v_add_f32 {vr(d)}, {vr(d)}, {vr(d + 1)}')
    for d in (192, 196):
        a.e(f'v_rcp_f32 {vr(d)}, {vr(d)}')
    for b, d, o in ((E, 192, out), (Pr, 196, out + 10)):
        for n in range(10):
            a.e(f'v_pk_mul_f32 {vr(b + 2 * n, 2)}, {vr(b + 2 * n, 2)}, {vr(d, 2)} op_sel_hi:[1,0]')
        for n in range(10):
            a.e(f'v_cvt_pk_bf16_f32 {vr(o + n)}, {vr(b + 2 * n)}, {vr(b + 2 * n + 1)}')


def phase1(g, ring):
    a, cfg = g.a, g.cfg
    a.c('phase 1: qkv projection')
    SRC, DST, HB = P + 10, P + 11, T + 15
    a.e(f's_mul_i32 {sr(SRC)}, {sr(S_J1)}, 153600\ns_lshl_b32 {sr(DST)}, {sr(S_W)}, 10\ns_add_u32 {sr(SRC)}, {sr(SRC)}, {sr(DST)}\ns_add_u32 {sr(SRC)}, {sr(SRC)}, {WS_WQ}')
    wtok = {}

    def wdma(q):
        if q == 37:
            a.e(f's_cmp_gt_u32 {sr(S_W)}, 1\ns_cselect_b32 {sr(T + 1)}, 2048, 0\ns_sub_u32 {sr(SRC)}, {sr(SRC)}, {sr(T + 1)}\ns_sub_u32 {sr(T + 1)}, {sr(DST)}, {sr(T + 1)}')
        a.e(f's_add_u32 m0, {sr(T + 1 if q == 37 else DST)}, {(q % 25) * 4096}\ns_add_u32 {sr(T)}, {sr(SRC)}, {q * 4096}')
        wtok[q] = a.vmem(f'buffer_load_dwordx4 v1, {sr(R_WS, 4)}, {sr(T)} offen sc1 lds')
    tf = g.publish(g.tok_h, P + 7)
    g.stamp('hpub')
    g.poll_check(*g.fw)
    for q in range(cfg.w1a):
        wdma(q)
    a.e(f's_lshl_b32 {sr(T)}, {sr(S_G1)}, 2\ns_add_u32 {sr(T)}, {sr(T)}, {sr(S_W)}\ns_mul_i32 {sr(HB)}, {sr(T)}, 40960\ns_add_u32 {sr(HB)}, {sr(HB)}, {WS_H}')
    a.e(f's_lshl_b32 {sr(T + 14)}, {sr(T)}, 9\ns_add_u32 {sr(T + 14)}, {sr(T + 14)}, {WS_FH}\nv_and_b32 v40, 3, v0\nv_lshlrev_b32 v40, 7, v40')
    fh = [(f'buffer_load_dwordx2 v[42:43], v40, {sr(R_WS, 4)}, {sr(T + 14)} offen sc1', 42)]
    wphi_frags(g)
    a.e(f's_add_u32 {sr(P + 8)}, {sr(HB)}, 20480')
    if cfg.ackw:
        a.wait(vm=tf)
    tok = g.poll_issue(fh)
    for q in range(cfg.w1a, cfg.w1b):
        wdma(q)
    gemv_early = 'g' in g.jt and not any('gemv' in f.__code__.co_names[-1:] or 'gemv_dma' in f.__code__.co_names for f in g.late)
    if gemv_early:
        g.fq.extend(g.gemv_items(L_MT2, P, 64))
        g.flush()
    g.poll_check(fh, tok)
    g.stamp('hready')
    htok = {}

    def hload(s, tt):
        sb = (HB, P + 8)[tt]
        if s and s % 4 == 0:
            a.e(f's_add_u32 {sr(sb)}, {sr(sb)}, 4096')
        htok[s, tt] = a.vmem(f'buffer_load_dwordx4 {ar(8 * s + 4 * tt, 4)}, v1, {sr(R_WS, 4)}, {sr(sb)} offen offset:{(s % 4) * 1024} sc1')
    for s in range(cfg.hpre):
        hload(s, 0)
        hload(s, 1)
    wq = list(range(cfg.w1b, 25))
    for s in range(cfg.hpre, 20):
        g.fq.append(lambda s=s: hload(s, 0))
        g.fq.append(lambda s=s: hload(s, 1))
        if wq:
            g.fq.append(lambda q=wq.pop(0): wdma(q))
    assert not wq
    jt, late = g.jt, g.late
    fin = g.job_finish_items(lambda: jt[0], 34, 0, 31, 128) + g.job_finish_items(lambda: jt[1], 34, 4096, 33, 148)
    a.wait(vm=wtok[cfg.w1b - 1])
    g.barrier()
    LA = 6
    rt = {}

    def wread(f):
        if f == 4 * cfg.w1b:
            a.wait(vm=wtok[24])
            g.barrier()
        off = f * 1024
        rt[f] = a.ds(f'ds_read_b128 {ar(160 + 4 * (f % 8), 4)}, {vr(VA0 + (off >> 16))} offset:{off & 0xffff}')
    for f in range(LA):
        wread(f)
    for f in range(100):
        s, n = divmod(f, 5)
        a.wait(vm=htok[s, 1] if n == 0 else None, lg=rt[f])
        for tt in range(2):
            acc = 64 + 20 * tt + 4 * n
            a.e(f'v_mfma_f32_16x16x32_bf16 {vr(acc, 4)}, {ar(160 + 4 * (f % 8), 4)}, {ar(8 * s + 4 * tt, 4)}, {vr(acc, 4) if s else 0}')
            if tt == 0 and f + LA < 100:
                wread(f + LA)
            if tt == 1 and f % 2 == 0:
                g.fill(1)
            if tt == 1 and f >= cfg.cold0 and (f - cfg.cold0) % cfg.coldp == 1 and late:
                late.pop(0)()
            if cfg.jfin and f >= 62 and not late and fin:
                g.fq.append(fin.pop(0))
                g.fill(1)
    assert not g.fq
    g.barrier()
    g.stamp('pass1')
    a.c('feature map of k, partial kv')
    for n in range(10):
        a.e(f'v_cvt_pk_bf16_f32 {vr(128 + n)}, {vr(64 + 2 * n)}, {vr(65 + 2 * n)}\nv_cvt_pk_bf16_f32 {vr(40 + n)}, {vr(84 + 2 * n)}, {vr(85 + 2 * n)}')
    a.e('v_mov_b32 v138, 0\nv_mov_b32 v139, 0\nv_mov_b32 v50, 0x3f80\nv_mov_b32 v51, 0')
    for n in range(10):
        a.e(f'v_permlane16_swap_b32 {vr(128 + n)}, {vr(40 + n)}')

    def mid_k():
        for n in range(3):
            a.ds(f'ds_write_b128 {vr(VTW1)}, {vr(40 + 4 * n, 4)} offset:{160 + 16 * n}')
        wl = [lambda q=q: wdma(q) for q in range(25, 38)]
        n = len(late)
        order = sorted([(i / max(n, 1), f) for i, f in enumerate(late)] + [(i / 13 * cfg.wspan, f) for i, f in enumerate(wl)], key=lambda x: x[0])
        g.fq.extend([f for _, f in order])
    feature_map(g, 224, mid_k, 165 // (13 + len(late)))
    g.flush()
    for n in range(5):
        a.ds(f'ds_write_b128 {vr(VTW0)}, {vr(224 + 4 * n, 4)} offset:{16 * n}')
    a.wait_all(vm=False)
    g.barrier()
    tk = []
    for s in range(8):
        for z in range(2):
            a.ds(f'ds_read_b64_tr_b16 {vr(128 + 8 * s + 2 * z, 2)}, {vr(VTR0)} offset:{(16 * s + 4 * z) * TP}')
        for z in range(2):
            t = a.ds(f'ds_read_b64_tr_b16 {vr(132 + 8 * s + 2 * z, 2)}, {vr(VTR1)} offset:{(16 * s + 4 * z) * TP}')
        tk.append(t)
        if s >= 2:
            a.wait(lg=tk[s - 2])
            a.e(f'v_mfma_f32_32x32x16_bf16 v[64:79], {vr(128 + 8 * (s - 2), 4)}, {vr(132 + 8 * (s - 2), 4)}, {"v[64:79]" if s > 2 else 0}')
    for s in (6, 7):
        a.wait(lg=tk[s])
        a.e(f'v_mfma_f32_32x32x16_bf16 v[64:79], {vr(128 + 8 * s, 4)}, {vr(132 + 8 * s, 4)}, v[64:79]')
    rt = {}

    def wread2(f):
        s, n = divmod(f, 3)
        rt[f] = a.ds(f'ds_read_b128 {ar(160 + 4 * (f % 8), 4)}, {vr(VA2 if n == 2 else VA0)} offset:{s * 2560 + n * 1024}')
    for n in range(8):
        a.e(f'v_cvt_pk_bf16_f32 {vr(52 + n)}, {vr(64 + 2 * n)}, {vr(65 + 2 * n)}')
    a.vmem(f'buffer_store_dwordx4 v[52:55], {vr(VKS)}, {sr(R_WS, 4)}, {sr(P + 4)} offen sc1')
    tkv = a.vmem(f'buffer_store_dwordx4 v[56:59], {vr(VKS)}, {sr(R_WS, 4)}, {sr(P + 5)} offen sc1')
    g.stamp('kvst')
    a.wait(vm=wtok[37])
    g.barrier()
    for f in range(LA):
        wread2(f)
    g.fq.extend(fin)
    if not gemv_early:
        g.fq.extend(g.gemv_items(L_MT2, P, 52))
    fkv = [(f'buffer_load_dwordx2 v[12:13], {vr(VF128)}, {sr(R_WS, 4)}, {sr(T + 14)} offen sc1', 12)]
    for f in range(60):
        s, n = divmod(f, 3)
        a.wait(lg=rt[f])
        for tt in range(2):
            acc = 104 + 12 * tt + 4 * n
            a.e(f'v_mfma_f32_16x16x32_bf16 {vr(acc, 4)}, {ar(160 + 4 * (f % 8), 4)}, {ar(8 * s + 4 * tt, 4)}, {vr(acc, 4) if s else 0}')
            if tt == 0 and f + LA < 60:
                wread2(f + LA)
            if f > cfg.kvpub:
                g.fill(1)
        if f == cfg.kvpub:
            g.publish(tkv, P + 6)
            if cfg.jfin:
                g.wg_flag_off(T + 13, 2, 1, None, WS_FRT, 3)
                g.flag(T + 13)
        if f == 50:
            a.e(f's_lshl_b32 {sr(T + 14)}, {sr(S_J1)}, 11\ns_add_u32 {sr(T + 14)}, {sr(T + 14)}, {WS_FKV}')
    assert not g.fq
    tok = g.poll_issue(fkv)
    g.stamp('pass2')
    for n in range(3):
        for tt in range(2):
            for k in range(2):
                a.e(f'v_cvt_pk_bf16_f32 {vr(128 + 4 * n + 2 * tt + k)}, {vr(104 + 12 * tt + 4 * n + 2 * k)}, {vr(105 + 12 * tt + 4 * n + 2 * k)}')
    a.e(f'v_mov_b32 v60, 0\nv_mov_b32 v61, 0\nv_mov_b32 v62, 0\nv_mov_b32 v63, 0\nv_min_u32 v9, 4, v0\nv_lshlrev_b32 v9, 4, v9\nv_add_u32 v9, {L_KVZ}, v9')
    a.ds('ds_write_b128 v9, v[60:63]')
    for n in range(3):
        for k in range(2):
            a.e(f'v_permlane16_swap_b32 {vr(128 + 4 * n + k)}, {vr(130 + 4 * n + k)}')
    gt = []

    def mid_q():
        if not cfg.jfin:
            g.wg_flag_off(T + 13, 2, 1, None, WS_FRT, 3)
        a.e(f's_mul_i32 {sr(T + 4)}, {sr(S_J1)}, {16 * 3456}\ns_add_u32 {sr(T + 4)}, {sr(T + 4)}, {WS_KVP}')
        gen2.phase2_addresses(g)
        g.poll_check(fkv, tok)
        g.barrier()
        if not cfg.jfin:
            g.flag(T + 13)
        ring.setup()
        ring.vfrag, ring.pre_max = VA0, 16
        if cfg.rt_early:
            a.e(f's_mov_b32 {sr(T + 13)}, {WS_FRT}')

        def gl(k):
            if k:
                a.e(f's_add_u32 {sr(T + 4)}, {sr(T + 4)}, 3456')
            gt.append(a.vmem(f'buffer_load_dwordx4 {vr(64 + 4 * k, 4)}, {vr(VGL)}, {sr(R_WS, 4)}, {sr(T + 4)} offen sc1'))
        g.fq.extend([lambda k=k: gl(k) for k in range(16)])
        g.fq.extend([ring.issue] * 8)
        if cfg.rt_early:
            g.fq.append(lambda: rtk.append(g.poll_issue(frt)))
        g.fq.extend([ring.issue] * 17)
    rtk = []
    frt = [(f'buffer_load_dwordx4 v[40:43], v1, {sr(R_WS, 4)}, {sr(T + 13)} offen sc1', (40, 42)),
           (f'buffer_load_dwordx4 v[44:47], v1, {sr(R_WS, 4)}, {sr(T + 13)} offen offset:1024 sc1', (44, 46))]
    feature_map(g, 224, mid_q, cfg.qpace)
    g.stamp('phiq')
    a.c('reduce kv, o = num / den')
    a.e(f's_mov_b32 {sr(T + 2)}, 0x3f80\ns_mov_b32 {sr(T + 3)}, 0x3f800000')
    for n in range(8):
        a.e(f'v_mov_b32 {vr(52 + n)}, 0')
    if cfg.rt_early:
        g.flush()
        assert cfg.jfin
        g.poll_check(frt, rtk[0])
        ring.limit = 35
        g.fq.extend([ring.bulk] * cfg.r0)
    while len(gt) < 16:
        g.fill(1)
    g.fq.extendleft(reversed(gen2.phase2_loads(g, ring)))
    for k in range(16):
        a.wait(vm=gt[k])
        if k % cfg.gpace == 0:
            g.fill(1)
        for n in range(4):
            a.e(f'v_dot2c_f32_bf16 {vr(52 + 2 * n)}, {sr(T + 2)}, {vr(64 + 4 * k + n)}')
            a.e(f'v_dot2c_f32_bf16 {vr(53 + 2 * n)}, {sr(T + 3)}, {vr(64 + 4 * k + n)}')
    for n in range(4):
        a.e(f'v_cvt_pk_bf16_f32 {vr(60 + n)}, {vr(52 + 2 * n)}, {vr(53 + 2 * n)}')
    a.ds(f'ds_write_b128 {vr(VKW)}, v[60:63]')
    a.e(f's_lshl_b32 {sr(T)}, {sr(S_G1)}, 2\ns_add_u32 {sr(T)}, {sr(T)}, {sr(S_W)}\ns_mul_i32 {sr(T + 7)}, {sr(T)}, 40960\ns_mul_i32 {sr(T)}, {sr(S_J1)}, 1280')
    a.e(f's_add_u32 {sr(T + 7)}, {sr(T + 7)}, {sr(T)}\ns_add_u32 {sr(T + 7)}, {sr(T + 7)}, {WS_O}')
    g.wg_flag_off(P + 6, S_G1, 16, S_J1, WS_FO, spare=True)
    a.wait_all(vm=False)
    g.barrier()
    tk = []
    for t in (1, 0):
        for s in range(5):
            tk.append(a.ds(f'ds_read_b128 {vr(128 + 20 * t + 4 * s, 4)}, {vr(VO0 + t)} offset:{16 * s}'))
    n = 0
    for t in (1, 0):
        for s in range(5):
            a.wait(lg=tk[n])
            n += 1
            acc = 64 + 16 * t
            a.e(f'v_mfma_f32_32x32x16_bf16 {vr(acc, 16)}, {vr(128 + 20 * t + 4 * s, 4)}, {vr(224 + 4 * s, 4)}, {vr(acc, 16) if s else 0}')
            g.fill(1)
    if cfg.rt_early:
        g.fq.clear()
    g.flush()
    a.e('v_add_f32 v84, 0x358637bd, v84\nv_rcp_f32 v84, v84')
    for n in (8, 9, 0, 1, 2, 3, 4, 5, 6, 7):
        a.e(f'v_pk_mul_f32 {vr(64 + 2 * n, 2)}, {vr(64 + 2 * n, 2)}, v[84:85] op_sel_hi:[1,0]')
    for n in (8, 9, 0, 1, 2, 3, 4, 5, 6, 7):
        a.e(f'v_cvt_pk_bf16_f32 {vr(128 + n)}, {vr(64 + 2 * n)}, {vr(65 + 2 * n)}')
    a.e('v_permlane32_swap_b32 v136, v138\nv_permlane32_swap_b32 v137, v139')
    a.vmem(f'buffer_store_dwordx4 v[128:131], {vr(VOS0)}, {sr(R_WS, 4)}, {sr(T + 7)} offen sc1')
    a.vmem(f'buffer_store_dwordx4 v[132:135], {vr(VOS0)}, {sr(R_WS, 4)}, {sr(T + 7)} offen offset:256 sc1')
    a.e('s_mov_b32 exec_hi, 0')
    g.tok_o = a.vmem(f'buffer_store_dwordx4 v[136:139], {vr(VOS1)}, {sr(R_WS, 4)}, {sr(T + 7)} offen offset:512 sc1')
    a.e('s_mov_b64 exec, -1')
    g.stamp('ost')
    assert not g.fq
```

```python
from asmlib import vr, ar, sr
from gen import *

V_X1P, V_GBP = 16, 26
VK0, VN0, VF8, VXO = 4, 36, 7, 39
VXW, VXR, VH1, VH6, VHL, VRING = 42, 43, 44, 45, 46, 253
VTB = 168
ACC = 48
V_GA, V_SB, V_S2, V_X1, V_GB = 88, 108, 128, 148, 68
SRC2, SRC3, SRC4, RDST, RTMP = 12, 13, 14, 15, 16
XOFF, FLG8, BB0, PSRC = 17, 18, 4, 19
F_A, F_B, F_2, F_END = 100, 260, 380, 520
HT = 57344


class Ring:
    def __init__(self, g):
        self.g = g
        self.tok = {}
        self.issued = 0
        self.published = 0
        self.consumed = 0
        self.total = 130
        self.limit = 25
        self.pre = {}

    def setup(self):
        a = self.g.a
        a.e(f's_lshl_b32 {sr(RDST)}, {sr(S_W)}, 10')
        for d, role, size, base in ((SRC2, S_N2, 102400, WS_WO), (SRC3, S_J3, 286720, WS_W13), (PSRC, S_N2, 286720, WS_W2)):
            a.e(f's_mul_i32 {sr(d)}, {sr(role)}, {size}\ns_add_u32 {sr(d)}, {sr(d)}, {base}')
        a.e(f's_mul_i32 {sr(RTMP)}, {sr(S_W)}, 71680\ns_add_u32 {sr(PSRC)}, {sr(PSRC)}, {sr(RTMP)}\ns_add_u32 {sr(SRC4)}, {sr(PSRC)}, 35840')
        self.delta = None
        self.m0_for = None

    def can_issue(self):
        return self.issued < min(self.total, self.limit) and 4 * (self.issued + 1) - RING <= self.consumed

    def issue(self):
        a = self.g.a
        q = self.issued
        assert self.can_issue(), q
        if self.m0_for != q:
            a.e(f's_add_u32 m0, {sr(RDST)}, {(q % 40) * 4096}')
        if q < 95:
            src, off = (SRC2, q) if q < 25 else (SRC3, q - 25)
            delta = (src, (off - q % 40) * 4096)
            if delta != self.delta:
                self.delta = delta
                a.e(f's_add_u32 {sr(RTMP)}, {sr(src)}, {delta[1] & 0xffffffff}\nv_add_u32 {vr(VRING)}, {sr(RTMP)}, v1')
            self.tok[q] = a.vmem(f'buffer_load_dwordx4 {vr(VRING)}, {sr(R_WS, 4)}, m0 offen sc1 lds')
        else:
            self.tok[q] = a.vmem(f'buffer_load_dwordx4 v1, {sr(R_WS, 4)}, {sr(SRC4)} offen sc1 lds')
            a.e(f's_add_u32 {sr(SRC4)}, {sr(SRC4)}, 1024')
        self.issued += 1
        if q + 1 < self.total:
            a.e(f's_add_u32 m0, {sr(RDST)}, {((q + 1) % 40) * 4096}')
            self.m0_for = q + 1

    @staticmethod
    def pre_reg(i):
        return ar(192 + 4 * i, 4) if i < 16 else vr(176 + 4 * (i - 16), 4)

    def preload(self):
        a = self.g.a
        i = len(self.pre)
        if i and i % 4 == 0:
            a.e(f's_add_u32 {sr(PSRC)}, {sr(PSRC)}, 4096')
        self.pre[i] = a.vmem(f'buffer_load_dwordx4 {self.pre_reg(i)}, {vr(self.vfrag)}, {sr(R_WS, 4)}, {sr(PSRC)} offen offset:{(i % 4) * 1024} sc1')

    def bulk(self):
        if self.can_issue():
            self.issue()
        elif self.limit > 25 and len(self.pre) < self.pre_max:
            self.preload()
        else:
            return False
        return True

    def bulk_n(self, n):
        while n > 0 and self.bulk():
            n -= 1

    def sync(self, consumed, need):
        publish = min(-(-need // 4), self.total)
        assert publish <= self.issued, (publish, self.issued)
        if publish > self.published:
            self.g.a.wait(vm=self.tok[publish - 1])
            self.published = publish
        self.g.barrier()
        self.consumed = max(self.consumed, consumed)

    def lds(self, base, f, chk=0):
        assert chk is None or f + chk < 4 * self.published, f
        off = (f % RING) * 1024
        return f'{vr(base + (off >> 16))} offset:{off & 0xffff}'


def phase2_addresses(g):
    a = g.a
    a.e(f's_lshl_b32 {sr(T)}, {sr(S_M2)}, 2\ns_add_u32 {sr(T)}, {sr(T)}, {sr(S_W)}\ns_mul_i32 {sr(XOFF)}, {sr(T)}, 20480')
    a.e(f's_mul_i32 {sr(T)}, {sr(S_N2)}, 160\ns_add_u32 {sr(XOFF)}, {sr(XOFF)}, {sr(T)}\ns_mov_b32 {sr(T + 1)}, {1280 - 160}')
    for n in range(3):
        a.e(f'v_add_u32 v9, {64 * n}, v0\nv_mul_u32_u24 v10, 0xcd, v9\nv_lshrrev_b32 v10, 11, v10\nv_lshlrev_b32 v9, 4, v9\nv_mad_u32_u24 {vr(VXO + n)}, v10, {sr(T + 1)}, v9')
    a.e(f's_mul_i32 {sr(P + 1)}, {sr(S_W)}, 2560\ns_add_u32 {sr(P + 1)}, {sr(P + 1)}, {L_XR}')
    a.e(f's_mul_i32 {sr(T)}, {sr(S_W)}, 160\ns_mul_i32 {sr(T + 1)}, {sr(S_N2)}, 20\ns_add_u32 {sr(T)}, {sr(T)}, {sr(T + 1)}\ns_add_u32 {sr(T)}, {sr(T)}, 320')
    a.e(f'v_min_u32 v19, 19, v0\nv_add_u32 v17, {sr(T)}, v19\nv_lshrrev_b32 v18, 4, v17\nv_and_b32 v17, 15, v17\nv_lshlrev_b32 v17, 4, v17\nv_lshl_add_u32 v17, v18, 10, v17')
    a.e(f'v_add_u32 v17, {WS_MOD}, v17\nv_add_u32 v18, {WS_FRT}, v1')
    a.e(f's_mul_i32 {sr(T)}, {sr(S_W)}, 320\ns_add_u32 {sr(T)}, {sr(T)}, {L_PAR}\nv_lshlrev_b32 v19, 4, v19\nv_add_u32 v19, {sr(T)}, v19')


def phase2_loads(g, ring):
    a, cfg = g.a, g.cfg

    def xdma(n):
        ring.m0_for = None
        a.e(f's_add_u32 m0, {sr(P + 1)}, {1024 * n}')
        if n == 2:
            a.e('s_mov_b32 exec_hi, 0')
        a.vmem(f'buffer_load_dwordx4 {vr(VXO + n)}, {sr(R_X, 4)}, {sr(XOFF)} offen lds')
        if n == 2:
            a.e('s_mov_b64 exec, -1')
    g.ld = [(f'buffer_load_dwordx4 {vr(168 + 4 * k, 4)}, v17, {sr(R_WS, 4)}, 0 offen offset:{256 * k} sc1', -(168 + 4 * k)) for k in range(4)]
    if not cfg.rt_early:
        g.ld += [(f'buffer_load_dwordx4 v[184:187], v18, {sr(R_WS, 4)}, 0 offen sc1', (184, 186)),
                 (f'buffer_load_dwordx4 v[188:191], v18, {sr(R_WS, 4)}, 0 offen offset:1024 sc1', (188, 190))]

    def ld1(text):
        g.ld_tok = a.vmem(text)
    return [lambda n=n: xdma(n) for n in range(3)] + [lambda t=t: ld1(t) for t, _ in g.ld]


def phase2(g, ring):
    a, cfg = g.a, g.cfg
    a.c('phase 2: output projection, residual, LayerNorm 2')
    a.e(f's_cmp_eq_u32 {sr(S_W)}, 2\ns_cselect_b32 {sr(T + 8)}, 1.0, 0\ns_mov_b32 {sr(T + 9)}, {sr(T + 8)}')
    a.e(f'v_and_b32 v14, 15, v0\nv_mul_u32_u24 v14, 0xa0, v14\nv_add_u32 v14, {sr(P + 1)}, v14\nv_lshrrev_b32 v12, 4, v0')
    a.e('v_lshl_add_u32 v13, v12, 3, v14\nv_lshl_add_u32 v14, v12, 4, v14')
    g.poll_check(g.ld, g.ld_tok)
    a.ds('ds_read_b128 v[64:67], v14')
    a.ds('ds_read_b128 v[68:71], v14 offset:64')
    a.ds('ds_read_b64 v[72:73], v13 offset:128')
    g.mod_finish(168, 0, T + 8)
    a.ds('ds_write_b128 v19, v[168:171]')
    a.e(f'v_mov_b32 {vr(VN0)}, {vr(VA0)}\nv_add_u32 {vr(VN0 + 1)}, 0x10000, {vr(VN0)}\nv_add_u32 {vr(VN0 + 2)}, 0x20000, {vr(VN0)}')
    ring.vfrag, ring.pre_max = VN0, 35
    a.e(f's_and_b32 {sr(T + 1)}, {sr(S_W)}, 1\ns_mul_i32 {sr(T)}, {sr(T + 1)}, 5120')
    for k in range(2):
        a.e(f'v_add_u32 {vr(VK0 + k)}, {sr(T)}, {vr(VN0 + k)}')
    if cfg.p2split:
        a.e(f's_lshr_b32 {sr(T)}, {sr(S_M2)}, 1\ns_lshl_b32 {sr(FLG8)}, {sr(T)}, 11\ns_lshl_b32 {sr(T + 5)}, {sr(T + 1)}, 10\ns_add_u32 {sr(T + 14)}, {sr(FLG8)}, {sr(T + 5)}')
        a.e(f's_add_u32 {sr(T + 14)}, {sr(T + 14)}, {WS_FO}\nv_and_b32 {vr(VF8)}, 7, v0\nv_lshlrev_b32 {vr(VF8)}, 7, {vr(VF8)}')
        a.e(f's_lshl_b32 {sr(T + 5)}, {sr(S_M2)}, 2\ns_add_u32 {sr(T + 5)}, {sr(T + 5)}, {sr(S_W)}\ns_xor_b32 {sr(T + 6)}, {sr(T + 5)}, 1')
        a.e(f's_mul_i32 {sr(T + 7)}, {sr(T + 1)}, 10240\ns_add_u32 {sr(T + 7)}, {sr(T + 7)}, {WS_O}')
        for k in range(2):
            a.e(f's_mul_i32 {sr(BB0 + k)}, {sr(T + 5 + k)}, 20480\ns_add_u32 {sr(BB0 + k)}, {sr(BB0 + k)}, {sr(T + 7)}')
    else:
        a.e(f's_lshr_b32 {sr(T)}, {sr(S_M2)}, 1\ns_lshl_b32 {sr(FLG8)}, {sr(T)}, 11\ns_add_u32 {sr(T + 14)}, {sr(FLG8)}, {WS_FO}')
        a.e(f'v_and_b32 {vr(VF8)}, 15, v0\nv_lshlrev_b32 {vr(VF8)}, 7, {vr(VF8)}')
        a.e(f's_lshl_b32 {sr(T + 5)}, {sr(S_M2)}, 2\ns_add_u32 {sr(T + 5)}, {sr(T + 5)}, {sr(S_W)}\ns_mul_i32 {sr(BB0)}, {sr(T + 5)}, 20480\ns_add_u32 {sr(BB0)}, {sr(BB0)}, {WS_O}')
    a.wait_all(vm=False)
    a.wait(vm=max(g.tok_o, ring.tok[24]))
    ring.sync(0, 100)
    tf = g.flag(P + 6)
    ring.limit = 35
    g.stamp('opub')
    ring.bulk_n(cfg.r0b)
    a.e(f's_mul_i32 {sr(T)}, {sr(S_W)}, 5120\ns_add_u32 {sr(T)}, {sr(T)}, {L_XCH}\nv_add_u32 {vr(VXW)}, {sr(T)}, v1')
    a.e(f's_xor_b32 {sr(T)}, {sr(S_W)}, 1\ns_mul_i32 {sr(T)}, {sr(T)}, 5120\ns_add_u32 {sr(T)}, {sr(T)}, {L_XCH}\nv_add_u32 {vr(VXR)}, {sr(T)}, v1')
    fo = [(f'buffer_load_dwordx2 v[14:15], {vr(VF8)}, {sr(R_WS, 4)}, {sr(T + 14)} offen sc1', 14)]
    a.e(f'v_lshlrev_b32 v11, 4, v12\nv_add_u32 v11, {L_PAR}, v11\nv_lshlrev_b32 v10, 5, v12\nv_add_u32 v10, {L_PAR}, v10')
    par = ((10, 0), (10, 16), (10, 128), (10, 144), (11, 256))
    for n in range(10):
        g.unpack(V_X1 + 2 * n, V_X1 + 2 * n + 1, 64 + n)
    tk = [a.ds(f'ds_read_b128 {vr(V_GB + 4 * k, 4)}, v{v} offset:{960 + off}') for k, (v, off) in enumerate(par)]
    for n in range(15):
        v, off = par[n % 5]
        a.ds(f'ds_read_b128 {vr((V_GA, V_SB, V_S2)[n // 5] + 4 * (n % 5), 4)}, v{v} offset:{320 * (n // 5) + off}')
    if cfg.ackw:
        a.wait(vm=tf)
    tok = g.poll_issue(fo)
    ring.bulk_n(cfg.r1)
    a.e(f'v_and_b32 v9, 1, v0\nv_lshlrev_b32 v9, 4, v9\nv_lshrrev_b32 v9, v9, {vr(V_TAG)}\nv_and_b32 {vr(VTB)}, 0xff, v9\nv_bfe_u32 {vr(VTB + 1)}, v9, 8, 8')
    a.e(f'v_and_b32 v9, 15, v0\nv_lshlrev_b32 {vr(VTB + 2)}, 3, v9')
    a.wait(lg=tk[-1])
    for n in range(10):
        a.e(f'v_cvt_pk_bf16_f32 {vr(V_GBP + n)}, {vr(V_GB + 2 * n)}, {vr(V_GB + 2 * n + 1)}')
    g.poll_check(fo, tok)
    g.stamp('oready')
    if cfg.p2split:
        ot = {}
        for q in range(10):
            for k in range(2):
                if q and q % 4 == 0:
                    a.e(f's_add_u32 {sr(BB0 + k)}, {sr(BB0 + k)}, 4096')
                ot[q, k] = a.vmem(f'buffer_load_dwordx4 {ar(8 * q + 4 * k, 4)}, v1, {sr(R_WS, 4)}, {sr(BB0 + k)} offen offset:{(q % 4) * 1024} sc1')
        g.advance_epoch()
        rt = {}

        def wread(q, t):
            rt[q, t] = a.ds(f'ds_read_b128 {ar(80 + 20 * (q & 1) + 4 * t, 4)}, {ring.lds(VK0, 10 * q + t, 5)}')
        for t in range(5):
            wread(0, t)
        budget = cfg.r2
        for q in range(10):
            n = 0
            for k in (1, 0) if q == 9 else (0, 1):
                a.wait(vm=ot[q, 1 if q == 9 else k], lg=rt[q, 4])
                for t in range(5):
                    acc = ACC + 20 * k + 4 * t
                    a.e(f'v_mfma_f32_16x16x32_bf16 {vr(acc, 4)}, {ar(80 + 20 * (q & 1) + 4 * t, 4)}, {ar(8 * q + 4 * k, 4)}, {vr(acc, 4) if q else 0}')
                    if n < 5 and q < 9:
                        wread(q + 1, n)
                    if n in (6, 8) and budget > 0 and ring.bulk():
                        budget -= 1
                    n += 1
        g.stamp('p2mma')
        g.barrier()
        for t in range(5):
            a.ds(f'ds_write_b128 {vr(VXW)}, {vr(ACC + 20 + 4 * t, 4)} offset:{1024 * t}')
        a.wait_all(vm=False)
        g.barrier()
        ring.consumed = 100
        tk = [a.ds(f'ds_read_b128 {vr(ACC + 20 + 4 * t, 4)}, {vr(VXR)} offset:{1024 * t}') for t in range(5)]
        for t in range(5):
            a.wait(lg=tk[t])
            for n in (0, 2):
                a.e(f'v_pk_add_f32 {vr(ACC + 4 * t + n, 2)}, {vr(ACC + 4 * t + n, 2)}, {vr(ACC + 20 + 4 * t + n, 2)}')
    else:
        ot = {}
        for q in range(20):
            if q and q % 4 == 0:
                a.e(f's_add_u32 {sr(BB0)}, {sr(BB0)}, 4096')
            ot[q] = a.vmem(f'buffer_load_dwordx4 {ar(4 * q, 4)}, v1, {sr(R_WS, 4)}, {sr(BB0)} offen offset:{(q % 4) * 1024} sc1')
        a.e(f'v_and_b32 {vr(VF8)}, 0x380, {vr(VF8)}')
        g.advance_epoch()
        rt = {}
        NB = 18

        def wread(f):
            rt[f] = a.ds(f'ds_read_b128 {ar(80 + 4 * (f % 20), 4)}, {ring.lds(VN0, f)}')
        for f in range(NB):
            wread(f)
        budget = cfg.r2
        for f in range(100):
            q, t = divmod(f, 5)
            a.wait(vm=ot[q] if t == 0 else None, lg=rt[min(f + 4, 99)] if t == 0 else None)
            acc = ACC + 4 * t
            a.e(f'v_mfma_f32_16x16x32_bf16 {vr(acc, 4)}, {ar(80 + 4 * (f % 20), 4)}, {ar(4 * q, 4)}, {vr(acc, 4) if q else 0}')
            if f + NB < 100:
                wread(f + NB)
            if t == 2 and budget > 0 and ring.bulk():
                budget -= 1
        g.stamp('p2mma')
    for n in range(10):
        a.e(f'v_pk_fma_f32 {vr(V_X1 + 2 * n, 2)}, {vr(ACC + 2 * n, 2)}, {vr(V_GA + 2 * n, 2)}, {vr(V_X1 + 2 * n, 2)}')
    for n in range(10):
        a.e(f'v_cvt_pk_bf16_f32 {vr(V_X1P + n)}, {vr(V_X1 + 2 * n)}, {vr(V_X1 + 2 * n + 1)}')
    a.e(f's_mov_b32 {sr(T + 2)}, 0x3f803f80\nv_mov_b32 v48, 0\nv_mov_b32 v49, 0\nv_mov_b32 v52, 0\nv_mov_b32 v53, 0')
    for n in range(10):
        d = 48 + 4 * (n & 1)
        a.e(f'v_dot2c_f32_bf16 {vr(d)}, {sr(T + 2)}, {vr(V_X1P + n)}\nv_dot2c_f32_bf16 {vr(d + 1)}, {vr(V_X1P + n)}, {vr(V_X1P + n)}')
    a.e(f's_lshl_b32 {sr(T)}, {sr(S_M2)}, 12\ns_lshl_b32 {sr(T + 1)}, {sr(S_W)}, 7\ns_add_u32 {sr(T)}, {sr(T)}, {sr(T + 1)}\ns_add_u32 {sr(T + 14)}, {sr(T)}, {WS_ST}')
    a.e(f's_lshl_b32 {sr(T + 1)}, {sr(S_N2)}, 9\ns_add_u32 {sr(T + 1)}, {sr(T + 1)}, {sr(T + 14)}')
    a.e('v_pk_add_f32 v[48:49], v[48:49], v[52:53]')
    g.sum_rows((48, 49), (50, 51), (4, 5))
    for op in ('v_add_u32 {d}, 0x80, {d}', 'v_and_b32 {d}, 0xffffff00, {d}', 'v_or_b32 {d}, {d}, {t}'):
        for r in range(2):
            a.e(op.format(d=vr(48 + r), t=vr(VTB + r)))
    a.e('s_mov_b64 exec, 0xffff')
    tf = a.vmem(f'buffer_store_dwordx2 v[48:49], {vr(VTB + 2)}, {sr(R_WS, 4)}, {sr(T + 1)} offen sc1')
    a.e('s_mov_b64 exec, -1')
    g.stamp('stpub')
    ring.bulk_n(cfg.r3)
    for n in range(10):
        g.unpack(V_X1 + 2 * n, V_X1 + 2 * n + 1, V_X1P + n)
    a.e(f'v_lshrrev_b32 v9, 4, v0\nv_and_b32 v10, 0xf0, v1\nv_lshl_add_u32 v11, v9, 10, {vr(VTB + 2)}')
    a.e('v_lshrrev_b32 v9, 1, v9\nv_lshl_add_u32 v13, v9, 8, v10')
    a.e(f's_lshl_b32 {sr(T + 2)}, {sr(S_M2)}, 2\ns_add_u32 {sr(T + 2)}, {sr(T + 2)}, {sr(S_W)}\ns_mul_i32 {sr(T + 2)}, {sr(T + 2)}, 20480')
    a.e(f's_mul_i32 {sr(T + 3)}, {sr(S_N2)}, 2560\ns_add_u32 {sr(T + 2)}, {sr(T + 2)}, {sr(T + 3)}\ns_add_u32 {sr(T + 2)}, {sr(T + 2)}, {WS_Y}')
    g.wg_flag_off(T + 6, S_M2, 8, S_N2, WS_FY, spare=True)
    if cfg.ackw:
        a.wait(vm=tf)
    sl = [(f'buffer_load_dwordx2 v[52:53], v11, {sr(R_WS, 4)}, {sr(T + 14)} offen sc1', ('pair', 52, VTB)),
          (f'buffer_load_dwordx2 v[56:57], v11, {sr(R_WS, 4)}, {sr(T + 14)} offen offset:512 sc1', ('pair', 56, VTB))]
    tok = g.poll_issue(sl)
    g.barrier()
    ring.consumed = 100
    ring.limit = ring.total
    ring.bulk_n(cfg.r3b)
    g.poll_check(sl, tok)
    g.stamp('stready')
    a.e('v_pk_add_f32 v[48:49], v[52:53], v[56:57]')
    g.sum_rows((48, 49), (50, 51), (4, 5))
    a.e('v_mul_f32 v48, 0x3acccccd, v48\nv_mul_f32 v50, 0x3acccccd, v49\nv_fma_f32 v50, -v48, v48, v50\nv_max_f32 v50, 0, v50')
    a.e('v_add_f32 v50, 0x3727c5ac, v50\nv_rsq_f32 v50, v50')
    order = (8, 9, 0, 1, 2, 3, 4, 5, 6, 7)
    for n in order:
        a.e(f'v_pk_add_f32 {vr(V_X1 + 2 * n, 2)}, {vr(V_X1 + 2 * n, 2)}, v[48:49] op_sel_hi:[1,0] neg_lo:[0,1] neg_hi:[0,1]')
    for n in order:
        a.e(f'v_pk_mul_f32 {vr(V_X1 + 2 * n, 2)}, {vr(V_X1 + 2 * n, 2)}, v[50:51] op_sel_hi:[1,0]')
    for n in order:
        a.e(f'v_pk_fma_f32 {vr(V_X1 + 2 * n, 2)}, {vr(V_X1 + 2 * n, 2)}, {vr(V_S2 + 2 * n, 2)}, {vr(V_SB + 2 * n, 2)}')
    for n in order:
        a.e(f'v_cvt_pk_bf16_f32 {vr(52 + n)}, {vr(V_X1 + 2 * n)}, {vr(V_X1 + 2 * n + 1)}')
    a.e('v_permlane16_swap_b32 v60, v62\nv_permlane16_swap_b32 v61, v63')
    a.vmem(f'buffer_store_dwordx4 v[52:55], v1, {sr(R_WS, 4)}, {sr(T + 2)} offen sc1')
    a.vmem(f'buffer_store_dwordx4 v[56:59], v1, {sr(R_WS, 4)}, {sr(T + 2)} offen offset:1024 sc1')
    a.e('s_mov_b32 exec_lo, 0xffff\ns_mov_b32 exec_hi, 0xffff')
    tok = a.vmem(f'buffer_store_dwordx4 v[60:63], v13, {sr(R_WS, 4)}, {sr(T + 2)} offen offset:2048 sc1')
    a.e('s_mov_b64 exec, -1')
    g.stamp('yst')
    ring.bulk_n(cfg.r4)
    g.tf = g.publish(tok, T + 6)
    g.stamp('ypub')


def silu_items(G0, U0, G1, U1, E, dst):
    G = [G0 + i for i in range(4)] + [G1 + i for i in range(4)]
    U = [U0 + i for i in range(4)] + [U1 + i for i in range(4)]
    it = [f'v_pk_mul_f32 {vr(E + i, 2)}, {vr(G[i], 2)}, {sr(S_L2E, 2)} neg_lo:[1,0] neg_hi:[1,0]' for i in range(0, 8, 2)]
    it += [f'v_exp_f32 {vr(E + i)}, {vr(E + i)}' for i in range(8)]
    it += [f'v_pk_mul_f32 {vr(G[i], 2)}, {vr(G[i], 2)}, {vr(U[i], 2)}' for i in range(0, 8, 2)]
    it += [f'v_pk_add_f32 {vr(E + i, 2)}, {vr(E + i, 2)}, 1.0 op_sel_hi:[1,0]' for i in range(0, 8, 2)]
    it += [f'v_rcp_f32 {vr(E + i)}, {vr(E + i)}' for i in range(8)]
    it += [f'v_pk_mul_f32 {vr(G[i], 2)}, {vr(G[i], 2)}, {vr(E + i, 2)}' for i in range(0, 8, 2)]
    it += [f'v_cvt_pk_bf16_f32 {vr(dst + i // 2)}, {vr(G[i])}, {vr(G[i + 1])}' for i in range(0, 8, 2)]
    return it


def phase34(g, ring):
    a, cfg = g.a, g.cfg
    a.c('phase 3: gate / up projection in two passes')
    YB0, HA, HBo, FA, FB = T + 8, T + 10, T + 11, T + 12, T + 13
    a.e(f's_lshl_b32 {sr(T)}, {sr(S_G3)}, 2\ns_add_u32 {sr(T)}, {sr(T)}, {sr(S_W)}')
    a.e(f's_lshr_b32 {sr(T + 1)}, {sr(T)}, 1\ns_lshl_b32 {sr(T + 1)}, {sr(T + 1)}, 10\ns_add_u32 {sr(T + 14)}, {sr(T + 1)}, {WS_FY}')
    ring.bulk_n(cfg.r5)
    fy = [(f'buffer_load_dwordx2 v[14:15], {vr(VF8)}, {sr(R_WS, 4)}, {sr(T + 14)} offen sc1', 14)]
    a.e(f's_mul_i32 {sr(YB0)}, {sr(T)}, 40960\ns_add_u32 {sr(YB0)}, {sr(YB0)}, {WS_Y}\ns_add_u32 {sr(YB0 + 1)}, {sr(YB0)}, 20480')
    a.e(f's_mul_i32 {sr(HA)}, {sr(T)}, {2 * HT}\ns_add_u32 {sr(HA)}, {sr(HA)}, {WS_HH}\ns_lshr_b32 {sr(T)}, {sr(S_J3)}, 2\ns_mul_i32 {sr(T)}, {sr(T)}, {56 * 256}')
    a.e(f's_add_u32 {sr(HA)}, {sr(HA)}, {sr(T)}\ns_bfe_u32 {sr(T)}, {sr(S_J3)}, 0x10001\ns_mul_i32 {sr(T)}, {sr(T)}, 11\ns_and_b32 {sr(T + 1)}, {sr(S_J3)}, 1')
    a.e(f's_mul_i32 {sr(T + 2)}, {sr(T + 1)}, 6\ns_add_u32 {sr(T)}, {sr(T)}, {sr(T + 2)}\ns_add_u32 {sr(T)}, {sr(T)}, 32\ns_lshl_b32 {sr(T)}, {sr(T)}, 8\ns_add_u32 {sr(HBo)}, {sr(HA)}, {sr(T)}')
    a.e(f's_and_b32 {sr(T)}, {sr(S_J3)}, 3\ns_lshl_b32 {sr(T)}, {sr(T)}, 11\ns_add_u32 {sr(HA)}, {sr(HA)}, {sr(T)}')
    if cfg.ackw:
        a.wait(vm=g.tf)
    tok = g.poll_issue(fy)
    ring.bulk_n(cfg.r6)
    a.e(f'v_add_u32 {vr(VH1)}, {HT}, v1\nv_bfe_u32 v9, v0, 4, 1\nv_mul_u32_u24 v9, {HT}, v9\nv_and_b32 v11, 0xf0, v1\nv_add_u32 v9, v9, v11\nv_lshrrev_b32 v11, 5, v0\nv_lshl_add_u32 v9, v11, 8, v9')
    a.e(f's_cmp_eq_u32 {sr(T + 1)}, 1\ns_cselect_b32 {sr(T + 3)}, 32, 64\nv_mov_b32 v11, {OOB}\nv_cmp_gt_u32 vcc, {sr(T + 3)}, v0\nv_cndmask_b32 {vr(VH6)}, v11, v9, vcc')
    a.e(f'v_cmp_gt_u32 vcc, 32, v0\nv_cndmask_b32 {vr(VHL)}, v11, v1, vcc')
    g.wg_flag_off(FA, S_G3, 16, S_J3, WS_FHA)
    a.e(f's_add_u32 {sr(FB)}, {sr(FA)}, {WS_FHB - WS_FHA}')
    a.e(f's_lshl_b32 {sr(T + 2)}, {sr(S_M2)}, 2\ns_add_u32 {sr(T + 2)}, {sr(T + 2)}, {sr(S_W)}\ns_mul_i32 {sr(T + 4)}, {sr(S_W)}, 14336\ns_add_u32 {sr(T + 4)}, {sr(T + 4)}, {WS_HH}')
    for k in range(4):
        a.e(f's_xor_b32 {sr(T + 3)}, {sr(T + 2)}, {k}\ns_mul_i32 {sr(BB0 + k)}, {sr(T + 3)}, {HT}\ns_add_u32 {sr(BB0 + k)}, {sr(BB0 + k)}, {sr(T + 4)}')
    a.e(f's_lshl_b32 {sr(T)}, {sr(S_W)}, 9\ns_add_u32 {sr(FLG8)}, {sr(FLG8)}, {sr(T)}')
    for k in range(3):
        a.e(f'v_add_u32 {vr(VK0 + k)}, {sr(RDST)}, {vr(VN0 + k)}')
    srd(a, R_OUT, S_OUT, 2048 * 1280)
    g.poll_check(fy, tok)
    g.stamp('yready')
    a.e(f'v_and_b32 {vr(VF8)}, 0x180, {vr(VF8)}')
    yt = {}

    def yload(s, tt):
        sb = YB0 + tt
        if s and s % 4 == 0:
            a.e(f's_add_u32 {sr(sb)}, {sr(sb)}, 4096')
        yt[s, tt] = a.vmem(f'buffer_load_dwordx4 {ar(8 * s + 4 * tt, 4)}, v1, {sr(R_WS, 4)}, {sr(sb)} offen offset:{(s % 4) * 1024} sc1')
    for s in range(cfg.ypre):
        yload(s, 0)
        yload(s, 1)
    yq = [(s, tt) for s in range(cfg.ypre, 20) for tt in range(2)]
    SY = cfg.sy
    ring.sync(F_A, min(F_A + SY + 12, 4 * ring.issued))
    LA = 6
    rt = {}

    def wread(f):
        rt[f] = a.ds(f'ds_read_b128 {ar(160 + 4 * (f % 8), 4)}, {ring.lds(VN0, f)}')
    for f in range(F_A, F_A + LA):
        wread(f)

    def acc_of(f, tt):
        if f < F_B:
            s, fi = divmod(f - F_A, 8)
            return s, ACC + 32 * tt + 4 * fi
        s, fi = divmod(f - F_B, 6)
        return s, ACC + 64 + 24 * tt + 4 * fi
    ht = {}

    def hslot(q, k):
        return 4 * q + k if q < 10 else 4 * (q - 10) + k

    def hload(q, k):
        if q and q % 4 == 0:
            a.e(f's_add_u32 {sr(BB0 + k)}, {sr(BB0 + k)}, 4096')
        ht[q, k] = a.vmem(f'buffer_load_dwordx4 {ar(4 * hslot(q, k), 4)}, {vr(VHL) if q == 13 else "v1"}, {sr(R_WS, 4)}, {sr(BB0 + k)} offen offset:{(q % 4) * 1024} sc1')
    st = {'free': 0}
    fa = [(f'buffer_load_dwordx2 v[14:15], {vr(VF8)}, {sr(R_WS, 4)}, {sr(T + 14)} offen sc1', 14)]
    hq = []

    def h_ok():
        return hq and (hslot(*hq[0]) + (40 if hq[0][0] >= 10 else 0)) < st['free']

    def vm_slot(f):
        if ring.can_issue() and 4 * ring.issued < min(f + cfg.lead, F_2):
            ring.issue()
        elif yq:
            yload(*yq.pop(0))
        elif len(ring.pre) < 35:
            ring.preload()
        elif h_ok():
            hload(*hq.pop(0))
        elif ring.can_issue():
            ring.issue()

    def run_pass(f0, f1):
        for f in range(f0, f1):
            s, _ = acc_of(f, 0)
            first_of_step = f == (F_A + 8 * s if f < F_B else F_B + 6 * s)
            if f >= F_B:
                st['free'] = 2 * s
            a.wait(vm=yt[s, 1] if f < F_B and first_of_step else None, lg=rt[min(f + (f & 1 ^ 1), F_2 - 1)] if cfg.wait2 else rt[f])
            for tt in range(2):
                _, acc = acc_of(f, tt)
                a.e(f'v_mfma_f32_16x16x32_bf16 {vr(acc, 4)}, {ar(160 + 4 * (f % 8), 4)}, {ar(8 * s + 4 * tt, 4)}, {vr(acc, 4) if s else 0}')
                if tt == 0 and f + LA < F_2:
                    wread(f + LA)
                if tt == 1 and f % 2 == 0:
                    vm_slot(f)
            if (f - F_A) % SY == SY - 1 and f + 1 < F_2:
                pub = 'A' in st and 'Aflag' not in st and f >= F_B + cfg.puba
                if pub:
                    a.wait(vm=st['A'])
                ring.sync(f + 1, min(f + 1 + SY + 12, F_2))
                if pub:
                    g.flag(FA)
                    st['Aflag'] = f
            if f == F_B + 6 * cfg.chk_a:
                assert 'Aflag' in st
                a.e(f's_add_u32 {sr(T + 14)}, {sr(FLG8)}, {WS_FHA}')
                st['fa'] = g.poll_issue(fa)
            if f == F_B + 6 * cfg.chk_a + 6 * cfg.chkd:
                g.poll_check(fa, st['fa'])
                hq.extend((q, k) for q in range(8) for k in range(4))

    def epilogue(items, every, f):
        for n, it in enumerate(items):
            g.fq.append(it)
            g.fill(1)
            if n % every == every - 1:
                vm_slot(f)
    run_pass(F_A, F_B)
    g.stamp('passA')
    items = []
    for tt in range(2):
        for pp in range(2):
            b = ACC + 32 * tt + 16 * pp
            items += silu_items(b, b + 4, b + 8, b + 12, 160 + 8 * pp, b + 4)

            def sto(tt=tt, pp=pp, b=b):
                st['A'] = a.vmem(f'buffer_store_dwordx4 {vr(b + 4, 4)}, {vr(VH1) if tt else "v1"}, {sr(R_WS, 4)}, {sr(HA)} offen offset:{1024 * pp} sc1')
            items.append(sto)
    epilogue(items, cfg.epace, F_B)
    g.stamp('epiA')
    run_pass(F_B, F_2)
    g.stamp('passB')
    st['free'] = 40
    ring.sync(F_2, F_2)
    items = []
    B0 = ACC + 64
    for tt in range(2):
        b = B0 + 24 * tt
        items += silu_items(b, b + 4, b + 8, b + 12, 160 + 8 * tt, b + 4)

        def stb(tt=tt, b=b):
            a.vmem(f'buffer_store_dwordx4 {vr(b + 4, 4)}, {vr(VH1) if tt else "v1"}, {sr(R_WS, 4)}, {sr(HBo)} offen sc1')
        items.append(stb)
    items += silu_items(B0 + 16, B0 + 20, B0 + 40, B0 + 44, 160, B0 + 20)
    items += [f'v_permlane16_swap_b32 {vr(B0 + 20)}, {vr(B0 + 22)}', f'v_permlane16_swap_b32 {vr(B0 + 21)}, {vr(B0 + 23)}']

    def stc():
        st['B'] = a.vmem(f'buffer_store_dwordx4 {vr(B0 + 20, 4)}, {vr(VH6)}, {sr(R_WS, 4)}, {sr(HBo)} offen offset:1024 sc1')
    items.append(stc)
    epilogue(items, cfg.epace, F_2)
    g.stamp('epiB')
    a.c('phase 4: down projection (four-way split K), residual')
    fb = [(f'buffer_load_dwordx2 v[14:15], {vr(VF8)}, {sr(R_WS, 4)}, {sr(T + 14)} offen sc1', 14)]
    assert len(ring.pre) == 35
    rt = {}
    LB = 4

    def wread4(i):
        while ring.issued <= 95 + i - 35:
            ring.issue()
        a.wait(vm=ring.tok[95 + i - 35])
        rt[i] = a.ds(f'ds_read_b128 {ar(160 + 4 * (i % 8), 4)}, {ring.lds(VK0, F_2 + 4 * (i - 35), None)}')

    def xw(t, k):
        a.ds(f'ds_write_b128 v12, {vr(ACC + 20 * k + 4 * t, 4)} offset:{4096 * (3 * t + k - 1)}')
    for i in range(70):
        q, t = divmod(i, 5)
        st['free'] = 40 + 4 * q
        if t == 0:
            while hq and hq[0][0] <= q:
                hload(*hq.pop(0))
        a.wait(vm=max(ht[q, 3], ring.pre[i] if i < 35 else 0) if t == 0 or i < 35 else None, lg=rt.get(i))
        A = ring.pre_reg(i) if i < 35 else ar(160 + 4 * (i % 8), 4)
        for k in ((1, 2, 3, 0) if q == 13 else range(4)):
            acc = ACC + 20 * k + 4 * t
            a.e(f'v_mfma_f32_16x16x32_bf16 {vr(acc, 4)}, {A}, {ar(4 * hslot(q, k), 4)}, {vr(acc, 4) if q else 0}')
            if k == 1 and 35 <= i + LB < 70:
                wread4(i + LB)
            if k == 2:
                vm_slot(F_2)
        if q == 13 and t:
            for k in range(1, 4):
                xw(t - 1, k)
        if i == 60:
            a.e(f'v_add_u32 v12, {sr(RDST)}, v1\nv_add_u32 v12, 0xf000, v12')
            for k in range(1, 4):
                a.e(f'v_xor_b32 {vr(8 + k)}, {k * 1024}, v12')
        if i == cfg.pubb:
            g.publish(st['B'], FB)
        if i == cfg.chk_b:
            a.e(f's_add_u32 {sr(T + 14)}, {sr(FLG8)}, {WS_FHB}')
            st['fb'] = g.poll_issue(fb)
        if i == cfg.chk_b + cfg.chkd4:
            g.poll_check(fb, st['fb'])
            hq.extend((qq, k) for qq in range(8, 14) for k in range(4))
        if i in (19, 39):
            g.stamp(f'p4i{i}')
    g.stamp('p4mma')
    for k in range(1, 4):
        xw(4, k)
    for n in range(10):
        g.unpack(128 + 2 * n, 129 + 2 * n, V_X1P + n)
        g.unpack(148 + 2 * n, 149 + 2 * n, V_GBP + n)
    a.e(f's_mul_i32 {sr(T + 2)}, {sr(S_W)}, 2560\nv_and_b32 v13, 15, v0\nv_mul_u32_u24 v13, 0xa0, v13\nv_add_u32 v13, {sr(T + 2)}, v13\nv_lshrrev_b32 v14, 4, v0')
    a.e(f'v_lshl_add_u32 v15, v14, 3, v13\nv_lshl_add_u32 v13, v14, 4, v13\nv_add_u32 v14, {sr(T + 2)}, v1')
    a.wait_all(vm=False)
    g.barrier()
    tk = {}
    for t in range(5):
        for k in range(1, 4):
            tk[t] = a.ds(f'ds_read_b128 {vr(ACC + 20 * k + 4 * t, 4)}, {vr(8 + k)} offset:{4096 * (3 * t + k - 1)}')
    for t in range(5):
        a.wait(lg=tk[t])
        for n in (0, 2):
            r = ACC + 4 * t + n
            a.e(f'v_pk_add_f32 {vr(r, 2)}, {vr(r, 2)}, {vr(r + 20, 2)}\nv_pk_add_f32 {vr(r + 40, 2)}, {vr(r + 40, 2)}, {vr(r + 60, 2)}')
        for n in (0, 2):
            r = ACC + 4 * t + n
            a.e(f'v_pk_add_f32 {vr(r, 2)}, {vr(r, 2)}, {vr(r + 40, 2)}')
        for n in (0, 2):
            r = ACC + 4 * t + n
            a.e(f'v_pk_fma_f32 {vr(r, 2)}, {vr(r, 2)}, {vr(148 + 4 * t + n, 2)}, {vr(128 + 4 * t + n, 2)}')
        for n in (0, 2):
            r = ACC + 4 * t + n
            a.e(f'v_cvt_pk_bf16_f32 {vr(176 + 2 * t + n // 2)}, {vr(r)}, {vr(r + 1)}')
    a.ds('ds_write_b128 v13, v[176:179]')
    a.ds('ds_write_b128 v13, v[180:183] offset:64')
    a.ds('ds_write_b64 v15, v[184:185] offset:128')
    tk = [a.ds(f'ds_read_b128 {vr(188 + 4 * n, 4)}, v14 offset:{1024 * n}') for n in range(3)]
    for n in range(3):
        a.wait(lg=tk[n])
        if n == 2:
            a.e('s_mov_b32 exec_hi, 0')
        a.vmem(f'buffer_store_dwordx4 {vr(188 + 4 * n, 4)}, {vr(VXO + n)}, {sr(R_OUT, 4)}, {sr(XOFF)} offen')
    a.e('s_mov_b64 exec, -1')
```

```python
import sys
from collections import deque
from asmlib import Asm, pad_hazards, vr, ar, sr

NAME = 'adaLN_cond__linear_kernel_hedgehog__glu_gated_swiglu__prompt'

WS_EPOCH = 0
WS_FW = 0x1000
WS_FRT = 0x4000
WS_FH = 0x10000
WS_FKV = 0x30000
WS_FO = 0x50000
WS_FY = 0x70000
WS_FHA = 0x90000
WS_FHB = 0xB0000
WS_MOD = 0xD0000
WS_ST = 0xE0000
WS_KVP = 0x120000
WS_WQ = 0x200000
WS_H = 0x480000
WS_O = 0x700000
WS_Y = 0x980000
WS_WO = 0xC00000
WS_W13 = 0xD00000
WS_W2 = 0x1180000
WS_HH = 0x1400000
WS_SPARE = 0x1B00000
WS_DBG = 0x1B40000
WS_SIZE = 0x1C00000
OOB_VAL = 0x40000000
OOB = 's3'

L_XS = 20480
L_JA = 32768
L_JB = 102400
L_TS = 59392
L_MISC = 153600
L_MODP = L_XS
L_SILU = L_MISC + 5120
L_LNRED = L_MISC + 6400
L_WPHI = L_MISC + 6656
L_KVR = L_MISC
L_KVZ = L_KVR + 3840
L_PAR = L_MISC + 8704
L_MT2 = 135168
L_XCH = 143360
L_XR = 143360
TP = 336
RING = 160

S_X, S_WQKV, S_WPHI, S_WO, S_W1, S_W3, S_W2, S_C, S_WMOD, S_OUT, S_DBG, S_WS = 4, 6, 8, 10, 14, 16, 18, 20, 22, 24, 26, 28
S_TAG = 30
R_WS, R_A, R_B, R_C, R_X, R_OUT = 32, 36, 40, 44, 48, 52
S_W, S_XC, S_I, S_G1, S_J1, S_M2, S_N2, S_G3, S_J3 = 56, 57, 58, 59, 60, 61, 62, 63, 64
S_SPIN = 65
S_SPARE = 21
S_TB = 26
S_L2E = 66
T = 68
P = 84
S_PM = 96
S_STAMP = 98
JB_OFF, JC_OFF = 4, 8

V_TAG = 2
V_STAMP = 255
VA0, VA1, VA2, VTW0, VTW1, VTR0, VTR1, VKS, VGL, VKW, VO0, VO1 = range(16, 28)
VOS0, VOS1, VF128, VFW = 36, 37, 38, 39
VGM, VGT, VGB = 244, 245, 246


class Cfg:
    diag = False
    probe = None
    stop = None
    map2 = '8x1'
    map3 = '2x4'
    spin = 200000
    pfcode = 1
    nt = 1
    only = ''
    outp = ''
    skip = 'issued,prep,yst,xin'
    ackw = 1
    ja_at = 1
    map1 = '2x4'
    kv1 = 40
    kv2 = 75
    cold0 = 100
    coldp = 4
    late1 = 4
    gm_first = 0
    late2 = 0
    jfin = 0
    wspan = 0
    kvpub = 19
    jb_at = 1
    w1b = 20
    kpace = 11
    w1a = 10
    hpre = 8
    rt_early = 0
    qpace = 6
    r0b = 6
    p2split = 1
    gpace = 1
    epace = 14
    r0 = 26
    r1 = 8
    r2 = 20
    r3 = 10
    r3b = 12
    r4 = 10
    r5 = 10
    r6 = 10
    ypre = 5
    lead = 80
    wait2 = 1
    sy = 24
    puba = 12
    chk_a = 11
    chkd = 3
    pubb = 8
    chk_b = 18
    chkd4 = 10


def srd(a, r, ptr, size):
    a.e(f's_mov_b32 {sr(r)}, {sr(ptr)}\ns_mov_b32 {sr(r + 1)}, {sr(ptr + 1)}\n'
        f's_mov_b32 {sr(r + 2)}, {size}\ns_mov_b32 {sr(r + 3)}, 0x20000')


class Gen:
    def __init__(self, cfg):
        self.cfg = cfg
        self.a = Asm()
        self.stamps = []
        self.nt = ' nt' if cfg.nt else ''
        self.fq = deque()

    def stamp(self, name):
        a = self.a
        if self.cfg.probe:
            if name == self.cfg.probe:
                a.e(f's_memrealtime {sr(S_STAMP + 2, 2)}')
                a.wait_all(vm=False)
            return
        if not self.cfg.diag or name in self.cfg.skip.split(','):
            return
        if self.cfg.only and name not in self.cfg.only.split(',') + ['start', 'end']:
            return
        idx = len(self.stamps)
        self.stamps.append(name)
        a.e(f's_memrealtime {sr(S_STAMP, 2)}\ns_memtime {sr(S_STAMP + 2, 2)}')
        a.wait_all(vm=False)
        a.e(f'v_writelane_b32 {vr(V_STAMP)}, {sr(S_STAMP)}, {idx}\nv_writelane_b32 {vr(V_STAMP)}, {sr(S_STAMP + 2)}, {idx + 32}')

    def barrier(self):
        self.a.e('s_barrier')

    def fill(self, n):
        while n > 0 and self.fq:
            f = self.fq.popleft()
            if callable(f):
                f()
            else:
                self.a.e(f)
            n -= 1

    def flush(self):
        self.fill(1 << 30)

    def _cmp_tags(self, loads):
        a = self.a
        first = True
        pairs = [t for _, t in loads if isinstance(t, tuple) and t[0] == 'pair']
        if pairs:
            for n, (_, b, tb) in enumerate(pairs):
                a.e(f'v_xor_b32 {vr(b)}, {vr(b)}, {vr(tb)}\nv_xor_b32 {vr(b + 1)}, {vr(b + 1)}, {vr(tb + 1)}')
                a.e(f'v_or3_b32 v9, {vr(b)}, {vr(b + 1)}, {"v9" if n else vr(b)}')
            a.e('v_and_b32 v9, 0xff, v9\nv_cmp_ne_u32 vcc, 0, v9')
            return
        byte = [-t for _, t in loads if not isinstance(t, tuple) and t < 0]
        if byte:
            for n, b in enumerate(byte):
                for r in range(4):
                    a.e(f'v_xor_b32 {vr(b + r)}, {sr(S_TB + r)}, {vr(b + r)}')
                a.e(f'v_or3_b32 v9, {vr(b)}, {vr(b + 1)}, {"v9" if n else vr(b)}\nv_or3_b32 v9, {vr(b + 2)}, {vr(b + 3)}, v9')
            a.e('v_and_b32 v9, 0xff, v9\nv_cmp_ne_u32 vcc, 0, v9')
            first = False
        for _, tags in loads:
            for t in (tags if isinstance(tags, tuple) else (tags,)):
                if t < 0:
                    continue
                if first:
                    a.e(f'v_cmp_ne_u64 vcc, {sr(S_TAG, 2)}, {vr(t, 2)}')
                    first = False
                else:
                    a.e(f'v_cmp_ne_u64 {sr(S_PM, 2)}, {sr(S_TAG, 2)}, {vr(t, 2)}\ns_or_b64 vcc, vcc, {sr(S_PM, 2)}')

    def poll_issue(self, loads):
        tok = None
        for text, _ in loads:
            tok = self.a.vmem(text)
        return tok

    def poll_check(self, loads, tok):
        a = self.a
        top, done = a.newlabel('poll'), a.newlabel('polled')
        a.wait(vm=tok)
        self._cmp_tags(loads)
        a.e(f's_cbranch_vccz {done}\ns_mov_b32 {sr(S_SPIN)}, {self.cfg.spin}')
        a.label(top)
        for text, _ in loads:
            a.e(text)
        a.e('s_waitcnt vmcnt(0)')
        self._cmp_tags(loads)
        a.e(f's_cbranch_vccz {done}')
        a.e(f's_sub_u32 {sr(S_SPIN)}, {sr(S_SPIN)}, 1\ns_cmp_lg_u32 {sr(S_SPIN)}, 0\ns_cbranch_scc1 {top}')
        a.label(done)

    def poll(self, loads):
        self.poll_check(loads, self.poll_issue(loads))

    def flag(self, soff):
        a = self.a
        a.e('s_mov_b64 exec, 1')
        tok = a.vmem(f'buffer_store_dwordx2 {vr(V_TAG, 2)}, off, {sr(R_WS, 4)}, {sr(soff)} sc1')
        a.e('s_mov_b64 exec, -1')
        return tok

    def wg_flag_off(self, dst, hi, mul, lo, base, shift=7, spare=False):
        a = self.a
        a.e(f's_mul_i32 {sr(dst)}, {sr(hi)}, {mul}')
        if lo is not None:
            a.e(f's_add_u32 {sr(dst)}, {sr(dst)}, {sr(lo)}')
        a.e(f's_lshl_b32 {sr(dst)}, {sr(dst)}, {shift}\ns_add_u32 {sr(dst)}, {sr(dst)}, {base}')
        a.e(f's_cmp_eq_u32 {sr(S_W)}, 0\ns_cselect_b32 {sr(dst)}, {sr(dst)}, {sr(S_SPARE) if spare else OOB}')

    def publish(self, tok, soff):
        self.a.wait(vm=tok)
        self.barrier()
        return self.flag(soff)

    def wave_flag_off(self, dst, hi, mul, lo, base, shift=7):
        a = self.a
        a.e(f's_mul_i32 {sr(dst)}, {sr(hi)}, {mul}')
        if lo is not None:
            a.e(f's_add_u32 {sr(dst)}, {sr(dst)}, {sr(lo)}')
        a.e(f's_lshl_b32 {sr(dst)}, {sr(dst)}, 2\ns_add_u32 {sr(dst)}, {sr(dst)}, {sr(S_W)}')
        a.e(f's_lshl_b32 {sr(dst)}, {sr(dst)}, {shift}\ns_add_u32 {sr(dst)}, {sr(dst)}, {base}')

    def unpack(self, lo, hi, src):
        self.a.e(f'v_lshlrev_b32 {vr(lo)}, 16, {vr(src)}\nv_and_b32 {vr(hi)}, 0xffff0000, {vr(src)}')

    def round_pair(self, lo, tmp):
        self.a.e(f'v_cvt_pk_bf16_f32 {vr(tmp)}, {vr(lo)}, {vr(lo + 1)}')
        self.unpack(lo, lo + 1, tmp)

    def sum_rows(self, regs, tmps, bits):
        a = self.a
        for b in bits:
            if b == 3:
                for r in regs:
                    a.e(f'v_add_f32_dpp {vr(r)}, {vr(r)}, {vr(r)} row_ror:8 row_mask:0xf bank_mask:0xf')
            else:
                for r, t in zip(regs, tmps):
                    a.e(f'v_mov_b32 {vr(t)}, {vr(r)}')
                for r, t in zip(regs, tmps):
                    a.e(f'v_permlane{16 if b == 4 else 32}_swap_b32 {vr(r)}, {vr(t)}')
                for r, t in zip(regs, tmps):
                    a.e(f'v_add_f32 {vr(r)}, {vr(r)}, {vr(t)}')

    def frag16_addr(self, vd, t):
        a = self.a
        a.e(f'v_bfe_u32 {vr(t)}, v0, 2, 2\nv_lshlrev_b32 {vr(vd)}, 8, {vr(t)}\nv_and_b32 {vr(t)}, 2, {vr(t)}')
        a.e(f'v_lshrrev_b32 {vr(t + 1)}, 4, v0\nv_xor_b32 {vr(t)}, {vr(t)}, {vr(t + 1)}\nv_lshl_add_u32 {vr(vd)}, {vr(t)}, 6, {vr(vd)}')
        a.e(f'v_add_u32 {vr(vd)}, {vr(vd)}, v8')

    def gemv_role(self, first, count, s_src, s_dst):
        a = self.a
        a.e(f's_lshr_b32 {sr(T)}, {sr(S_I)}, 2\ns_lshl_b32 {sr(T)}, {sr(T)}, 3\ns_add_u32 {sr(T)}, {sr(T)}, {sr(S_XC)}')
        a.e(f's_and_b32 {sr(T + 1)}, {sr(S_I)}, 3\ns_mul_i32 {sr(s_src)}, {sr(T + 1)}, 160\ns_mul_i32 {sr(s_dst)}, {sr(S_W)}, 40\ns_add_u32 {sr(s_src)}, {sr(s_src)}, {sr(s_dst)}')
        a.e(f's_mul_i32 {sr(s_src)}, {sr(s_src)}, 7680\ns_lshl_b32 {sr(s_dst)}, {sr(T)}, 7\ns_add_u32 {sr(s_src)}, {sr(s_src)}, {sr(s_dst)}')
        a.e(f's_lshl_b32 {sr(s_dst)}, {sr(T)}, 2\ns_add_u32 {sr(s_dst)}, {sr(s_dst)}, {sr(T + 1)}\ns_lshl_b32 {sr(s_dst)}, {sr(s_dst)}, 2\ns_add_u32 {sr(s_dst)}, {sr(s_dst)}, {sr(S_W)}')
        a.e(f's_lshl_b32 {sr(s_dst)}, {sr(s_dst)}, 6\ns_add_u32 {sr(s_dst)}, {sr(s_dst)}, {WS_MOD}')
        a.e(f's_sub_u32 {sr(T)}, {sr(T)}, {first}\ns_cmp_lt_u32 {sr(T)}, {count}\ns_cselect_b32 {sr(s_src)}, {sr(s_src)}, {OOB}\ns_cselect_b32 {sr(s_dst)}, {sr(s_dst)}, {OOB}')

    def gemv_dma(self, n, s_src, lds):
        a = self.a
        a.e(f's_mul_i32 {sr(T)}, {sr(S_W)}, 5120\ns_add_u32 m0, {sr(T)}, {lds + n * 1024}\ns_add_u32 {sr(T)}, {sr(s_src)}, {n * 8 * 7680}')
        return a.vmem(f'buffer_load_dwordx4 {vr(VGM)}, {sr(R_A, 4)}, {sr(T)} offen{self.nt} lds')

    def gemv_items(self, lds, s_dst, base):
        a = self.a
        tk = {}
        A, B, D = base, base + 20, base + 40
        it = [f'v_add_u32 {vr(D + 4)}, {lds}, {vr(VGT)}']
        for s in range(5):
            it.append(lambda s=s: a.ds(f'ds_read_b128 {vr(B + 4 * s, 4)}, {vr(VGB)} offset:{64 * s}'))
            it.append(lambda s=s: a.ds(f'ds_read_b64_tr_b16 {vr(A + 4 * s, 2)}, {vr(D + 4)} offset:{4096 * s}'))
            it.append(lambda s=s: tk.__setitem__(s, a.ds(f'ds_read_b64_tr_b16 {vr(A + 4 * s + 2, 2)}, {vr(D + 4)} offset:{4096 * s + 512}')))
        for s in range(5):
            def mm(s=s):
                a.wait(lg=tk[s])
                a.e(f'v_mfma_f32_16x16x32_bf16 {vr(D, 4)}, {vr(A + 4 * s, 4)}, {vr(B + 4 * s, 4)}, {vr(D, 4) if s else 0}')
            it.append(mm)

        def fin():
            for op in ('v_add_u32 {d}, 0x80, {d}', 'v_and_b32 {d}, 0xffffff00, {d}', 'v_or_b32 {d}, {t}, {d}'):
                for r in range(4):
                    a.e(op.format(d=vr(D + r), t=sr(S_TB + r)))
            a.e('s_mov_b32 exec_lo, 0x00010001\ns_mov_b32 exec_hi, 0x00010001')
            a.vmem(f'buffer_store_dwordx4 {vr(D, 4)}, v0, {sr(R_WS, 4)}, {sr(s_dst)} offen sc1')
            a.e('s_mov_b64 exec, -1')
        it.append(fin)
        return it

    def mod_finish(self, base, n, s_add):
        a = self.a
        for h in (0, 2):
            a.e(f'v_pk_add_f32 {vr(base + h, 2)}, {vr(base + h, 2)}, {vr(base + 4 + h, 2)}\nv_pk_add_f32 {vr(base + 8 + h, 2)}, {vr(base + 8 + h, 2)}, {vr(base + 12 + h, 2)}')
        for h in (0, 2):
            a.e(f'v_pk_add_f32 {vr(base + h, 2)}, {vr(base + h, 2)}, {vr(base + 8 + h, 2)}')
        self.round_pair(base, base + 4)
        self.round_pair(base + 2, base + 5)
        for h in (0, 2):
            a.e(f'v_pk_add_f32 {vr(base + h, 2)}, {vr(base + h, 2)}, {sr(s_add, 2)}')
        self.round_pair(base, base + 4)
        self.round_pair(base + 2, base + 5)

    def prologue(self):
        a, cfg = self.a, self.cfg
        a.e('s_cmp_ge_u32 s2, 256\ns_cbranch_scc1 L_end')
        if cfg.probe == 'entry':
            self.stamp('entry')
        a.e('s_load_dwordx16 s[4:19], s[0:1], 0\ns_load_dwordx8 s[20:27], s[0:1], 64\ns_load_dwordx2 s[28:29], s[0:1], 96')
        a.e(f's_mov_b32 s3, {OOB_VAL}')
        a.e('v_lshrrev_b32 v1, 6, v0\nv_and_b32 v0, 63, v0')
        a.e(f'v_readfirstlane_b32 {sr(S_W)}, v1\nv_lshlrev_b32 v1, 4, v0')
        if cfg.diag:
            a.e(f'v_mov_b32 {vr(V_STAMP)}, 0')
        a.e(f's_and_b32 {sr(S_XC)}, s2, 7\ns_lshr_b32 {sr(S_I)}, s2, 3')
        if cfg.pfcode:
            self.prefetch_code()
        a.e('v_bfe_u32 v9, v0, 4, 1\nv_and_b32 v10, 7, v0\nv_xor_b32 v4, v10, v9\nv_lshlrev_b32 v4, 4, v4\nv_lshrrev_b32 v5, 3, v0')
        a.e(f's_mov_b32 {sr(T)}, 1280\nv_xor_b32 v11, v10, v5\nv_lshlrev_b32 v11, 4, v11\nv_mad_u32_u24 v12, v5, {sr(T)}, v11')
        a.e(f's_mov_b32 {sr(T)}, 7680\nv_and_b32 v11, 2, v5\nv_xor_b32 v11, v10, v11\nv_lshlrev_b32 v11, 4, v11\nv_mad_u32_u24 {vr(VGM)}, v5, {sr(T)}, v11')
        a.e(f's_mul_i32 {sr(T + 2)}, s2, 10240\ns_lshl_b32 {sr(T + 1)}, {sr(S_W)}, 7\ns_add_u32 {sr(T + 2)}, {sr(T + 2)}, {sr(T + 1)}')
        a.e(f's_cmp_lt_u32 {sr(S_W)}, 2\ns_cselect_b32 {sr(T + 3)}, {sr(T + 2)}, {OOB}')
        a.e(f's_mul_i32 {sr(T + 5)}, {sr(S_W)}, 3072\ns_add_u32 {sr(T + 5)}, {sr(T + 5)}, {L_XS}')
        self.gemv_role(0, 20, T + 4, P)
        a.e('s_waitcnt lgkmcnt(0)')
        srd(a, R_A, S_WMOD, 640 * 7680)
        srd(a, R_X, S_X, 2048 * 1280)
        srd(a, R_WS, S_WS, WS_SIZE)
        self.stamp('start')

    def prefetch_code(self):
        a = self.a
        a.e(f's_getpc_b64 {sr(T, 2)}')
        a.label('L_pc')
        a.e(f's_and_b32 {sr(T + 2)}, {sr(S_I)}, 1\ns_lshl_b32 {sr(T + 2)}, {sr(T + 2)}, 2\ns_add_u32 {sr(T + 2)}, {sr(T + 2)}, {sr(S_W)}')
        a.e(f's_lshl_b32 {sr(T + 2)}, {sr(T + 2)}, 13\nv_lshlrev_b32 v4, 7, v0\nv_add_u32 v4, {sr(T + 2)}, v4')
        a.e(f'v_min_u32 v4, L_end-L_pc, v4\nv_mov_b32 v5, {sr(T + 1)}\nv_add_co_u32 v4, vcc, {sr(T)}, v4\nv_addc_co_u32 v5, vcc, 0, v5, vcc')
        a.vmem('global_load_dword v254, v[4:5], off')

    def roles(self):
        a, cfg = self.a, self.cfg

        def role(dm, dn, xm_shift, nn_bits_x, i_shift):
            a.e(f's_lshr_b32 {sr(T)}, {sr(S_XC)}, {xm_shift}\ns_lshl_b32 {sr(T)}, {sr(T)}, {5 - i_shift}')
            a.e(f's_lshr_b32 {sr(T + 1)}, {sr(S_I)}, {i_shift}\ns_add_u32 {sr(dm)}, {sr(T)}, {sr(T + 1)}')
            a.e(f's_and_b32 {sr(T)}, {sr(S_XC)}, {(1 << nn_bits_x) - 1}\ns_lshl_b32 {sr(T)}, {sr(T)}, {i_shift}')
            a.e(f's_and_b32 {sr(T + 1)}, {sr(S_I)}, {(1 << i_shift) - 1}\ns_add_u32 {sr(dn)}, {sr(T)}, {sr(T + 1)}')
        role(S_G1, S_J1, *{'8x1': (0, 0, 4), '4x2': (1, 1, 3), '2x4': (2, 2, 2), '1x8': (3, 3, 1)}[cfg.map1])
        role(S_M2, S_N2, *{'8x1': (0, 0, 3), '4x2': (1, 1, 2), '2x4': (2, 2, 1)}[cfg.map2])
        role(S_G3, S_J3, *{'8x1': (0, 0, 4), '4x2': (1, 1, 3), '2x4': (2, 2, 2)}[cfg.map3])
        self.wave_flag_off(S_SPARE, 2, 1, None, WS_SPARE)
        a.e(f's_mov_b32 {sr(S_L2E)}, 0x3fb8aa3b\ns_mov_b32 {sr(S_L2E + 1)}, 0x3fb8aa3b')

    def make_tag(self):
        a = self.a
        a.wait(vm=self.tok_epoch)
        a.e(f'v_readfirstlane_b32 {sr(S_TAG)}, {vr(V_TAG)}\nv_readfirstlane_b32 {sr(S_TAG + 1)}, {vr(V_TAG + 1)}')
        a.e(f's_mul_i32 {sr(S_TAG)}, {sr(S_TAG)}, 1664525\ns_add_u32 {sr(S_TAG)}, {sr(S_TAG)}, 1013904223')
        a.e(f's_mul_i32 {sr(S_TAG + 1)}, {sr(S_TAG + 1)}, 22695477\ns_add_u32 {sr(S_TAG + 1)}, {sr(S_TAG + 1)}, 0x3c6ef35f')
        a.e(f'v_mov_b32 {vr(V_TAG)}, {sr(S_TAG)}\nv_mov_b32 {vr(V_TAG + 1)}, {sr(S_TAG + 1)}')
        for r in range(4):
            a.e(f's_bfe_u32 {sr(S_TB + r)}, {sr(S_TAG)}, {0x80000 + 8 * r}')

    def job_tr_bases(self):
        a = self.a
        a.e('v_lshrrev_b32 v6, 4, v0\nv_lshlrev_b32 v6, 10, v6\nv_bfe_u32 v9, v0, 2, 2\nv_lshl_add_u32 v6, v9, 7, v6')
        a.e('v_lshrrev_b32 v9, 1, v9\nv_and_b32 v8, 3, v0\nv_lshl_or_b32 v9, v8, 1, v9\nv_lshl_add_u32 v6, v9, 4, v6\nv_lshlrev_b32 v8, 4, v8')
        a.e(f's_lshl_b32 {sr(T)}, {sr(S_W)}, 13\ns_add_u32 {sr(P + 3)}, {sr(T)}, {L_JB}\nv_add_u32 v34, {sr(P + 3)}, v6\nv_xor_b32 v35, 16, v34')
        a.e(f's_lshl_b32 {sr(T)}, {sr(S_W)}, 12\ns_add_u32 {sr(T)}, {sr(T)}, {L_JA}\nv_add_u32 v6, {sr(T)}, v6\nv_xor_b32 v7, 16, v6')

    def job_finish_items(self, tok, vb, off, vdest, base):
        a = self.a
        st = {}
        items = [lambda: a.wait(vm=tok())]
        for n in range(4):
            for z in range(2):
                def rd(n=n, z=z):
                    st[n] = a.ds(f'ds_read_b64_tr_b16 {vr(base + 4 * n + 2 * z, 2)}, v{vb + (n >> 1)} offset:{off + z * 512 + (n & 1) * 8}')
                items.append(rd)
        for n in range(4):
            items.append(f'v_add_u32_dpp {vr(base + 16 + n)}, {vr(vdest)}, v8 quad_perm:[{n},{n},{n},{n}] row_mask:0xf bank_mask:0xf')
        for n in range(4):
            def sto(n=n):
                a.wait(lg=st[n])
                self.tok_job = a.vmem(f'buffer_store_dwordx4 {vr(base + 4 * n, 4)}, {vr(base + 16 + n)}, {sr(R_WS, 4)}, 0 offen sc1')
            items.append(sto)
        return items

    def piece_swizzle(self, acc, g):
        self.a.e(f'v_and_b32 {vr(g)}, 2, {vr(g)}\nv_lshrrev_b32 v15, 4, v0\nv_xor_b32 {vr(g)}, {vr(g)}, v15\nv_lshl_add_u32 {vr(acc)}, {vr(g)}, 6, {vr(acc)}')

    def dest_A(self, vd, s_blk, s_kb, s_base):
        a = self.a
        a.e(f's_mul_i32 {sr(T)}, {sr(s_blk)}, 205\ns_lshr_b32 {sr(T)}, {sr(T)}, 11')
        a.e(f's_mul_i32 {sr(T + 1)}, {sr(T)}, 10\ns_sub_u32 {sr(T + 1)}, {sr(s_blk)}, {sr(T + 1)}\ns_lshl_b32 {sr(T + 1)}, {sr(T + 1)}, 4')
        a.e(f'v_and_b32 v9, 15, v0\nv_add_u32 v9, {sr(T + 1)}, v9')
        a.e('v_mul_u32_u24 v10, 103, v9\nv_lshrrev_b32 v10, 9, v10')
        a.e('v_mul_u32_u24 v11, 5, v10\nv_sub_u32 v11, v9, v11')
        a.e('v_and_b32 v12, 1, v10\nv_lshlrev_b32 v14, 1, v12')
        a.e(f's_lshr_b32 {sr(T + 1)}, {sr(T)}, 1\nv_add_u32 v13, {sr(T + 1)}, v14\nv_lshlrev_b32 v13, 8, v13\nv_lshl_add_u32 v13, v11, 10, v13')
        a.e('v_and_b32 v9, 1, v11\nv_add_u32 v9, v9, v14\nv_lshlrev_b32 v9, 8, v9\nv_lshrrev_b32 v11, 1, v11\nv_lshl_add_u32 v9, v11, 10, v9')
        a.e(f's_cmp_eq_u32 {sr(T)}, 0\ns_cselect_b64 vcc, -1, 0\ns_cselect_b32 {sr(T + 2)}, 5120, 0\ns_lshl_b32 {sr(T + 1)}, {sr(s_kb)}, 13')
        a.e(f's_add_u32 {sr(T + 1)}, {sr(T + 1)}, {sr(T + 2)}\ns_add_u32 {sr(T + 1)}, {sr(T + 1)}, {sr(s_base)}\nv_cndmask_b32 v13, v13, v9, vcc')
        self.piece_swizzle(13, 14)
        a.e(f's_mov_b32 {sr(T + 2)}, 163840\nv_lshrrev_b32 v10, 1, v10\nv_mad_u32_u24 v13, v10, {sr(T + 2)}, v13')
        a.e(f'v_add_u32 {vr(vd)}, {sr(T + 1)}, v13')

    def dest_B(self, vd, s_blk, s_kb, s_up):
        a = self.a
        a.e(f's_lshl_b32 {sr(T)}, {sr(s_blk)}, 4\nv_and_b32 v9, 15, v0\nv_add_u32 v9, {sr(T)}, v9')
        a.e('v_lshrrev_b32 v10, 1, v9\nv_and_b32 v9, 1, v9')
        a.e('v_mul_u32_u24 v11, 19, v10\nv_lshrrev_b32 v11, 9, v11')
        a.e('v_mul_u32_u24 v12, 27, v11\nv_sub_u32 v12, v10, v12')
        a.e('v_cmp_le_u32 vcc, 14, v12\nv_lshlrev_b32 v11, 1, v11\nv_subrev_u32 v13, 14, v12')
        a.e('v_cndmask_b32 v12, v12, v13, vcc\nv_addc_co_u32 v11, vcc, 0, v11, vcc')
        a.e('v_lshrrev_b32 v13, 2, v12\nv_lshl_add_u32 v13, v13, 1, v9\nv_and_b32 v14, 3, v12')
        a.e('v_lshl_add_u32 v10, v14, 1, v9\nv_cmp_gt_u32 vcc, 12, v12\nv_cndmask_b32 v13, 6, v13, vcc\nv_cndmask_b32 v14, v10, v14, vcc')
        a.e(f's_lshl_b32 {sr(T)}, {sr(s_kb)}, 13\ns_mul_i32 {sr(T + 1)}, {sr(s_kb)}, 6144\ns_add_u32 {sr(T + 1)}, {sr(T + 1)}, {163840 - 8192}')
        a.e(f'v_mov_b32 v9, {sr(T)}\nv_mov_b32 v10, {sr(T + 1)}\nv_cmp_gt_u32 vcc, 4, v13\nv_cndmask_b32 v9, v10, v9, vcc')
        a.e('v_lshl_add_u32 v13, v13, 11, v9\nv_lshl_add_u32 v13, v14, 8, v13')
        self.piece_swizzle(13, 14)
        a.e(f's_mov_b32 {sr(T)}, 286720\nv_mad_u32_u24 v13, v11, {sr(T)}, v13')
        a.e(f's_lshl_b32 {sr(T)}, {sr(s_up)}, 10\ns_add_u32 {sr(T)}, {sr(T)}, {WS_W13}\nv_add_u32 {vr(vd)}, {sr(T)}, v13')

    def dest_C(self, vd, s_blk, s_kb, half, s_base, stride):
        a = self.a
        if half is None:
            a.e(f's_mov_b32 {sr(T + 1)}, {sr(s_kb)}')
        else:
            a.e(f's_sub_u32 {sr(T + 1)}, {sr(s_kb)}, {half}\ns_lshl_b32 {sr(T + 1)}, {sr(T + 1)}, 1\ns_add_u32 {sr(T + 1)}, {sr(T + 1)}, 1')
            a.e(f's_lshl_b32 {sr(T + 2)}, {sr(s_kb)}, 1\ns_cmp_lt_u32 {sr(s_kb)}, {half}\ns_cselect_b32 {sr(T + 1)}, {sr(T + 2)}, {sr(T + 1)}')
        a.e(f's_mul_i32 {sr(T + 1)}, {sr(T + 1)}, 5120\ns_add_u32 {sr(T + 1)}, {sr(T + 1)}, {sr(s_base)}')
        a.e(f's_lshl_b32 {sr(T)}, {sr(s_blk)}, 4\nv_and_b32 v9, 15, v0\nv_add_u32 v9, {sr(T)}, v9')
        a.e('v_mul_u32_u24 v10, 103, v9\nv_lshrrev_b32 v10, 11, v10')
        a.e('v_mul_u32_u24 v11, 20, v10\nv_sub_u32 v11, v9, v11')
        a.e('v_lshrrev_b32 v12, 3, v11\nv_lshlrev_b32 v12, 1, v12\nv_and_b32 v13, 1, v11\nv_add_u32 v13, v12, v13')
        a.e('v_bfe_u32 v14, v11, 1, 2\nv_and_b32 v15, 3, v11\nv_cmp_gt_u32 vcc, 16, v11')
        a.e('v_cndmask_b32 v13, 4, v13, vcc\nv_cndmask_b32 v14, v15, v14, vcc')
        a.e('v_lshlrev_b32 v13, 10, v13\nv_lshl_add_u32 v13, v14, 8, v13')
        self.piece_swizzle(13, 14)
        a.e(f's_mov_b32 {sr(T)}, {stride}\nv_mad_u32_u24 v13, v10, {sr(T)}, v13\nv_add_u32 {vr(vd)}, {sr(T + 1)}, v13')

    def job_bc_setup(self, rnd, rs, voff, vd, offs):
        a = self.a
        J, BLK, KB = T + 4, T + 5, T + 6
        lw2, ldone = a.newlabel('jw2'), a.newlabel('jdone')
        a.e(f's_lshl_b32 {sr(J)}, s2, 2\ns_add_u32 {sr(J)}, {sr(J)}, {sr(S_W)}')
        if rnd:
            a.e(f's_add_u32 {sr(J)}, {sr(J)}, 1024\ns_cmp_ge_u32 {sr(J)}, 1080\ns_cbranch_scc1 {lw2}')
        a.e(f's_cmp_ge_u32 {sr(J)}, 540\ns_cselect_b32 {sr(T + 8)}, 1, 0')
        a.e(f's_cselect_b32 {sr(rs)}, {sr(S_W3)}, {sr(S_W1)}\ns_cselect_b32 {sr(rs + 1)}, {sr(S_W3 + 1)}, {sr(S_W1 + 1)}')
        a.e(f's_cselect_b32 {sr(T + 9)}, 540, 0\ns_sub_u32 {sr(J)}, {sr(J)}, {sr(T + 9)}')
        a.e(f's_mov_b32 {sr(rs + 2)}, {640 * 3456}\ns_mov_b32 {sr(rs + 3)}, 0x20000')
        a.e(f's_mul_i32 {sr(KB)}, {sr(J)}, 607\ns_lshr_b32 {sr(KB)}, {sr(KB)}, 14')
        a.e(f's_mul_i32 {sr(BLK)}, {sr(KB)}, 27\ns_sub_u32 {sr(BLK)}, {sr(J)}, {sr(BLK)}')
        self.dest_B(vd, BLK, KB, T + 8)
        a.e(f's_mov_b32 {sr(T)}, 3456\nv_mad_u32_u24 {vr(voff)}, v5, {sr(T)}, v4')
        a.e(f's_mul_i32 {sr(T + 10)}, {sr(KB)}, {32 * 3456}\ns_lshl_b32 {sr(BLK)}, {sr(BLK)}, 7\ns_add_u32 {sr(T + 10)}, {sr(T + 10)}, {sr(BLK)}')
        for n in range(1, 4):
            a.e(f's_add_u32 {sr(T + 10 + n)}, {sr(T + 10)}, {n * 8 * 3456}')
        if rnd:
            a.e(f's_branch {ldone}')
            a.label(lw2)
            srd(a, rs, S_W2, 1728 * 1280)
            a.e(f's_sub_u32 {sr(J)}, {sr(J)}, 1080\ns_mov_b32 {sr(T + 9)}, {WS_W2}')
            a.e(f's_cmp_lt_u32 {sr(J)}, 560\ns_cselect_b32 {sr(T + 9)}, {sr(T + 9)}, {OOB}\ns_cselect_b32 {sr(T + 8)}, 0, {OOB}\ns_cselect_b32 {sr(J)}, {sr(J)}, 0')
            a.e(f's_mul_i32 {sr(KB)}, {sr(J)}, 205\ns_lshr_b32 {sr(KB)}, {sr(KB)}, 11')
            a.e(f's_mul_i32 {sr(BLK)}, {sr(KB)}, 10\ns_sub_u32 {sr(BLK)}, {sr(J)}, {sr(BLK)}')
            self.dest_C(vd, BLK, KB, None, T + 9, 286720)
            a.e(f's_mov_b32 {sr(T)}, 1280\nv_mad_u32_u24 {vr(voff)}, v5, {sr(T)}, v4')
            a.e(f's_lshl_b32 {sr(BLK)}, {sr(BLK)}, 7\ns_add_u32 {sr(BLK)}, {sr(BLK)}, {sr(T + 8)}')
            a.e(f's_mul_i32 {sr(T + 7)}, {sr(KB)}, 37\ns_lshr_b32 {sr(T + 7)}, {sr(T + 7)}, 9\ns_mul_i32 {sr(T)}, {sr(T + 7)}, 14\ns_sub_u32 {sr(KB)}, {sr(KB)}, {sr(T)}')
            a.e(f's_lshl_b32 {sr(KB)}, {sr(KB)}, 2\ns_mul_i32 {sr(T + 7)}, {sr(T + 7)}, 54')
            a.e(f's_lshr_b32 {sr(T)}, {sr(KB)}, 4\ns_mul_i32 {sr(T)}, {sr(T)}, 27\ns_bfe_u32 {sr(T + 1)}, {sr(KB)}, 0x10003\ns_mul_i32 {sr(T + 1)}, {sr(T + 1)}, 14')
            a.e(f's_add_u32 {sr(T)}, {sr(T)}, {sr(T + 1)}\ns_and_b32 {sr(T + 1)}, {sr(KB)}, 7\ns_add_u32 {sr(T + 4)}, {sr(T)}, {sr(T + 1)}')
            for n in range(4):
                R, UU = T, T + 1
                a.e(f's_add_u32 {sr(R)}, {sr(KB)}, {n - 32}\ns_add_u32 {sr(UU)}, {sr(R)}, 8')
                for lim in (6, 11, 17):
                    a.e(f's_cmp_ge_i32 {sr(R)}, {lim}\ns_cselect_b32 {sr(T + 2)}, 8, 0\ns_add_u32 {sr(UU)}, {sr(UU)}, {sr(T + 2)}')
                a.e(f's_add_u32 {sr(T + 2)}, {sr(T + 4)}, {n}\ns_cmp_lt_i32 {sr(R)}, 0\ns_cselect_b32 {sr(UU)}, {sr(T + 2)}, {sr(UU)}')
                a.e(f's_add_u32 {sr(UU)}, {sr(UU)}, {sr(T + 7)}\ns_mul_i32 {sr(UU)}, {sr(UU)}, {8 * 1280}\ns_add_u32 {sr(UU)}, {sr(UU)}, {sr(BLK)}')
                a.e(f's_cmp_ge_i32 {sr(R)}, 22\ns_cselect_b32 {sr(T + 10 + n)}, {OOB}, {sr(UU)}')
            a.label(ldone)
        for n in range(4):
            a.e(f's_mov_b32 {sr(offs + n)}, {sr(T + 10 + n)}')

    def startup(self):
        import gen1
        a, cfg = self.a, self.cfg
        lskip = a.newlabel('noc')
        a.e(f's_cmp_lg_u32 {sr(S_W)}, 0\ns_cbranch_scc1 {lskip}')
        srd(a, R_B, S_C, 1280)
        a.e(f'v_lshlrev_b32 v9, 2, v0\nbuffer_load_dwordx4 v[64:67], v1, {sr(R_B, 4)}, 0 offen\nbuffer_load_dword v68, v9, {sr(R_B, 4)}, 0 offen offset:1024')
        a.label(lskip)
        self.tok_epoch = a.vmem(f'buffer_load_dwordx2 {vr(V_TAG, 2)}, off, {sr(R_WS, 4)}, 0 sc1')
        for r in range(3):
            a.e(f's_add_u32 m0, {sr(T + 5)}, {r * 512}')
            tx = a.vmem(f'buffer_load_dwordx4 v12, {sr(R_X, 4)}, {sr(T + 2 + (r == 2))} offen offset:{r * 512}{self.nt} lds')
        for n in range(5):
            tt = self.gemv_dma(n, T + 4, 0)
        self.stamp('issued')
        self.roles()
        self.job_tr_bases()
        J, BLK, KB, VALD, PITCH = T + 4, T + 5, T + 6, T + 7, T + 8
        lwn, lj = a.newlabel('jqkv'), a.newlabel('jgo')
        a.e(f's_cmp_lg_u32 {sr(S_W)}, 0\ns_cbranch_scc1 {lwn}')
        srd(a, R_OUT, S_WO, 640 * 1280)
        a.e(f's_cmp_lt_u32 s2, 200\ns_cselect_b32 {sr(VALD)}, 0, {OOB}\ns_cselect_b32 {sr(J)}, s2, 0')
        a.e(f's_mul_i32 {sr(KB)}, {sr(J)}, 205\ns_lshr_b32 {sr(KB)}, {sr(KB)}, 11\ns_mul_i32 {sr(BLK)}, {sr(KB)}, 10\ns_sub_u32 {sr(BLK)}, {sr(J)}, {sr(BLK)}')
        a.e(f's_mov_b32 {sr(PITCH)}, 1280\ns_add_u32 {sr(T + 9)}, {sr(VALD)}, {WS_WO}')
        self.dest_C(29, BLK, KB, 10 if cfg.p2split else None, T + 9, 102400)
        a.e(f's_branch {lj}')
        a.label(lwn)
        srd(a, R_OUT, S_WQKV, 640 * 3840)
        a.e(f's_mul_i32 {sr(J)}, s2, 3\ns_add_u32 {sr(J)}, {sr(J)}, {sr(S_W)}\ns_sub_u32 {sr(J)}, {sr(J)}, 1')
        a.e(f's_cmp_lt_u32 {sr(J)}, 600\ns_cselect_b32 {sr(VALD)}, 0, {OOB}\ns_cselect_b32 {sr(J)}, {sr(J)}, 0')
        a.e(f's_mul_i32 {sr(BLK)}, {sr(J)}, 205\ns_lshr_b32 {sr(BLK)}, {sr(BLK)}, 12\ns_mul_i32 {sr(KB)}, {sr(BLK)}, 20\ns_sub_u32 {sr(KB)}, {sr(J)}, {sr(KB)}')
        a.e(f's_mov_b32 {sr(PITCH)}, 3840\ns_add_u32 {sr(T + 9)}, {sr(VALD)}, {WS_WQ}')
        self.dest_A(29, BLK, KB, T + 9)
        a.label(lj)
        a.e(f's_lshl_b32 {sr(P + 10)}, {sr(PITCH)}, 3\ns_mul_i32 {sr(P + 9)}, {sr(P + 10)}, {sr(KB)}\ns_lshl_b32 {sr(P + 9)}, {sr(P + 9)}, 2')
        a.e(f's_lshl_b32 {sr(T)}, {sr(BLK)}, 7\ns_add_u32 {sr(P + 9)}, {sr(P + 9)}, {sr(T)}\ns_add_u32 {sr(P + 9)}, {sr(P + 9)}, {sr(VALD)}')
        a.e(f'v_mad_u32_u24 v28, v5, {sr(PITCH)}, v4')
        ja = {}

        def job_a_issue():
            a.e(f's_lshl_b32 {sr(T)}, {sr(S_W)}, 12\ns_add_u32 {sr(T)}, {sr(T)}, {L_JA}')
            for n in range(4):
                a.e(f's_add_u32 m0, {sr(T)}, {n * 1024}')
                if n:
                    a.e(f's_add_u32 {sr(P + 9)}, {sr(P + 9)}, {sr(P + 10)}')
                ja['t'] = a.vmem(f'buffer_load_dwordx4 v28, {sr(R_OUT, 4)}, {sr(P + 9)} offen{self.nt} lds')
            srd(a, R_B, S_WPHI, 32 * 800)
            a.e(f's_mul_i32 {sr(T)}, {sr(S_J1)}, 1600\ns_lshl_b32 {sr(T + 1)}, {sr(S_W)}, 9\ns_add_u32 {sr(T)}, {sr(T)}, {sr(T + 1)}')
            a.e(f's_add_u32 m0, {sr(T + 1)}, {L_WPHI}\ns_mov_b32 exec_hi, 0')
            a.vmem(f'buffer_load_dwordx4 v1, {sr(R_B, 4)}, {sr(T)} offen lds')
            a.e('s_mov_b64 exec, -1')
        if cfg.ja_at == 0:
            job_a_issue()
        a.e('v_lshrrev_b32 v9, 4, v0\nv_bfe_u32 v10, v0, 2, 2\nv_lshl_add_u32 v11, v9, 3, v10\nv_lshlrev_b32 v11, 7, v11')
        a.e(f'v_lshrrev_b32 v10, 1, v10\nv_xor_b32 v10, {sr(S_W)}, v10\nv_lshl_add_u32 v11, v10, 5, v11\nv_and_b32 v10, 3, v0\nv_lshl_add_u32 {vr(VGT)}, v10, 3, v11')
        a.e(f's_and_b32 {sr(T)}, {sr(S_I)}, 3\ns_mul_i32 {sr(T)}, {sr(T)}, 320\ns_add_u32 {sr(T)}, {sr(T)}, {L_SILU}\nv_lshlrev_b32 v9, 4, v9\nv_add_u32 {vr(VGB)}, {sr(T)}, v9')
        lj = a.newlabel('nosilu')
        a.e(f's_cmp_lg_u32 {sr(S_W)}, 0\ns_cbranch_scc1 {lj}')
        st = a.state()
        a.wait(vm=self.tok_epoch)
        for n in range(5):
            self.unpack(70 + 2 * n, 71 + 2 * n, 64 + n)
        for op in ('v_mul_f32 {d}, 0xbfb8aa3b, {s}', 'v_exp_f32 {d}, {d}', 'v_add_f32 {d}, 1.0, {d}', 'v_rcp_f32 {d}, {d}', 'v_mul_f32 {d}, {s}, {d}'):
            for n in range(10):
                a.e(op.format(d=vr(80 + n), s=vr(70 + n)))
        for n in range(5):
            a.e(f'v_cvt_pk_bf16_f32 {vr(64 + n)}, {vr(80 + 2 * n)}, {vr(81 + 2 * n)}')
        a.e(f'v_add_u32 v9, {L_SILU}, v1\nv_lshlrev_b32 v10, 2, v0\nv_add_u32 v10, {L_SILU + 1024}, v10')
        a.e('ds_write_b128 v9, v[64:67]\nds_write_b32 v10, v68\ns_waitcnt lgkmcnt(0)')
        a.set_state(st)
        a.label(lj)
        self.make_tag()
        if cfg.ja_at == 1:
            job_a_issue()
        self.jt = {}

        def jdma(r, n):
            a.e(f's_add_u32 m0, {sr(P + 3)}, {r * 4096 + n * 1024}')
            self.jt[r] = a.vmem(f'buffer_load_dwordx4 v{30 + 2 * r}, {sr((R_B, R_C)[r], 4)}, {sr((JB_OFF, JC_OFF)[r] + n)} offen{self.nt} lds')
        self.late = [lambda r=r, n=n: jdma(r, n) for r in range(2) for n in range(4)]
        self.stamp('setup')
        a.c('LayerNorm 1')
        a.e('v_and_b32 v9, 7, v0\nv_xor_b32 v10, v9, v5\nv_lshlrev_b32 v10, 4, v10\nv_lshl_add_u32 v10, v9, 7, v10')
        a.e(f's_mul_i32 {sr(T)}, {sr(S_W)}, 3072\ns_add_u32 {sr(T)}, {sr(T)}, {L_XS}\nv_add_u32 v11, {sr(T)}, v10')
        a.e(f'v_lshlrev_b32 v9, 4, v9\ns_lshl_b32 {sr(T)}, {sr(S_W)}, 2\ns_add_u32 {sr(T)}, {sr(T)}, {L_LNRED}\nv_add_u32 v10, {sr(T)}, v9\nv_add_u32 v9, {L_LNRED}, v9')
        a.e(f's_cmp_lt_u32 {sr(S_W)}, 2\ns_cselect_b32 {sr(T + 2)}, 1.0, 0')
        a.wait(vm=tx)
        self.stamp('xin')
        tk = [a.ds(f'ds_read_b128 {vr(112 + 4 * r, 4)}, v11 offset:{1024 * r}') for r in range(3)]
        X = 128
        for r in range(3):
            a.wait(lg=tk[r])
            for n in range(4):
                self.unpack(X + 8 * r + 2 * n, X + 8 * r + 2 * n + 1, 112 + 4 * r + n)

        def tree(dst, src, n):
            a.e(f'v_pk_add_f32 {vr(dst, 2)}, {vr(src, 2)}, {vr(src + 2, 2)}')
            for k in range(4, n, 2):
                a.e(f'v_pk_add_f32 {vr(dst, 2)}, {vr(dst, 2)}, {vr(src + k, 2)}')

        def all_sum(r, off, pre=None):
            self.sum_rows((r,), (11,), (3, 4, 5))
            a.ds(f'ds_write_b32 v10, {vr(r)} offset:{off}')
            if pre:
                pre()
            a.wait_all(vm=False)
            self.barrier()

        def read_sum(r, off):
            t = a.ds(f'ds_read_b128 v[12:15], v9 offset:{off}')
            a.wait(lg=t)
            a.e(f'v_add_f32 v12, v12, v13\nv_add_f32 v14, v14, v15\nv_add_f32 {vr(r)}, v12, v14\nv_mul_f32 {vr(r)}, 0x3acccccd, {vr(r)}')
        tree(152, X, 12)
        tree(154, X + 12, 12)
        a.e('v_pk_add_f32 v[152:153], v[152:153], v[154:155]\nv_add_f32 v152, v152, v153')
        all_sum(152, 0, pre=lambda: a.wait(vm=tt))
        self.stamp('tilein')
        self.fq.extend(self.gemv_items(0, P, 64))
        self.flush()
        self.stamp('gemv')
        read_sum(152, 0)
        for n in range(12):
            a.e(f'v_pk_add_f32 {vr(X + 2 * n, 2)}, {vr(X + 2 * n, 2)}, v[152:153] op_sel_hi:[1,0] neg_lo:[0,1] neg_hi:[0,1]')
        a.e(f'v_pk_mul_f32 v[154:155], {vr(X, 2)}, {vr(X, 2)}\nv_pk_mul_f32 v[156:157], {vr(X + 16, 2)}, {vr(X + 16, 2)}')
        for n in range(1, 8):
            a.e(f'v_pk_fma_f32 v[154:155], {vr(X + 2 * n, 2)}, {vr(X + 2 * n, 2)}, v[154:155]')
            if n < 4:
                a.e(f'v_pk_fma_f32 v[156:157], {vr(X + 16 + 2 * n, 2)}, {vr(X + 16 + 2 * n, 2)}, v[156:157]')
        a.e(f'v_add_f32 v154, v154, v155\nv_add_f32 v156, v156, v157\nv_fma_f32 v154, v156, {sr(T + 2)}, v154')
        all_sum(154, 128)
        read_sum(154, 128)
        a.e('v_add_f32 v154, 0x3727c5ac, v154\nv_rsq_f32 v154, v154')
        for n in range(12):
            a.e(f'v_pk_mul_f32 {vr(X + 2 * n, 2)}, {vr(X + 2 * n, 2)}, v[154:155] op_sel_hi:[1,0]')
        self.fq.extend(self.job_finish_items(lambda: ja['t'], 6, 0, 29, 44))
        self.flush()
        self.stamp('jobA')
        a.e(f's_mul_i32 {sr(T + 14)}, {sr(S_W)}, 5120\ns_add_u32 {sr(T + 14)}, {sr(T + 14)}, {WS_MOD}\ns_add_u32 {sr(T + 15)}, {sr(T + 14)}, 4096')
        a.e('v_and_b32 v41, 0xf0, v1\nv_lshrrev_b32 v40, 4, v0\nv_lshl_add_u32 v40, v40, 10, v41')
        mod_loads = [(f'buffer_load_dwordx4 {vr(64 + 4 * k, 4)}, v40, {sr(R_WS, 4)}, {sr(T + 14)} offen offset:{256 * k} sc1', -(64 + 4 * k)) for k in range(4)]
        mod_loads += [(f'buffer_load_dwordx4 {vr(80 + 4 * k, 4)}, v41, {sr(R_WS, 4)}, {sr(T + 15)} offen offset:{256 * k} sc1', -(80 + 4 * k)) for k in range(4)]
        self.wg_flag_off(P + 2, 2, 1, None, WS_FW, 3)
        self.gemv_role(20, 40, P + 1, P)
        gm = [lambda n=n: self.jt.__setitem__('g', self.gemv_dma(n, P + 1, L_MT2)) for n in range(5)]
        self.late = gm + self.late if cfg.gm_first else self.late + gm
        a.e(f's_mul_i32 {sr(T + 1)}, {sr(S_W)}, 1280\ns_add_u32 {sr(T + 1)}, {sr(T + 1)}, {L_MODP}')
        a.e(f'v_add_u32 v42, {sr(T + 1)}, v1\nv_add_u32 v43, {sr(T + 1)}, v41')
        a.e(f's_lshl_b32 {sr(T + 2)}, {sr(S_W)}, 8\ns_add_u32 {sr(T + 2)}, {sr(T + 2)}, {L_MODP}\nv_lshlrev_b32 v158, 5, v5\nv_add_u32 v158, {sr(T + 2)}, v158')
        a.e('v_and_b32 v159, 7, v0\nv_lshlrev_b32 v159, 4, v159\nv_lshl_add_u32 v159, v5, 8, v159')
        H0 = P + 4
        a.e(f's_lshr_b32 {sr(H0)}, s2, 1\ns_mul_i32 {sr(H0)}, {sr(H0)}, 20480\ns_and_b32 {sr(T)}, s2, 1\ns_lshl_b32 {sr(T)}, {sr(T)}, 7')
        a.e(f's_add_u32 {sr(H0)}, {sr(H0)}, {sr(T)}\ns_lshl_b32 {sr(T)}, {sr(S_W)}, 11\ns_add_u32 {sr(H0)}, {sr(H0)}, {sr(T)}')
        a.e(f's_add_u32 {sr(H0)}, {sr(H0)}, {WS_H}\ns_add_u32 {sr(H0 + 1)}, {sr(H0)}, 8192\ns_add_u32 {sr(H0 + 2)}, {sr(H0)}, 16384')
        a.e(f's_cmp_lt_u32 {sr(S_W)}, 2\ns_cselect_b32 {sr(H0 + 2)}, {sr(H0 + 2)}, {OOB}\ns_cselect_b32 {sr(P + 10)}, 0, 1.0\ns_mov_b32 {sr(P + 11)}, {sr(P + 10)}')
        self.wg_flag_off(P + 7, 2, 1, None, WS_FH, spare=True)
        a.e(f'v_min_u32 v9, 49, v0\nv_lshlrev_b32 {vr(VFW)}, 5, v9\ns_mov_b32 {sr(P + 8)}, {WS_FW}')
        self.job_bc_setup(0, R_B, 30, 31, JB_OFF)
        self.publish(self.tok_job, P + 2)
        self.stamp('fw')
        tok = self.poll_issue(mod_loads)
        n1 = min(cfg.late1, 9 if cfg.gm_first else 4)
        for _ in range(n1):
            self.late.pop(0)()
        self.job_bc_setup(1, R_C, 32, 33, JC_OFF)
        for _ in range(cfg.late1 - n1):
            self.late.pop(0)()
        self.poll_check(mod_loads, tok)
        self.stamp('mod')
        self.mod_finish(64, 0, P + 10)
        a.ds('ds_write_b128 v42, v[64:67]')
        self.mod_finish(80, 1, P + 10)
        a.ds('ds_write_b128 v43, v[80:83] offset:1024')
        a.wait_all(vm=False)
        self.barrier()
        tk = []
        for r in range(3):
            a.ds(f'ds_read_b128 {vr(64 + 16 * r, 4)}, v158 offset:{1024 * r + 2560}')
            a.ds(f'ds_read_b128 {vr(68 + 16 * r, 4)}, v158 offset:{1024 * r + 2576}')
            a.ds(f'ds_read_b128 {vr(72 + 16 * r, 4)}, v158 offset:{1024 * r}')
            tk.append(a.ds(f'ds_read_b128 {vr(76 + 16 * r, 4)}, v158 offset:{1024 * r + 16}'))
        for r in range(3):
            a.wait(lg=tk[r])
            for n in range(4):
                x, s, b = X + 8 * r + 2 * n, 64 + 16 * r + 2 * n, 72 + 16 * r + 2 * n
                a.e(f'v_pk_fma_f32 {vr(x, 2)}, {vr(x, 2)}, {vr(s, 2)}, {vr(b, 2)}')
            for n in range(4):
                a.e(f'v_cvt_pk_bf16_f32 {vr(112 + 4 * r + n)}, {vr(X + 8 * r + 2 * n)}, {vr(X + 8 * r + 2 * n + 1)}')
            self.tok_h = a.vmem(f'buffer_store_dwordx4 {vr(112 + 4 * r, 4)}, v159, {sr(R_WS, 4)}, {sr(H0 + r)} offen sc1')
        self.stamp('hst')
        fw_loads = [(f'buffer_load_dwordx4 v[44:47], {vr(VFW)}, {sr(R_WS, 4)}, {sr(P + 8)} offen sc1', (44, 46)),
                    (f'buffer_load_dwordx4 v[40:43], {vr(VFW)}, {sr(R_WS, 4)}, {sr(P + 8)} offen offset:16 sc1', (40, 42))]
        self.fw = (fw_loads, self.poll_issue(fw_loads))
        for _ in range(cfg.late2):
            self.late.pop(0)()
        gen1.addresses(self)


    def finish(self):
        a, cfg = self.a, self.cfg
        if cfg.diag:
            self.stamp('end')
            self.wave_flag_off(T, 2, 1, None, WS_DBG, 8)
            a.e('v_lshlrev_b32 v9, 2, v0')
            a.vmem(f'buffer_store_dword {vr(V_STAMP)}, v9, {sr(R_WS, 4)}, {sr(T)} offen')
        if cfg.probe:
            a.wait_all()
            self.stamp('end')
            a.e(f's_add_u32 {sr(S_STAMP + 2)}, {sr(S_STAMP + 2)}, 7000')
            a.label('L_probe')
            a.e(f's_memrealtime {sr(T, 2)}\ns_waitcnt lgkmcnt(0)\ns_sub_u32 {sr(T)}, {sr(T)}, {sr(S_STAMP + 2)}\ns_cmp_lt_i32 {sr(T)}, 0\ns_cbranch_scc1 L_probe')
        a.label('L_end')
        a.e('s_endpgm')

    def advance_epoch(self):
        a = self.a
        a.e(f's_lshl_b32 {sr(T + 15)}, s2, 2\ns_add_u32 {sr(T + 15)}, {sr(T + 15)}, {sr(S_W)}\ns_cmp_eq_u32 {sr(T + 15)}, 0\ns_cselect_b32 {sr(T + 15)}, {WS_EPOCH}, {OOB}')
        self.flag(T + 15)

    def build(self):
        import gen1
        import gen2
        cfg = self.cfg
        self.prologue()
        self.startup()
        ring = gen2.Ring(self)
        for name, fn in (('phase1', gen1.phase1), ('phase2', gen2.phase2), ('phase34', gen2.phase34)):
            if cfg.stop == 'startup':
                break
            fn(self, ring)
            if cfg.stop == name:
                break
        if cfg.stop or cfg.diag:
            self.a.wait_all()
        self.finish()
        body = pad_hazards(self.a.lines)
        head = open(f'cdna_kernels/{NAME}.s.ref').read().split('\n')
        out = []
        for l in head:
            if l.startswith('; @launch'):
                out.append('; @launch grid=(256,1,1) block=(256,1,1) lds=163840')
            else:
                out.append(l)
            if l.startswith(NAME + '_kernel:'):
                break
        out += body
        out += ['.section .rodata,"a"', '.p2align 6', f'.amdhsa_kernel {NAME}_kernel',
                '  .amdhsa_next_free_vgpr 512', '  .amdhsa_next_free_sgpr 102', '  .amdhsa_accum_offset 256',
                '  .amdhsa_group_segment_fixed_size 0', '  .amdhsa_kernarg_size 104', '  .amdhsa_user_sgpr_count 2',
                '  .amdhsa_user_sgpr_kernarg_segment_ptr 1', '  .amdhsa_system_sgpr_workgroup_id_x 1',
                '  .amdhsa_float_denorm_mode_32 3', '.end_amdhsa_kernel', '']
        return '\n'.join(out)


def main():
    cfg = Cfg()
    path = None
    for arg in sys.argv[1:]:
        if '=' in arg:
            k, v = arg.split('=')
            old = getattr(Cfg, k)
            setattr(cfg, k, (v == '1') if isinstance(old, bool) else int(v) if isinstance(old, int) else v)
        else:
            path = arg
    g = Gen(cfg)
    text = g.build()
    open(path, 'w').write(text)
    open(path + '.stamps', 'w').write('\n'.join(g.stamps))
    print('wrote', path, len(text), 'bytes,', text.count('\n'), 'lines')


if __name__ == '__main__':
    import gen
    gen.main()
```

```python
from asmlib import vr, ar, sr
from gen import *
import gen2


def wphi_frags(g):
    a = g.a
    a.e('v_and_b32 v9, 1, v0\nv_mul_u32_u24 v9, 0x320, v9\nv_bfe_u32 v10, v0, 2, 2\nv_mul_u32_u24 v10, 40, v10\nv_add_u32 v9, v9, v10')
    a.e('v_bfe_u32 v10, v0, 1, 1\nv_bfe_u32 v11, v0, 4, 1\nv_lshl_add_u32 v10, v11, 1, v10\nv_lshl_add_u32 v9, v10, 3, v9')
    a.e(f'v_add_u32 v9, {L_WPHI}, v9')
    a.e('v_bfe_u32 v10, v0, 2, 1\nv_lshrrev_b32 v11, 5, v0\nv_cmp_eq_u32 vcc, v10, v11\nv_cndmask_b32 v10, 0, -1, vcc')
    for t in range(2):
        for s in range(3):
            r = 200 + 12 * t + 4 * s
            a.ds(f'ds_read_b64_tr_b16 {vr(r, 2)}, v9 offset:{32 * t + 320 * s}')
            if s < 2:
                a.ds(f'ds_read_b64_tr_b16 {vr(r + 2, 2)}, v9 offset:{32 * t + 320 * s + 160}')
            else:
                a.e(f'v_mov_b32 {vr(r + 2)}, 0\nv_mov_b32 {vr(r + 3)}, 0')
    a.wait_all(vm=False)
    for t in range(2):
        for n in range(10):
            r = 200 + 12 * t + n
            a.e(f'v_and_b32 {vr(r)}, {vr(r)}, v10')


def addresses(g):
    a = g.a
    g.frag16_addr(VA0, 9)
    a.e(f'v_add_u32 {vr(VA1)}, 0x10000, {vr(VA0)}')
    a.e(f's_mul_i32 {sr(T)}, {sr(S_W)}, {32 * TP}\ns_add_u32 {sr(T)}, {sr(T)}, {L_TS}\nv_and_b32 v9, 31, v0\nv_mul_u32_u24 v9, {TP}, v9\nv_add_u32 v9, {sr(T)}, v9')
    a.e(f'v_lshrrev_b32 v11, 5, v0\nv_mul_u32_u24 v10, 48, v11\nv_add_u32 {vr(VTW1)}, v10, v9\nv_mul_u32_u24 v11, 80, v11\nv_add_u32 {vr(VTW0)}, v11, v9')
    a.e(f'v_lshrrev_b32 v11, 5, v0\nv_bfe_u32 v12, v0, 2, 2\nv_lshl_add_u32 v11, v11, 3, v12\nv_mul_u32_u24 v11, {TP}, v11')
    a.e('v_bfe_u32 v12, v0, 4, 1\nv_and_b32 v13, 3, v0\nv_lshl_add_u32 v14, v12, 2, v13')
    a.e('v_and_b32 v15, 1, v0\nv_lshlrev_b32 v15, 1, v15\nv_lshl_add_u32 v15, v12, 2, v15\nv_bfe_u32 v13, v0, 1, 1\nv_add_u32 v15, v15, v13')
    a.e(f's_lshr_b32 {sr(T)}, {sr(S_W)}, 1\ns_and_b32 {sr(T + 1)}, {sr(S_W)}, 1\ns_mul_i32 {sr(T + 2)}, {sr(T)}, 80\ns_lshl_b32 {sr(T + 3)}, {sr(T + 1)}, 6')
    a.e(f's_add_u32 {sr(T + 2)}, {sr(T + 2)}, {sr(T + 3)}\ns_add_u32 {sr(T + 2)}, {sr(T + 2)}, {L_TS}\ns_mul_i32 {sr(T + 3)}, {sr(T)}, 48\ns_add_u32 {sr(T + 3)}, {sr(T + 3)}, {L_TS + 160}')
    a.e(f'v_lshl_add_u32 v12, v15, 3, v11\nv_add_u32 {vr(VTR0)}, {sr(T + 2)}, v12\nv_lshl_add_u32 v13, v14, 3, v11\nv_add_u32 {vr(VTR1)}, {sr(T + 3)}, v13')
    a.e(f'v_lshrrev_b32 v9, 5, v0\nv_and_b32 v10, 31, v0\ns_mul_i32 {sr(T)}, {sr(T)}, 5\ns_lshl_b32 {sr(T + 2)}, {sr(T + 1)}, 2\ns_add_u32 {sr(T)}, {sr(T)}, {sr(T + 2)}')
    a.e(f'v_add_u32 v11, {sr(T)}, v9\nv_mul_u32_u24 v11, 21, v11\nv_add_u32 v11, v11, v10\nv_lshlrev_b32 v11, 4, v11')
    a.e(f's_cmp_eq_u32 {sr(T + 1)}, 0\ns_cselect_b32 {sr(T + 2)}, 64, 32\ns_cselect_b32 {sr(T + 3)}, {42 * 16}, {OOB}')
    a.e(f'v_mov_b32 v9, {OOB}\nv_cmp_gt_u32 vcc, 21, v10\nv_cndmask_b32 v11, v9, v11, vcc\nv_cmp_gt_u32 vcc, {sr(T + 2)}, v0\nv_cndmask_b32 {vr(VKS)}, v9, v11, vcc')
    a.e(f's_lshl_b32 {sr(T)}, {sr(S_J1)}, 4\ns_add_u32 {sr(T)}, {sr(T)}, {sr(S_G1)}\ns_mul_i32 {sr(P + 4)}, {sr(T)}, 3456\ns_add_u32 {sr(P + 4)}, {sr(P + 4)}, {WS_KVP}')
    a.e(f's_add_u32 {sr(P + 5)}, {sr(P + 4)}, {sr(T + 3)}')
    g.wg_flag_off(P + 6, S_J1, 16, S_G1, WS_FKV)
    a.e(f's_lshl_b32 {sr(T)}, {sr(S_W)}, 6\nv_add_u32 v9, {sr(T)}, v0\nv_lshlrev_b32 v10, 4, v9\nv_mov_b32 v11, {OOB}')
    a.e(f'v_cmp_gt_u32 vcc, 0xd2, v9\nv_cndmask_b32 {vr(VGL)}, v11, v10, vcc')
    a.e('v_mul_u32_u24 v11, 0x187, v9\nv_lshrrev_b32 v11, 13, v11\nv_mul_u32_u24 v12, 21, v11\nv_sub_u32 v12, v9, v12')
    a.e(f'v_mul_u32_u24 v12, 80, v12\nv_lshl_add_u32 v12, v11, 4, v12\nv_add_u32 v13, {1920 - 80}, v12')
    a.e(f'v_cmp_gt_u32 {sr(T + 2, 2)}, 5, v11\nv_cndmask_b32 v12, v13, v12, {sr(T + 2, 2)}')
    a.e(f'v_mov_b32 v13, 3920\nv_cndmask_b32 v12, v13, v12, vcc\nv_add_u32 {vr(VKW)}, {L_KVR}, v12')
    a.e('v_bfe_u32 v9, v0, 2, 1\nv_bfe_u32 v10, v0, 3, 2\nv_and_b32 v11, 3, v0\nv_lshrrev_b32 v12, 5, v0')
    a.e('v_add_u32 v13, v10, v9\nv_lshl_add_u32 v13, v13, 2, v11')
    a.e('v_lshlrev_b32 v14, 2, v9\nv_sub_u32 v14, 4, v14\nv_cmp_eq_u32 vcc, 0, v10\nv_cndmask_b32 v14, 5, v14, vcc\nv_lshl_add_u32 v14, v14, 2, v11')
    a.e(f'v_mul_u32_u24 v15, 0x780, v9\nv_add_u32 v15, {L_KVR}, v15\nv_mov_b32 v10, {L_KVZ}\nv_cmp_eq_u32 vcc, v9, v12')
    a.e(f'v_mul_u32_u24 v13, 80, v13\nv_add_u32 v13, v13, v15\nv_cndmask_b32 {vr(VO0)}, v10, v13, vcc')
    a.e(f'v_mul_u32_u24 v14, 80, v14\nv_add_u32 v14, v14, v15\nv_cndmask_b32 {vr(VO1)}, v10, v14, vcc')
    a.e(f'v_bfe_u32 v9, v0, 4, 1\nv_mul_u32_u24 v9, 0x5000, v9\nv_and_b32 v10, 0xf0, v1\nv_add_u32 {vr(VOS1)}, v9, v10\nv_mul_u32_u24 v12, 0x300, v12\nv_add_u32 {vr(VOS0)}, {vr(VOS1)}, v12')
    a.e(f'v_and_b32 v9, 15, v0\nv_lshlrev_b32 {vr(VF128)}, 7, v9')


class Paced:
    def __init__(self, g, every, at=None):
        self.g, self.every, self.n, self.at = g, every, 0, at or {}

    def e(self, text):
        for t in text.split('\n'):
            self.g.a.e(t)
            self.n += 1
            if self.n in self.at:
                self.at[self.n]()
            if self.n % self.every == 0:
                self.g.fill(1)


def feature_map(g, out, mid=None, every=8, at=None, half=None):
    a = g.a
    for t in (1, 0):
        for s in range(3):
            acc = 140 + 16 * t
            a.e(f'v_mfma_f32_32x32x16_bf16 {vr(acc, 16)}, {vr(200 + 12 * t + 4 * s, 4)}, {vr(128 + 4 * s, 4)}, {vr(acc, 16) if s else 0}')
    if mid:
        mid()
    a = Paced(g, every, at)
    Pr, E = 140, 172
    for op, d in (('max', 192), ('min', 194)):
        a.e(f'v_{op}3_f32 {vr(d)}, {vr(Pr + 16)}, {vr(Pr + 17)}, {vr(Pr + 18)}')
    for op, d in (('max', 192), ('min', 194)):
        a.e(f'v_{op}3_f32 {vr(d + 1)}, {vr(Pr + 19)}, {vr(Pr)}, {vr(Pr + 1)}')
    for k in range(2, 16, 2):
        for op, d in (('max', 192), ('min', 194)):
            dd = d + ((k >> 1) & 1 ^ 1)
            a.e(f'v_{op}3_f32 {vr(dd)}, {vr(dd)}, {vr(Pr + k)}, {vr(Pr + k + 1)}')
    for op, d in (('max', 192), ('min', 194)):
        a.e(f'v_{op}_f32 {vr(d)}, {vr(d)}, {vr(d + 1)}')
    a.e(f'v_mul_f32 v192, {sr(S_L2E)}, v192\nv_mul_f32 v194, {sr(S_L2E)}, v194')
    for n in range(10):
        a.e(f'v_pk_fma_f32 {vr(E + 2 * n, 2)}, {vr(Pr + 2 * n, 2)}, {sr(S_L2E, 2)}, v[192:193] op_sel_hi:[1,1,0] neg_lo:[0,0,1] neg_hi:[0,0,1]')
        a.e(f'v_pk_fma_f32 {vr(Pr + 2 * n, 2)}, {vr(Pr + 2 * n, 2)}, {sr(S_L2E, 2)}, v[194:195] op_sel_hi:[1,1,0] neg_lo:[1,0,0] neg_hi:[1,0,0]')
    for b in (E, Pr):
        for n in range(20):
            a.e(f'v_exp_f32 {vr(b + n)}, {vr(b + n)}')
    for b, d in ((E, 192), (Pr, 196)):
        a.e(f'v_pk_add_f32 {vr(d, 2)}, {vr(b, 2)}, {vr(b + 2, 2)}\nv_pk_add_f32 {vr(d + 2, 2)}, {vr(b + 4, 2)}, {vr(b + 6, 2)}')
    for k in range(8, 20, 4):
        for b, d in ((E, 192), (Pr, 196)):
            a.e(f'v_pk_add_f32 {vr(d, 2)}, {vr(d, 2)}, {vr(b + k, 2)}\nv_pk_add_f32 {vr(d + 2, 2)}, {vr(d + 2, 2)}, {vr(b + k + 2, 2)}')
    for d in (192, 196):
        a.e(f'v_pk_add_f32 {vr(d, 2)}, {vr(d, 2)}, {vr(d + 2, 2)}')
    for d in (192, 196):
        a.e(f'v_add_f32 {vr(d)}, {vr(d)}, {vr(d + 1)}')
    for d in (192, 196):
        a.e(f'v_rcp_f32 {vr(d)}, {vr(d)}')
    for b, d, o in ((E, 192, out), (Pr, 196, out + 10)):
        for n in range(10):
            a.e(f'v_pk_mul_f32 {vr(b + 2 * n, 2)}, {vr(b + 2 * n, 2)}, {vr(d, 2)} op_sel_hi:[1,0]')
        for n in range(10):
            a.e(f'v_cvt_pk_bf16_f32 {vr(o + n)}, {vr(b + 2 * n)}, {vr(b + 2 * n + 1)}')
            if half and (o - out + n) % 4 == 3:
                half((o - out + n) // 4)


def phase1(g, ring):
    a, cfg = g.a, g.cfg
    a.c('phase 1: qkv projection')
    DST, HB = P + 11, T + 15
    VW0, VW1 = 247, 248
    a.e(f's_mul_i32 {sr(T)}, {sr(S_J1)}, 163840\ns_add_u32 {sr(T)}, {sr(T)}, {WS_WQ}\ns_lshl_b32 {sr(DST)}, {sr(S_W)}, 10\nv_add_u32 {vr(VW0)}, {sr(T)}, v1')
    a.e(f's_cmp_eq_u32 {sr(S_W)}, 3\ns_cselect_b32 {sr(T)}, 16, 0\nv_and_b32 v9, {sr(T)}, v0\nv_mov_b32 v10, {OOB}\nv_cmp_eq_u32 vcc, 0, v9\nv_cndmask_b32 {vr(VW1)}, v10, {vr(VW0)}, vcc')
    wtok = {}
    W = {'issued': 0, 'free': 24, 'pub': 0, 'm0': None}

    def wdma():
        q = W['issued']
        assert q < W['free']
        if q == 24:
            a.e(f'v_add_u32 {vr(VW0)}, {24 * 4096}, {vr(VW0)}\nv_add_u32 {vr(VW1)}, {24 * 4096}, {vr(VW1)}')
        if W['m0'] != q:
            a.e(f's_add_u32 m0, {sr(DST)}, {(q % 24) * 4096}')
        wtok[q] = a.vmem(f'buffer_load_dwordx4 {vr(VW0 + (q & 1))}, {sr(R_WS, 4)}, m0 offen sc1 lds')
        W['issued'] += 1
        if q < 39:
            a.e(f's_add_u32 m0, {sr(DST)}, {((q + 1) % 24) * 4096}')
            W['m0'] = q + 1

    def wsync(consumed, need):
        need = min(need, 40)
        while W['issued'] < need:
            wdma()
        if need > W['pub']:
            a.wait(vm=wtok[need - 1])
            W['pub'] = need
        g.barrier()
        W['free'] = 24 + consumed
    tf = g.publish(g.tok_h, P + 7)
    g.stamp('hpub')
    g.poll_check(*g.fw)
    for q in range(cfg.w1a):
        wdma()
    a.e(f's_lshl_b32 {sr(T)}, {sr(S_G1)}, 2\ns_add_u32 {sr(T)}, {sr(T)}, {sr(S_W)}\ns_mul_i32 {sr(HB)}, {sr(T)}, 40960\ns_add_u32 {sr(HB)}, {sr(HB)}, {WS_H}')
    a.e(f's_lshl_b32 {sr(T + 14)}, {sr(T)}, 9\ns_add_u32 {sr(T + 14)}, {sr(T + 14)}, {WS_FH}\nv_and_b32 v40, 3, v0\nv_lshlrev_b32 v40, 7, v40')
    fh = [(f'buffer_load_dwordx2 v[42:43], v40, {sr(R_WS, 4)}, {sr(T + 14)} offen sc1', 42)]
    wphi_frags(g)
    a.e(f's_add_u32 {sr(P + 8)}, {sr(HB)}, 20480')
    if cfg.ackw:
        a.wait(vm=tf)
    tok = g.poll_issue(fh)
    for q in range(cfg.w1a, cfg.w1b):
        wdma()
    gemv_early = cfg.gm_first and cfg.late1 + cfg.late2 >= 5
    if gemv_early:
        g.fq.extend(g.gemv_items(L_MT2, P, 64))
        g.flush()
    g.poll_check(fh, tok)
    g.stamp('hready')
    htok = {}

    def hload(s, tt):
        sb = (HB, P + 8)[tt]
        if s and s % 4 == 0:
            a.e(f's_add_u32 {sr(sb)}, {sr(sb)}, 4096')
        htok[s, tt] = a.vmem(f'buffer_load_dwordx4 {ar(8 * s + 4 * tt, 4)}, v1, {sr(R_WS, 4)}, {sr(sb)} offen offset:{(s % 4) * 1024} sc1')
    for s in range(cfg.hpre):
        hload(s, 0)
        hload(s, 1)
    hq = [(s, tt) for s in range(cfg.hpre, 20) for tt in range(2)]
    jt, late = g.jt, g.late
    fin = g.job_finish_items(lambda: jt[0], 34, 0, 31, 128) + g.job_finish_items(lambda: jt[1], 34, 4096, 33, 148)
    wsync(0, 12)
    LA = 6
    rt = {}

    def wread(f):
        assert f < 4 * W['pub']
        off = (f % 96) * 1024
        rt[f] = a.ds(f'ds_read_b128 {ar(160 + 4 * (f % 8), 4)}, {vr(VA0 + (off >> 16))} offset:{off & 0xffff}')
    for f in range(LA):
        wread(f)
    for f in range(160):
        s, n = divmod(f, 8)
        a.wait(vm=htok[s, 1] if n == 0 else None, lg=rt[min(f + (f & 1 ^ 1), 159)])
        for tt in range(2):
            acc = 64 + 20 * tt + 4 * n if n < 5 else 104 + 12 * tt + 4 * (n - 5)
            a.e(f'v_mfma_f32_16x16x32_bf16 {vr(acc, 4)}, {ar(160 + 4 * (f % 8), 4)}, {ar(8 * s + 4 * tt, 4)}, {vr(acc, 4) if s else 0}')
            if tt == 0 and f + LA < 160:
                wread(f + LA)
            if tt == 1 and f % 2 == 0:
                wok = W['issued'] < min(W['free'], 40)
                if hq and (hq[0][0] <= s + cfg.hpre or not wok):
                    hload(*hq.pop(0))
                elif wok:
                    wdma()
                elif f >= cfg.cold0 and (f // 2) % (cfg.coldp // 2) == 0 and late:
                    late.pop(0)()
                    W['m0'] = None
            if cfg.jfin and f >= 124 and not late and fin:
                g.fq.append(fin.pop(0))
                g.fill(1)
        if f % 32 == 31 and f < 159:
            wsync((f + 1) // 4, (f + 1) // 4 + 12)
    assert not hq
    g.barrier()
    g.stamp('pass1')
    a.c('feature map of k, partial kv')
    for n in range(10):
        a.e(f'v_cvt_pk_bf16_f32 {vr(128 + n)}, {vr(64 + 2 * n)}, {vr(65 + 2 * n)}\nv_cvt_pk_bf16_f32 {vr(40 + n)}, {vr(84 + 2 * n)}, {vr(85 + 2 * n)}')
    a.e('v_mov_b32 v138, 0\nv_mov_b32 v139, 0\nv_mov_b32 v50, 0x3f80\nv_mov_b32 v51, 0')
    for n in range(10):
        a.e(f'v_permlane16_swap_b32 {vr(128 + n)}, {vr(40 + n)}')

    def mid_k():
        for n in range(3):
            a.ds(f'ds_write_b128 {vr(VTW1)}, {vr(40 + 4 * n, 4)} offset:{160 + 16 * n}')
        ring.setup()
        ring.limit = 14
        ring.vfrag, ring.pre_max = VA0, 0

        def lt(f):
            f()
            ring.m0_for = None
        g.fq.extend([lambda f=f: lt(f) for f in late])
        g.fq.extend([ring.issue] * 14)
    feature_map(g, 224, mid_k, cfg.kpace, half=lambda n: a.ds(f'ds_write_b128 {vr(VTW0)}, {vr(224 + 4 * n, 4)} offset:{16 * n}'))
    a.wait_all(vm=False)
    g.barrier()
    tk = []
    for s in range(8):
        for z in range(2):
            a.ds(f'ds_read_b64_tr_b16 {vr(128 + 8 * s + 2 * z, 2)}, {vr(VTR0)} offset:{(16 * s + 4 * z) * TP}')
        for z in range(2):
            t = a.ds(f'ds_read_b64_tr_b16 {vr(132 + 8 * s + 2 * z, 2)}, {vr(VTR1)} offset:{(16 * s + 4 * z) * TP}')
        tk.append(t)
        if s >= 2:
            a.wait(lg=tk[s - 2])
            a.e(f'v_mfma_f32_32x32x16_bf16 v[64:79], {vr(128 + 8 * (s - 2), 4)}, {vr(132 + 8 * (s - 2), 4)}, {"v[64:79]" if s > 2 else 0}')
    for s in (6, 7):
        a.wait(lg=tk[s])
        a.e(f'v_mfma_f32_32x32x16_bf16 v[64:79], {vr(128 + 8 * s, 4)}, {vr(132 + 8 * s, 4)}, v[64:79]')
    a.e(f's_lshl_b32 {sr(T + 14)}, {sr(S_J1)}, 11\ns_add_u32 {sr(T + 14)}, {sr(T + 14)}, {WS_FKV}')
    a.e(f's_mul_i32 {sr(T + 4)}, {sr(S_J1)}, {16 * 3456}\ns_add_u32 {sr(T + 4)}, {sr(T + 4)}, {WS_KVP}')
    g.wg_flag_off(T + 13, 2, 1, None, WS_FRT, 3)
    for n in range(8):
        a.e(f'v_cvt_pk_bf16_f32 {vr(52 + n)}, {vr(64 + 2 * n)}, {vr(65 + 2 * n)}')
    a.vmem(f'buffer_store_dwordx4 v[52:55], {vr(VKS)}, {sr(R_WS, 4)}, {sr(P + 4)} offen sc1')
    tkv = a.vmem(f'buffer_store_dwordx4 v[56:59], {vr(VKS)}, {sr(R_WS, 4)}, {sr(P + 5)} offen sc1')
    g.stamp('kvst')
    g.flush()
    g.fq.extend(fin)
    g.flush()
    gen2.phase2_addresses(g)
    for n in range(3):
        for tt in range(2):
            for k in range(2):
                a.e(f'v_cvt_pk_bf16_f32 {vr(128 + 4 * n + 2 * tt + k)}, {vr(104 + 12 * tt + 4 * n + 2 * k)}, {vr(105 + 12 * tt + 4 * n + 2 * k)}')
    a.e(f'v_mov_b32 v60, 0\nv_mov_b32 v61, 0\nv_mov_b32 v62, 0\nv_mov_b32 v63, 0\nv_min_u32 v9, 4, v0\nv_lshlrev_b32 v9, 4, v9\nv_add_u32 v9, {L_KVZ}, v9')
    a.ds('ds_write_b128 v9, v[60:63]')
    for n in range(3):
        for k in range(2):
            a.e(f'v_permlane16_swap_b32 {vr(128 + 4 * n + k)}, {vr(130 + 4 * n + k)}')
    g.publish(tkv, P + 6)
    g.stamp('kvpub')
    ring.limit = 25
    if not gemv_early:
        g.fq.extend(g.gemv_items(L_MT2, P, 64))
        g.flush()
    gt = []
    fkv = [(f'buffer_load_dwordx2 v[12:13], {vr(VF128)}, {sr(R_WS, 4)}, {sr(T + 14)} offen sc1', 12)]
    st = {}

    def gl(k):
        if k:
            a.e(f's_add_u32 {sr(T + 4)}, {sr(T + 4)}, 3456')
        gt.append(a.vmem(f'buffer_load_dwordx4 {vr(64 + 4 * k, 4)}, {vr(VGL)}, {sr(R_WS, 4)}, {sr(T + 4)} offen sc1'))

    def ask():
        st['t'] = g.poll_issue(fkv)

    def check():
        g.poll_check(fkv, st['t'])
        g.barrier()
        g.flag(T + 13)
        g.fq.extendleft(reversed([lambda k=k: gl(k) for k in range(16)]))
    feature_map(g, 224, lambda: g.fq.extend([ring.issue] * 11), cfg.qpace, {cfg.kv1: ask, cfg.kv2: check})
    g.stamp('phiq')
    a.c('reduce kv, o = num / den')
    a.e(f's_mov_b32 {sr(T + 2)}, 0x3f80\ns_mov_b32 {sr(T + 3)}, 0x3f800000')
    for n in range(8):
        a.e(f'v_mov_b32 {vr(52 + n)}, 0')
    while len(gt) < 16:
        g.fill(1)
    g.fq.extend(gen2.phase2_loads(g, ring))
    for k in range(16):
        a.wait(vm=gt[k])
        if k % cfg.gpace == 0:
            g.fill(1)
        for n in range(4):
            a.e(f'v_dot2c_f32_bf16 {vr(52 + 2 * n)}, {sr(T + 2)}, {vr(64 + 4 * k + n)}')
            a.e(f'v_dot2c_f32_bf16 {vr(53 + 2 * n)}, {sr(T + 3)}, {vr(64 + 4 * k + n)}')
    for n in range(4):
        a.e(f'v_cvt_pk_bf16_f32 {vr(60 + n)}, {vr(52 + 2 * n)}, {vr(53 + 2 * n)}')
    a.ds(f'ds_write_b128 {vr(VKW)}, v[60:63]')
    a.e(f's_lshl_b32 {sr(T)}, {sr(S_G1)}, 2\ns_add_u32 {sr(T)}, {sr(T)}, {sr(S_W)}\ns_mul_i32 {sr(T + 7)}, {sr(T)}, 40960\ns_mul_i32 {sr(T)}, {sr(S_J1)}, 1280')
    a.e(f's_add_u32 {sr(T + 7)}, {sr(T + 7)}, {sr(T)}\ns_add_u32 {sr(T + 7)}, {sr(T + 7)}, {WS_O}')
    g.wg_flag_off(P + 6, S_G1, 16, S_J1, WS_FO, spare=True)
    a.wait_all(vm=False)
    g.barrier()
    tk = []
    for t in (1, 0):
        for s in range(5):
            tk.append(a.ds(f'ds_read_b128 {vr(128 + 20 * t + 4 * s, 4)}, {vr(VO0 + t)} offset:{16 * s}'))
    n = 0
    for t in (1, 0):
        for s in range(5):
            a.wait(lg=tk[n])
            n += 1
            acc = 64 + 16 * t
            a.e(f'v_mfma_f32_32x32x16_bf16 {vr(acc, 16)}, {vr(128 + 20 * t + 4 * s, 4)}, {vr(224 + 4 * s, 4)}, {vr(acc, 16) if s else 0}')
            g.fill(1)
    g.flush()
    a.e('v_add_f32 v84, 0x358637bd, v84\nv_rcp_f32 v84, v84')
    for n in (8, 9, 0, 1, 2, 3, 4, 5, 6, 7):
        a.e(f'v_pk_mul_f32 {vr(64 + 2 * n, 2)}, {vr(64 + 2 * n, 2)}, v[84:85] op_sel_hi:[1,0]')
    for n in (8, 9, 0, 1, 2, 3, 4, 5, 6, 7):
        a.e(f'v_cvt_pk_bf16_f32 {vr(128 + n)}, {vr(64 + 2 * n)}, {vr(65 + 2 * n)}')
    a.e('v_permlane32_swap_b32 v136, v138\nv_permlane32_swap_b32 v137, v139')
    a.vmem(f'buffer_store_dwordx4 v[128:131], {vr(VOS0)}, {sr(R_WS, 4)}, {sr(T + 7)} offen sc1')
    a.vmem(f'buffer_store_dwordx4 v[132:135], {vr(VOS0)}, {sr(R_WS, 4)}, {sr(T + 7)} offen offset:256 sc1')
    a.e('s_mov_b32 exec_hi, 0')
    g.tok_o = a.vmem(f'buffer_store_dwordx4 v[136:139], {vr(VOS1)}, {sr(R_WS, 4)}, {sr(T + 7)} offen offset:512 sc1')
    a.e('s_mov_b64 exec, -1')
    g.stamp('ost')
    assert not g.fq
```

```python
import sys
from collections import deque
from asmlib import Asm, pad_hazards, align_runs, vr, ar, sr

NAME = 'adaLN_cond__linear_kernel_hedgehog__glu_gated_swiglu__prompt'

WS_EPOCH = 0
WS_FW = 0x1000
WS_FRT = 0x4000
WS_FH = 0x10000
WS_FKV = 0x30000
WS_FO = 0x50000
WS_FY = 0x70000
WS_FHA = 0x90000
WS_FHB = 0xB0000
WS_MOD = 0xD0000
WS_ST = 0xE0000
WS_KVP = 0x120000
WS_WQ = 0x200000
WS_H = 0x480000
WS_O = 0x700000
WS_Y = 0x980000
WS_WO = 0xC00000
WS_W13 = 0xD00000
WS_W2 = 0x1180000
WS_HH = 0x1400000
WS_SPARE = 0x1B00000
WS_DBG = 0x1B40000
WS_SIZE = 0x1C00000
OOB_VAL = 0x40000000
OOB = 's3'

L_XS = 20480
L_JA = 32768
L_JB = 102400
L_TS = 51200
L_MISC = 153600
L_MODP = L_XS
L_SILU = L_MISC + 5120
L_LNRED = L_MISC + 6400
L_WPHI = L_MISC + 6656
L_KVR = L_MISC
L_KVZ = L_KVR + 3840
L_PAR = L_MISC + 8704
L_MT2 = 135168
L_XCH = 143360
L_XR = 143360
TP = 336
RING = 160

S_X, S_WQKV, S_WPHI, S_WO, S_W1, S_W3, S_W2, S_C, S_WMOD, S_OUT, S_DBG, S_WS = 4, 6, 8, 10, 14, 16, 18, 20, 22, 24, 26, 28
S_TAG = 30
R_WS, R_A, R_B, R_C, R_X, R_OUT = 32, 36, 40, 44, 48, 52
S_W, S_XC, S_I, S_G1, S_J1, S_M2, S_N2, S_G3, S_J3 = 56, 57, 58, 59, 60, 61, 62, 63, 64
S_SPIN = 65
S_SPARE = 21
S_HB = 0
S_TB = 26
S_L2E = 66
T = 68
P = 84
S_PM = 96
S_STAMP = 98
JB_OFF, JC_OFF = 4, 8

V_TAG = 2
V_STAMP = 255
VA0, VA1, VA2, VTW0, VTW1, VTR0, VTR1, VKS, VGL, VKW, VO0, VO1 = range(16, 28)
VOS0, VOS1, VF128, VFW = 36, 37, 38, 39
VGM, VGT, VGB = 244, 245, 246


class Cfg:
    diag = False
    probe = None
    stop = None
    map2 = '8x1'
    map3 = '2x4'
    spin = 200000
    pfcode = 1
    nt = 1
    align = 0
    local = ''
    hmap = 0
    only = ''
    outp = ''
    skip = 'issued,prep,yst,xin'
    ackw = 1
    ja_at = 1
    map1 = '2x4'
    cold0 = 58
    coldp = 4
    late1 = 4
    gm_first = 0
    kpace = 0
    late2 = 0
    jfin = 0
    wspan = 0
    kvpub = 19
    jb_at = 1
    w1b = 20
    w1a = 10
    hpre = 8
    rt_early = 0
    qpace = 6
    r0b = 6
    stbar = 0
    p2split = 1
    gpace = 1
    epace = 1000
    r0 = 26
    r1 = 8
    r2 = 20
    r3 = 10
    r3b = 12
    r4 = 10
    r5 = 10
    r6 = 10
    ypre = 5
    lead = 80
    wait2 = 1
    sy = 24
    puba = 12
    chk_a = 11
    chkd = 3
    pubb = 8
    chk_b = 18
    chkd4 = 10


def srd(a, r, ptr, size):
    a.e(f's_mov_b32 {sr(r)}, {sr(ptr)}\ns_mov_b32 {sr(r + 1)}, {sr(ptr + 1)}\n'
        f's_mov_b32 {sr(r + 2)}, {size}\ns_mov_b32 {sr(r + 3)}, 0x20000')


class Gen:
    def __init__(self, cfg):
        self.cfg = cfg
        self.a = Asm()
        self.stamps = []
        self.nt = ' nt' if cfg.nt else ''
        self.fq = deque()

    def stamp(self, name):
        a = self.a
        if self.cfg.probe:
            if name == self.cfg.probe:
                a.e(f's_memrealtime {sr(S_STAMP + 2, 2)}')
                a.wait_all(vm=False)
            return
        if not self.cfg.diag or name in self.cfg.skip.split(','):
            return
        if self.cfg.only and name not in self.cfg.only.split(',') + ['start', 'end']:
            return
        idx = len(self.stamps)
        self.stamps.append(name)
        a.e(f's_memrealtime {sr(S_STAMP, 2)}\ns_memtime {sr(S_STAMP + 2, 2)}')
        a.wait_all(vm=False)
        a.e(f'v_writelane_b32 {vr(V_STAMP)}, {sr(S_STAMP)}, {idx}\nv_writelane_b32 {vr(V_STAMP)}, {sr(S_STAMP + 2)}, {idx + 32}')

    def barrier(self):
        self.a.e('s_barrier')

    def fill(self, n):
        while n > 0 and self.fq:
            f = self.fq.popleft()
            if callable(f):
                f()
            else:
                self.a.e(f)
            n -= 1

    def flush(self):
        self.fill(1 << 30)

    def _cmp_tags(self, loads):
        a = self.a
        first = True
        pairs = [t for _, t in loads if isinstance(t, tuple) and t[0] == 'pair']
        if pairs:
            for n, (_, b, tb) in enumerate(pairs):
                a.e(f'v_xor_b32 {vr(b)}, {vr(b)}, {vr(tb)}\nv_xor_b32 {vr(b + 1)}, {vr(b + 1)}, {vr(tb + 1)}')
                a.e(f'v_or3_b32 v9, {vr(b)}, {vr(b + 1)}, {"v9" if n else vr(b)}')
            a.e('v_and_b32 v9, 0xff, v9\nv_cmp_ne_u32 vcc, 0, v9')
            return
        byte = [-t for _, t in loads if not isinstance(t, tuple) and t < 0]
        if byte:
            for n, b in enumerate(byte):
                for r in range(4):
                    a.e(f'v_xor_b32 {vr(b + r)}, {sr(S_TB + r)}, {vr(b + r)}')
                a.e(f'v_or3_b32 v9, {vr(b)}, {vr(b + 1)}, {"v9" if n else vr(b)}\nv_or3_b32 v9, {vr(b + 2)}, {vr(b + 3)}, v9')
            a.e('v_and_b32 v9, 0xff, v9\nv_cmp_ne_u32 vcc, 0, v9')
            first = False
        for _, tags in loads:
            for t in (tags if isinstance(tags, tuple) else (tags,)):
                if t < 0:
                    continue
                if first:
                    a.e(f'v_cmp_ne_u64 vcc, {sr(S_TAG, 2)}, {vr(t, 2)}')
                    first = False
                else:
                    a.e(f'v_cmp_ne_u64 {sr(S_PM, 2)}, {sr(S_TAG, 2)}, {vr(t, 2)}\ns_or_b64 vcc, vcc, {sr(S_PM, 2)}')

    def poll_issue(self, loads):
        tok = None
        for text, _ in loads:
            tok = self.a.vmem(text)
        return tok

    def poll_check(self, loads, tok):
        a = self.a
        top, done = a.newlabel('poll'), a.newlabel('polled')
        a.wait(vm=tok)
        self._cmp_tags(loads)
        a.e(f's_cbranch_vccz {done}\ns_mov_b32 {sr(S_SPIN)}, {self.cfg.spin}')
        a.label(top)
        for text, _ in loads:
            a.e(text)
        a.e('s_waitcnt vmcnt(0)')
        self._cmp_tags(loads)
        a.e(f's_cbranch_vccz {done}')
        a.e(f's_sub_u32 {sr(S_SPIN)}, {sr(S_SPIN)}, 1\ns_cmp_lg_u32 {sr(S_SPIN)}, 0\ns_cbranch_scc1 {top}')
        a.label(done)

    def poll(self, loads):
        self.poll_check(loads, self.poll_issue(loads))

    def sc(self, kind):
        return '' if kind in self.cfg.local else ' sc1'

    def flag(self, soff, kind='-'):
        a = self.a
        a.e('s_mov_b64 exec, 1')
        tok = a.vmem(f'buffer_store_dwordx2 {vr(V_TAG, 2)}, off, {sr(R_WS, 4)}, {sr(soff)}{self.sc(kind)}')
        a.e('s_mov_b64 exec, -1')
        return tok

    def wg_flag_off(self, dst, hi, mul, lo, base, shift=7, spare=False):
        a = self.a
        a.e(f's_mul_i32 {sr(dst)}, {sr(hi)}, {mul}')
        if lo is not None:
            a.e(f's_add_u32 {sr(dst)}, {sr(dst)}, {sr(lo)}')
        a.e(f's_lshl_b32 {sr(dst)}, {sr(dst)}, {shift}\ns_add_u32 {sr(dst)}, {sr(dst)}, {base}')
        a.e(f's_cmp_eq_u32 {sr(S_W)}, 0\ns_cselect_b32 {sr(dst)}, {sr(dst)}, {sr(S_SPARE) if spare else OOB}')

    def publish(self, tok, soff, kind='-'):
        self.a.wait(vm=tok)
        self.barrier()
        return self.flag(soff, kind)

    def wave_flag_off(self, dst, hi, mul, lo, base, shift=7):
        a = self.a
        a.e(f's_mul_i32 {sr(dst)}, {sr(hi)}, {mul}')
        if lo is not None:
            a.e(f's_add_u32 {sr(dst)}, {sr(dst)}, {sr(lo)}')
        a.e(f's_lshl_b32 {sr(dst)}, {sr(dst)}, 2\ns_add_u32 {sr(dst)}, {sr(dst)}, {sr(S_W)}')
        a.e(f's_lshl_b32 {sr(dst)}, {sr(dst)}, {shift}\ns_add_u32 {sr(dst)}, {sr(dst)}, {base}')

    def unpack(self, lo, hi, src):
        self.a.e(f'v_lshlrev_b32 {vr(lo)}, 16, {vr(src)}\nv_and_b32 {vr(hi)}, 0xffff0000, {vr(src)}')

    def round_pair(self, lo, tmp):
        self.a.e(f'v_cvt_pk_bf16_f32 {vr(tmp)}, {vr(lo)}, {vr(lo + 1)}')
        self.unpack(lo, lo + 1, tmp)

    def sum_rows(self, regs, tmps, bits):
        a = self.a
        for b in bits:
            if b == 3:
                for r in regs:
                    a.e(f'v_add_f32_dpp {vr(r)}, {vr(r)}, {vr(r)} row_ror:8 row_mask:0xf bank_mask:0xf')
            else:
                for r, t in zip(regs, tmps):
                    a.e(f'v_mov_b32 {vr(t)}, {vr(r)}')
                for r, t in zip(regs, tmps):
                    a.e(f'v_permlane{16 if b == 4 else 32}_swap_b32 {vr(r)}, {vr(t)}')
                for r, t in zip(regs, tmps):
                    a.e(f'v_add_f32 {vr(r)}, {vr(r)}, {vr(t)}')

    def frag16_addr(self, vd, t):
        a = self.a
        a.e(f'v_bfe_u32 {vr(t)}, v0, 2, 2\nv_lshlrev_b32 {vr(vd)}, 8, {vr(t)}\nv_and_b32 {vr(t)}, 2, {vr(t)}')
        a.e(f'v_lshrrev_b32 {vr(t + 1)}, 4, v0\nv_xor_b32 {vr(t)}, {vr(t)}, {vr(t + 1)}\nv_lshl_add_u32 {vr(vd)}, {vr(t)}, 6, {vr(vd)}')
        a.e(f'v_add_u32 {vr(vd)}, {vr(vd)}, v8')

    def gemv_role(self, first, count, s_src, s_dst):
        a = self.a
        a.e(f's_lshr_b32 {sr(T)}, {sr(S_I)}, 2\ns_lshl_b32 {sr(T)}, {sr(T)}, 3\ns_add_u32 {sr(T)}, {sr(T)}, {sr(S_XC)}')
        a.e(f's_and_b32 {sr(T + 1)}, {sr(S_I)}, 3\ns_mul_i32 {sr(s_src)}, {sr(T + 1)}, 160\ns_mul_i32 {sr(s_dst)}, {sr(S_W)}, 40\ns_add_u32 {sr(s_src)}, {sr(s_src)}, {sr(s_dst)}')
        a.e(f's_mul_i32 {sr(s_src)}, {sr(s_src)}, 7680\ns_lshl_b32 {sr(s_dst)}, {sr(T)}, 7\ns_add_u32 {sr(s_src)}, {sr(s_src)}, {sr(s_dst)}')
        a.e(f's_lshl_b32 {sr(s_dst)}, {sr(T)}, 2\ns_add_u32 {sr(s_dst)}, {sr(s_dst)}, {sr(T + 1)}\ns_lshl_b32 {sr(s_dst)}, {sr(s_dst)}, 2\ns_add_u32 {sr(s_dst)}, {sr(s_dst)}, {sr(S_W)}')
        a.e(f's_lshl_b32 {sr(s_dst)}, {sr(s_dst)}, 6\ns_add_u32 {sr(s_dst)}, {sr(s_dst)}, {WS_MOD}')
        a.e(f's_sub_u32 {sr(T)}, {sr(T)}, {first}\ns_cmp_lt_u32 {sr(T)}, {count}\ns_cselect_b32 {sr(s_src)}, {sr(s_src)}, {OOB}\ns_cselect_b32 {sr(s_dst)}, {sr(s_dst)}, {OOB}')

    def gemv_dma(self, n, s_src, lds):
        a = self.a
        a.e(f's_mul_i32 {sr(T)}, {sr(S_W)}, 5120\ns_add_u32 m0, {sr(T)}, {lds + n * 1024}\ns_add_u32 {sr(T)}, {sr(s_src)}, {n * 8 * 7680}')
        return a.vmem(f'buffer_load_dwordx4 {vr(VGM)}, {sr(R_A, 4)}, {sr(T)} offen{self.nt} lds')

    def gemv_items(self, lds, s_dst, base):
        a = self.a
        tk = {}
        A, B, D = base, base + 20, base + 40
        it = [f'v_add_u32 {vr(D + 4)}, {lds}, {vr(VGT)}']
        for s in range(5):
            it.append(lambda s=s: a.ds(f'ds_read_b128 {vr(B + 4 * s, 4)}, {vr(VGB)} offset:{64 * s}'))
            it.append(lambda s=s: a.ds(f'ds_read_b64_tr_b16 {vr(A + 4 * s, 2)}, {vr(D + 4)} offset:{4096 * s}'))
            it.append(lambda s=s: tk.__setitem__(s, a.ds(f'ds_read_b64_tr_b16 {vr(A + 4 * s + 2, 2)}, {vr(D + 4)} offset:{4096 * s + 512}')))
        for s in range(5):
            def mm(s=s):
                a.wait(lg=tk[s])
                a.e(f'v_mfma_f32_16x16x32_bf16 {vr(D, 4)}, {vr(A + 4 * s, 4)}, {vr(B + 4 * s, 4)}, {vr(D, 4) if s else 0}')
            it.append(mm)

        def fin():
            for op in ('v_add_u32 {d}, 0x80, {d}', 'v_and_b32 {d}, 0xffffff00, {d}', 'v_or_b32 {d}, {t}, {d}'):
                for r in range(4):
                    a.e(op.format(d=vr(D + r), t=sr(S_TB + r)))
            a.e('s_mov_b32 exec_lo, 0x00010001\ns_mov_b32 exec_hi, 0x00010001')
            a.vmem(f'buffer_store_dwordx4 {vr(D, 4)}, v0, {sr(R_WS, 4)}, {sr(s_dst)} offen sc1')
            a.e('s_mov_b64 exec, -1')
        it.append(fin)
        return it

    def mod_finish(self, base, n, s_add):
        a = self.a
        for h in (0, 2):
            a.e(f'v_pk_add_f32 {vr(base + h, 2)}, {vr(base + h, 2)}, {vr(base + 4 + h, 2)}\nv_pk_add_f32 {vr(base + 8 + h, 2)}, {vr(base + 8 + h, 2)}, {vr(base + 12 + h, 2)}')
        for h in (0, 2):
            a.e(f'v_pk_add_f32 {vr(base + h, 2)}, {vr(base + h, 2)}, {vr(base + 8 + h, 2)}')
        self.round_pair(base, base + 4)
        self.round_pair(base + 2, base + 5)
        for h in (0, 2):
            a.e(f'v_pk_add_f32 {vr(base + h, 2)}, {vr(base + h, 2)}, {sr(s_add, 2)}')
        self.round_pair(base, base + 4)
        self.round_pair(base + 2, base + 5)

    def prologue(self):
        a, cfg = self.a, self.cfg
        a.e('s_cmp_ge_u32 s2, 256\ns_cbranch_scc1 L_end')
        if cfg.probe == 'entry':
            self.stamp('entry')
        a.e('s_load_dwordx16 s[4:19], s[0:1], 0\ns_load_dwordx8 s[20:27], s[0:1], 64\ns_load_dwordx2 s[28:29], s[0:1], 96')
        a.e(f's_mov_b32 s3, {OOB_VAL}')
        a.e('v_lshrrev_b32 v1, 6, v0\nv_and_b32 v0, 63, v0')
        a.e(f'v_readfirstlane_b32 {sr(S_W)}, v1\nv_lshlrev_b32 v1, 4, v0')
        if cfg.diag:
            a.e(f'v_mov_b32 {vr(V_STAMP)}, 0')
        a.e(f's_and_b32 {sr(S_XC)}, s2, 7\ns_lshr_b32 {sr(S_I)}, s2, 3')
        if cfg.hmap:
            a.e(f's_lshl_b32 {sr(S_SPIN)}, {sr(S_XC)}, 5\ns_add_u32 {sr(S_SPIN)}, {sr(S_SPIN)}, {sr(S_I)}')
        else:
            a.e(f's_mov_b32 {sr(S_SPIN)}, s2')
        if cfg.pfcode:
            self.prefetch_code()
        a.e('v_bfe_u32 v9, v0, 4, 1\nv_and_b32 v10, 7, v0\nv_xor_b32 v4, v10, v9\nv_lshlrev_b32 v4, 4, v4\nv_lshrrev_b32 v5, 3, v0')
        a.e(f's_mov_b32 {sr(T)}, 1280\nv_xor_b32 v11, v10, v5\nv_lshlrev_b32 v11, 4, v11\nv_mad_u32_u24 v12, v5, {sr(T)}, v11')
        a.e(f's_mov_b32 {sr(T)}, 7680\nv_and_b32 v11, 2, v5\nv_xor_b32 v11, v10, v11\nv_lshlrev_b32 v11, 4, v11\nv_mad_u32_u24 {vr(VGM)}, v5, {sr(T)}, v11')
        a.e(f's_mul_i32 {sr(T + 2)}, {sr(S_SPIN)}, 10240\ns_lshl_b32 {sr(T + 1)}, {sr(S_W)}, 7\ns_add_u32 {sr(T + 2)}, {sr(T + 2)}, {sr(T + 1)}')
        a.e(f's_cmp_lt_u32 {sr(S_W)}, 2\ns_cselect_b32 {sr(T + 3)}, {sr(T + 2)}, {OOB}')
        a.e(f's_mul_i32 {sr(T + 5)}, {sr(S_W)}, 3072\ns_add_u32 {sr(T + 5)}, {sr(T + 5)}, {L_XS}')
        self.gemv_role(0, 20, T + 4, P)
        a.e(f's_waitcnt lgkmcnt(0)\ns_mov_b32 {sr(S_HB)}, {sr(S_SPIN)}')
        srd(a, R_A, S_WMOD, 640 * 7680)
        srd(a, R_X, S_X, 2048 * 1280)
        srd(a, R_WS, S_WS, WS_SIZE)
        self.stamp('start')

    def prefetch_code(self):
        a = self.a
        if self.cfg.pfcode == 2:
            a.e(f's_getpc_b64 {sr(T, 2)}')
            a.label('L_pc')
            a.e(f's_and_b32 {sr(T + 2)}, {sr(S_I)}, 1\ns_lshl_b32 {sr(T + 2)}, {sr(T + 2)}, 2\ns_add_u32 {sr(T + 2)}, {sr(T + 2)}, {sr(S_W)}')
            a.e(f's_lshl_b32 {sr(T + 2)}, {sr(T + 2)}, 13\nv_lshlrev_b32 v4, 7, v0\nv_add_u32 v4, {sr(T + 2)}, v4')
            a.e(f'v_min_u32 v4, L_end-L_pc, v4\nv_mov_b32 v5, {sr(T + 1)}\nv_add_co_u32 v4, vcc, {sr(T)}, v4\nv_addc_co_u32 v5, vcc, 0, v5, vcc')
            a.vmem('global_load_dword v254, v[4:5], off')
            return
        a.e(f's_getpc_b64 {sr(T, 2)}')
        a.label('L_pc')
        a.e(f's_lshl_b32 {sr(T + 2)}, {sr(S_I)}, 2\ns_add_u32 {sr(T + 2)}, {sr(T + 2)}, {sr(S_W)}\ns_lshl_b32 {sr(T + 2)}, {sr(T + 2)}, 9')
        a.e(f'v_and_b32 v4, 3, v0\nv_lshlrev_b32 v4, 7, v4\nv_add_u32 v4, {sr(T + 2)}, v4')
        a.e(f'v_min_u32 v4, L_end-L_pc, v4\nv_mov_b32 v5, {sr(T + 1)}\nv_add_co_u32 v4, vcc, {sr(T)}, v4\nv_addc_co_u32 v5, vcc, 0, v5, vcc')
        a.e('s_mov_b64 exec, 15')
        a.vmem('global_load_dword v254, v[4:5], off')
        a.e('s_mov_b64 exec, -1')

    def roles(self):
        a, cfg = self.a, self.cfg

        def role(dm, dn, xm_shift, nn_bits_x, i_shift):
            a.e(f's_lshr_b32 {sr(T)}, {sr(S_XC)}, {xm_shift}\ns_lshl_b32 {sr(T)}, {sr(T)}, {5 - i_shift}')
            a.e(f's_lshr_b32 {sr(T + 1)}, {sr(S_I)}, {i_shift}\ns_add_u32 {sr(dm)}, {sr(T)}, {sr(T + 1)}')
            a.e(f's_and_b32 {sr(T)}, {sr(S_XC)}, {(1 << nn_bits_x) - 1}\ns_lshl_b32 {sr(T)}, {sr(T)}, {i_shift}')
            a.e(f's_and_b32 {sr(T + 1)}, {sr(S_I)}, {(1 << i_shift) - 1}\ns_add_u32 {sr(dn)}, {sr(T)}, {sr(T + 1)}')
        role(S_G1, S_J1, *{'8x1': (0, 0, 4), '4x2': (1, 1, 3), '2x4': (2, 2, 2), '1x8': (3, 3, 1)}[cfg.map1])
        role(S_M2, S_N2, *{'8x1': (0, 0, 3), '4x2': (1, 1, 2), '2x4': (2, 2, 1)}[cfg.map2])
        role(S_G3, S_J3, *{'8x1': (0, 0, 4), '4x2': (1, 1, 3), '2x4': (2, 2, 2)}[cfg.map3])
        self.wave_flag_off(S_SPARE, 2, 1, None, WS_SPARE)
        a.e(f's_mov_b32 {sr(S_L2E)}, 0x3fb8aa3b\ns_mov_b32 {sr(S_L2E + 1)}, 0x3fb8aa3b')

    def make_tag(self):
        a = self.a
        a.wait(vm=self.tok_epoch)
        a.e(f'v_readfirstlane_b32 {sr(S_TAG)}, {vr(V_TAG)}\nv_readfirstlane_b32 {sr(S_TAG + 1)}, {vr(V_TAG + 1)}')
        a.e(f's_mul_i32 {sr(S_TAG)}, {sr(S_TAG)}, 1664525\ns_add_u32 {sr(S_TAG)}, {sr(S_TAG)}, 1013904223')
        a.e(f's_mul_i32 {sr(S_TAG + 1)}, {sr(S_TAG + 1)}, 22695477\ns_add_u32 {sr(S_TAG + 1)}, {sr(S_TAG + 1)}, 0x3c6ef35f')
        a.e(f'v_mov_b32 {vr(V_TAG)}, {sr(S_TAG)}\nv_mov_b32 {vr(V_TAG + 1)}, {sr(S_TAG + 1)}')
        for r in range(4):
            a.e(f's_bfe_u32 {sr(S_TB + r)}, {sr(S_TAG)}, {0x80000 + 8 * r}')

    def job_tr_bases(self):
        a = self.a
        a.e('v_lshrrev_b32 v6, 4, v0\nv_lshlrev_b32 v6, 10, v6\nv_bfe_u32 v9, v0, 2, 2\nv_lshl_add_u32 v6, v9, 7, v6')
        a.e('v_lshrrev_b32 v9, 1, v9\nv_and_b32 v8, 3, v0\nv_lshl_or_b32 v9, v8, 1, v9\nv_lshl_add_u32 v6, v9, 4, v6\nv_lshlrev_b32 v8, 4, v8')
        a.e(f's_lshl_b32 {sr(T)}, {sr(S_W)}, 13\ns_add_u32 {sr(P + 3)}, {sr(T)}, {L_JB}\nv_add_u32 v34, {sr(P + 3)}, v6\nv_xor_b32 v35, 16, v34')
        a.e(f's_lshl_b32 {sr(T)}, {sr(S_W)}, 12\ns_add_u32 {sr(T)}, {sr(T)}, {L_JA}\nv_add_u32 v6, {sr(T)}, v6\nv_xor_b32 v7, 16, v6')

    def job_finish_items(self, tok, vb, off, vdest, base):
        a = self.a
        st = {}
        items = [lambda: a.wait(vm=tok())]
        for n in range(4):
            for z in range(2):
                def rd(n=n, z=z):
                    st[n] = a.ds(f'ds_read_b64_tr_b16 {vr(base + 4 * n + 2 * z, 2)}, v{vb + (n >> 1)} offset:{off + z * 512 + (n & 1) * 8}')
                items.append(rd)
        for n in range(4):
            items.append(f'v_add_u32_dpp {vr(base + 16 + n)}, {vr(vdest)}, v8 quad_perm:[{n},{n},{n},{n}] row_mask:0xf bank_mask:0xf')
        for n in range(4):
            def sto(n=n):
                a.wait(lg=st[n])
                self.tok_job = a.vmem(f'buffer_store_dwordx4 {vr(base + 4 * n, 4)}, {vr(base + 16 + n)}, {sr(R_WS, 4)}, 0 offen sc1')
            items.append(sto)
        return items

    def piece_swizzle(self, acc, g):
        self.a.e(f'v_and_b32 {vr(g)}, 2, {vr(g)}\nv_lshrrev_b32 v15, 4, v0\nv_xor_b32 {vr(g)}, {vr(g)}, v15\nv_lshl_add_u32 {vr(acc)}, {vr(g)}, 6, {vr(acc)}')

    def dest_A(self, vd, s_blk, s_kb, s_base):
        a = self.a
        a.e(f's_mul_i32 {sr(T)}, {sr(s_blk)}, 205\ns_lshr_b32 {sr(T)}, {sr(T)}, 11')
        a.e(f's_mul_i32 {sr(T + 1)}, {sr(T)}, 10\ns_sub_u32 {sr(T + 1)}, {sr(s_blk)}, {sr(T + 1)}\ns_lshl_b32 {sr(T + 1)}, {sr(T + 1)}, 4')
        a.e(f'v_and_b32 v9, 15, v0\nv_add_u32 v9, {sr(T + 1)}, v9')
        a.e('v_mul_u32_u24 v10, 103, v9\nv_lshrrev_b32 v10, 9, v10')
        a.e('v_mul_u32_u24 v11, 5, v10\nv_sub_u32 v11, v9, v11')
        a.e('v_and_b32 v12, 1, v10\nv_lshlrev_b32 v14, 1, v12')
        a.e(f's_lshr_b32 {sr(T + 1)}, {sr(T)}, 1\nv_add_u32 v13, {sr(T + 1)}, v14\nv_lshlrev_b32 v13, 8, v13\nv_lshl_add_u32 v13, v11, 10, v13')
        a.e('v_and_b32 v9, 1, v11\nv_add_u32 v9, v9, v14\nv_cmp_gt_u32 vcc, 4, v11\nv_cndmask_b32 v9, v12, v9, vcc')
        a.e('v_lshlrev_b32 v9, 8, v9\nv_lshrrev_b32 v11, 1, v11\nv_lshl_add_u32 v9, v11, 10, v9')
        a.e(f's_cmp_eq_u32 {sr(T)}, 0\ns_cselect_b64 vcc, -1, 0\ns_mul_i32 {sr(T + 1)}, {sr(s_kb)}, 5120\ns_mul_i32 {sr(T + 2)}, {sr(s_kb)}, 2560')
        a.e(f's_add_u32 {sr(T + 2)}, {sr(T + 2)}, 102400\ns_cmp_eq_u32 {sr(T)}, 0\ns_cselect_b32 {sr(T + 1)}, {sr(T + 2)}, {sr(T + 1)}')
        a.e(f's_add_u32 {sr(T + 1)}, {sr(T + 1)}, {sr(s_base)}\nv_cndmask_b32 v13, v13, v9, vcc')
        self.piece_swizzle(13, 14)
        a.e(f's_mov_b32 {sr(T + 2)}, 153600\nv_lshrrev_b32 v10, 1, v10\nv_mad_u32_u24 v13, v10, {sr(T + 2)}, v13')
        a.e(f'v_add_u32 {vr(vd)}, {sr(T + 1)}, v13')

    def dest_B(self, vd, s_blk, s_kb, s_up):
        a = self.a
        a.e(f's_lshl_b32 {sr(T)}, {sr(s_blk)}, 4\nv_and_b32 v9, 15, v0\nv_add_u32 v9, {sr(T)}, v9')
        a.e('v_lshrrev_b32 v10, 1, v9\nv_and_b32 v9, 1, v9')
        a.e('v_mul_u32_u24 v11, 19, v10\nv_lshrrev_b32 v11, 9, v11')
        a.e('v_mul_u32_u24 v12, 27, v11\nv_sub_u32 v12, v10, v12')
        a.e('v_cmp_le_u32 vcc, 14, v12\nv_lshlrev_b32 v11, 1, v11\nv_subrev_u32 v13, 14, v12')
        a.e('v_cndmask_b32 v12, v12, v13, vcc\nv_addc_co_u32 v11, vcc, 0, v11, vcc')
        a.e('v_lshrrev_b32 v13, 2, v12\nv_lshl_add_u32 v13, v13, 1, v9\nv_and_b32 v14, 3, v12')
        a.e('v_lshl_add_u32 v10, v14, 1, v9\nv_cmp_gt_u32 vcc, 12, v12\nv_cndmask_b32 v13, 6, v13, vcc\nv_cndmask_b32 v14, v10, v14, vcc')
        a.e(f's_lshl_b32 {sr(T)}, {sr(s_kb)}, 13\ns_mul_i32 {sr(T + 1)}, {sr(s_kb)}, 6144\ns_add_u32 {sr(T + 1)}, {sr(T + 1)}, {163840 - 8192}')
        a.e(f'v_mov_b32 v9, {sr(T)}\nv_mov_b32 v10, {sr(T + 1)}\nv_cmp_gt_u32 vcc, 4, v13\nv_cndmask_b32 v9, v10, v9, vcc')
        a.e('v_lshl_add_u32 v13, v13, 11, v9\nv_lshl_add_u32 v13, v14, 8, v13')
        self.piece_swizzle(13, 14)
        a.e(f's_mov_b32 {sr(T)}, 286720\nv_mad_u32_u24 v13, v11, {sr(T)}, v13')
        a.e(f's_lshl_b32 {sr(T)}, {sr(s_up)}, 10\ns_add_u32 {sr(T)}, {sr(T)}, {WS_W13}\nv_add_u32 {vr(vd)}, {sr(T)}, v13')

    def dest_C(self, vd, s_blk, s_kb, half, s_base, stride):
        a = self.a
        if half is None:
            a.e(f's_mov_b32 {sr(T + 1)}, {sr(s_kb)}')
        else:
            a.e(f's_sub_u32 {sr(T + 1)}, {sr(s_kb)}, {half}\ns_lshl_b32 {sr(T + 1)}, {sr(T + 1)}, 1\ns_add_u32 {sr(T + 1)}, {sr(T + 1)}, 1')
            a.e(f's_lshl_b32 {sr(T + 2)}, {sr(s_kb)}, 1\ns_cmp_lt_u32 {sr(s_kb)}, {half}\ns_cselect_b32 {sr(T + 1)}, {sr(T + 2)}, {sr(T + 1)}')
        a.e(f's_mul_i32 {sr(T + 1)}, {sr(T + 1)}, 5120\ns_add_u32 {sr(T + 1)}, {sr(T + 1)}, {sr(s_base)}')
        a.e(f's_lshl_b32 {sr(T)}, {sr(s_blk)}, 4\nv_and_b32 v9, 15, v0\nv_add_u32 v9, {sr(T)}, v9')
        a.e('v_mul_u32_u24 v10, 103, v9\nv_lshrrev_b32 v10, 11, v10')
        a.e('v_mul_u32_u24 v11, 20, v10\nv_sub_u32 v11, v9, v11')
        a.e('v_lshrrev_b32 v12, 3, v11\nv_lshlrev_b32 v12, 1, v12\nv_and_b32 v13, 1, v11\nv_add_u32 v13, v12, v13')
        a.e('v_bfe_u32 v14, v11, 1, 2\nv_and_b32 v15, 3, v11\nv_cmp_gt_u32 vcc, 16, v11')
        a.e('v_cndmask_b32 v13, 4, v13, vcc\nv_cndmask_b32 v14, v15, v14, vcc')
        a.e('v_lshlrev_b32 v13, 10, v13\nv_lshl_add_u32 v13, v14, 8, v13')
        self.piece_swizzle(13, 14)
        a.e(f's_mov_b32 {sr(T)}, {stride}\nv_mad_u32_u24 v13, v10, {sr(T)}, v13\nv_add_u32 {vr(vd)}, {sr(T + 1)}, v13')

    def job_bc_setup(self, rnd, rs, voff, vd, offs):
        a = self.a
        J, BLK, KB = T + 4, T + 5, T + 6
        lw2, ldone = a.newlabel('jw2'), a.newlabel('jdone')
        a.e(f's_lshl_b32 {sr(J)}, s2, 2\ns_add_u32 {sr(J)}, {sr(J)}, {sr(S_W)}')
        if rnd:
            a.e(f's_add_u32 {sr(J)}, {sr(J)}, 1024\ns_cmp_ge_u32 {sr(J)}, 1080\ns_cbranch_scc1 {lw2}')
        a.e(f's_cmp_ge_u32 {sr(J)}, 540\ns_cselect_b32 {sr(T + 8)}, 1, 0')
        a.e(f's_cselect_b32 {sr(rs)}, {sr(S_W3)}, {sr(S_W1)}\ns_cselect_b32 {sr(rs + 1)}, {sr(S_W3 + 1)}, {sr(S_W1 + 1)}')
        a.e(f's_cselect_b32 {sr(T + 9)}, 540, 0\ns_sub_u32 {sr(J)}, {sr(J)}, {sr(T + 9)}')
        a.e(f's_mov_b32 {sr(rs + 2)}, {640 * 3456}\ns_mov_b32 {sr(rs + 3)}, 0x20000')
        a.e(f's_mul_i32 {sr(KB)}, {sr(J)}, 607\ns_lshr_b32 {sr(KB)}, {sr(KB)}, 14')
        a.e(f's_mul_i32 {sr(BLK)}, {sr(KB)}, 27\ns_sub_u32 {sr(BLK)}, {sr(J)}, {sr(BLK)}')
        self.dest_B(vd, BLK, KB, T + 8)
        a.e(f's_mov_b32 {sr(T)}, 3456\nv_mad_u32_u24 {vr(voff)}, v5, {sr(T)}, v4')
        a.e(f's_mul_i32 {sr(T + 10)}, {sr(KB)}, {32 * 3456}\ns_lshl_b32 {sr(BLK)}, {sr(BLK)}, 7\ns_add_u32 {sr(T + 10)}, {sr(T + 10)}, {sr(BLK)}')
        for n in range(1, 4):
            a.e(f's_add_u32 {sr(T + 10 + n)}, {sr(T + 10)}, {n * 8 * 3456}')
        if rnd:
            a.e(f's_branch {ldone}')
            a.label(lw2)
            srd(a, rs, S_W2, 1728 * 1280)
            a.e(f's_sub_u32 {sr(J)}, {sr(J)}, 1080\ns_mov_b32 {sr(T + 9)}, {WS_W2}')
            a.e(f's_cmp_lt_u32 {sr(J)}, 560\ns_cselect_b32 {sr(T + 9)}, {sr(T + 9)}, {OOB}\ns_cselect_b32 {sr(T + 8)}, 0, {OOB}\ns_cselect_b32 {sr(J)}, {sr(J)}, 0')
            a.e(f's_mul_i32 {sr(KB)}, {sr(J)}, 205\ns_lshr_b32 {sr(KB)}, {sr(KB)}, 11')
            a.e(f's_mul_i32 {sr(BLK)}, {sr(KB)}, 10\ns_sub_u32 {sr(BLK)}, {sr(J)}, {sr(BLK)}')
            self.dest_C(vd, BLK, KB, None, T + 9, 286720)
            a.e(f's_mov_b32 {sr(T)}, 1280\nv_mad_u32_u24 {vr(voff)}, v5, {sr(T)}, v4')
            a.e(f's_lshl_b32 {sr(BLK)}, {sr(BLK)}, 7\ns_add_u32 {sr(BLK)}, {sr(BLK)}, {sr(T + 8)}')
            a.e(f's_mul_i32 {sr(T + 7)}, {sr(KB)}, 37\ns_lshr_b32 {sr(T + 7)}, {sr(T + 7)}, 9\ns_mul_i32 {sr(T)}, {sr(T + 7)}, 14\ns_sub_u32 {sr(KB)}, {sr(KB)}, {sr(T)}')
            a.e(f's_lshl_b32 {sr(KB)}, {sr(KB)}, 2\ns_mul_i32 {sr(T + 7)}, {sr(T + 7)}, 54')
            a.e(f's_lshr_b32 {sr(T)}, {sr(KB)}, 4\ns_mul_i32 {sr(T)}, {sr(T)}, 27\ns_bfe_u32 {sr(T + 1)}, {sr(KB)}, 0x10003\ns_mul_i32 {sr(T + 1)}, {sr(T + 1)}, 14')
            a.e(f's_add_u32 {sr(T)}, {sr(T)}, {sr(T + 1)}\ns_and_b32 {sr(T + 1)}, {sr(KB)}, 7\ns_add_u32 {sr(T + 4)}, {sr(T)}, {sr(T + 1)}')
            for n in range(4):
                R, UU = T, T + 1
                a.e(f's_add_u32 {sr(R)}, {sr(KB)}, {n - 32}\ns_add_u32 {sr(UU)}, {sr(R)}, 8')
                for lim in (6, 11, 17):
                    a.e(f's_cmp_ge_i32 {sr(R)}, {lim}\ns_cselect_b32 {sr(T + 2)}, 8, 0\ns_add_u32 {sr(UU)}, {sr(UU)}, {sr(T + 2)}')
                a.e(f's_add_u32 {sr(T + 2)}, {sr(T + 4)}, {n}\ns_cmp_lt_i32 {sr(R)}, 0\ns_cselect_b32 {sr(UU)}, {sr(T + 2)}, {sr(UU)}')
                a.e(f's_add_u32 {sr(UU)}, {sr(UU)}, {sr(T + 7)}\ns_mul_i32 {sr(UU)}, {sr(UU)}, {8 * 1280}\ns_add_u32 {sr(UU)}, {sr(UU)}, {sr(BLK)}')
                a.e(f's_cmp_ge_i32 {sr(R)}, 22\ns_cselect_b32 {sr(T + 10 + n)}, {OOB}, {sr(UU)}')
            a.label(ldone)
        for n in range(4):
            a.e(f's_mov_b32 {sr(offs + n)}, {sr(T + 10 + n)}')

    def startup(self):
        import gen1
        a, cfg = self.a, self.cfg
        lskip = a.newlabel('noc')
        a.e(f's_cmp_lg_u32 {sr(S_W)}, 0\ns_cbranch_scc1 {lskip}')
        srd(a, R_B, S_C, 1280)
        a.e(f'v_lshlrev_b32 v9, 2, v0\nbuffer_load_dwordx4 v[64:67], v1, {sr(R_B, 4)}, 0 offen\nbuffer_load_dword v68, v9, {sr(R_B, 4)}, 0 offen offset:1024')
        a.label(lskip)
        self.tok_epoch = a.vmem(f'buffer_load_dwordx2 {vr(V_TAG, 2)}, off, {sr(R_WS, 4)}, 0 sc1')
        for r in range(3):
            a.e(f's_add_u32 m0, {sr(T + 5)}, {r * 512}')
            tx = a.vmem(f'buffer_load_dwordx4 v12, {sr(R_X, 4)}, {sr(T + 2 + (r == 2))} offen offset:{r * 512}{self.nt} lds')
        for n in range(5):
            tt = self.gemv_dma(n, T + 4, 0)
        self.stamp('issued')
        self.roles()
        self.job_tr_bases()
        J, BLK, KB, VALD, PITCH = T + 4, T + 5, T + 6, T + 7, T + 8
        lwn, lj = a.newlabel('jqkv'), a.newlabel('jgo')
        a.e(f's_cmp_lg_u32 {sr(S_W)}, 0\ns_cbranch_scc1 {lwn}')
        srd(a, R_OUT, S_WO, 640 * 1280)
        a.e(f's_cmp_lt_u32 s2, 200\ns_cselect_b32 {sr(VALD)}, 0, {OOB}\ns_cselect_b32 {sr(J)}, s2, 0')
        a.e(f's_mul_i32 {sr(KB)}, {sr(J)}, 205\ns_lshr_b32 {sr(KB)}, {sr(KB)}, 11\ns_mul_i32 {sr(BLK)}, {sr(KB)}, 10\ns_sub_u32 {sr(BLK)}, {sr(J)}, {sr(BLK)}')
        a.e(f's_mov_b32 {sr(PITCH)}, 1280\ns_add_u32 {sr(T + 9)}, {sr(VALD)}, {WS_WO}')
        self.dest_C(29, BLK, KB, 10 if cfg.p2split else None, T + 9, 102400)
        a.e(f's_branch {lj}')
        a.label(lwn)
        srd(a, R_OUT, S_WQKV, 640 * 3840)
        a.e(f's_mul_i32 {sr(J)}, s2, 3\ns_add_u32 {sr(J)}, {sr(J)}, {sr(S_W)}\ns_sub_u32 {sr(J)}, {sr(J)}, 1')
        a.e(f's_cmp_lt_u32 {sr(J)}, 600\ns_cselect_b32 {sr(VALD)}, 0, {OOB}\ns_cselect_b32 {sr(J)}, {sr(J)}, 0')
        a.e(f's_mul_i32 {sr(BLK)}, {sr(J)}, 205\ns_lshr_b32 {sr(BLK)}, {sr(BLK)}, 12\ns_mul_i32 {sr(KB)}, {sr(BLK)}, 20\ns_sub_u32 {sr(KB)}, {sr(J)}, {sr(KB)}')
        a.e(f's_mov_b32 {sr(PITCH)}, 3840\ns_add_u32 {sr(T + 9)}, {sr(VALD)}, {WS_WQ}')
        self.dest_A(29, BLK, KB, T + 9)
        a.label(lj)
        a.e(f's_lshl_b32 {sr(P + 10)}, {sr(PITCH)}, 3\ns_mul_i32 {sr(P + 9)}, {sr(P + 10)}, {sr(KB)}\ns_lshl_b32 {sr(P + 9)}, {sr(P + 9)}, 2')
        a.e(f's_lshl_b32 {sr(T)}, {sr(BLK)}, 7\ns_add_u32 {sr(P + 9)}, {sr(P + 9)}, {sr(T)}\ns_add_u32 {sr(P + 9)}, {sr(P + 9)}, {sr(VALD)}')
        a.e(f'v_mad_u32_u24 v28, v5, {sr(PITCH)}, v4')
        ja = {}

        def job_a_issue():
            a.e(f's_lshl_b32 {sr(T)}, {sr(S_W)}, 12\ns_add_u32 {sr(T)}, {sr(T)}, {L_JA}')
            for n in range(4):
                a.e(f's_add_u32 m0, {sr(T)}, {n * 1024}')
                if n:
                    a.e(f's_add_u32 {sr(P + 9)}, {sr(P + 9)}, {sr(P + 10)}')
                ja['t'] = a.vmem(f'buffer_load_dwordx4 v28, {sr(R_OUT, 4)}, {sr(P + 9)} offen{self.nt} lds')
            srd(a, R_B, S_WPHI, 32 * 800)
            a.e(f's_mul_i32 {sr(T)}, {sr(S_J1)}, 1600\ns_lshl_b32 {sr(T + 1)}, {sr(S_W)}, 9\ns_add_u32 {sr(T)}, {sr(T)}, {sr(T + 1)}')
            a.e(f's_add_u32 m0, {sr(T + 1)}, {L_WPHI}\ns_mov_b32 exec_hi, 0')
            a.vmem(f'buffer_load_dwordx4 v1, {sr(R_B, 4)}, {sr(T)} offen lds')
            a.e('s_mov_b64 exec, -1')
        if cfg.ja_at == 0:
            job_a_issue()
        a.e('v_lshrrev_b32 v9, 4, v0\nv_bfe_u32 v10, v0, 2, 2\nv_lshl_add_u32 v11, v9, 3, v10\nv_lshlrev_b32 v11, 7, v11')
        a.e(f'v_lshrrev_b32 v10, 1, v10\nv_xor_b32 v10, {sr(S_W)}, v10\nv_lshl_add_u32 v11, v10, 5, v11\nv_and_b32 v10, 3, v0\nv_lshl_add_u32 {vr(VGT)}, v10, 3, v11')
        a.e(f's_and_b32 {sr(T)}, {sr(S_I)}, 3\ns_mul_i32 {sr(T)}, {sr(T)}, 320\ns_add_u32 {sr(T)}, {sr(T)}, {L_SILU}\nv_lshlrev_b32 v9, 4, v9\nv_add_u32 {vr(VGB)}, {sr(T)}, v9')
        lj = a.newlabel('nosilu')
        a.e(f's_cmp_lg_u32 {sr(S_W)}, 0\ns_cbranch_scc1 {lj}')
        st = a.state()
        a.wait(vm=self.tok_epoch)
        for n in range(5):
            self.unpack(70 + 2 * n, 71 + 2 * n, 64 + n)
        for op in ('v_mul_f32 {d}, 0xbfb8aa3b, {s}', 'v_exp_f32 {d}, {d}', 'v_add_f32 {d}, 1.0, {d}', 'v_rcp_f32 {d}, {d}', 'v_mul_f32 {d}, {s}, {d}'):
            for n in range(10):
                a.e(op.format(d=vr(80 + n), s=vr(70 + n)))
        for n in range(5):
            a.e(f'v_cvt_pk_bf16_f32 {vr(64 + n)}, {vr(80 + 2 * n)}, {vr(81 + 2 * n)}')
        a.e(f'v_add_u32 v9, {L_SILU}, v1\nv_lshlrev_b32 v10, 2, v0\nv_add_u32 v10, {L_SILU + 1024}, v10')
        a.e('ds_write_b128 v9, v[64:67]\nds_write_b32 v10, v68\ns_waitcnt lgkmcnt(0)')
        a.set_state(st)
        a.label(lj)
        self.make_tag()
        if cfg.ja_at == 1:
            job_a_issue()
        self.jt = {}

        def jdma(r, n):
            a.e(f's_add_u32 m0, {sr(P + 3)}, {r * 4096 + n * 1024}')
            self.jt[r] = a.vmem(f'buffer_load_dwordx4 v{30 + 2 * r}, {sr((R_B, R_C)[r], 4)}, {sr((JB_OFF, JC_OFF)[r] + n)} offen{self.nt} lds')
        self.late = [lambda r=r, n=n: jdma(r, n) for r in range(2) for n in range(4)]
        self.stamp('setup')
        a.c('LayerNorm 1')
        a.e('v_and_b32 v9, 7, v0\nv_xor_b32 v10, v9, v5\nv_lshlrev_b32 v10, 4, v10\nv_lshl_add_u32 v10, v9, 7, v10')
        a.e(f's_mul_i32 {sr(T)}, {sr(S_W)}, 3072\ns_add_u32 {sr(T)}, {sr(T)}, {L_XS}\nv_add_u32 v11, {sr(T)}, v10')
        a.e(f'v_lshlrev_b32 v9, 4, v9\ns_lshl_b32 {sr(T)}, {sr(S_W)}, 2\ns_add_u32 {sr(T)}, {sr(T)}, {L_LNRED}\nv_add_u32 v10, {sr(T)}, v9\nv_add_u32 v9, {L_LNRED}, v9')
        a.e(f's_cmp_lt_u32 {sr(S_W)}, 2\ns_cselect_b32 {sr(T + 2)}, 1.0, 0')
        a.wait(vm=tx)
        self.stamp('xin')
        tk = [a.ds(f'ds_read_b128 {vr(112 + 4 * r, 4)}, v11 offset:{1024 * r}') for r in range(3)]
        X = 128
        for r in range(3):
            a.wait(lg=tk[r])
            for n in range(4):
                self.unpack(X + 8 * r + 2 * n, X + 8 * r + 2 * n + 1, 112 + 4 * r + n)

        def tree(dst, src, n):
            a.e(f'v_pk_add_f32 {vr(dst, 2)}, {vr(src, 2)}, {vr(src + 2, 2)}')
            for k in range(4, n, 2):
                a.e(f'v_pk_add_f32 {vr(dst, 2)}, {vr(dst, 2)}, {vr(src + k, 2)}')

        def all_sum(r, off, pre=None):
            self.sum_rows((r,), (11,), (3, 4, 5))
            a.ds(f'ds_write_b32 v10, {vr(r)} offset:{off}')
            if pre:
                pre()
            a.wait_all(vm=False)
            self.barrier()

        def read_sum(r, off):
            t = a.ds(f'ds_read_b128 v[12:15], v9 offset:{off}')
            a.wait(lg=t)
            a.e(f'v_add_f32 v12, v12, v13\nv_add_f32 v14, v14, v15\nv_add_f32 {vr(r)}, v12, v14\nv_mul_f32 {vr(r)}, 0x3acccccd, {vr(r)}')
        tree(152, X, 12)
        tree(154, X + 12, 12)
        a.e('v_pk_add_f32 v[152:153], v[152:153], v[154:155]\nv_add_f32 v152, v152, v153')
        all_sum(152, 0, pre=lambda: a.wait(vm=tt))
        self.stamp('tilein')
        self.fq.extend(self.gemv_items(0, P, 64))
        self.flush()
        self.stamp('gemv')
        read_sum(152, 0)
        for n in range(12):
            a.e(f'v_pk_add_f32 {vr(X + 2 * n, 2)}, {vr(X + 2 * n, 2)}, v[152:153] op_sel_hi:[1,0] neg_lo:[0,1] neg_hi:[0,1]')
        a.e(f'v_pk_mul_f32 v[154:155], {vr(X, 2)}, {vr(X, 2)}\nv_pk_mul_f32 v[156:157], {vr(X + 16, 2)}, {vr(X + 16, 2)}')
        for n in range(1, 8):
            a.e(f'v_pk_fma_f32 v[154:155], {vr(X + 2 * n, 2)}, {vr(X + 2 * n, 2)}, v[154:155]')
            if n < 4:
                a.e(f'v_pk_fma_f32 v[156:157], {vr(X + 16 + 2 * n, 2)}, {vr(X + 16 + 2 * n, 2)}, v[156:157]')
        a.e(f'v_add_f32 v154, v154, v155\nv_add_f32 v156, v156, v157\nv_fma_f32 v154, v156, {sr(T + 2)}, v154')
        all_sum(154, 128)
        read_sum(154, 128)
        a.e('v_add_f32 v154, 0x3727c5ac, v154\nv_rsq_f32 v154, v154')
        for n in range(12):
            a.e(f'v_pk_mul_f32 {vr(X + 2 * n, 2)}, {vr(X + 2 * n, 2)}, v[154:155] op_sel_hi:[1,0]')
        self.fq.extend(self.job_finish_items(lambda: ja['t'], 6, 0, 29, 44))
        self.flush()
        self.stamp('jobA')
        a.e(f's_mul_i32 {sr(T + 14)}, {sr(S_W)}, 5120\ns_add_u32 {sr(T + 14)}, {sr(T + 14)}, {WS_MOD}\ns_add_u32 {sr(T + 15)}, {sr(T + 14)}, 4096')
        a.e('v_and_b32 v41, 0xf0, v1\nv_lshrrev_b32 v40, 4, v0\nv_lshl_add_u32 v40, v40, 10, v41')
        mod_loads = [(f'buffer_load_dwordx4 {vr(64 + 4 * k, 4)}, v40, {sr(R_WS, 4)}, {sr(T + 14)} offen offset:{256 * k} sc1', -(64 + 4 * k)) for k in range(4)]
        mod_loads += [(f'buffer_load_dwordx4 {vr(80 + 4 * k, 4)}, v41, {sr(R_WS, 4)}, {sr(T + 15)} offen offset:{256 * k} sc1', -(80 + 4 * k)) for k in range(4)]
        self.wg_flag_off(P + 2, 2, 1, None, WS_FW, 3)
        self.gemv_role(20, 40, P + 1, P)
        gm = [lambda n=n: self.jt.__setitem__('g', self.gemv_dma(n, P + 1, L_MT2)) for n in range(5)]
        self.late = gm + self.late if cfg.gm_first else self.late + gm
        a.e(f's_mul_i32 {sr(T + 1)}, {sr(S_W)}, 1280\ns_add_u32 {sr(T + 1)}, {sr(T + 1)}, {L_MODP}')
        a.e(f'v_add_u32 v42, {sr(T + 1)}, v1\nv_add_u32 v43, {sr(T + 1)}, v41')
        a.e(f's_lshl_b32 {sr(T + 2)}, {sr(S_W)}, 8\ns_add_u32 {sr(T + 2)}, {sr(T + 2)}, {L_MODP}\nv_lshlrev_b32 v158, 5, v5\nv_add_u32 v158, {sr(T + 2)}, v158')
        a.e('v_and_b32 v159, 7, v0\nv_lshlrev_b32 v159, 4, v159\nv_lshl_add_u32 v159, v5, 8, v159')
        H0 = P + 4
        a.e(f's_lshr_b32 {sr(H0)}, {sr(S_HB)}, 1\ns_mul_i32 {sr(H0)}, {sr(H0)}, 20480\ns_and_b32 {sr(T)}, {sr(S_HB)}, 1\ns_lshl_b32 {sr(T)}, {sr(T)}, 7')
        a.e(f's_add_u32 {sr(H0)}, {sr(H0)}, {sr(T)}\ns_lshl_b32 {sr(T)}, {sr(S_W)}, 11\ns_add_u32 {sr(H0)}, {sr(H0)}, {sr(T)}')
        a.e(f's_add_u32 {sr(H0)}, {sr(H0)}, {WS_H}\ns_add_u32 {sr(H0 + 1)}, {sr(H0)}, 8192\ns_add_u32 {sr(H0 + 2)}, {sr(H0)}, 16384')
        a.e(f's_cmp_lt_u32 {sr(S_W)}, 2\ns_cselect_b32 {sr(H0 + 2)}, {sr(H0 + 2)}, {OOB}\ns_cselect_b32 {sr(P + 10)}, 0, 1.0\ns_mov_b32 {sr(P + 11)}, {sr(P + 10)}')
        self.wg_flag_off(P + 7, S_HB, 1, None, WS_FH, spare=True)
        a.e(f'v_min_u32 v9, 49, v0\nv_lshlrev_b32 {vr(VFW)}, 5, v9\ns_mov_b32 {sr(P + 8)}, {WS_FW}')
        self.job_bc_setup(0, R_B, 30, 31, JB_OFF)
        self.publish(self.tok_job, P + 2)
        self.stamp('fw')
        tok = self.poll_issue(mod_loads)
        n1 = min(cfg.late1, 9 if cfg.gm_first else 4)
        for _ in range(n1):
            self.late.pop(0)()
        self.job_bc_setup(1, R_C, 32, 33, JC_OFF)
        for _ in range(cfg.late1 - n1):
            self.late.pop(0)()
        self.poll_check(mod_loads, tok)
        self.stamp('mod')
        self.mod_finish(64, 0, P + 10)
        a.ds('ds_write_b128 v42, v[64:67]')
        self.mod_finish(80, 1, P + 10)
        a.ds('ds_write_b128 v43, v[80:83] offset:1024')
        a.wait_all(vm=False)
        self.barrier()
        tk = []
        for r in range(3):
            a.ds(f'ds_read_b128 {vr(64 + 16 * r, 4)}, v158 offset:{1024 * r + 2560}')
            a.ds(f'ds_read_b128 {vr(68 + 16 * r, 4)}, v158 offset:{1024 * r + 2576}')
            a.ds(f'ds_read_b128 {vr(72 + 16 * r, 4)}, v158 offset:{1024 * r}')
            tk.append(a.ds(f'ds_read_b128 {vr(76 + 16 * r, 4)}, v158 offset:{1024 * r + 16}'))
        for r in range(3):
            a.wait(lg=tk[r])
            for n in range(4):
                x, s, b = X + 8 * r + 2 * n, 64 + 16 * r + 2 * n, 72 + 16 * r + 2 * n
                a.e(f'v_pk_fma_f32 {vr(x, 2)}, {vr(x, 2)}, {vr(s, 2)}, {vr(b, 2)}')
            for n in range(4):
                a.e(f'v_cvt_pk_bf16_f32 {vr(112 + 4 * r + n)}, {vr(X + 8 * r + 2 * n)}, {vr(X + 8 * r + 2 * n + 1)}')
            self.tok_h = a.vmem(f'buffer_store_dwordx4 {vr(112 + 4 * r, 4)}, v159, {sr(R_WS, 4)}, {sr(H0 + r)} offen{self.sc("h")}')
        self.stamp('hst')
        fw_loads = [(f'buffer_load_dwordx4 v[44:47], {vr(VFW)}, {sr(R_WS, 4)}, {sr(P + 8)} offen sc1', (44, 46)),
                    (f'buffer_load_dwordx4 v[40:43], {vr(VFW)}, {sr(R_WS, 4)}, {sr(P + 8)} offen offset:16 sc1', (40, 42))]
        self.fw = (fw_loads, self.poll_issue(fw_loads))
        for _ in range(cfg.late2):
            self.late.pop(0)()
        gen1.addresses(self)


    def finish(self):
        a, cfg = self.a, self.cfg
        if cfg.diag:
            self.stamp('end')
            self.wave_flag_off(T, 2, 1, None, WS_DBG, 8)
            a.e('v_lshlrev_b32 v9, 2, v0')
            a.vmem(f'buffer_store_dword {vr(V_STAMP)}, v9, {sr(R_WS, 4)}, {sr(T)} offen')
        if cfg.probe:
            a.wait_all()
            self.stamp('end')
            a.e(f's_add_u32 {sr(S_STAMP + 2)}, {sr(S_STAMP + 2)}, 7000')
            a.label('L_probe')
            a.e(f's_memrealtime {sr(T, 2)}\ns_waitcnt lgkmcnt(0)\ns_sub_u32 {sr(T)}, {sr(T)}, {sr(S_STAMP + 2)}\ns_cmp_lt_i32 {sr(T)}, 0\ns_cbranch_scc1 L_probe')
        a.label('L_end')
        a.e('s_endpgm')

    def advance_epoch(self):
        a = self.a
        a.e(f's_lshl_b32 {sr(T + 15)}, s2, 2\ns_add_u32 {sr(T + 15)}, {sr(T + 15)}, {sr(S_W)}\ns_cmp_eq_u32 {sr(T + 15)}, 0\ns_cselect_b32 {sr(T + 15)}, {WS_EPOCH}, {OOB}')
        self.flag(T + 15)

    def build(self):
        import gen1
        import gen2
        cfg = self.cfg
        self.prologue()
        self.startup()
        ring = gen2.Ring(self)
        for name, fn in (('phase1', gen1.phase1), ('phase2', gen2.phase2), ('phase34', gen2.phase34)):
            if cfg.stop == 'startup':
                break
            fn(self, ring)
            if cfg.stop == name:
                break
        if cfg.stop or cfg.diag:
            self.a.wait_all()
        self.finish()
        body = pad_hazards(self.a.lines)
        if cfg.align:
            body = align_runs(body)
        head = open(f'cdna_kernels/{NAME}.s.ref').read().split('\n')
        out = []
        for l in head:
            if l.startswith('; @launch'):
                out.append('; @launch grid=(256,1,1) block=(256,1,1) lds=163840')
            else:
                out.append(l)
            if l.startswith(NAME + '_kernel:'):
                break
        out += body
        out += ['.section .rodata,"a"', '.p2align 6', f'.amdhsa_kernel {NAME}_kernel',
                '  .amdhsa_next_free_vgpr 512', '  .amdhsa_next_free_sgpr 102', '  .amdhsa_accum_offset 256',
                '  .amdhsa_group_segment_fixed_size 0', '  .amdhsa_kernarg_size 104', '  .amdhsa_user_sgpr_count 2',
                '  .amdhsa_user_sgpr_kernarg_segment_ptr 1', '  .amdhsa_system_sgpr_workgroup_id_x 1',
                '  .amdhsa_float_denorm_mode_32 3', '.end_amdhsa_kernel', '']
        return '\n'.join(out)


def main():
    cfg = Cfg()
    path = None
    for arg in sys.argv[1:]:
        if '=' in arg:
            k, v = arg.split('=')
            old = getattr(Cfg, k)
            setattr(cfg, k, (v == '1') if isinstance(old, bool) else int(v) if isinstance(old, int) else v)
        else:
            path = arg
    g = Gen(cfg)
    text = g.build()
    open(path, 'w').write(text)
    open(path + '.stamps', 'w').write('\n'.join(g.stamps))
    print('wrote', path, len(text), 'bytes,', text.count('\n'), 'lines')


if __name__ == '__main__':
    import gen
    gen.main()
```
